```python
import torch

def _softmax(x, axis=-1):
    return torch.softmax(x, dim=axis)
def _gelu(x):
    return torch.nn.functional.gelu(x, approximate="tanh")
def _silu(x):
    return torch.nn.functional.silu(x)
def _sigmoid(x):
    return torch.sigmoid(x)
def _layernorm(x, axis=-1, eps=1e-5):
    m = x.mean(dim=axis, keepdim=True)
    v = x.var(dim=axis, keepdim=True, unbiased=False)
    return (x - m) / torch.sqrt(v + eps)
def _scatter_add(tgt, idx, src, axis=0):
    return tgt.clone().index_add_(axis, idx, src)
def _segment_sum(src, seg, n):
    out = torch.zeros((n,) + src.shape[1:], dtype=src.dtype)
    return out.index_add_(0, seg, src)
def _pad(x, pw):
    flat = tuple(v for pair in reversed(pw) for v in pair)
    return torch.nn.functional.pad(x, flat)

kernel_name = 'interleave_layers__mha_block__dense_activation_silu__prompt'

def setup_inputs():

    _w = (lambda a: (lambda t: t.to(torch.bfloat16) if t.is_floating_point() else t)(torch.as_tensor(a)))
    def _A_setup():
        B, S, D, H = 1, 2048, 640, 32
        return {
            "x": _w((lambda *s: torch.randn(*s, dtype=torch.bfloat16) * 0.05)(B, S, D)),
            "wqkv": _w((lambda *s: torch.randn(*s, dtype=torch.bfloat16) * 0.05)(D, 3 * D)),
            "wo": _w((lambda *s: torch.randn(*s, dtype=torch.bfloat16) * 0.05)(D, D)),
        }
    _A_in = _A_setup()

    def _B_setup():
        B, S, D, F = 1, 2048, 640, 1728
        return {
            "x": _w((lambda *s: torch.randn(*s, dtype=torch.bfloat16) * 0.05)(B, S, D)),
            "w1": _w((lambda *s: torch.randn(*s, dtype=torch.bfloat16) * 0.8)(D, F) * (D ** -0.5)),
            "w2": _w((lambda *s: torch.randn(*s, dtype=torch.bfloat16) * 0.8)(F, D) * (F ** -0.5)),
        }
    _B_in = _B_setup()

    return {
        "A_x": _A_in["x"],
        "A_wqkv": _A_in["wqkv"],
        "A_wo": _A_in["wo"],
        "B_x": _B_in["x"],
        "B_w1": _B_in["w1"],
        "B_w2": _B_in["w2"],
    }

def reference(A_x, A_wqkv, A_wo, B_x, B_w1, B_w2):
    def _A_ref(x, wqkv, wo):
        B, S, D = x.shape
        H = 32
        Dh = D // H
        qkv = (lambda x, *d: x.permute(*d))((x @ wqkv).reshape(B, S, 3, H, Dh), 2, 0, 3, 1, 4)
        q, k, v = qkv[0], qkv[1], qkv[2]
        scores = torch.einsum("bhqd,bhkd->bhqk", q, k) * (Dh ** -0.5)
        p = _softmax(scores, axis=-1)
        o = torch.einsum("bhqk,bhkd->bhqd", p, v)
        return (lambda x, *d: x.permute(*d))(o, 0, 2, 1, 3).reshape(B, S, D) @ wo

    def _B_ref(x, w1, w2):
        h = torch.einsum("bsd,df->bsf", x, w1)
        h = _silu(h)
        out = torch.einsum("bsf,fd->bsd", h, w2)
        return out

    x = A_x
    x = x + _A_ref(_layernorm(x, axis=-1), A_wqkv, A_wo)
    x = x + _B_ref(_layernorm(x, axis=-1), B_w1, B_w2)
    x = x + _A_ref(_layernorm(x, axis=-1), A_wqkv, A_wo)
    x = x + _B_ref(_layernorm(x, axis=-1), B_w1, B_w2)
    return x
```

```python
import re

class Asm:
    def __init__(self):
        self.lines = []
        self._lab = 0
    def __call__(self, text):
        for l in text.split("\n"):
            l = l.strip()
            if l:
                self.lines.append(l)
    def label(self, name):
        self.lines.append(name + ":")
    def newlabel(self, base):
        self._lab += 1
        return f"L_{base}_{self._lab}"
    def text(self):
        out = []
        for l in self.lines:
            if l.endswith(":") or l.startswith("."):
                out.append(l)
            else:
                out.append("    " + l)
        return "\n".join(out) + "\n"

def v(i, n=1):
    return f"v{i}" if n == 1 else f"v[{i}:{i+n-1}]"
def s(i, n=1):
    return f"s{i}" if n == 1 else f"s[{i}:{i+n-1}]"
def a(i, n=1):
    return f"a{i}" if n == 1 else f"a[{i}:{i+n-1}]"

class Regs:
    def __init__(self, start, limit, kind):
        self.next = start; self.limit = limit; self.kind = kind; self.names = {}
    def alloc(self, name, n=1, align=1):
        self.next = (self.next + align - 1) // align * align
        r = self.next
        self.next += n
        assert self.next <= self.limit, f"out of {self.kind} regs at {name}"
        self.names[name] = (r, n)
        return r

_REG = re.compile(r"^(-?\|?|abs\()?([vsa])(\d+)\)?\|?$")
_RNG = re.compile(r"^-?([vsa])\[(\d+):(\d+)\]$")
def regs_of(op):
    op = op.strip()
    m = _RNG.match(op)
    if m:
        return {(m.group(1), i) for i in range(int(m.group(2)), int(m.group(3)) + 1)}
    m = _REG.match(op)
    if m:
        return {(m.group(2), int(m.group(3)))}
    if op in ("vcc", "vcc_lo", "vcc_hi"):
        return {("s", 106), ("s", 107)}
    if op in ("exec", "exec_lo", "exec_hi"):
        return {("x", 0)}
    if op == "m0":
        return {("m", 0)}
    return set()

TRANS = ("v_exp_", "v_log_", "v_rcp_", "v_rsq_", "v_sqrt_", "v_sin_", "v_cos_")
NO_DST_SALU = ("s_cmp", "s_waitcnt", "s_barrier", "s_branch", "s_nop", "s_cbranch", "s_bitcmp", "s_setprio",
               "s_endpgm", "s_sleep", "s_setreg", "s_sendmsg", "s_inst", "s_set_gpr")

class Ins:
    __slots__ = ("text", "op", "kind", "defs", "uses", "passes", "A", "B", "C", "trans", "dpp", "perm", "rdlane",
                 "wide_store", "ldsdma", "nops", "sdefs", "suses", "target", "isbranch", "uncond", "label", "storedata", "mask")
    def __init__(self, text):
        self.text = text
        self.label = None
        if text.endswith(":"):
            self.label = text[:-1]; self.kind = "label"; self.op = ""; self.defs = set(); self.uses = set(); self.isbranch = False
            self.uncond = False; self.target = None; self.nops = 0
            return
        t = text.split(";")[0].strip()
        parts = t.split(None, 1)
        op = parts[0]; self.op = op
        rest = parts[1] if len(parts) > 1 else ""
        ops = []; depth = 0; cur = ""
        for ch in rest:
            if ch == "[": depth += 1
            if ch == "]": depth -= 1
            if ch == "," and depth == 0:
                ops.append(cur.strip()); cur = ""
            else:
                cur += ch
        if cur.strip(): ops.append(cur.strip())
        mods = ""
        if ops:
            lastparts = ops[-1].split()
            ops[-1] = lastparts[0]
            mods = " ".join(lastparts[1:])
        self.defs = set(); self.uses = set(); self.passes = 0
        self.A = self.B = self.C = set()
        self.trans = False; self.dpp = False; self.perm = False; self.rdlane = False
        self.wide_store = False; self.ldsdma = False; self.nops = 1
        self.target = None; self.isbranch = False; self.uncond = False; self.storedata = set(); self.mask = set()
        R = [regs_of(o) for o in ops]
        if op.startswith("."):
            self.kind = "dir"; self.nops = 0
        elif op.startswith("v_mfma"):
            self.kind = "mfma"
            self.defs = set(R[0]); self.A = R[1]; self.B = R[2]; self.C = R[3] if len(R) > 3 else set()
            self.uses = self.A | self.B | self.C
            if "32x32x16" in op or "32x32x8" in op: self.passes = 8
            elif "16x16x32" in op or "16x16x16" in op: self.passes = 4
            else: raise ValueError("unknown mfma " + op)
        elif op.startswith("v_"):
            self.kind = "valu"
            self.trans = op.startswith(TRANS)
            self.dpp = ("row_" in mods or "quad_perm" in mods or "wave_" in mods or "row_" in rest) and "dpp" in op
            if op.startswith("v_permlane"):
                self.perm = True
                self.defs = R[0] | R[1]; self.uses = R[0] | R[1]
            elif op.startswith("v_cmp"):
                self.defs = set(R[0]); self.uses = set().union(*R[1:])
            elif op.startswith("v_readfirstlane") or op.startswith("v_readlane"):
                self.rdlane = True
                self.defs = set(R[0]); self.uses = set().union(*R[1:])
            elif op.startswith(("v_add_co", "v_sub_co", "v_addc_co", "v_subb_co")):
                self.defs = R[0] | R[1]; self.uses = set().union(*R[2:])
            else:
                self.defs = set(R[0]); self.uses = set().union(*R[1:]) if len(R) > 1 else set()
                if op.startswith(("v_fmac", "v_dot2c", "v_mac", "v_pk_fmac", "v_writelane", "v_accvgpr_write")) or "UNUSED_PRESERVE" in mods:
                    if not op.startswith("v_accvgpr_write"): self.uses |= R[0]
                if op.startswith("v_cndmask") and len(R) > 3:
                    self.mask = set(R[3])
        elif op.startswith(("buffer_", "global_")):
            self.kind = "vmem"
            islds = bool(re.search(r"\blds\b", mods)) or op.startswith("global_load_lds")
            if "load" in op:
                if islds:
                    self.ldsdma = True
                    self.uses = set().union(*R)
                    self.uses |= {("m", 0)}
                else:
                    self.defs = set(R[0]); self.uses = set().union(*R[1:])
            elif "store" in op:
                if op.startswith("buffer_"):
                    self.storedata = set(R[0])
                else:
                    self.storedata = set(R[1])
                self.uses = set().union(*R)
                self.wide_store = op.endswith(("x3", "x4"))
            elif "atomic" in op:
                self.uses = set().union(*R)
                if "sc0" in mods: self.defs = set(R[0])
            elif op.startswith(("buffer_wbl2", "buffer_inv")):
                pass
            else:
                raise ValueError("unknown vmem " + op)
        elif op.startswith("ds_"):
            self.kind = "ds"
            if op.startswith(("ds_read", "ds_bpermute", "ds_permute", "ds_swizzle")):
                self.defs = set(R[0]); self.uses = set().union(*R[1:])
            else:
                self.uses = set().union(*R)
        elif op.startswith("s_"):
            self.kind = "salu"
            if op == "s_nop":
                self.nops = int(ops[0], 0) + 1
            if op.startswith(("s_cbranch", "s_branch")):
                self.isbranch = True; self.target = ops[0]; self.uncond = op == "s_branch"
            elif op == "s_endpgm":
                self.isbranch = True; self.uncond = True; self.target = None
            elif op.startswith(("s_load", "s_memtime", "s_memrealtime", "s_getreg", "s_getpc")):
                self.defs = set(R[0]); self.uses = set().union(*R[1:]) if len(R) > 1 else set()
            elif op.startswith(NO_DST_SALU):
                self.uses = set().union(*R) if R else set()
            else:
                self.defs = set(R[0]); self.uses = set().union(*R[1:]) if len(R) > 1 else set()
        else:
            raise ValueError("unknown instruction: " + text)

def vregs(S): return {r for r in S if r[0] in "va"}
def sregs(S): return {r for r in S if r[0] == "s"}

def required(p, c):
    n = 0
    if p.kind == "valu":
        pv = vregs(p.defs); ps = sregs(p.defs)
        if c.kind == "mfma" and pv & c.uses: n = max(n, 2)
        if c.kind == "valu":
            if c.rdlane and pv & c.uses: n = max(n, 1)
            if c.perm and pv & c.uses: n = max(n, 2)
            if c.dpp and pv & c.uses: n = max(n, 2)
            if p.trans and not c.trans and pv & c.uses: n = max(n, 1)
            if ps & (sregs(c.uses)): n = max(n, 2)
        if c.kind in ("vmem",) and ps & c.uses: n = max(n, 5)
        if c.kind in ("vmem", "ds") and p.trans and pv & c.uses: n = max(n, 1)
        if c.kind == "salu" and ps & c.uses: n = max(n, 2)
    if p.kind == "mfma":
        D = p.defs
        big = {8: 12, 4: 8}[p.passes]
        if c.kind == "mfma":
            if D & c.C:
                if c.C == D and c.passes == p.passes: pass
                else: n = max(n, {8: 10, 4: 6}[p.passes])
            if D & (c.A | c.B): n = max(n, big)
            if (D & c.defs) and not (c.C == D and c.defs == D):
                n = max(n, {8: 10, 4: 6}[p.passes])
        elif c.kind == "valu":
            if D & (c.uses | c.defs): n = max(n, big)
            if p.C & c.defs: n = max(n, {8: 7, 4: 3}[p.passes])
        elif c.kind in ("vmem", "ds"):
            if D & (c.uses | c.defs): n = max(n, big)
    if p.kind == "salu":
        if ("m", 0) in p.defs and c.kind == "vmem" and c.ldsdma: n = max(n, 1)
    if p.kind == "vmem" and p.wide_store:
        if c.kind == "valu" and p.storedata & c.defs: n = max(n, 2)
        elif c.kind in ("vmem", "ds") and p.storedata & c.defs: n = max(n, 1)
    return n

def hazard_pass(lines, verbose=False, maxwin=14):
    total_inserted = 0
    for _iter in range(2000):
        ins = [Ins(l) for l in lines]
        labels = {x.label: i for i, x in enumerate(ins) if x.label}
        preds = [[] for _ in ins]
        for i, x in enumerate(ins):
            if i + 1 < len(ins) and not (x.kind != "label" and x.kind != "dir" and x.isbranch and x.uncond):
                preds[i + 1].append(i)
            if x.kind not in ("label", "dir") and x.isbranch and x.target is not None:
                if x.target in labels:
                    preds[labels[x.target]].append(i)
        inserts = {}
        for i, c in enumerate(ins):
            if c.kind in ("label", "dir"): continue
            need = 0; who = None
            stack = [(p, 0) for p in preds[i]]
            seen = {}
            while stack:
                j, dist = stack.pop()
                if dist >= maxwin: continue
                if seen.get(j, 99) <= dist: continue
                seen[j] = dist
                p = ins[j]
                if p.kind not in ("label", "dir"):
                    r = required(p, c)
                    if r - dist > need:
                        need = r - dist; who = p
                    nd = dist + p.nops
                else:
                    nd = dist
                for q in preds[j]: stack.append((q, nd))
            if need > 0:
                inserts[i] = (need, who)
        if not inserts:
            return lines, total_inserted
        new = []
        last = -10**9
        for i, l in enumerate(lines):
            if i in inserts and i - last > maxwin:
                last = i
                need, who = inserts[i]
                if verbose: print(f"hazard: +{need} before '{l}' after '{who.text}'")
                total_inserted += need
                k = need
                while k > 0:
                    m = min(k, 16)
                    new.append(f"s_nop {m-1}")
                    k -= m
            new.append(l)
        lines = new
    raise RuntimeError("hazard pass did not converge")
```

```python
import sys
from asmlib import *
from layout import *
import k_prep

HEADER = open('interleave_layers__mha_block__dense_activation_silu__prompt.s.ref').read().split("; Override launch")[0]

def assemble(kernels, launches):
    out = HEADER
    for (name, grid, block, lds) in launches:
        out += f"; @launch kernel={name} grid=({grid},1,1) block=({block},1,1) lds={lds}\n"
    out += '.amdgcn_target "amdgcn-amd-amdhsa--gfx950"\n.text\n'
    tot = 0
    for (A, descs) in kernels:
        lines, n = hazard_pass(A.lines)
        tot += n
        A.lines = lines
        out += A.text()
        out += descs
    return out, tot
```

```python
from asmlib import *
from layout import *
from k_prep import srd, descriptor, entry
import struct
def f2u(x): return struct.unpack("<I", struct.pack("<f", x))[0]

S_Q=8; S_K=12; S_V=16; S_O=20
S_HEAD=24; S_QB=25; S_WAVE=26; S_QG=27; S_KH=28; S_KOFF=29; S_VOFF=30; S_CNT=31
S_T0=32; S_T1=33; S_T2=34; S_FLAG=35; S_K0=36; S_TT0=37
S_VMASK=40
S_LO=42
V_LANE=1; V_H=2; V_T=3
V_AK0=4; V_AK1=5; V_AV=6; V_AO=7
V_TMP=10
V_Q=16; V_O=48; V_S=112; V_P=144; V_K=152; V_V=168; V_M=184; V_X=188; V_J=200
LDS_BYTES = 32768

def Q0(q): return V_Q + 8*q
def Q1(q): return V_Q + 8*q + 4
def O(q): return V_O + 16*q
def S(b): return V_S + 16*b
def K0(p): return V_K + 8*p
def K1(p): return V_K + 8*p + 4
def V0(p): return V_V + 8*p
def V1(p): return V_V + 8*p + 4

def mf(d, a_, b_, c):
    cs = v(c,16) if c is not None else "0"
    return f"v_mfma_f32_32x32x16_bf16 {v(d,16)}, {v(a_,4)}, {v(b_,4)}, {cs}"

def load_k(A, p):
    A(f"buffer_load_dwordx4 {v(K0(p),4)}, v{V_AK0}, s[{S_K}:{S_K+3}], s{S_KOFF} offen")
    A(f"buffer_load_dwordx2 {v(K1(p),2)}, v{V_AK1}, s[{S_K}:{S_K+3}], s{S_KOFF} offen")
    A(f"s_add_u32 s{S_KOFF}, s{S_KOFF}, 1280")
def load_v(A, p):
    A(f"s_mov_b64 exec, s[{S_VMASK}:{S_VMASK+1}]")
    A(f"buffer_load_dwordx4 {v(V0(p),4)}, v{V_AV}, s[{S_V}:{S_V+3}], s{S_VOFF} offen")
    A(f"buffer_load_dwordx4 {v(V1(p),4)}, v{V_AV}, s[{S_V}:{S_V+3}], s{S_VOFF} offen offset:640")
    A(f"s_mov_b64 exec, -1")
    A(f"s_add_u32 s{S_VOFF}, s{S_VOFF}, 1280")

def period(A, p, q):
    b = q & 1
    s_ = S(b); sn = S(b ^ 1)
    qn = (q + 1) & 3; kp = p if q < 3 else p ^ 1
    qp = (q - 1) & 3; vp = p if q > 0 else p ^ 1
    e = lambda r: A(f"v_exp_f32 v{s_+r}, v{s_+r}")
    c = lambda k: A(f"v_cvt_pk_bf16_f32 v{V_P+k}, v{s_+2*k}, v{s_+2*k+1}")
    if q == 3: A("s_waitcnt vmcnt(2)")
    A(mf(sn, K0(kp), Q0(qn), None))
    e(0); e(1); e(2); e(3); c(0)
    A(mf(sn, K1(kp), Q1(qn), sn))
    e(4); e(5); c(1)
    if q == 3: load_k(A, p)
    if q == 1: load_v(A, p ^ 1)
    e(6); e(7); c(2)
    A(mf(O(qp), V1(vp), V_P+4, O(qp)))
    e(8); e(9); c(3); e(10); e(11); c(4)
    if q == 0: A("s_waitcnt vmcnt(2)")
    A(mf(O(q), V0(p), V_P, O(q)))
    e(12); e(13); c(5); e(14); e(15); c(6); c(7)

def rowmax(A, dst, src):
    A(f"v_max3_f32 v{dst}, v{src}, v{src+1}, v{src+2}")
    for r in range(3, 15, 2):
        A(f"v_max3_f32 v{dst}, v{dst}, v{src+r}, v{src+r+1}")
    A(f"v_max_f32 v{dst}, v{dst}, v{src+15}")
    A(f"v_mov_b32 v{V_TMP}, v{dst}")
    A(f"v_permlane32_swap_b32 v{dst}, v{V_TMP}")
    A(f"v_max_f32 v{dst}, v{dst}, v{V_TMP}")

def reset_ptrs(A):
    A(f"s_mov_b32 s{S_KOFF}, s{S_K0}")
    A(f"s_mov_b32 s{S_VOFF}, s{S_K0}")

def gen_attn(prefetch=True):
    A = Asm(); descs = ""; names = []
    COMMON = "L_attn_common"; END = "L_attn_end"
    name = "attn_kernel"
    names.append(name)
    entry(A, name)
    descs += descriptor(name, 224, 64)
    A(f"""
    s_load_dwordx2 s[4:5], s[0:1], {KA_WS}
    s_cmp_ge_u32 s2, 256
    s_cbranch_scc1 {END}
    s_and_b32 s{S_HEAD}, s2, 31
    s_lshr_b32 s{S_QB}, s2, 5
    v_lshrrev_b32 v{V_TMP}, 6, v0
    v_and_b32 v{V_LANE}, 63, v0
    v_readfirstlane_b32 s{S_WAVE}, v{V_TMP}
    v_lshrrev_b32 v{V_H}, 5, v{V_LANE}
    v_and_b32 v{V_T}, 31, v{V_LANE}
    s_mov_b32 s{S_VMASK}, 0x000fffff
    s_mov_b32 s{S_VMASK+1}, 0x000fffff
    s_mov_b32 s{S_LO}, -1
    s_mov_b32 s{S_LO+1}, 0
    s_and_b32 s{S_QG}, s{S_WAVE}, 1
    s_lshr_b32 s{S_KH}, s{S_WAVE}, 1
    s_lshl_b32 s{S_T0}, s{S_HEAD}, 6
    s_lshl_b32 s{S_T1}, s{S_KH}, 5
    s_add_u32 s{S_T1}, s{S_T1}, s{S_T0}
    s_mul_i32 s{S_K0}, s{S_T1}, 1280
    s_lshl_b32 s{S_TT0}, s{S_QB}, 3
    s_lshl_b32 s{S_T2}, s{S_QG}, 2
    s_add_u32 s{S_TT0}, s{S_TT0}, s{S_T2}
    s_add_u32 s{S_T0}, s{S_T0}, s{S_TT0}
    s_mul_i32 s{S_T0}, s{S_T0}, 1280
    v_lshlrev_b32 v{V_AK0}, 4, v{V_LANE}
    v_lshlrev_b32 v{V_AK1}, 3, v{V_T}
    v_add_u32 v{V_AK1}, 1024, v{V_AK1}
    v_mul_u32_u24 v{V_AV}, 20, v{V_H}
    v_add_u32 v{V_AV}, v{V_AV}, v{V_T}
    v_lshlrev_b32 v{V_AV}, 4, v{V_AV}
    s_mov_b32 s{S_FLAG}, 0
    s_waitcnt lgkmcnt(0)
    """)
    srd(A, S_Q, 4, QF, XSZ); srd(A, S_K, 4, KF, XSZ); srd(A, S_V, 4, VF, XSZ); srd(A, S_O, 4, OF, XSZ)
    for q in range(4):
        for r in range(4): A(f"v_mov_b32 v{Q1(q)+r}, 0")
    for q in range(4):
        A(f"buffer_load_dwordx4 {v(Q0(q),4)}, v{V_AK0}, s[{S_Q}:{S_Q+3}], s{S_T0} offen offset:{0}" if q == 0 else
          f"buffer_load_dwordx4 {v(Q0(q),4)}, v{V_AK0}, s[{S_Q}:{S_Q+3}], s{S_T0} offen offset:{1280*q}")
    A(f"s_mov_b64 exec, s[{S_LO}:{S_LO+1}]")
    for q in range(4):
        A(f"buffer_load_dwordx2 {v(Q1(q),2)}, v{V_AK1}, s[{S_Q}:{S_Q+3}], s{S_T0} offen" + (f" offset:{1280*q}" if q else ""))
    A("s_mov_b64 exec, -1")
    for p in range(2):
        A(f"v_mov_b32 v{K1(p)+2}, 0x3f803f80")
        A(f"v_mov_b32 v{K1(p)+3}, 0x00003f80")
        for r in range(8): A(f"v_mov_b32 v{V0(p)+r}, 0x3f803f80")
    reset_ptrs(A)
    load_k(A, 0)
    if prefetch:
        A(f"""
        s_lshl_b32 s{S_T0}, s{S_HEAD}, 6
        s_mul_i32 s{S_T0}, s{S_T0}, 1280
        s_mul_i32 s{S_T1}, s{S_QB}, 10240
        s_add_u32 s{S_T0}, s{S_T0}, s{S_T1}
        v_lshlrev_b32 v{V_TMP}, 4, v0
        v_add_u32 v{V_TMP}, s{S_T0}, v{V_TMP}
        s_movk_i32 s{S_T1}, 4096
        s_movk_i32 s{S_T2}, 8192
        """)
        for j,so in enumerate(("0", f"s{S_T1}", f"s{S_T2}")):
            A(f"buffer_load_dwordx4 {v(V_J+8*j,4)}, v{V_TMP}, s[{S_K}:{S_K+3}], {so} offen")
            A(f"buffer_load_dwordx4 {v(V_J+8*j+4,4)}, v{V_TMP}, s[{S_V}:{S_V+3}], {so} offen")
    npf = 6 if prefetch else 0
    A(f"s_waitcnt vmcnt({npf})")
    for q in range(4):
        A(mf(O(q), K0(0), Q0(q), None))
        A(mf(O(q), K1(0), Q1(q), O(q)))
    for q in range(4):
        rowmax(A, V_M+q, O(q))
    SETUP = "L_attn_setup"; LOOP = "L_attn_loop"; TRUEMAX = "L_attn_truemax"; COMBINE = "L_attn_combine"
    A.label(SETUP)
    reset_ptrs(A)
    load_k(A, 0); load_v(A, 0); load_k(A, 1)
    A(f"s_mov_b64 exec, s[{S_LO}:{S_LO+1}]")
    for q in range(4):
        m = V_M + q
        A(f"""
        v_sub_f32 v{V_TMP}, 0, v{m}
        v_and_b32 v{V_TMP+1}, 0xffff0000, v{V_TMP}
        v_sub_f32 v{V_TMP}, v{V_TMP}, v{V_TMP+1}
        v_and_b32 v{V_TMP+2}, 0xffff0000, v{V_TMP}
        v_sub_f32 v{V_TMP}, v{V_TMP}, v{V_TMP+2}
        v_lshrrev_b32 v{V_TMP+1}, 16, v{V_TMP+1}
        v_or_b32 v{Q1(q)+2}, v{V_TMP+1}, v{V_TMP+2}
        v_lshrrev_b32 v{Q1(q)+3}, 16, v{V_TMP}
        """)
    A("s_mov_b64 exec, -1")
    for r in range(64): A(f"v_mov_b32 v{V_O+r}, 0")
    for r in range(8): A(f"v_mov_b32 v{V_P+r}, 0")
    A(f"s_mov_b64 exec, s[{S_VMASK}:{S_VMASK+1}]")
    for r in range(4): A(f"v_mov_b32 v{V1(1)+r}, 0")
    A("s_mov_b64 exec, -1")
    A("s_waitcnt vmcnt(4)")
    A(mf(S(0), K0(0), Q0(0), None))
    A(mf(S(0), K1(0), Q1(0), S(0)))
    A(f"s_mov_b32 s{S_CNT}, 16")
    A("s_nop 7")
    A(".p2align 6")
    A.label(LOOP)
    for p in range(2):
        for q in range(4):
            period(A, p, q)
    A(f"s_sub_u32 s{S_CNT}, s{S_CNT}, 1")
    A(f"s_cmp_lg_u32 s{S_CNT}, 0")
    A(f"s_cbranch_scc1 {LOOP}")
    A(mf(O(3), V1(1), V_P+4, O(3)))
    A("s_waitcnt vmcnt(0)")
    A(f"s_cmp_lg_u32 s{S_FLAG}, 0")
    A(f"s_cbranch_scc1 {COMBINE}")
    A(f"v_mov_b32 v{V_TMP}, 0")
    for q in range(4):
        for r in range(0, 12, 2):
            A(f"v_max3_f32 v{V_TMP}, v{V_TMP}, |v{O(q)+r}|, |v{O(q)+r+1}|")
    A(f"""
    v_add_f32 v{V_TMP+2}, v{O(0)+12}, v{O(1)+12}
    v_add_f32 v{V_TMP+3}, v{O(2)+12}, v{O(3)+12}
    v_add_f32 v{V_TMP+2}, v{V_TMP+2}, v{V_TMP+3}
    s_mov_b32 s{S_T0}, {hex(f2u(2.0**40))}
    s_mov_b32 s{S_T1}, {hex(f2u(2.0**120))}
    v_cmp_gt_f32 vcc, s{S_T0}, v{V_TMP+2}
    v_cmp_gt_f32 s[{S_T2+10}:{S_T2+11}], s{S_T1}, v{V_TMP}
    s_and_b64 vcc, vcc, s[{S_T2+10}:{S_T2+11}]
    s_cmp_eq_u64 vcc, exec
    s_cbranch_scc1 {COMBINE}
    """)
    A.label(TRUEMAX)
    A(f"s_mov_b32 s{S_FLAG}, 1")
    A(f"s_mov_b64 exec, s[{S_LO}:{S_LO+1}]")
    for q in range(4):
        A(f"v_mov_b32 v{Q1(q)+2}, 0")
        A(f"v_mov_b32 v{Q1(q)+3}, 0")

    A("s_mov_b64 exec, -1")
    for q in range(4): A(f"v_mov_b32 v{V_X+q}, 0xff800000")
    reset_ptrs(A)
    A(f"s_mov_b32 s{S_CNT}, 32")
    TL = "L_attn_tm_loop"
    A.label(TL)
    load_k(A, 0)
    A("s_waitcnt vmcnt(0)")
    for q in range(4):
        A(mf(O(q), K0(0), Q0(q), None))
        A(mf(O(q), K1(0), Q1(q), O(q)))
    for q in range(4):
        rowmax(A, V_M+q, O(q))
        A(f"v_max_f32 v{V_X+q}, v{V_X+q}, v{V_M+q}")
    A(f"s_sub_u32 s{S_CNT}, s{S_CNT}, 1")
    A(f"s_cmp_lg_u32 s{S_CNT}, 0")
    A(f"s_cbranch_scc1 {TL}")
    for q in range(4): A(f"v_mov_b32 v{V_M+q}, v{V_X+q}")
    A(f"s_branch {SETUP}")
    A.label(COMBINE)
    for q in range(4): A(f"v_mov_b32 v{O(q)+13}, v{V_M+q}")
    A(f"""
    s_lshl_b32 s{S_T0}, s{S_WAVE}, 13
    v_lshlrev_b32 v{V_TMP}, 4, v{V_LANE}
    v_add_u32 v{V_TMP+1}, s{S_T0}, v{V_TMP}
    s_xor_b32 s{S_T1}, s{S_WAVE}, 2
    s_lshl_b32 s{S_T1}, s{S_T1}, 13
    v_add_u32 v{V_TMP+2}, s{S_T1}, v{V_TMP}
    s_cmp_eq_u32 s{S_KH}, 0
    """)
    C1 = "L_attn_c1"; C2 = "L_attn_c2"
    A(f"s_cbranch_scc0 {C1}")
    for kh in range(2):
        if kh == 1: A.label(C1)
        send = (2, 3) if kh == 0 else (0, 1)
        keep = (0, 1) if kh == 0 else (2, 3)
        for j, q in enumerate(send):
            for g in range(4):
                A(f"ds_write_b128 v{V_TMP+1}, {v(O(q)+4*g,4)} offset:{4096*j + 1024*g}")
        A("s_waitcnt lgkmcnt(0)")
        A("s_barrier")
        for j in range(2):
            for g in range(4):
                A(f"ds_read_b128 {v(V_S+16*j+4*g,4)}, v{V_TMP+2} offset:{4096*j + 1024*g}")
        A("s_waitcnt lgkmcnt(0)")
        for j, q in enumerate(keep):
            o = O(q); r_ = V_S + 16*j
            A(f"""
            v_max_f32 v{V_X}, v{o+13}, v{r_+13}
            v_sub_f32 v{V_X+1}, v{o+13}, v{V_X}
            v_sub_f32 v{V_X+2}, v{r_+13}, v{V_X}
            v_exp_f32 v{V_X+1}, v{V_X+1}
            v_exp_f32 v{V_X+2}, v{V_X+2}
            s_nop 0
            v_mul_f32 v{V_X+3}, v{V_X+1}, v{o+12}
            v_fmac_f32 v{V_X+3}, v{V_X+2}, v{r_+12}
            v_rcp_f32 v{V_X+3}, v{V_X+3}
            s_nop 0
            v_mul_f32 v{V_X+4}, v{V_X+1}, v{V_X+3}
            v_mul_f32 v{V_X+6}, v{V_X+2}, v{V_X+3}
            v_mov_b32 v{V_X+5}, v{V_X+4}
            v_mov_b32 v{V_X+7}, v{V_X+6}
            """)
            for pr in range(6):
                A(f"v_pk_mul_f32 {v(o+2*pr,2)}, {v(o+2*pr,2)}, {v(V_X+4,2)}")
            for pr in range(6):
                A(f"v_pk_fma_f32 {v(o+2*pr,2)}, {v(r_+2*pr,2)}, {v(V_X+6,2)}, {v(o+2*pr,2)}")
            for pr in range(6):
                A(f"v_cvt_pk_bf16_f32 v{V_P+pr}, v{o+2*pr}, v{o+2*pr+1}")
            if j == 0:
                A(f"s_mul_i32 s{S_T0}, s{S_HEAD}, 5")
                for a_ in range(3):
                    A(f"""
                    v_add_u32 v{V_TMP+3}, s{S_T0}, v{V_H}
                    v_add_u32 v{V_TMP+3}, {2*a_}, v{V_TMP+3}
                    v_lshrrev_b32 v{V_TMP+4}, 2, v{V_TMP+3}
                    v_lshlrev_b32 v{V_AO+a_}, 10, v{V_TMP+4}
                    v_and_b32 v{V_TMP+4}, 1, v{V_TMP+3}
                    v_lshlrev_b32 v{V_TMP+4}, 9, v{V_TMP+4}
                    v_add_u32 v{V_AO+a_}, v{V_AO+a_}, v{V_TMP+4}
                    v_bfe_u32 v{V_TMP+4}, v{V_TMP+3}, 1, 1
                    v_lshlrev_b32 v{V_TMP+4}, 3, v{V_TMP+4}
                    v_add_u32 v{V_AO+a_}, v{V_AO+a_}, v{V_TMP+4}
                    v_lshlrev_b32 v{V_TMP+4}, 4, v{V_T}
                    v_add_u32 v{V_AO+a_}, v{V_AO+a_}, v{V_TMP+4}
                    """)
            A(f"""
            s_add_u32 s{S_T1}, s{S_TT0}, {q}
            s_mul_i32 s{S_T1}, s{S_T1}, 40960
            buffer_store_dwordx2 {v(V_P,2)}, v{V_AO}, s[{S_O}:{S_O+3}], s{S_T1} offen
            buffer_store_dwordx2 {v(V_P+2,2)}, v{V_AO+1}, s[{S_O}:{S_O+3}], s{S_T1} offen
            s_mov_b64 exec, s[{S_LO}:{S_LO+1}]
            buffer_store_dwordx2 {v(V_P+4,2)}, v{V_AO+2}, s[{S_O}:{S_O+3}], s{S_T1} offen
            s_mov_b64 exec, -1
            """)
            if j == 0: A("s_nop 1")
        A(f"s_branch {END}")
    A.label(END)
    A("s_endpgm")
    return A, descs, names
```

```python
from asmlib import *
from layout import *
from k_prep import srd, descriptor, entry, halfsum

SLOT = 20480; NSLOT = 8
LDS_BYTES = SLOT*NSLOT
LDW = 1280
S_X=8; S_W=12; S_R=16; S_OUT=20; S_ST=24
S_WAVE=28; S_TB=29; S_CB=30; S_MODE=31; S_XOFF=32; S_WOFF=33; S_FREE=34; S_CUR=35; S_CNT=36
S_T0=37; S_T1=38; S_T2=39; S_WT=40; S_WK=41; S_OOB=42; S_XM0=43; S_WM0=44; S_NK=45; S_SLOT=48
V_LANE=1; V_H=2; V_T=3
V_XD=4; V_WD=5
V_XR=8; V_WR=9
V_TMP=10
V_RES=20
V_FR=40
V_ACC=72
V_E=120

def frW(setn, b): return V_FR + 16*setn + 4*b
def frX(setn): return V_FR + 16*setn + 12
def acc(b): return V_ACC + 16*b

def reads(setn, j):
    L = []
    for b in range(3):
        for jj in range(2):
            L.append(f"ds_read_b64_tr_b16 {v(frW(setn,b)+2*jj,2)}, v{V_WR} offset:{j*6144 + jj*1536 + b*256}")
    L.append(f"ds_read_b128 {v(frX(setn),4)}, v{V_XR} offset:{j*2048}")
    return L
def mfmas(setn):
    return [f"v_mfma_f32_32x32x16_bf16 {v(acc(b),16)}, {v(frW(setn,b),4)}, {v(frX(setn),4)}, {v(acc(b),16)}" for b in range(3)]
def dma_x(k): return f"buffer_load_dwordx4 v{V_XD}, s[{S_X}:{S_X+3}], s{S_XOFF} offen" + (f" offset:{1024*k}" if k else "") + " lds"
def dma_w(k): return f"buffer_load_dwordx4 v{V_WD+k}, s[{S_W}:{S_W+3}], s{S_WOFF} offen" + (f" offset:{1024*k}" if k else "") + " lds"

def adv_free(A):
    A(f"s_add_u32 s{S_XOFF}, s{S_XOFF}, 4096")
    A(f"s_add_u32 s{S_WOFF}, s{S_WOFF}, {64*LDW}")
    A(f"s_add_u32 s{S_FREE}, s{S_FREE}, {SLOT}")
    A(f"s_cmp_eq_u32 s{S_FREE}, {SLOT*NSLOT}")
    A(f"s_cselect_b32 s{S_FREE}, 0, s{S_FREE}")

def issue_all(A):
    A(f"s_add_u32 m0, s{S_FREE}, s{S_XM0}")
    A(f"s_add_u32 s{S_T0}, s{S_FREE}, s{S_WM0}")
    A(dma_x(0)); A(dma_x(1))
    A(f"s_mov_b32 m0, s{S_T0}")
    A("s_nop 0")
    for k in range(3): A(dma_w(k))
    adv_free(A)

def stage(A, dma, vm_wait, last=False):
    M = mfmas(0); R = reads(1, 1)
    A("s_waitcnt lgkmcnt(0)")
    A(M[0])
    if dma:
        A(f"s_add_u32 m0, s{S_FREE}, s{S_XM0}")
        A(f"s_add_u32 s{S_T0}, s{S_FREE}, s{S_WM0}")
    A(R[0]); A(R[1]); A(R[2])
    if dma: A(dma_x(0))
    A(M[1])
    A(R[3]); A(R[4])
    if dma: A(dma_x(1))
    A(M[2])
    A(R[5]); A(R[6])
    if dma:
        A(f"s_mov_b32 m0, s{S_T0}")
    M = mfmas(1)
    A("s_waitcnt lgkmcnt(0)")
    A(M[0])
    if dma: A(dma_w(0)); A(dma_w(1))
    if last:
        A(M[1]); A(M[2]); return
    A(M[1])
    if dma:
        A(dma_w(2)); adv_free(A)
    A(f"s_add_u32 s{S_CUR}, s{S_CUR}, {SLOT}")
    A(f"s_cmp_eq_u32 s{S_CUR}, {SLOT*NSLOT}")
    A(f"s_cselect_b32 s{S_T1}, {hex(-SLOT*(NSLOT-1) & 0xffffffff)}, s{S_SLOT}")
    A(f"s_cselect_b32 s{S_CUR}, 0, s{S_CUR}")
    A(f"v_add_u32 v{V_XR}, s{S_T1}, v{V_XR}")
    A(f"v_add_u32 v{V_WR}, s{S_T1}, v{V_WR}")
    A(f"s_waitcnt vmcnt({vm_wait})")
    A("s_barrier")
    R = reads(0, 0)
    for r in R[:4]: A(r)
    A(M[2])
    for r in R[4:]: A(r)

def gen_narrow():
    A = Asm(); descs = ""; names = []
    COMMON = "L_nar_common"; END = "L_nar_end"
    variants = [
        ("oproj1_kernel", OF, XSZ, 640,  KA_WO, 0, 1),
        ("ffb1_kernel",   HF, HSZ, F,    KA_W2, 1, 2),
        ("oproj2_kernel", OF, XSZ, 640,  KA_WO, 2, 3),
        ("ffb2_kernel",   HF, HSZ, F,    KA_W2, 3, None),
    ]
    for (name, xb, xsz, K, kaw, ri, oi) in variants:
        names.append(name)
        entry(A, name)
        A(f"""
        s_load_dwordx2 s[4:5], s[0:1], {KA_WS}
        s_load_dwordx2 s[6:7], s[0:1], {kaw}
        s_load_dwordx2 s[46:47], s[0:1], {KA_OUT}
        s_cmp_ge_u32 s2, 256
        s_cbranch_scc1 {END}
        s_and_b32 s{S_T0}, s2, 7
        s_lshr_b32 s{S_T1}, s2, 3
        s_and_b32 s{S_TB}, s{S_T0}, 3
        s_lshl_b32 s{S_TB}, s{S_TB}, 3
        s_and_b32 s{S_T2}, s{S_T1}, 7
        s_add_u32 s{S_TB}, s{S_TB}, s{S_T2}
        s_lshr_b32 s{S_T0}, s{S_T0}, 2
        s_lshl_b32 s{S_T0}, s{S_T0}, 2
        s_lshr_b32 s{S_T1}, s{S_T1}, 3
        s_add_u32 s{S_CB}, s{S_T0}, s{S_T1}
        s_mov_b32 s{S_NK}, {K//16}
        s_mov_b32 s{S_MODE}, {0 if oi is not None else 1}
        s_mov_b32 s{S_CNT}, {K//64 - (NSLOT-1)}
        s_waitcnt lgkmcnt(0)
        """)
        srd(A, S_X, 4, xb, xsz)
        srd(A, S_W, 6, 0, K*LDW)
        srd(A, S_R, 4, XF[ri], XSZ)
        if oi is not None:
            srd(A, S_OUT, 4, XF[oi], XSZ)
            srd(A, S_ST, 4, ST[oi], STSZ)
        else:
            srd(A, S_OUT, 46, 0, XSZ)
            srd(A, S_ST, 4, ST[0], 0)
        A(f"s_branch {COMMON}")
        descs += descriptor(name, 160, 64)
    A(".p2align 6")
    A.label(COMMON)
    A(f"""
    v_lshrrev_b32 v{V_TMP}, 6, v0
    v_and_b32 v{V_LANE}, 63, v0
    v_readfirstlane_b32 s{S_WAVE}, v{V_TMP}
    v_lshrrev_b32 v{V_H}, 5, v{V_LANE}
    v_and_b32 v{V_T}, 31, v{V_LANE}
    s_mov_b32 s{S_OOB}, 0x7f000000
    s_and_b32 s{S_WT}, s{S_WAVE}, 1
    s_lshr_b32 s{S_WK}, s{S_WAVE}, 1
    v_lshlrev_b32 v{V_XD}, 4, v{V_LANE}
    """)
    A(f"""
    s_lshl_b32 s{S_T0}, s{S_TB}, 1
    s_add_u32 s{S_T0}, s{S_T0}, s{S_WT}
    s_mul_i32 s{S_T0}, s{S_T0}, s{S_NK}
    s_lshl_b32 s{S_T1}, s{S_WK}, 1
    s_add_u32 s{S_T0}, s{S_T0}, s{S_T1}
    s_lshl_b32 s{S_XOFF}, s{S_T0}, 10
    s_lshl_b32 s{S_XM0}, s{S_WT}, 12
    s_lshl_b32 s{S_T1}, s{S_WK}, 11
    s_add_u32 s{S_XM0}, s{S_XM0}, s{S_T1}
    """)
    for j in range(3):
        A(f"""
        v_add_u32 v{V_TMP}, {64*j}, v{V_LANE}
        v_mul_u32_u24 v{V_TMP+1}, 1366, v{V_TMP}
        v_lshrrev_b32 v{V_TMP+1}, 16, v{V_TMP+1}
        v_mul_u32_u24 v{V_TMP+2}, 48, v{V_TMP+1}
        v_sub_u32 v{V_TMP+2}, v{V_TMP}, v{V_TMP+2}
        v_bfe_u32 v{V_TMP+3}, v{V_TMP+2}, 2, 2
        v_lshlrev_b32 v{V_TMP+1}, 2, v{V_TMP+1}
        v_add_u32 v{V_TMP+1}, v{V_TMP+1}, v{V_TMP+3}
        v_mul_u32_u24 v{V_WD+j}, {LDW}, v{V_TMP+1}
        v_lshrrev_b32 v{V_TMP+3}, 4, v{V_TMP+2}
        v_lshlrev_b32 v{V_TMP+3}, 2, v{V_TMP+3}
        v_and_b32 v{V_TMP+4}, 3, v{V_TMP+2}
        v_add_u32 v{V_TMP+3}, v{V_TMP+3}, v{V_TMP+4}
        v_lshlrev_b32 v{V_TMP+4}, 4, v{V_TMP+3}
        v_add_u32 v{V_WD+j}, v{V_WD+j}, v{V_TMP+4}
        v_cmp_le_u32 vcc, 10, v{V_TMP+3}
        v_mov_b32 v{V_TMP+4}, s{S_OOB}
        v_subrev_u32 v{V_WD+j}, {1024*j}, v{V_WD+j}
        v_cndmask_b32 v{V_WD+j}, v{V_WD+j}, v{V_TMP+4}, vcc
        """)
    A(f"""
    s_mul_i32 s{S_WOFF}, s{S_WAVE}, {16*LDW}
    s_mul_i32 s{S_T0}, s{S_CB}, 160
    s_add_u32 s{S_WOFF}, s{S_WOFF}, s{S_T0}
    s_mul_i32 s{S_WM0}, s{S_WAVE}, 3072
    s_add_u32 s{S_WM0}, s{S_WM0}, 8192
    s_mov_b32 s{S_FREE}, 0
    """)
    A(f"""
    s_lshl_b32 s{S_T0}, s{S_TB}, 1
    s_add_u32 s{S_T0}, s{S_T0}, s{S_WT}
    s_mul_i32 s{S_T0}, s{S_T0}, 40
    s_mul_i32 s{S_T1}, s{S_CB}, 5
    s_add_u32 s{S_T0}, s{S_T0}, s{S_T1}
    s_lshl_b32 s{S_T0}, s{S_T0}, 10
    s_add_u32 s{S_T1}, s{S_T0}, 4096
    """)
    for k in range(4):
        A(f"buffer_load_dwordx4 {v(V_RES+4*k,4)}, v{V_XD}, s[{S_R}:{S_R+3}], s{S_T0} offen" + (f" offset:{1024*k}" if k else ""))
    A(f"buffer_load_dwordx4 {v(V_RES+16,4)}, v{V_XD}, s[{S_R}:{S_R+3}], s{S_T1} offen")
    A(f"s_mov_b32 s{S_SLOT}, {SLOT}")
    A(f"s_mov_b32 s{S_CUR}, 0")
    for st in range(NSLOT-1): issue_all(A)
    A(f"""
    s_lshl_b32 s{S_T0}, s{S_WT}, 12
    s_lshl_b32 s{S_T1}, s{S_WK}, 10
    s_add_u32 s{S_T0}, s{S_T0}, s{S_T1}
    v_add_u32 v{V_XR}, s{S_T0}, v{V_XD}
    s_lshl_b32 s{S_T0}, s{S_WK}, 2
    v_add_u32 v{V_TMP}, s{S_T0}, v{V_H}
    v_mul_u32_u24 v{V_WR}, 768, v{V_TMP}
    v_bfe_u32 v{V_TMP}, v{V_LANE}, 2, 2
    v_lshlrev_b32 v{V_TMP}, 6, v{V_TMP}
    v_add_u32 v{V_WR}, v{V_WR}, v{V_TMP}
    v_bfe_u32 v{V_TMP}, v{V_LANE}, 4, 1
    v_lshlrev_b32 v{V_TMP}, 5, v{V_TMP}
    v_add_u32 v{V_WR}, v{V_WR}, v{V_TMP}
    v_and_b32 v{V_TMP}, 3, v{V_LANE}
    v_lshlrev_b32 v{V_TMP}, 3, v{V_TMP}
    v_add_u32 v{V_WR}, v{V_WR}, v{V_TMP}
    v_add_u32 v{V_WR}, 8192, v{V_WR}
    """)
    for r in range(48): A(f"v_mov_b32 v{V_ACC+r}, 0")
    A(f"s_waitcnt vmcnt({5*(NSLOT-2)})")
    A("s_barrier")
    for r in reads(0, 0): A(r)
    L = "L_nar_loop"
    A(".p2align 4")
    A.label(L)
    stage(A, True, 5*(NSLOT-2))
    A(f"s_sub_u32 s{S_CNT}, s{S_CNT}, 1")
    A(f"s_cmp_lg_u32 s{S_CNT}, 0")
    A(f"s_cbranch_scc1 {L}")
    for t in range(NSLOT-1):
        last = (t == NSLOT-2)
        stage(A, False, 5*(NSLOT-3-t) if not last else 0, last=last)
    A("s_barrier")
    A(f"""
    s_mul_i32 s{S_T0}, s{S_WAVE}, 6144
    v_add_u32 v{V_TMP}, s{S_T0}, v{V_XD}
    s_xor_b32 s{S_T1}, s{S_WAVE}, 2
    s_mul_i32 s{S_T1}, s{S_T1}, 6144
    v_add_u32 v{V_TMP+1}, s{S_T1}, v{V_XD}
    s_lshl_b32 s{S_T0}, s{S_TB}, 1
    s_add_u32 s{S_T0}, s{S_T0}, s{S_WT}
    s_mul_i32 s{S_T1}, s{S_T0}, 40
    s_mul_i32 s{S_T2}, s{S_CB}, 5
    s_add_u32 s{S_T1}, s{S_T1}, s{S_T2}
    s_lshl_b32 s{S_T1}, s{S_T1}, 10
    """)
    def areg(k): return acc(k >> 1) + 8*(k & 1)
    W1 = "L_nar_wk1"; FIN = "L_nar_fin"
    A(f"s_cmp_eq_u32 s{S_WK}, 0")
    A(f"s_cbranch_scc0 {W1}")
    for wk in range(2):
        if wk == 1: A.label(W1)
        keep = (0, 1, 2) if wk == 0 else (3, 4)
        send = (3, 4) if wk == 0 else (0, 1, 2)
        for j, k in enumerate(send):
            A(f"ds_write_b128 v{V_TMP}, {v(areg(k),4)} offset:{2048*j}")
            A(f"ds_write_b128 v{V_TMP}, {v(areg(k)+4,4)} offset:{2048*j+1024}")
        A("s_waitcnt lgkmcnt(0)")
        A("s_barrier")
        for j, k in enumerate(keep):
            A(f"ds_read_b128 {v(V_E+8*j,4)}, v{V_TMP+1} offset:{2048*j}")
            A(f"ds_read_b128 {v(V_E+8*j+4,4)}, v{V_TMP+1} offset:{2048*j+1024}")
        A(f"v_mov_b32 v{V_TMP+2}, 0")
        A(f"v_mov_b32 v{V_TMP+3}, 0")
        A("s_waitcnt lgkmcnt(0)")
        for j, k in enumerate(keep):
            a_ = areg(k); p_ = V_E + 8*j; r_ = V_RES + 4*k
            for pr in range(4):
                A(f"v_pk_add_f32 {v(a_+2*pr,2)}, {v(a_+2*pr,2)}, {v(p_+2*pr,2)}")
            for pr in range(4):
                A(f"v_lshlrev_b32 v{p_+2*pr}, 16, v{r_+pr}")
                A(f"v_and_b32 v{p_+2*pr+1}, 0xffff0000, v{r_+pr}")
            for pr in range(4):
                A(f"v_pk_add_f32 {v(a_+2*pr,2)}, {v(a_+2*pr,2)}, {v(p_+2*pr,2)}")
            for pr in range(4):
                A(f"v_cvt_pk_bf16_f32 v{r_+pr}, v{a_+2*pr}, v{a_+2*pr+1}")
            for x in range(8):
                A(f"v_add_f32 v{V_TMP+2}, v{V_TMP+2}, v{a_+x}")
                A(f"v_fmac_f32 v{V_TMP+3}, v{a_+x}, v{a_+x}")
        OUTF = f"L_nar_rowmajor_{wk}"
        A(f"s_cmp_eq_u32 s{S_MODE}, 1")
        A(f"s_cbranch_scc1 {OUTF}")
        for j, k in enumerate(keep):
            r_ = V_RES + 4*k
            if k < 4:
                A(f"buffer_store_dwordx4 {v(r_,4)}, v{V_XD}, s[{S_OUT}:{S_OUT+3}], s{S_T1} offen" + (f" offset:{1024*k}" if k else ""))
            else:
                A(f"s_add_u32 s{S_T2}, s{S_T1}, 4096")
                A(f"buffer_store_dwordx4 {v(r_,4)}, v{V_XD}, s[{S_OUT}:{S_OUT+3}], s{S_T2} offen")
        halfsum(A, V_TMP+2, V_TMP+4)
        halfsum(A, V_TMP+3, V_TMP+5)
        A(f"""
        s_lshl_b32 s{S_T0}, s{S_T0}, 12
        s_lshl_b32 s{S_T2}, s{S_CB}, 4
        s_add_u32 s{S_T0}, s{S_T0}, s{S_T2}
        s_add_u32 s{S_T0}, s{S_T0}, {8*wk}
        v_lshlrev_b32 v{V_TMP+4}, 7, v{V_T}
        buffer_store_dwordx2 {v(V_TMP+2,2)}, v{V_TMP+4}, s[{S_ST}:{S_ST+3}], s{S_T0} offen
        s_branch {END}
        """)
        A.label(OUTF)
        A(f"""
        s_lshl_b32 s{S_T0}, s{S_T0}, 5
        v_add_u32 v{V_TMP+4}, s{S_T0}, v{V_T}
        v_mul_u32_u24 v{V_TMP+4}, 1280, v{V_TMP+4}
        v_lshlrev_b32 v{V_TMP+5}, 4, v{V_H}
        v_add_u32 v{V_TMP+4}, v{V_TMP+4}, v{V_TMP+5}
        s_mul_i32 s{S_T2}, s{S_CB}, 160
        """)
        for j, k in enumerate(keep):
            r_ = V_RES + 4*k
            A(f"v_permlane32_swap_b32 v{r_}, v{r_+2}")
            A(f"v_permlane32_swap_b32 v{r_+1}, v{r_+3}")
        for j, k in enumerate(keep):
            r_ = V_RES + 4*k
            A(f"buffer_store_dwordx4 {v(r_,4)}, v{V_TMP+4}, s[{S_OUT}:{S_OUT+3}], s{S_T2} offen" + (f" offset:{32*k}" if k else ""))
        A(f"s_branch {END}")
    A.label(END)
    A("s_endpgm")
    return A, descs, names
```

```python
from asmlib import *
from layout import *

def srd(A, d, base, off, size):
    if off:
        A(f"s_add_u32 s{d}, s{base}, {hex(off)}")
        A(f"s_addc_u32 s{d+1}, s{base+1}, 0")
    else:
        A(f"s_mov_b32 s{d}, s{base}")
        A(f"s_mov_b32 s{d+1}, s{base+1}")
    A(f"s_mov_b32 s{d+2}, {hex(size)}")
    A(f"s_mov_b32 s{d+3}, 0x20000")

def descriptor(name, vgpr, sgpr, accum=None):
    if accum is None: accum = (vgpr + 3) // 4 * 4
    return f""".section .rodata,"a"
.p2align 6
.amdhsa_kernel {name}
  .amdhsa_next_free_vgpr {vgpr}
  .amdhsa_next_free_sgpr {sgpr}
  .amdhsa_accum_offset {accum}
  .amdhsa_group_segment_fixed_size 0
  .amdhsa_kernarg_size 72
  .amdhsa_user_sgpr_count 2
  .amdhsa_user_sgpr_kernarg_segment_ptr 1
  .amdhsa_system_sgpr_workgroup_id_x 1
  .amdhsa_float_denorm_mode_32 3
.end_amdhsa_kernel
.text
"""

def entry(A, name):
    A(f".globl {name}")
    A(".p2align 8")
    A(f".type {name},@function")
    A.label(name)

def halfsum(A, x, tmp):
    A(f"v_mov_b32 v{tmp}, v{x}")
    A(f"v_permlane32_swap_b32 v{x}, v{tmp}")
    A(f"v_add_f32 v{x}, v{x}, v{tmp}")

def gen_prep(name="prep_kernel"):
    A = Asm()
    entry(A, name)
    END = f"L_{name}_end"
    A(f"""
    s_load_dwordx4 s[4:7], s[0:1], {KA_X}
    s_load_dwordx2 s[8:9], s[0:1], {KA_WO}
    s_load_dwordx4 s[12:15], s[0:1], {KA_W1}
    s_load_dwordx2 s[10:11], s[0:1], {KA_WS}
    s_cmp_ge_u32 s2, 256
    s_cbranch_scc1 {END}
    v_lshrrev_b32 v1, 6, v0
    v_and_b32 v2, 63, v0
    v_readfirstlane_b32 s16, v1
    v_lshrrev_b32 v3, 5, v2
    v_and_b32 v4, 31, v2
    s_lshr_b32 s17, s2, 2
    s_and_b32 s18, s2, 3
    """)
    A(f"""
    s_lshl_b32 s19, s17, 5
    v_add_u32 v5, s19, v4
    v_mul_u32_u24 v5, 1280, v5
    v_lshlrev_b32 v6, 4, v3
    v_add_u32 v5, v5, v6
    s_mul_i32 s19, s18, 320
    s_lshl_b32 s20, s16, 5
    s_add_u32 s19, s19, s20
    v_add_u32 v5, s19, v5
    s_mov_b32 s63, 0x7f000000
    s_cmp_lt_u32 s16, 2
    s_cselect_b32 s21, 256, s63
    s_waitcnt lgkmcnt(0)
    """)
    srd(A, 24, 4, 0, XSZ)
    srd(A, 28, 10, XF[0], XSZ)
    srd(A, 32, 10, ST[0], STSZ)
    srd(A, 36, 8, 0, 640*1280)
    srd(A, 40, 14, 0, F*1280)
    A(f"""
    buffer_load_dwordx4 v[8:11], v5, s[24:27], 0 offen
    buffer_load_dwordx4 v[12:15], v5, s[24:27], 0 offen offset:128
    buffer_load_dwordx4 v[16:19], v5, s[24:27], s21 offen
    """)
    NOCS = f"L_{name}_nocs"; CSW1 = f"L_{name}_csw1"; CSGO = f"L_{name}_csgo"
    A(f"""
    s_cmp_ge_u32 s2, 228
    s_cselect_b32 s22, 1, 0
    s_cmp_ge_u32 s2, 120
    s_cbranch_scc1 {CSW1}
    """)
    srd(A, 44, 6, 0, 640*3840)
    srd(A, 48, 10, CSQ, CSQSZ)
    A(f"""
    s_mov_b32 s52, 3840
    s_mov_b32 s53, 7680
    s_mov_b32 s54, s2
    s_branch {CSGO}
    """)
    A.label(CSW1)
    srd(A, 44, 12, 0, 640*3456)
    srd(A, 48, 10, CS1, CS1SZ)
    A(f"""
    s_mov_b32 s52, 3456
    s_mov_b32 s53, 6912
    s_sub_u32 s54, s2, 120
    """)
    A.label(CSGO)
    A(f"""
    s_lshr_b32 s55, s54, 2
    s_and_b32 s56, s54, 3
    v_lshrrev_b32 v6, 3, v0
    s_mul_i32 s57, s56, 160
    v_add_u32 v6, s57, v6
    v_mul_lo_u32 v6, v6, s52
    v_and_b32 v7, 7, v0
    v_lshlrev_b32 v7, 4, v7
    v_add_u32 v6, v6, v7
    s_lshl_b32 s57, s55, 7
    v_add_u32 v6, s57, v6
    s_lshl_b32 s58, s52, 5
    s_cmp_eq_u32 s22, 1
    s_cselect_b32 s59, s63, 0
    """)
    for i in range(5):
        A(f"buffer_load_dwordx4 v[{20+4*i}:{23+4*i}], v6, s[44:47], s59 offen")
        if i < 4: A("s_add_u32 s59, s59, s58")
    A(f"""
    s_lshl_b32 s60, s2, 12
    v_lshlrev_b32 v7, 4, v0
    v_add_u32 v7, s60, v7
    s_mov_b32 s61, 0x100000
    s_mov_b32 s62, 0x200000
    buffer_load_dwordx4 v[40:43], v7, s[36:39], 0 offen
    buffer_load_dwordx4 v[44:47], v7, s[40:43], 0 offen
    buffer_load_dwordx4 v[48:51], v7, s[40:43], s61 offen
    buffer_load_dwordx4 v[52:55], v7, s[40:43], s62 offen
    """)
    A("s_waitcnt vmcnt(9)")
    A("v_mov_b32 v56, 0\nv_mov_b32 v57, 0")
    for r in range(8, 20):
        A(f"""
        v_lshlrev_b32 v58, 16, v{r}
        v_and_b32 v59, 0xffff0000, v{r}
        v_add_f32 v56, v56, v58
        v_fmac_f32 v57, v58, v58
        v_add_f32 v56, v56, v59
        v_fmac_f32 v57, v59, v59
        """)
    for b in (8, 12, 16):
        A(f"v_permlane32_swap_b32 v{b}, v{b+2}")
        A(f"v_permlane32_swap_b32 v{b+1}, v{b+3}")
    A(f"""
    s_mul_i32 s19, s17, 40
    s_mul_i32 s20, s18, 10
    s_add_u32 s19, s19, s20
    s_add_u32 s19, s19, s16
    s_lshl_b32 s19, s19, 10
    v_lshlrev_b32 v60, 4, v2
    v_add_u32 v60, s19, v60
    s_cmp_lt_u32 s16, 2
    s_cselect_b32 s21, 8192, s63
    s_mov_b32 s23, 4096
    buffer_store_dwordx4 v[8:11], v60, s[28:31], 0 offen
    buffer_store_dwordx4 v[12:15], v60, s[28:31], s23 offen
    buffer_store_dwordx4 v[16:19], v60, s[28:31], s21 offen
    """)
    halfsum(A, 56, 58)
    halfsum(A, 57, 59)
    A(f"""
    s_lshl_b32 s19, s17, 5
    v_add_u32 v60, s19, v4
    v_lshlrev_b32 v60, 7, v60
    s_lshl_b32 s20, s18, 2
    s_add_u32 s20, s20, s16
    s_lshl_b32 s20, s20, 3
    v_add_u32 v60, s20, v60
    buffer_store_dwordx2 v[56:57], v60, s[32:35], 0 offen
    """)
    A("s_waitcnt vmcnt(8)")
    for j in range(8): A(f"v_mov_b32 v{64+j}, 0")
    for i in range(5):
        for rr in range(4):
            r = 20 + 4*i + rr
            A(f"""
            v_lshlrev_b32 v58, 16, v{r}
            v_and_b32 v59, 0xffff0000, v{r}
            v_add_f32 v{64+2*rr}, v{64+2*rr}, v58
            v_add_f32 v{65+2*rr}, v{65+2*rr}, v59
            """)
    A(f"""
    v_lshlrev_b32 v58, 5, v0
    ds_write_b128 v58, v[64:67]
    ds_write_b128 v58, v[68:71] offset:16
    s_waitcnt lgkmcnt(0)
    s_barrier
    """)
    A(f"""
    v_lshlrev_b32 v58, 2, v2
    s_lshl_b32 s19, s16, 11
    v_add_u32 v58, s19, v58
    """)
    for k in range(8): A(f"ds_read_b32 v{64+k}, v58 offset:{256*k}")
    A("s_waitcnt lgkmcnt(0)")
    A("""
    v_add_f32 v64, v64, v65
    v_add_f32 v66, v66, v67
    v_add_f32 v68, v68, v69
    v_add_f32 v70, v70, v71
    v_add_f32 v64, v64, v66
    v_add_f32 v68, v68, v70
    v_add_f32 v64, v64, v68
    v_lshlrev_b32 v58, 2, v0
    s_barrier
    ds_write_b32 v58, v64
    s_waitcnt lgkmcnt(0)
    s_barrier
    v_lshlrev_b32 v58, 2, v2
    ds_read_b32 v64, v58
    ds_read_b32 v65, v58 offset:256
    ds_read_b32 v66, v58 offset:512
    ds_read_b32 v67, v58 offset:768
    s_waitcnt lgkmcnt(0)
    v_add_f32 v64, v64, v65
    v_add_f32 v66, v66, v67
    v_add_f32 v64, v64, v66
    """)
    A(f"""
    s_mul_i32 s19, s56, s53
    s_lshl_b32 s20, s55, 8
    s_add_u32 s19, s19, s20
    s_cmp_lg_u32 s16, 0
    s_cselect_b32 s19, s63, s19
    s_cmp_eq_u32 s22, 1
    s_cselect_b32 s19, s63, s19
    v_add_u32 v58, s19, v58
    buffer_store_dword v64, v58, s[48:51], 0 offen
    s_waitcnt vmcnt(0)
    """)
    A.label(END)
    A("s_endpgm")
    return A, descriptor(name, 72, 72), 8192
```

```python
from asmlib import *
from layout import *
from k_prep import srd, descriptor, entry, halfsum

RING = 32768
SCR = 4*RING
LDS_BYTES = SCR + 2048
QSCALE = (DH ** -0.5) * 1.4426950408889634
import struct
def f2u(x): return struct.unpack("<I", struct.pack("<f", x))[0]

S_X=8; S_W=12; S_ST=16; S_CS=20; S_OUT=24
S_WAVE=28; S_TB=29; S_CB=30; S_MODE=31; S_XOFF=32; S_WOFF=33; S_M0=34; S_WADV=35; S_FREE=36; S_CNT=37
S_LDW=38; S_N0=39; S_CSROW=40; S_T0=41; S_T1=42; S_T2=43; S_WN=44; S_WT=45; S_OOB=46; S_LAYER=47
V_LANE=1; V_H=2; V_T=3
V_XD=4; V_WD=5
V_XR=9; V_WR=10
V_TMP=11
V_AA=20
V_NB=24
V_A2=28
V_FR=32
V_ACC=64
V_E=128

def fr(setn, kind, i):
    base = V_FR + 16*setn
    return base + (0 if kind == 'W' else 8) + 4*i

def acc(i, ip):
    return V_ACC + 16*(2*i + ip)

def reads(A, setn, step):
    L = []
    for i in range(2):
        for jj in range(2):
            L.append(f"ds_read_b64_tr_b16 {v(fr(setn,'W',i)+2*jj,2)}, v{V_WR} offset:{step*4096 + jj*2048 + i*256}")
        L.append(f"ds_read_b128 {v(fr(setn,'X',i),4)}, v{V_XR} offset:{i*4096 + step*1024}")
    return L

def mfmas(setn, trans):
    L = []
    for (i, ip) in ((0,0),(0,1),(1,0),(1,1)):
        w = v(fr(setn,'W',i),4); x = v(fr(setn,'X',ip),4); d = v(acc(i,ip),16)
        if trans: L.append(f"v_mfma_f32_32x32x16_bf16 {d}, {w}, {x}, {d}")
        else:     L.append(f"v_mfma_f32_32x32x16_bf16 {d}, {x}, {w}, {d}")
    return L

def dma_x(k): return f"buffer_load_dwordx4 v{V_XD}, s[{S_X}:{S_X+3}], s{S_XOFF} offen offset:{k*1024} lds" if k else f"buffer_load_dwordx4 v{V_XD}, s[{S_X}:{S_X+3}], s{S_XOFF} offen lds"
def dma_w(k): return f"buffer_load_dwordx4 v{V_WD+k}, s[{S_W}:{S_W+3}], s{S_WOFF} offen offset:{k*1024} lds" if k else f"buffer_load_dwordx4 v{V_WD}, s[{S_W}:{S_W+3}], s{S_WOFF} offen lds"

def issue_stage_all(A):
    A(f"s_add_u32 m0, s{S_FREE}, s{S_M0}")
    A(f"s_add_u32 s{S_T0}, s{S_FREE}, s{S_M0}")
    for k in range(4): A(dma_x(k))
    A(f"s_add_u32 m0, s{S_T0}, 16384")
    A(f"s_add_u32 s{S_XOFF}, s{S_XOFF}, 4096")
    for k in range(4): A(dma_w(k))
    A(f"s_add_u32 s{S_WOFF}, s{S_WOFF}, s{S_WADV}")
    A(f"s_add_u32 s{S_FREE}, s{S_FREE}, {RING}")
    A(f"s_and_b32 s{S_FREE}, s{S_FREE}, {4*RING-1}")

def stage(A, trans, dma, vm_wait, last=False):
    for step in range(4):
        cur = step & 1; nxt = cur ^ 1
        M = mfmas(cur, trans)
        A("s_waitcnt lgkmcnt(0)")
        pre = []
        if dma:
            if step == 0:
                pre = [f"s_add_u32 m0, s{S_FREE}, s{S_M0}", f"s_add_u32 s{S_T0}, s{S_FREE}, s{S_M0}"]
            if step == 2:
                pre = [f"s_add_u32 m0, s{S_T0}, 16384"]
            d = [dma_x(2*step), dma_x(2*step+1)] if step < 2 else [dma_w(2*(step-2)), dma_w(2*(step-2)+1)]
        else:
            d = []
        if step < 3:
            R = reads(A, nxt, step+1)
            A(M[0])
            for x in pre: A(x)
            A(R[0]); A(R[1]); A(R[2])
            A(M[1])
            if d: A(d[0])
            A(R[3]); A(R[4])
            A(M[2])
            A(R[5])
            if d: A(d[1])
            A(M[3])
            if dma and step == 1: A(f"s_add_u32 s{S_XOFF}, s{S_XOFF}, 4096")
        else:
            A(M[0])
            if d: A(d[0])
            A(M[1])
            if d: A(d[1])
            if dma:
                A(f"s_add_u32 s{S_WOFF}, s{S_WOFF}, s{S_WADV}")
                A(f"s_add_u32 s{S_FREE}, s{S_FREE}, {RING}")
                A(f"s_and_b32 s{S_FREE}, s{S_FREE}, {4*RING-1}")
            if not last:
                A(f"v_add_u32 v{V_XR}, {RING}, v{V_XR}")
                A(f"v_add_u32 v{V_WR}, {RING}, v{V_WR}")
                A(f"v_and_b32 v{V_XR}, {4*RING-1}, v{V_XR}")
                A(f"v_and_b32 v{V_WR}, {4*RING-1}, v{V_WR}")
                A(f"s_waitcnt vmcnt({vm_wait})")
                A("s_barrier")
                R = reads(A, 0, 0)
                A(R[0]); A(R[1]); A(R[2])
                A(M[2])
                A(R[3]); A(R[4]); A(R[5])
                A(M[3])
            else:
                A(M[2]); A(M[3])

def mainloop(A, trans, tag):
    L = f"L_wide_loop_{tag}"
    A(f"s_mov_b32 s{S_CNT}, 7")
    A(".p2align 4")
    A.label(L)
    stage(A, trans, True, 16)
    A(f"s_sub_u32 s{S_CNT}, s{S_CNT}, 1")
    A(f"s_cmp_lg_u32 s{S_CNT}, 0")
    A(f"s_cbranch_scc1 {L}")
    stage(A, trans, False, 8)
    stage(A, trans, False, 0)
    stage(A, trans, False, 0, last=True)

def gen_wide():
    A = Asm()
    descs = ""
    COMMON = "L_wide_common"; END = "L_wide_end"
    names = []
    for kind, layer in (("qkv", 0), ("qkv", 1), ("ffa", 0), ("ffa", 1)):
        name = f"{kind}{layer+1}_kernel"
        names.append(name)
        entry(A, name)
        xi = 2*layer + (0 if kind == "qkv" else 1)
        A(f"""
        s_load_dwordx2 s[4:5], s[0:1], {KA_WS}
        s_load_dwordx2 s[6:7], s[0:1], {KA_WQKV if kind=='qkv' else KA_W1}
        s_and_b32 s{S_T0}, s2, 7
        s_lshr_b32 s{S_T1}, s2, 3
        s_and_b32 s{S_TB}, s{S_T0}, 3
        s_lshl_b32 s{S_TB}, s{S_TB}, 2
        s_and_b32 s{S_T2}, s{S_T1}, 3
        s_add_u32 s{S_TB}, s{S_TB}, s{S_T2}
        s_lshr_b32 s{S_T0}, s{S_T0}, 2
        s_lshr_b32 s{S_T1}, s{S_T1}, 2
        """)
        if kind == "qkv":
            A(f"""
            s_lshl_b32 s{S_CB}, s{S_T0}, 3
            s_add_u32 s{S_CB}, s{S_CB}, s{S_T1}
            s_cmp_ge_u32 s2, 256
            s_cbranch_scc1 {END}
            s_cmp_ge_u32 s{S_CB}, 15
            s_cbranch_scc1 {END}
            s_mov_b32 s{S_LDW}, 3840
            s_mov_b32 s{S_CSROW}, 7680
            s_cmp_ge_u32 s{S_CB}, 5
            s_cselect_b32 s{S_MODE}, 1, 0
            s_cmp_ge_u32 s{S_CB}, 10
            s_cselect_b32 s{S_MODE}, 2, s{S_MODE}
            s_waitcnt lgkmcnt(0)
            """)
            srd(A, S_W, 6, 0, 640*3840)
            srd(A, S_CS, 4, CSQ, CSQSZ)
            A(f"""
            s_mul_i32 s{S_T0}, s{S_MODE}, {XSZ}
            s_add_u32 s{S_T0}, s{S_T0}, {QF}
            s_add_u32 s{S_OUT}, s4, s{S_T0}
            s_addc_u32 s{S_OUT+1}, s5, 0
            s_mov_b32 s{S_OUT+2}, {XSZ}
            s_mov_b32 s{S_OUT+3}, 0x20000
            """)
        else:
            A(f"""
            s_mul_i32 s{S_CB}, s{S_T0}, 7
            s_add_u32 s{S_CB}, s{S_CB}, s{S_T1}
            s_cmp_ge_u32 s2, 256
            s_cbranch_scc1 {END}
            s_cmp_ge_u32 s{S_T1}, 7
            s_cbranch_scc1 {END}
            s_mov_b32 s{S_LDW}, 3456
            s_mov_b32 s{S_CSROW}, 6912
            s_mov_b32 s{S_MODE}, 3
            s_waitcnt lgkmcnt(0)
            """)
            srd(A, S_W, 6, 0, 640*3456)
            srd(A, S_CS, 4, CS1, CS1SZ)
            srd(A, S_OUT, 4, HF, HSZ)
        srd(A, S_X, 4, XF[xi], XSZ)
        srd(A, S_ST, 4, ST[xi], STSZ)
        A(f"s_branch {COMMON}")
        descs += descriptor(name, 224, 64)
    A(".p2align 6")
    A.label(COMMON)
    A(f"""
    v_lshrrev_b32 v{V_TMP}, 6, v0
    v_and_b32 v{V_LANE}, 63, v0
    v_readfirstlane_b32 s{S_WAVE}, v{V_TMP}
    v_lshrrev_b32 v{V_H}, 5, v{V_LANE}
    v_and_b32 v{V_T}, 31, v{V_LANE}
    s_lshl_b32 s{S_N0}, s{S_CB}, 7
    s_mov_b32 s{S_OOB}, 0x7f000000
    s_and_b32 s{S_WN}, s{S_WAVE}, 1
    s_lshr_b32 s{S_WT}, s{S_WAVE}, 1
    """)
    A(f"""
    s_lshl_b32 s{S_T0}, s{S_TB}, 2
    s_lshl_b32 s{S_T1}, s{S_WT}, 1
    s_add_u32 s{S_T0}, s{S_T0}, s{S_T1}
    s_lshl_b32 s{S_T0}, s{S_T0}, 12
    v_lshlrev_b32 v{V_TMP}, 7, v{V_T}
    v_lshlrev_b32 v{V_TMP+1}, 6, v{V_H}
    v_add_u32 v{V_TMP}, v{V_TMP}, v{V_TMP+1}
    v_add_u32 v{V_TMP}, s{S_T0}, v{V_TMP}
    """)
    for ip in range(2):
        for k in range(4):
            A(f"buffer_load_dwordx4 {v(V_FR+16*ip+4*k,4)}, v{V_TMP}, s[{S_ST}:{S_ST+3}], 0 offen offset:{ip*4096 - 0 + 16*k if ip*4096+16*k < 4096 else 0}" if ip == 0 else
              f"buffer_load_dwordx4 {v(V_FR+16*ip+4*k,4)}, v{V_TMP+1}, s[{S_ST}:{S_ST+3}], 0 offen offset:{16*k}")
        if ip == 0:
            A(f"v_add_u32 v{V_TMP+1}, 4096, v{V_TMP}")
    A(f"""
    v_and_b32 v{V_TMP+2}, 127, v0
    v_add_u32 v{V_TMP+2}, s{S_N0}, v{V_TMP+2}
    v_lshlrev_b32 v{V_TMP+2}, 2, v{V_TMP+2}
    s_lshl_b32 s{S_T1}, s{S_CSROW}, 1
    s_add_u32 s{S_T2}, s{S_T1}, s{S_CSROW}
    buffer_load_dword v{V_E}, v{V_TMP+2}, s[{S_CS}:{S_CS+3}], 0 offen
    buffer_load_dword v{V_E+1}, v{V_TMP+2}, s[{S_CS}:{S_CS+3}], s{S_CSROW} offen
    buffer_load_dword v{V_E+2}, v{V_TMP+2}, s[{S_CS}:{S_CS+3}], s{S_T1} offen
    buffer_load_dword v{V_E+3}, v{V_TMP+2}, s[{S_CS}:{S_CS+3}], s{S_T2} offen
    """)
    A(f"""
    v_lshlrev_b32 v{V_XD}, 4, v{V_LANE}
    s_lshl_b32 s{S_T0}, s{S_TB}, 2
    s_add_u32 s{S_T0}, s{S_T0}, s{S_WAVE}
    s_mul_i32 s{S_XOFF}, s{S_T0}, 40960
    v_lshrrev_b32 v{V_TMP}, 4, v{V_LANE}
    v_lshlrev_b32 v{V_WD}, 6, v{V_TMP}
    v_and_b32 v{V_TMP+1}, 3, v{V_LANE}
    v_lshlrev_b32 v{V_TMP+1}, 4, v{V_TMP+1}
    v_add_u32 v{V_WD}, v{V_WD}, v{V_TMP+1}
    v_bfe_u32 v{V_TMP+1}, v{V_LANE}, 2, 2
    v_mul_lo_u32 v{V_TMP+1}, v{V_TMP+1}, s{S_LDW}
    v_add_u32 v{V_WD}, v{V_WD}, v{V_TMP+1}
    """)
    A(f"""
    s_cmp_eq_u32 s{S_MODE}, 3
    s_cselect_b32 s{S_T0}, s{S_CB}, 0
    s_cmp_eq_u32 s{S_T0}, 13
    s_cselect_b32 s{S_T0}, s{S_OOB}, 0
    v_cmp_le_u32 vcc, 2, v{V_TMP}
    v_mov_b32 v{V_TMP+1}, s{S_T0}
    v_cndmask_b32 v{V_TMP+1}, 0, v{V_TMP+1}, vcc
    v_add_u32 v{V_WD}, v{V_WD}, v{V_TMP+1}
    s_lshl_b32 s{S_T0}, s{S_LDW}, 2
    s_sub_u32 s{S_T0}, s{S_T0}, 1024
    v_add_u32 v{V_WD+1}, s{S_T0}, v{V_WD}
    v_add_u32 v{V_WD+2}, s{S_T0}, v{V_WD+1}
    v_add_u32 v{V_WD+3}, s{S_T0}, v{V_WD+2}
    s_lshl_b32 s{S_WADV}, s{S_LDW}, 6
    s_lshl_b32 s{S_T0}, s{S_LDW}, 4
    s_mul_i32 s{S_T0}, s{S_T0}, s{S_WAVE}
    s_lshl_b32 s{S_WOFF}, s{S_N0}, 1
    s_add_u32 s{S_WOFF}, s{S_WOFF}, s{S_T0}
    s_lshl_b32 s{S_M0}, s{S_WAVE}, 12
    s_mov_b32 s{S_FREE}, 0
    """)
    for st in range(3): issue_stage_all(A)
    A(f"""
    s_lshl_b32 s{S_T0}, s{S_WT}, 13
    v_lshlrev_b32 v{V_XR}, 4, v{V_LANE}
    v_add_u32 v{V_XR}, s{S_T0}, v{V_XR}
    v_lshlrev_b32 v{V_WR}, 10, v{V_H}
    v_bfe_u32 v{V_TMP}, v{V_LANE}, 2, 2
    v_lshlrev_b32 v{V_TMP}, 6, v{V_TMP}
    v_add_u32 v{V_WR}, v{V_WR}, v{V_TMP}
    v_bfe_u32 v{V_TMP}, v{V_LANE}, 4, 1
    v_lshlrev_b32 v{V_TMP}, 5, v{V_TMP}
    v_add_u32 v{V_WR}, v{V_WR}, v{V_TMP}
    v_and_b32 v{V_TMP}, 3, v{V_LANE}
    v_lshlrev_b32 v{V_TMP}, 3, v{V_TMP}
    v_add_u32 v{V_WR}, v{V_WR}, v{V_TMP}
    s_lshl_b32 s{S_T0}, s{S_WN}, 9
    s_add_u32 s{S_T0}, s{S_T0}, 16384
    v_add_u32 v{V_WR}, s{S_T0}, v{V_WR}
    """)
    for r in range(64): A(f"v_mov_b32 v{V_ACC+r}, 0")
    A("s_waitcnt vmcnt(24)")
    for ip in range(2):
        b = V_FR + 16*ip
        A(f"""
        v_pk_add_f32 {v(b,2)}, {v(b,2)}, {v(b+2,2)}
        v_pk_add_f32 {v(b+4,2)}, {v(b+4,2)}, {v(b+6,2)}
        v_pk_add_f32 {v(b+8,2)}, {v(b+8,2)}, {v(b+10,2)}
        v_pk_add_f32 {v(b+12,2)}, {v(b+12,2)}, {v(b+14,2)}
        v_pk_add_f32 {v(b,2)}, {v(b,2)}, {v(b+4,2)}
        v_pk_add_f32 {v(b+8,2)}, {v(b+8,2)}, {v(b+12,2)}
        v_pk_add_f32 {v(b,2)}, {v(b,2)}, {v(b+8,2)}
        """)
        halfsum(A, b, V_TMP)
        halfsum(A, b+1, V_TMP+1)
        A(f"""
        v_mul_f32 v{b}, {hex(f2u(1.0/640))}, v{b}
        v_mul_f32 v{b+1}, {hex(f2u(1.0/640))}, v{b+1}
        v_fma_f32 v{b+1}, -v{b}, v{b}, v{b+1}
        v_max_f32 v{b+1}, 0, v{b+1}
        v_add_f32 v{b+1}, {hex(f2u(1e-5))}, v{b+1}
        v_rsq_f32 v{b+1}, v{b+1}
        v_sub_f32 v{V_NB+2*ip}, 0, v{b}
        v_sub_f32 v{V_NB+2*ip+1}, 0, v{b}
        v_mov_b32 v{V_AA+2*ip}, v{b+1}
        v_mov_b32 v{V_AA+2*ip+1}, v{b+1}
        v_mul_f32 v{V_A2+2*ip}, {hex(f2u(-1.4426950408889634))}, v{b+1}
        v_mul_f32 v{V_A2+2*ip+1}, {hex(f2u(-1.4426950408889634))}, v{b+1}
        v_mul_f32 v{b+2}, v{b}, v{b+1}
        """)
        A(f"""
        s_lshl_b32 s{S_T0}, s{S_WT}, 8
        s_add_u32 s{S_T0}, s{S_T0}, {SCR + 512 + 128*ip}
        v_lshlrev_b32 v{V_TMP}, 2, v{V_T}
        v_add_u32 v{V_TMP}, s{S_T0}, v{V_TMP}
        ds_write_b32 v{V_TMP}, v{b+1}
        ds_write_b32 v{V_TMP}, v{b+2} offset:512
        """)
    A(f"""
    s_cmp_eq_u32 s{S_MODE}, 0
    s_cselect_b32 s{S_T0}, {hex(f2u(QSCALE))}, 1.0
    v_mul_f32 v{V_AA}, s{S_T0}, v{V_AA}
    v_mul_f32 v{V_AA+1}, s{S_T0}, v{V_AA+1}
    v_mul_f32 v{V_AA+2}, s{S_T0}, v{V_AA+2}
    v_mul_f32 v{V_AA+3}, s{S_T0}, v{V_AA+3}
    v_add_f32 v{V_E}, v{V_E}, v{V_E+1}
    v_add_f32 v{V_E+2}, v{V_E+2}, v{V_E+3}
    v_add_f32 v{V_E}, v{V_E}, v{V_E+2}
    v_and_b32 v{V_TMP}, 127, v0
    v_lshlrev_b32 v{V_TMP}, 2, v{V_TMP}
    v_add_u32 v{V_TMP}, {SCR}, v{V_TMP}
    ds_write_b32 v{V_TMP}, v{V_E}
    s_waitcnt vmcnt(16) lgkmcnt(0)
    s_barrier
    """)
    for r in reads(A, 0, 0): A(r)
    LV = "L_wide_vmode"
    A(f"s_cmp_eq_u32 s{S_MODE}, 2")
    A(f"s_cbranch_scc1 {LV}")
    mainloop(A, True, "t")
    A(f"""
    s_lshl_b32 s{S_T0}, s{S_WN}, 8
    s_add_u32 s{S_T0}, s{S_T0}, {SCR}
    v_lshlrev_b32 v{V_TMP}, 4, v{V_H}
    v_add_u32 v{V_TMP}, s{S_T0}, v{V_TMP}
    """)
    for i in range(2):
        for g in range(4):
            A(f"ds_read_b128 {v(V_E+16*i+4*g,4)}, v{V_TMP} offset:{128*i + 32*g}")
    LF = "L_wide_ffn"
    A(f"s_cmp_eq_u32 s{S_MODE}, 3")
    A(f"s_cbranch_scc1 {LF}")
    A(f"""
    s_mul_i32 s{S_T0}, s{S_MODE}, 640
    s_sub_u32 s{S_T0}, s{S_N0}, s{S_T0}
    s_lshl_b32 s{S_T1}, s{S_WN}, 6
    s_add_u32 s{S_T0}, s{S_T0}, s{S_T1}
    v_lshlrev_b32 v{V_TMP}, 2, v{V_H}
    v_add_u32 v{V_TMP}, s{S_T0}, v{V_TMP}
    s_movk_i32 s{S_T1}, 3277
    """)
    VA = V_E + 32
    for i in range(2):
        for g in range(4):
            r = VA + 4*i + g
            A(f"""
            v_add_u32 v{V_TMP+1}, {32*i+8*g}, v{V_TMP}
            v_mul_u32_u24 v{V_TMP+2}, s{S_T1}, v{V_TMP+1}
            v_lshrrev_b32 v{V_TMP+2}, 16, v{V_TMP+2}
            v_mul_u32_u24 v{V_TMP+3}, 20, v{V_TMP+2}
            v_sub_u32 v{V_TMP+3}, v{V_TMP+1}, v{V_TMP+3}
            v_mul_u32_u24 v{r}, {64*1280}, v{V_TMP+2}
            v_lshrrev_b32 v{V_TMP+4}, 3, v{V_TMP+3}
            v_lshlrev_b32 v{V_TMP+4}, 9, v{V_TMP+4}
            v_add_u32 v{r}, v{r}, v{V_TMP+4}
            v_bfe_u32 v{V_TMP+4}, v{V_TMP+3}, 2, 1
            v_lshlrev_b32 v{V_TMP+4}, 3, v{V_TMP+4}
            v_add_u32 v{r}, v{r}, v{V_TMP+4}
            v_cmp_eq_u32 vcc, 16, v{V_TMP+3}
            v_lshlrev_b32 v{V_TMP+4}, 4, v{V_T}
            v_lshlrev_b32 v{V_TMP+5}, 3, v{V_T}
            v_cndmask_b32 v{V_TMP+4}, v{V_TMP+4}, v{V_TMP+5}, vcc
            v_add_u32 v{r}, v{r}, v{V_TMP+4}
            """)
    A(f"""
    s_lshl_b32 s{S_T0}, s{S_TB}, 2
    s_lshl_b32 s{S_T1}, s{S_WT}, 1
    s_add_u32 s{S_T0}, s{S_T0}, s{S_T1}
    s_mul_i32 s{S_T0}, s{S_T0}, 1280
    s_waitcnt lgkmcnt(0)
    """)
    VP = V_E + 40
    for i in range(2):
        for ip in range(2):
            c = acc(i, ip)
            for p in range(8):
                A(f"v_pk_fma_f32 {v(c+2*p,2)}, {v(V_E+16*i+2*p,2)}, {v(V_NB+2*ip,2)}, {v(c+2*p,2)}")
            for p in range(8):
                A(f"v_pk_mul_f32 {v(c+2*p,2)}, {v(c+2*p,2)}, {v(V_AA+2*ip,2)}")
            pk = VP + 8*((2*i+ip) & 1)
            for p in range(8):
                A(f"v_cvt_pk_bf16_f32 v{pk+p}, v{c+2*p}, v{c+2*p+1}")
            for g in range(4):
                A(f"buffer_store_dwordx2 {v(pk+2*g,2)}, v{VA+4*i+g}, s[{S_OUT}:{S_OUT+3}], s{S_T0} offen offset:{1280*ip}")
    A(f"s_branch {END}")
    A.label(LF)
    A(f"""
    s_lshl_b32 s{S_T0}, s{S_WN}, 6
    s_add_u32 s{S_T0}, s{S_T0}, s{S_N0}
    s_cmp_ge_u32 s{S_T0}, {F}
    s_cbranch_scc1 {END}
    s_lshr_b32 s{S_T0}, s{S_T0}, 4
    s_lshl_b32 s{S_T1}, s{S_TB}, 2
    s_lshl_b32 s{S_T2}, s{S_WT}, 1
    s_add_u32 s{S_T1}, s{S_T1}, s{S_T2}
    s_mul_i32 s{S_T1}, s{S_T1}, 108
    s_add_u32 s{S_T0}, s{S_T0}, s{S_T1}
    s_lshl_b32 s{S_T0}, s{S_T0}, 10
    s_add_u32 s{S_T1}, s{S_T0}, {108*1024}
    s_waitcnt lgkmcnt(0)
    """)
    VZ = V_E + 32
    VP = V_E + 48
    for ip in range(2):
        for i in range(2):
            c = acc(i, ip)
            for p in range(8):
                A(f"v_pk_fma_f32 {v(c+2*p,2)}, {v(V_E+16*i+2*p,2)}, {v(V_NB+2*ip,2)}, {v(c+2*p,2)}")
            for p in range(8):
                A(f"v_pk_mul_f32 {v(VZ+2*p,2)}, {v(c+2*p,2)}, {v(V_A2+2*ip,2)}")
            for r in range(16):
                A(f"v_exp_f32 v{VZ+r}, v{VZ+r}")
                if r % 2 == 1: A(f"v_pk_mul_f32 {v(c+r-1,2)}, {v(c+r-1,2)}, {v(V_AA+2*ip,2)}")
            for p in range(8):
                A(f"v_pk_add_f32 {v(VZ+2*p,2)}, {v(VZ+2*p,2)}, 1.0 op_sel_hi:[1,0]")
            for r in range(16):
                A(f"v_rcp_f32 v{VZ+r}, v{VZ+r}")
            for p in range(8):
                A(f"v_pk_mul_f32 {v(c+2*p,2)}, {v(c+2*p,2)}, {v(VZ+2*p,2)}")
            pk = VP + 8*i
            for p in range(8):
                A(f"v_cvt_pk_bf16_f32 v{pk+p}, v{c+2*p}, v{c+2*p+1}")
            so = S_T0 if ip == 0 else S_T1
            off0 = f" offset:{2048*i}" if i else ""
            A(f"buffer_store_dwordx4 {v(pk,4)}, v{V_XD}, s[{S_OUT}:{S_OUT+3}], s{so} offen{off0}")
            A(f"buffer_store_dwordx4 {v(pk+4,4)}, v{V_XD}, s[{S_OUT}:{S_OUT+3}], s{so} offen offset:{2048*i+1024}")
    A(f"s_branch {END}")
    A.label(LV)
    mainloop(A, False, "v")
    A(f"""
    s_lshl_b32 s{S_T0}, s{S_WN}, 6
    v_add_u32 v{V_TMP}, s{S_T0}, v{V_T}
    v_lshlrev_b32 v{V_TMP+1}, 2, v{V_TMP}
    v_add_u32 v{V_TMP+1}, {SCR}, v{V_TMP+1}
    ds_read_b32 v{V_E+64}, v{V_TMP+1}
    ds_read_b32 v{V_E+66}, v{V_TMP+1} offset:128
    s_sub_u32 s{S_T0}, s{S_N0}, 1280
    v_add_u32 v{V_TMP}, s{S_T0}, v{V_TMP}
    s_movk_i32 s{S_T1}, 3277
    """)
    VA = V_E + 68
    for i in range(2):
        A(f"""
        v_add_u32 v{V_TMP+1}, {32*i}, v{V_TMP}
        v_mul_u32_u24 v{V_TMP+2}, s{S_T1}, v{V_TMP+1}
        v_lshrrev_b32 v{V_TMP+2}, 16, v{V_TMP+2}
        v_mul_u32_u24 v{V_TMP+3}, 20, v{V_TMP+2}
        v_sub_u32 v{V_TMP+3}, v{V_TMP+1}, v{V_TMP+3}
        v_mul_u32_u24 v{VA+i}, {64*1280}, v{V_TMP+2}
        v_mul_u32_u24 v{V_TMP+4}, 20, v{V_H}
        v_add_u32 v{V_TMP+4}, v{V_TMP+4}, v{V_TMP+3}
        v_lshlrev_b32 v{V_TMP+4}, 4, v{V_TMP+4}
        v_add_u32 v{VA+i}, v{VA+i}, v{V_TMP+4}
        """)
    A(f"""
    s_lshl_b32 s{S_T0}, s{S_TB}, 2
    s_lshl_b32 s{S_T1}, s{S_WT}, 1
    s_add_u32 s{S_T0}, s{S_T0}, s{S_T1}
    s_mul_i32 s{S_T0}, s{S_T0}, 1280
    s_lshl_b32 s{S_T1}, s{S_WT}, 8
    s_add_u32 s{S_T1}, s{S_T1}, {SCR+512}
    v_lshlrev_b32 v{V_TMP}, 4, v{V_H}
    v_add_u32 v{V_TMP}, s{S_T1}, v{V_TMP}
    """)
    for ip in range(2):
        for g in range(4):
            A(f"ds_read_b128 {v(V_E+32*ip+4*g,4)}, v{V_TMP} offset:{128*ip + 32*g}")
            A(f"ds_read_b128 {v(V_E+32*ip+16+4*g,4)}, v{V_TMP} offset:{512 + 128*ip + 32*g}")
    A("s_waitcnt lgkmcnt(0)")
    A(f"""
    v_sub_f32 v{V_E+64}, 0, v{V_E+64}
    v_sub_f32 v{V_E+66}, 0, v{V_E+66}
    v_mov_b32 v{V_E+65}, v{V_E+64}
    v_mov_b32 v{V_E+67}, v{V_E+66}
    """)
    VP = V_E + 72
    for ip in range(2):
        for i in range(2):
            c = acc(i, ip)
            for p in range(8):
                A(f"v_pk_mul_f32 {v(c+2*p,2)}, {v(c+2*p,2)}, {v(V_E+32*ip+2*p,2)}")
            for p in range(8):
                A(f"v_pk_fma_f32 {v(c+2*p,2)}, {v(V_E+32*ip+16+2*p,2)}, {v(V_E+64+2*i,2)}, {v(c+2*p,2)}")
            pk = VP + 8*i
            for p in range(8):
                A(f"v_cvt_pk_bf16_f32 v{pk+p}, v{c+2*p}, v{c+2*p+1}")
            A(f"buffer_store_dwordx4 {v(pk,4)}, v{VA+i}, s[{S_OUT}:{S_OUT+3}], s{S_T0} offen offset:{1280*ip}")
            A(f"buffer_store_dwordx4 {v(pk+4,4)}, v{VA+i}, s[{S_OUT}:{S_OUT+3}], s{S_T0} offen offset:{1280*ip+640}")
    A.label(END)
    A("s_endpgm")
    return A, descs, names
```

```python
T=2048; D=640; H=32; DH=20; F=1728
XSZ = T*D*2
XF = [0x000000, 0x280000, 0x500000, 0x780000]
STSZ = T*16*8
ST = [0xA00000, 0xA40000, 0xA80000, 0xAC0000]
QF = 0xB00000; KF = 0xD80000; VF = 0x1000000; OF = 0x1280000
HF = 0x1500000; HSZ = T*F*2
CSQ = 0x1BC0000; CSQSZ = 4*1920*4
CS1 = 0x1BC8000; CS1SZ = 4*1728*4
KA_X=0; KA_WQKV=8; KA_WO=16; KA_W1=32; KA_W2=40; KA_OUT=48; KA_DBG=56; KA_WS=64
SRD3 = 0x00020000
WOP = 0x1C00000; WOPSZ = 640*1280
W2P = 0x1D00000; W2PSZ = 1728*1280
```

```python
import sys; sys.path.insert(0,'gen')
from build import *
import k_wide, k_attn, k_narrow
def make(path, extra_launches=[]):
    P,pd,pl=k_prep.gen_prep()
    A,d,wn=k_wide.gen_wide()
    T_,td,tn=k_attn.gen_attn()
    N,nd,nn=k_narrow.gen_narrow()
    WL=k_wide.LDS_BYTES; AL=k_attn.LDS_BYTES; NL=k_narrow.LDS_BYTES
    launches=[('prep_kernel',256,256,pl),
      ('qkv1_kernel',256,256,WL),('attn_kernel',256,256,AL),('oproj1_kernel',256,256,NL),('ffa1_kernel',256,256,WL),('ffb1_kernel',256,256,NL),
      ('qkv2_kernel',256,256,WL),('attn_kernel',256,256,AL),('oproj2_kernel',256,256,NL),('ffa2_kernel',256,256,WL),('ffb2_kernel',256,256,NL)]
    t,n=assemble([(P,pd),(A,d),(T_,td),(N,nd)],launches+extra_launches)
    open(path,'w').write(t); print('nops',n, len(t.splitlines()), len(t))
if __name__=="__main__":
    make('cur.s')
```

```python
import sys; sys.path.insert(0,'gen')
from mkall import *
import build
from k_prep import descriptor, entry
def make2(path, nempty, dup=None):
    P,pd,pl=k_prep.gen_prep()
    A,d,wn=k_wide.gen_wide()
    T_,td,tn=k_attn.gen_attn()
    N,nd,nn=k_narrow.gen_narrow()
    E=Asm(); entry(E,'empty_kernel'); E("s_endpgm"); ed=descriptor('empty_kernel',8,16)
    WL=k_wide.LDS_BYTES; AL=k_attn.LDS_BYTES; NL=k_narrow.LDS_BYTES
    launches=[('prep_kernel',256,256,pl),
      ('qkv1_kernel',256,256,WL),('attn_kernel',256,256,AL),('oproj1_kernel',256,256,NL),('ffa1_kernel',256,256,WL),('ffb1_kernel',256,256,NL),
      ('qkv2_kernel',256,256,WL),('attn_kernel',256,256,AL),('oproj2_kernel',256,256,NL),('ffa2_kernel',256,256,WL),('ffb2_kernel',256,256,NL)]
    if dup is not None:
        L=[]
        for i,l in enumerate(launches):
            L.append(l)
            if i in dup: L.append(l)
        launches=L
    launches = launches[:1] + [('empty_kernel',256,256,0)]*nempty + launches[1:]
    t,n=assemble([(P,pd),(A,d),(T_,td),(N,nd),(E,ed)],launches)
    open(path,'w').write(t)
make2('e10.s',10)
make2('dup_attn.s',0,dup=[2,7])
make2('dup_qkv.s',0,dup=[1,6])
make2('dup_ffb.s',0,dup=[5,10])
make2('dup_prep.s',0,dup=[0])
```

```python
import re

class Asm:
    def __init__(self):
        self.lines = []
        self._lab = 0
    def __call__(self, text):
        for l in text.split("\n"):
            l = l.strip()
            if l:
                self.lines.append(l)
    def label(self, name):
        self.lines.append(name + ":")
    def newlabel(self, base):
        self._lab += 1
        return f"L_{base}_{self._lab}"
    def text(self):
        out = []
        for l in self.lines:
            if l.endswith(":") or l.startswith("."):
                out.append(l)
            else:
                out.append("    " + l)
        return "\n".join(out) + "\n"

def v(i, n=1):
    return f"v{i}" if n == 1 else f"v[{i}:{i+n-1}]"
def s(i, n=1):
    return f"s{i}" if n == 1 else f"s[{i}:{i+n-1}]"
def a(i, n=1):
    return f"a{i}" if n == 1 else f"a[{i}:{i+n-1}]"

class Regs:
    def __init__(self, start, limit, kind):
        self.next = start; self.limit = limit; self.kind = kind; self.names = {}
    def alloc(self, name, n=1, align=1):
        self.next = (self.next + align - 1) // align * align
        r = self.next
        self.next += n
        assert self.next <= self.limit, f"out of {self.kind} regs at {name}"
        self.names[name] = (r, n)
        return r

_REG = re.compile(r"^(-?\|?|abs\()?([vsa])(\d+)\)?\|?$")
_RNG = re.compile(r"^-?([vsa])\[(\d+):(\d+)\]$")
def regs_of(op):
    op = op.strip()
    m = _RNG.match(op)
    if m:
        return {(m.group(1), i) for i in range(int(m.group(2)), int(m.group(3)) + 1)}
    m = _REG.match(op)
    if m:
        return {(m.group(2), int(m.group(3)))}
    if op in ("vcc", "vcc_lo", "vcc_hi"):
        return {("s", 106), ("s", 107)}
    if op in ("exec", "exec_lo", "exec_hi"):
        return {("x", 0)}
    if op == "m0":
        return {("m", 0)}
    return set()

TRANS = ("v_exp_", "v_log_", "v_rcp_", "v_rsq_", "v_sqrt_", "v_sin_", "v_cos_")
NO_DST_SALU = ("s_cmp", "s_waitcnt", "s_barrier", "s_branch", "s_nop", "s_cbranch", "s_bitcmp", "s_setprio",
               "s_endpgm", "s_sleep", "s_setreg", "s_sendmsg", "s_inst", "s_set_gpr")

class Ins:
    __slots__ = ("text", "op", "kind", "defs", "uses", "passes", "A", "B", "C", "trans", "dpp", "perm", "rdlane",
                 "wide_store", "ldsdma", "nops", "sdefs", "suses", "target", "isbranch", "uncond", "label", "storedata", "mask")
    def __init__(self, text):
        self.text = text
        self.label = None
        if text.endswith(":"):
            self.label = text[:-1]; self.kind = "label"; self.op = ""; self.defs = set(); self.uses = set(); self.isbranch = False
            self.uncond = False; self.target = None; self.nops = 0
            return
        t = text.split(";")[0].strip()
        parts = t.split(None, 1)
        op = parts[0]; self.op = op
        rest = parts[1] if len(parts) > 1 else ""
        ops = []; depth = 0; cur = ""
        for ch in rest:
            if ch == "[": depth += 1
            if ch == "]": depth -= 1
            if ch == "," and depth == 0:
                ops.append(cur.strip()); cur = ""
            else:
                cur += ch
        if cur.strip(): ops.append(cur.strip())
        mods = ""
        if ops:
            lastparts = ops[-1].split()
            ops[-1] = lastparts[0]
            mods = " ".join(lastparts[1:])
        self.defs = set(); self.uses = set(); self.passes = 0
        self.A = self.B = self.C = set()
        self.trans = False; self.dpp = False; self.perm = False; self.rdlane = False
        self.wide_store = False; self.ldsdma = False; self.nops = 1
        self.target = None; self.isbranch = False; self.uncond = False; self.storedata = set(); self.mask = set()
        R = [regs_of(o) for o in ops]
        if op.startswith("."):
            self.kind = "dir"; self.nops = 0
        elif op.startswith("v_mfma"):
            self.kind = "mfma"
            self.defs = set(R[0]); self.A = R[1]; self.B = R[2]; self.C = R[3] if len(R) > 3 else set()
            self.uses = self.A | self.B | self.C
            if "32x32x16" in op or "32x32x8" in op: self.passes = 8
            elif "16x16x32" in op or "16x16x16" in op: self.passes = 4
            else: raise ValueError("unknown mfma " + op)
        elif op.startswith("v_"):
            self.kind = "valu"
            self.trans = op.startswith(TRANS)
            self.dpp = ("row_" in mods or "quad_perm" in mods or "wave_" in mods or "row_" in rest) and "dpp" in op
            if op.startswith("v_permlane"):
                self.perm = True
                self.defs = R[0] | R[1]; self.uses = R[0] | R[1]
            elif op.startswith("v_cmp"):
                self.defs = set(R[0]); self.uses = set().union(*R[1:])
            elif op.startswith("v_readfirstlane") or op.startswith("v_readlane"):
                self.rdlane = True
                self.defs = set(R[0]); self.uses = set().union(*R[1:])
            elif op.startswith(("v_add_co", "v_sub_co", "v_addc_co", "v_subb_co")):
                self.defs = R[0] | R[1]; self.uses = set().union(*R[2:])
            else:
                self.defs = set(R[0]); self.uses = set().union(*R[1:]) if len(R) > 1 else set()
                if op.startswith(("v_fmac", "v_dot2c", "v_mac", "v_pk_fmac", "v_writelane", "v_accvgpr_write")) or "UNUSED_PRESERVE" in mods:
                    if not op.startswith("v_accvgpr_write"): self.uses |= R[0]
                if op.startswith("v_cndmask") and len(R) > 3:
                    self.mask = set(R[3])
        elif op.startswith(("buffer_", "global_")):
            self.kind = "vmem"
            islds = bool(re.search(r"\blds\b", mods)) or op.startswith("global_load_lds")
            if "load" in op:
                if islds:
                    self.ldsdma = True
                    self.uses = set().union(*R)
                    self.uses |= {("m", 0)}
                else:
                    self.defs = set(R[0]); self.uses = set().union(*R[1:])
            elif "store" in op:
                if op.startswith("buffer_"):
                    self.storedata = set(R[0])
                else:
                    self.storedata = set(R[1])
                self.uses = set().union(*R)
                self.wide_store = op.endswith(("x3", "x4"))
            elif "atomic" in op:
                self.uses = set().union(*R)
                if "sc0" in mods: self.defs = set(R[0])
            elif op.startswith(("buffer_wbl2", "buffer_inv")):
                pass
            else:
                raise ValueError("unknown vmem " + op)
        elif op.startswith("ds_"):
            self.kind = "ds"
            if op.startswith(("ds_read", "ds_bpermute", "ds_permute", "ds_swizzle")):
                self.defs = set(R[0]); self.uses = set().union(*R[1:])
            else:
                self.uses = set().union(*R)
        elif op.startswith("s_"):
            self.kind = "salu"
            if op == "s_nop":
                self.nops = int(ops[0], 0) + 1
            if op.startswith(("s_cbranch", "s_branch")):
                self.isbranch = True; self.target = ops[0]; self.uncond = op == "s_branch"
            elif op == "s_endpgm":
                self.isbranch = True; self.uncond = True; self.target = None
            elif op.startswith(("s_load", "s_memtime", "s_memrealtime", "s_getreg", "s_getpc")):
                self.defs = set(R[0]); self.uses = set().union(*R[1:]) if len(R) > 1 else set()
            elif op.startswith(NO_DST_SALU):
                self.uses = set().union(*R) if R else set()
            else:
                self.defs = set(R[0]); self.uses = set().union(*R[1:]) if len(R) > 1 else set()
        else:
            raise ValueError("unknown instruction: " + text)

def vregs(S): return {r for r in S if r[0] in "va"}
def sregs(S): return {r for r in S if r[0] == "s"}

def required(p, c):
    n = 0
    if p.kind == "valu":
        pv = vregs(p.defs); ps = sregs(p.defs)
        if c.kind == "mfma" and pv & c.uses: n = max(n, 2)
        if c.kind == "valu":
            if c.rdlane and pv & c.uses: n = max(n, 1)
            if c.perm and pv & c.uses: n = max(n, 2)
            if c.dpp and pv & c.uses: n = max(n, 2)
            if p.trans and not c.trans and pv & c.uses: n = max(n, 1)
            if ps & (sregs(c.uses)): n = max(n, 2)
        if c.kind in ("vmem",) and ps & c.uses: n = max(n, 5)
        if c.kind in ("vmem", "ds") and p.trans and pv & c.uses: n = max(n, 1)
        if c.kind == "salu" and ps & c.uses: n = max(n, 2)
    if p.kind == "mfma":
        D = p.defs
        big = {8: 12, 4: 8}[p.passes]
        if c.kind == "mfma":
            if D & c.C:
                if c.C == D and c.passes == p.passes: pass
                else: n = max(n, {8: 10, 4: 6}[p.passes])
            if D & (c.A | c.B): n = max(n, big)
            if (D & c.defs) and not (c.C == D and c.defs == D):
                n = max(n, {8: 10, 4: 6}[p.passes])
        elif c.kind == "valu":
            if D & (c.uses | c.defs): n = max(n, big)
            if p.C & c.defs: n = max(n, {8: 7, 4: 3}[p.passes])
        elif c.kind in ("vmem", "ds"):
            if D & (c.uses | c.defs): n = max(n, big)
    if p.kind == "salu":
        if ("m", 0) in p.defs and c.kind == "vmem" and c.ldsdma: n = max(n, 1)
    if p.kind == "vmem" and p.wide_store:
        if c.kind == "valu" and p.storedata & c.defs: n = max(n, 2)
        elif c.kind in ("vmem", "ds") and p.storedata & c.defs: n = max(n, 1)
    return n

def hazard_pass(lines, verbose=False, maxwin=14):
    total_inserted = 0
    for _iter in range(2000):
        ins = [Ins(l) for l in lines]
        labels = {x.label: i for i, x in enumerate(ins) if x.label}
        preds = [[] for _ in ins]
        for i, x in enumerate(ins):
            if i + 1 < len(ins) and not (x.kind != "label" and x.kind != "dir" and x.isbranch and x.uncond):
                preds[i + 1].append(i)
            if x.kind not in ("label", "dir") and x.isbranch and x.target is not None:
                if x.target in labels:
                    preds[labels[x.target]].append(i)
        inserts = {}
        for i, c in enumerate(ins):
            if c.kind in ("label", "dir"): continue
            need = 0; who = None
            stack = [(p, 0) for p in preds[i]]
            seen = {}
            while stack:
                j, dist = stack.pop()
                if dist >= maxwin: continue
                if seen.get(j, 99) <= dist: continue
                seen[j] = dist
                p = ins[j]
                if p.kind not in ("label", "dir"):
                    r = required(p, c)
                    if r - dist > need:
                        need = r - dist; who = p
                    nd = dist + p.nops
                else:
                    nd = dist
                for q in preds[j]: stack.append((q, nd))
            if need > 0:
                inserts[i] = (need, who)
        if not inserts:
            return lines, total_inserted
        new = []
        last = -10**9
        for i, l in enumerate(lines):
            if i in inserts and i - last > maxwin:
                last = i
                need, who = inserts[i]
                if verbose: print(f"hazard: +{need} before '{l}' after '{who.text}'")
                total_inserted += need
                k = need
                while k > 0:
                    m = min(k, 16)
                    new.append(f"s_nop {m-1}")
                    k -= m
            new.append(l)
        lines = new
    raise RuntimeError("hazard pass did not converge")

STAMP = False
STAMP_BASE = 64
STAMP_WS_OFF = 0x2000000
def stamp(A, i, real=False):
    if not STAMP: return
    A(f"s_mem{'real' if real else ''}time s[{STAMP_BASE+2*i}:{STAMP_BASE+2*i+1}]")
def stamp_flush(A, n, kid, ws=4):
    if not STAMP: return
    A("s_waitcnt lgkmcnt(0)")
    A(f"s_add_u32 s92, s{ws}, {hex(STAMP_WS_OFF + kid*0x20000)}")
    A(f"s_addc_u32 s93, s{ws+1}, 0")
    A("s_mov_b32 s94, 0x20000")
    A("s_mov_b32 s95, 0x20000")
    A("v_lshrrev_b32 v250, 6, v0")
    A("v_lshlrev_b32 v250, 6, v250")
    A("s_lshl_b32 s96, s2, 9")
    A("v_add_u32 v250, s96, v250")
    for i in range(n):
        A(f"v_mov_b32 v251, s{STAMP_BASE+2*i}")
        A(f"buffer_store_dword v251, v250, s[92:95], 0 offen offset:{4*i}")
    A("s_waitcnt vmcnt(0)")

def loader_schedule(nst, nslot, burst=2, first=2):
    out = []; issued = 0
    for j in range(-1, nst-1):
        n = 0; lim = first if j == -1 else burst
        while issued < nst and issued - nslot + 1 <= j and (n < lim or issued <= j + 1):
            issued += 1; n += 1
        out.append((n, issued - (j + 2)))
    return out
def emit_loader(A, sched, issue_fn, cnt, scnt, tag):
    i = 0; k = 0
    while i < len(sched):
        j = i
        while j < len(sched) and sched[j] == sched[i]: j += 1
        run = j - i; n, w = sched[i]
        def body():
            for _ in range(n): issue_fn(A)
            A(f"s_waitcnt vmcnt({cnt*w})")
            A("s_barrier")
        if run >= 3:
            L = f"L_{tag}_{k}"; k += 1
            A(f"s_mov_b32 s{scnt}, {run}")
            A.label(L)
            body()
            A(f"s_sub_u32 s{scnt}, s{scnt}, 1")
            A(f"s_cmp_lg_u32 s{scnt}, 0")
            A(f"s_cbranch_scc1 {L}")
        else:
            for _ in range(run): body()
        i = j
```

```python
from asmlib import *
from layout import *
from k_prep import srd, descriptor, entry, halfsum
from k2_wide import srd_off
import asmlib
EXPT = dict(noread=False, nomfma=False)

SLOT = 18432; NSLOT = 8
LDS_BYTES = SLOT*NSLOT
LDW = 1280
S_X=8; S_W=12; S_R=16; S_OUT=20; S_ST=24
S_WAVE=28; S_TB=29; S_CB=30; S_MODE=31; S_XOFF=32; S_WOFF=33; S_FREE=34; S_CUR=35; S_CNT=36
S_T0=37; S_T1=38; S_T2=39; S_WT=40; S_WK=41; S_OOB=42; S_XM0=43; S_WM0=44; S_NK=45; S_SLOT=48
S_XB=49; S_XSZ=50; S_RB=51; S_OB=52; S_STB=53; S_WSZ=54; S_NST=55; S_WB=56; S_SIG=57; S_XWR=58; S_WWR=59
V_LANE=1; V_H=2; V_T=3
V_XD=4; V_WR2=5; V_XR=8; V_WR=9
V_TMP=10; V_RES=20; V_FR=40; V_ACC=72; V_E=120

def frW(setn, b): return V_FR + 16*setn + 4*b
def frX(setn): return V_FR + 16*setn + 12
def acc(b): return V_ACC + 16*b
def reads(setn, j):
    L = []
    for b in range(3):
        for jj in range(2):
            if b < 2: L.append(f"ds_read_b64_tr_b16 {v(frW(setn,b)+2*jj,2)}, v{V_WR} offset:{j*5120 + jj*1280 + b*256}")
            else:     L.append(f"ds_read_b64_tr_b16 {v(frW(setn,b)+2*jj,2)}, v{V_WR2} offset:{j*5120 + jj*1280}")
    L.insert(2, f"ds_read_b128 {v(frX(setn),4)}, v{V_XR} offset:{j*2048}")
    return L
def mfmas(setn):
    return [f"v_mfma_f32_32x32x16_bf16 {v(acc(b),16)}, {v(frW(setn,b),4)}, {v(frX(setn),4)}, {v(acc(b),16)}" for b in range(3)]
def dma_x(k): return f"buffer_load_dwordx4 v{V_XD}, s[{S_X}:{S_X+3}], s{S_XOFF} offen" + (f" offset:{1024*k}" if k else "") + " lds"
def dma_w(k): return f"buffer_load_dwordx4 v{V_XD}, s[{S_W}:{S_W+3}], s{S_WOFF} offen" + (f" offset:{1024*k}" if k else "") + " lds"

ROT = False
def make_issue(nw):
    def issue_stage(A):
        A(f"s_add_u32 m0, s{S_FREE}, s{S_XM0}")
        A(f"s_add_u32 s{S_T0}, s{S_FREE}, s{S_WM0}")
        A(dma_x(0)); A(dma_x(1))
        A(f"s_mov_b32 m0, s{S_T0}")
        A(f"s_add_u32 s{S_XOFF}, s{S_XOFF}, 4096")
        for k in range(nw): A(dma_w(k))
        A(f"s_add_u32 s{S_WOFF}, s{S_WOFF}, 10240")
        A(f"s_add_u32 s{S_FREE}, s{S_FREE}, {SLOT}")
        A(f"s_cmp_eq_u32 s{S_FREE}, {SLOT*NSLOT}")
        A(f"s_cselect_b32 s{S_FREE}, 0, s{S_FREE}")
        if ROT:
            A(f"s_add_u32 s{S_SIG}, s{S_SIG}, 1")
            A(f"s_cmp_eq_u32 s{S_SIG}, s{S_NST}")
            A(f"s_cselect_b32 s{S_T1}, s{S_XWR}, 0")
            A(f"s_cselect_b32 s{S_T2}, s{S_WWR}, 0")
            A(f"s_cselect_b32 s{S_SIG}, 0, s{S_SIG}")
            A(f"s_sub_u32 s{S_XOFF}, s{S_XOFF}, s{S_T1}")
            A(f"s_sub_u32 s{S_WOFF}, s{S_WOFF}, s{S_T2}")
    return issue_stage

def stage(A0, last=False):
    def A(x):
        if EXPT['noread'] and x.startswith('ds_read'): return
        if EXPT['nomfma'] and x.startswith('v_mfma'): return
        A0(x)
    M = mfmas(0); R = reads(1, 1)
    A("s_waitcnt lgkmcnt(0)")
    A(M[0]); A(R[0]); A(R[1]); A(R[2])
    A(M[1]); A(R[3]); A(R[4])
    A(M[2]); A(R[5]); A(R[6])
    M = mfmas(1)
    A("s_waitcnt lgkmcnt(0)")
    if last:
        for m in M: A(m)
        return
    A(M[0])
    A(f"s_add_u32 s{S_CUR}, s{S_CUR}, {SLOT}")
    A(f"s_cmp_eq_u32 s{S_CUR}, {SLOT*NSLOT}")
    A(f"s_cselect_b32 s{S_T1}, {hex(-SLOT*(NSLOT-1) & 0xffffffff)}, s{S_SLOT}")
    A(f"s_cselect_b32 s{S_CUR}, 0, s{S_CUR}")
    A(f"v_add_u32 v{V_XR}, s{S_T1}, v{V_XR}")
    A(f"v_add_u32 v{V_WR}, s{S_T1}, v{V_WR}")
    A(f"v_add_u32 v{V_WR2}, s{S_T1}, v{V_WR2}")
    A("s_barrier")
    R = reads(0, 0)
    A(R[0]); A(R[1]); A(R[2])
    A(M[1])
    A(R[3]); A(R[4]); A(R[5]); A(R[6])
    A(M[2])

def gen_narrow2():
    A = Asm(); descs = ""; names = []
    COMMON = "L_n2_common"; END = "L_n2_end"; LOADER = "L_n2_loader"
    variants = [
        ("oproj1_kernel", OF, XSZ, 640,  WOP, 0, 1),
        ("ffb1_kernel",   HF, HSZ, F,    W2P, 1, 2),
        ("oproj2_kernel", OF, XSZ, 640,  WOP, 2, 3),
        ("ffb2_kernel",   HF, HSZ, F,    W2P, 3, None),
    ]
    for (name, xb, xsz, K, kaw, ri, oi) in variants:
        names.append(name)
        entry(A, name)
        stamp(A, 0); stamp(A, 6, True)
        A(f"""
        s_load_dwordx2 s[4:5], s[0:1], {KA_WS}
        s_load_dwordx2 s[46:47], s[0:1], {KA_OUT}
        s_cmp_ge_u32 s2, 256
        s_cbranch_scc1 {END}
        s_and_b32 s{S_T0}, s2, 7
        s_lshr_b32 s{S_T1}, s2, 3
        s_and_b32 s{S_TB}, s{S_T0}, 3
        s_lshl_b32 s{S_TB}, s{S_TB}, 3
        s_and_b32 s{S_T2}, s{S_T1}, 7
        s_add_u32 s{S_TB}, s{S_TB}, s{S_T2}
        s_lshr_b32 s{S_T0}, s{S_T0}, 2
        s_lshl_b32 s{S_T0}, s{S_T0}, 2
        s_lshr_b32 s{S_T1}, s{S_T1}, 3
        s_add_u32 s{S_CB}, s{S_T0}, s{S_T1}
        s_mov_b32 s{S_NK}, {K//16}
        s_mov_b32 s{S_NST}, {K//64}
        s_mov_b32 s{S_MODE}, {0 if oi is not None else 1}
        s_mov_b32 s{S_XB}, {hex(xb)}
        s_mov_b32 s{S_XSZ}, {xsz}
        s_mov_b32 s{S_WSZ}, {K*LDW}
        s_mov_b32 s{S_WB}, {hex(kaw)}
        s_mov_b32 s{S_RB}, {hex(XF[ri])}
        s_mov_b32 s{S_OB}, {hex(XF[oi]) if oi is not None else 0}
        s_mov_b32 s{S_STB}, {hex(ST[oi]) if oi is not None else 0}
        s_branch {COMMON}
        """)
        descs += descriptor(name, 160, 64)
    A(".p2align 6")
    A.label(COMMON)
    A(f"""
    v_lshrrev_b32 v{V_TMP}, 6, v0
    v_and_b32 v{V_LANE}, 63, v0
    v_readfirstlane_b32 s{S_WAVE}, v{V_TMP}
    v_lshlrev_b32 v{V_XD}, 4, v{V_LANE}
    s_mov_b32 s{S_SLOT}, {SLOT}
    s_cmp_ge_u32 s{S_WAVE}, 4
    s_cbranch_scc1 {LOADER}
    """)
    A(f"""
    v_lshrrev_b32 v{V_H}, 5, v{V_LANE}
    v_and_b32 v{V_T}, 31, v{V_LANE}
    s_and_b32 s{S_WT}, s{S_WAVE}, 1
    s_lshr_b32 s{S_WK}, s{S_WAVE}, 1
    s_lshl_b32 s{S_T0}, s{S_TB}, 1
    s_add_u32 s{S_T0}, s{S_T0}, s{S_WT}
    s_mul_i32 s{S_T0}, s{S_T0}, 40
    s_mul_i32 s{S_T1}, s{S_CB}, 5
    s_add_u32 s{S_T0}, s{S_T0}, s{S_T1}
    s_lshl_b32 s{S_T0}, s{S_T0}, 10
    s_add_u32 s{S_T1}, s{S_T0}, 4096
    s_mov_b32 s{S_CUR}, 0
    s_waitcnt lgkmcnt(0)
    """)
    srd_off(A, S_R, 4, S_RB, XSZ)
    for k in range(4):
        A(f"buffer_load_dwordx4 {v(V_RES+4*k,4)}, v{V_XD}, s[{S_R}:{S_R+3}], s{S_T0} offen" + (f" offset:{1024*k}" if k else ""))
    A(f"buffer_load_dwordx4 {v(V_RES+16,4)}, v{V_XD}, s[{S_R}:{S_R+3}], s{S_T1} offen")
    A(f"""
    s_cmp_eq_u32 s{S_MODE}, 1
    s_cselect_b32 s{S_OUT}, s46, s4
    s_cselect_b32 s{S_OUT+1}, s47, s5
    s_add_u32 s{S_OUT}, s{S_OUT}, s{S_OB}
    s_addc_u32 s{S_OUT+1}, s{S_OUT+1}, 0
    s_mov_b32 s{S_OUT+2}, {XSZ}
    s_mov_b32 s{S_OUT+3}, 0x20000
    """)
    srd_off(A, S_ST, 4, S_STB, STSZ)
    A(f"""
    s_lshl_b32 s{S_T0}, s{S_WT}, 12
    s_lshl_b32 s{S_T1}, s{S_WK}, 10
    s_add_u32 s{S_T0}, s{S_T0}, s{S_T1}
    v_add_u32 v{V_XR}, s{S_T0}, v{V_XD}
    s_lshl_b32 s{S_T0}, s{S_WK}, 2
    v_add_u32 v{V_TMP}, s{S_T0}, v{V_H}
    v_mul_u32_u24 v{V_WR}, 640, v{V_TMP}
    v_add_u32 v{V_WR}, 8192, v{V_WR}
    v_and_b32 v{V_TMP}, 3, v{V_LANE}
    v_lshlrev_b32 v{V_TMP}, 3, v{V_TMP}
    v_add_u32 v{V_WR}, v{V_WR}, v{V_TMP}
    v_bfe_u32 v{V_TMP}, v{V_LANE}, 2, 2
    v_lshlrev_b32 v{V_TMP+1}, 5, v{V_TMP}
    v_add_u32 v{V_WR2}, v{V_WR}, v{V_TMP+1}
    v_add_u32 v{V_WR2}, 512, v{V_WR2}
    v_lshlrev_b32 v{V_TMP}, 6, v{V_TMP}
    v_add_u32 v{V_WR}, v{V_WR}, v{V_TMP}
    v_bfe_u32 v{V_TMP}, v{V_LANE}, 4, 1
    v_lshlrev_b32 v{V_TMP}, 5, v{V_TMP}
    v_add_u32 v{V_WR}, v{V_WR}, v{V_TMP}
    """)
    for r in range(48): A(f"v_mov_b32 v{V_ACC+r}, 0")
    A(f"s_sub_u32 s{S_CNT}, s{S_NST}, 1")
    stamp(A, 1)
    A("s_barrier")
    stamp(A, 2)
    for r in reads(0, 0): A(r)
    L = "L_n2_loop"
    A(".p2align 4")
    A.label(L)
    stage(A)
    A(f"s_sub_u32 s{S_CNT}, s{S_CNT}, 1")
    A(f"s_cmp_lg_u32 s{S_CNT}, 0")
    A(f"s_cbranch_scc1 {L}")
    stage(A, last=True)
    stamp(A, 3)
    A("s_barrier")
    A(f"""
    s_mul_i32 s{S_T0}, s{S_WAVE}, 6144
    v_add_u32 v{V_TMP}, s{S_T0}, v{V_XD}
    s_xor_b32 s{S_T1}, s{S_WAVE}, 2
    s_mul_i32 s{S_T1}, s{S_T1}, 6144
    v_add_u32 v{V_TMP+1}, s{S_T1}, v{V_XD}
    s_lshl_b32 s{S_T0}, s{S_TB}, 1
    s_add_u32 s{S_T0}, s{S_T0}, s{S_WT}
    s_mul_i32 s{S_T1}, s{S_T0}, 40
    s_mul_i32 s{S_T2}, s{S_CB}, 5
    s_add_u32 s{S_T1}, s{S_T1}, s{S_T2}
    s_lshl_b32 s{S_T1}, s{S_T1}, 10
    """)
    def areg(k): return acc(k >> 1) + 8*(k & 1)
    W1 = "L_n2_wk1"
    A(f"s_cmp_eq_u32 s{S_WK}, 0")
    A(f"s_cbranch_scc0 {W1}")
    for wk in range(2):
        if wk == 1: A.label(W1)
        keep = (0, 1, 2) if wk == 0 else (3, 4)
        send = (3, 4) if wk == 0 else (0, 1, 2)
        for j, k in enumerate(send):
            A(f"ds_write_b128 v{V_TMP}, {v(areg(k),4)} offset:{2048*j}")
            A(f"ds_write_b128 v{V_TMP}, {v(areg(k)+4,4)} offset:{2048*j+1024}")
        A("s_waitcnt lgkmcnt(0)")
        A("s_barrier")
        for j, k in enumerate(keep):
            A(f"ds_read_b128 {v(V_E+8*j,4)}, v{V_TMP+1} offset:{2048*j}")
            A(f"ds_read_b128 {v(V_E+8*j+4,4)}, v{V_TMP+1} offset:{2048*j+1024}")
        A(f"v_mov_b32 v{V_TMP+2}, 0")
        A(f"v_mov_b32 v{V_TMP+3}, 0")
        A("s_waitcnt vmcnt(0) lgkmcnt(0)")
        for j, k in enumerate(keep):
            a_ = areg(k); p_ = V_E + 8*j; r_ = V_RES + 4*k
            for pr in range(4):
                A(f"v_pk_add_f32 {v(a_+2*pr,2)}, {v(a_+2*pr,2)}, {v(p_+2*pr,2)}")
            for pr in range(4):
                A(f"v_lshlrev_b32 v{p_+2*pr}, 16, v{r_+pr}")
                A(f"v_and_b32 v{p_+2*pr+1}, 0xffff0000, v{r_+pr}")
            for pr in range(4):
                A(f"v_pk_add_f32 {v(a_+2*pr,2)}, {v(a_+2*pr,2)}, {v(p_+2*pr,2)}")
            for pr in range(4):
                A(f"v_cvt_pk_bf16_f32 v{r_+pr}, v{a_+2*pr}, v{a_+2*pr+1}")
        OUTF = f"L_n2_rowmajor_{wk}"
        A(f"s_cmp_eq_u32 s{S_MODE}, 1")
        A(f"s_cbranch_scc1 {OUTF}")
        for j, k in enumerate(keep):
            r_ = V_RES + 4*k
            if k < 4:
                A(f"buffer_store_dwordx4 {v(r_,4)}, v{V_XD}, s[{S_OUT}:{S_OUT+3}], s{S_T1} offen" + (f" offset:{1024*k}" if k else ""))
            else:
                A(f"s_add_u32 s{S_T2}, s{S_T1}, 4096")
                A(f"buffer_store_dwordx4 {v(r_,4)}, v{V_XD}, s[{S_OUT}:{S_OUT+3}], s{S_T2} offen")
        for j, k in enumerate(keep):
            a_ = areg(k)
            for x in range(8):
                A(f"v_add_f32 v{V_TMP+2}, v{V_TMP+2}, v{a_+x}")
                A(f"v_fmac_f32 v{V_TMP+3}, v{a_+x}, v{a_+x}")
        halfsum(A, V_TMP+2, V_TMP+4)
        halfsum(A, V_TMP+3, V_TMP+5)
        A(f"""
        s_lshl_b32 s{S_T0}, s{S_T0}, 12
        s_lshl_b32 s{S_T2}, s{S_CB}, 9
        s_add_u32 s{S_T0}, s{S_T0}, s{S_T2}
        s_add_u32 s{S_T0}, s{S_T0}, {8*wk}
        v_lshlrev_b32 v{V_TMP+4}, 4, v{V_T}
        buffer_store_dwordx2 {v(V_TMP+2,2)}, v{V_TMP+4}, s[{S_ST}:{S_ST+3}], s{S_T0} offen
        s_branch L_n2_fin
        """)
        A.label(OUTF)
        A(f"""
        s_lshl_b32 s{S_T0}, s{S_T0}, 5
        v_add_u32 v{V_TMP+4}, s{S_T0}, v{V_T}
        v_mul_u32_u24 v{V_TMP+4}, 1280, v{V_TMP+4}
        v_lshlrev_b32 v{V_TMP+5}, 4, v{V_H}
        v_add_u32 v{V_TMP+4}, v{V_TMP+4}, v{V_TMP+5}
        s_mul_i32 s{S_T2}, s{S_CB}, 160
        """)
        for j, k in enumerate(keep):
            r_ = V_RES + 4*k
            A(f"v_permlane32_swap_b32 v{r_}, v{r_+2}")
            A(f"v_permlane32_swap_b32 v{r_+1}, v{r_+3}")
        for j, k in enumerate(keep):
            r_ = V_RES + 4*k
            A(f"buffer_store_dwordx4 {v(r_,4)}, v{V_TMP+4}, s[{S_OUT}:{S_OUT+3}], s{S_T2} offen" + (f" offset:{32*k}" if k else ""))
        A(f"s_branch L_n2_fin")
    A.label("L_n2_fin")
    stamp(A, 4)
    if asmlib.STAMP: A("s_waitcnt vmcnt(0)")
    stamp(A, 5); stamp(A, 7, True)
    stamp_flush(A, 8, 3)
    A("s_endpgm")
    A(".p2align 6")
    A.label(LOADER)
    A(f"""
    s_sub_u32 s{S_WAVE}, s{S_WAVE}, 4
    s_mov_b32 s{S_OOB}, 0x7f000000
    s_and_b32 s{S_WT}, s{S_WAVE}, 1
    s_lshr_b32 s{S_WK}, s{S_WAVE}, 1
    s_lshl_b32 s{S_T0}, s{S_TB}, 1
    s_add_u32 s{S_T0}, s{S_T0}, s{S_WT}
    s_mul_i32 s{S_T0}, s{S_T0}, s{S_NK}
    s_lshl_b32 s{S_T1}, s{S_WK}, 1
    s_add_u32 s{S_T0}, s{S_T0}, s{S_T1}
    s_lshl_b32 s{S_XOFF}, s{S_T0}, 10
    s_lshl_b32 s{S_XM0}, s{S_WT}, 12
    s_lshl_b32 s{S_T1}, s{S_WK}, 11
    s_add_u32 s{S_XM0}, s{S_XM0}, s{S_T1}
    """)
    A(f"""
    s_mul_i32 s{S_T0}, s{S_WAVE}, 3072
    s_cmp_eq_u32 s{S_WAVE}, 3
    s_cselect_b32 s{S_T0}, 8192, s{S_T0}
    s_add_u32 s{S_WM0}, s{S_T0}, 8192
    s_lshl_b32 s{S_T1}, s{S_NK}, 2
    s_mul_i32 s{S_T1}, s{S_T1}, 640
    s_mul_i32 s{S_T1}, s{S_T1}, s{S_CB}
    s_add_u32 s{S_WOFF}, s{S_T1}, s{S_T0}
    s_mov_b32 s{S_FREE}, 0
    """)
    if ROT:
        A(f"""
        s_lshr_b32 s{S_T0}, s2, 3
        s_and_b32 s{S_T1}, s{S_T0}, 7
        s_lshr_b32 s{S_T0}, s{S_T0}, 3
        s_cmp_eq_u32 s{S_NST}, 10
        s_cselect_b32 s{S_T2}, 1, 3
        s_mul_i32 s{S_T1}, s{S_T1}, s{S_T2}
        s_cselect_b32 s{S_T2}, 3, 7
        s_mul_i32 s{S_T0}, s{S_T0}, s{S_T2}
        s_add_u32 s{S_SIG}, s{S_T0}, s{S_T1}
        s_cmp_ge_u32 s{S_SIG}, s{S_NST}
        s_cselect_b32 s{S_T0}, s{S_NST}, 0
        s_sub_u32 s{S_SIG}, s{S_SIG}, s{S_T0}
        s_lshl_b32 s{S_T0}, s{S_SIG}, 12
        s_add_u32 s{S_XOFF}, s{S_XOFF}, s{S_T0}
        s_mul_i32 s{S_T0}, s{S_SIG}, 10240
        s_add_u32 s{S_WOFF}, s{S_WOFF}, s{S_T0}
        s_lshl_b32 s{S_XWR}, s{S_NST}, 12
        s_mul_i32 s{S_WWR}, s{S_NST}, 10240
        """)
    A(f"""
    s_waitcnt lgkmcnt(0)
    s_add_u32 s{S_X}, s4, s{S_XB}
    s_addc_u32 s{S_X+1}, s5, 0
    s_mov_b32 s{S_X+2}, s{S_XSZ}
    s_mov_b32 s{S_X+3}, 0x20000
    s_add_u32 s{S_W}, s4, s{S_WB}
    s_addc_u32 s{S_W+1}, s5, 0
    s_mov_b32 s{S_W+2}, s{S_WSZ}
    s_mov_b32 s{S_W+3}, 0x20000
    """)
    for nw in (3, 2):
        for nst in (10, 27):
            nxt = f"L_n2_ld_next_{nw}_{nst}"
            A(f"s_cmp_lt_u32 s{S_WAVE}, 2")
            A(f"s_cbranch_scc{0 if nw == 3 else 1} {nxt}")
            A(f"s_cmp_eq_u32 s{S_NST}, {nst}")
            A(f"s_cbranch_scc0 {nxt}")
            emit_loader(A, loader_schedule(nst, NSLOT, burst=2, first=2), make_issue(nw), 2+nw, S_CNT, f"n2ld{nw}_{nst}")
            A("s_endpgm")
            A.label(nxt)
    A.label(END)
    A("s_endpgm")
    return A, descs, names
```

```python
from asmlib import *
from layout import *
from k_prep import srd, descriptor, entry, halfsum
import struct, asmlib
EXPT = dict(noread=False, nomfma=False)
def f2u(x): return struct.unpack("<I", struct.pack("<f", x))[0]

RING = 32768
SCR = 4*RING
LDS_BYTES = SCR + 2048
QSCALE = (DH ** -0.5) * 1.4426950408889634
NST = 10

S_X=8; S_W=12; S_ST=16; S_CS=20; S_OUT=24
S_WAVE=28; S_TB=29; S_CB=30; S_MODE=31; S_XOFF=32; S_WOFF=33; S_M0=34; S_WADV=35; S_FREE=36; S_CNT=37
S_LDW=38; S_N0=39; S_CSROW=40; S_T0=41; S_T1=42; S_T2=43; S_WN=44; S_WT=45; S_OOB=46
S_SIG=55; S_XWR=56; S_WWR=57
S_XB=48; S_STB=49; S_CSB=50; S_OUTB=51; S_WSZ=52; S_CSSZ=53; S_OUTSZ=54
V_LANE=1; V_H=2; V_T=3
V_XD=4; V_WD=5
V_XR=9; V_WR=10
V_TMP=11
V_AA=20; V_NB=24; V_A2=28
V_FR=32; V_ACC=64; V_E=128

def fr(setn, kind, i): return V_FR + 16*setn + (0 if kind == 'W' else 8) + 4*i
def acc(i, ip): return V_ACC + 16*(2*i + ip)
def reads(setn, step):
    L = []
    for i in range(2):
        for jj in range(2):
            L.append(f"ds_read_b64_tr_b16 {v(fr(setn,'W',i)+2*jj,2)}, v{V_WR} offset:{step*4096 + jj*2048 + i*256}")
        L.append(f"ds_read_b128 {v(fr(setn,'X',i),4)}, v{V_XR} offset:{i*4096 + step*1024}")
    return L
def mfmas(setn, trans):
    L = []
    for (i, ip) in ((0,0),(0,1),(1,0),(1,1)):
        w = v(fr(setn,'W',i),4); x = v(fr(setn,'X',ip),4); d = v(acc(i,ip),16)
        L.append(f"v_mfma_f32_32x32x16_bf16 {d}, {w}, {x}, {d}" if trans else f"v_mfma_f32_32x32x16_bf16 {d}, {x}, {w}, {d}")
    return L
def dma_x(k): return f"buffer_load_dwordx4 v{V_XD}, s[{S_X}:{S_X+3}], s{S_XOFF} offen" + (f" offset:{k*1024}" if k else "") + " lds"
def dma_w(k): return f"buffer_load_dwordx4 v{V_WD+k}, s[{S_W}:{S_W+3}], s{S_WOFF} offen" + (f" offset:{k*1024}" if k else "") + " lds"

ROT = False
def issue_stage(A):
    A(f"s_add_u32 m0, s{S_FREE}, s{S_M0}")
    A(f"s_add_u32 s{S_T0}, s{S_FREE}, s{S_M0}")
    for k in range(4): A(dma_x(k))
    A(f"s_add_u32 m0, s{S_T0}, 16384")
    A(f"s_add_u32 s{S_XOFF}, s{S_XOFF}, 4096")
    for k in range(4): A(dma_w(k))
    A(f"s_add_u32 s{S_WOFF}, s{S_WOFF}, s{S_WADV}")
    A(f"s_add_u32 s{S_FREE}, s{S_FREE}, {RING}")
    A(f"s_and_b32 s{S_FREE}, s{S_FREE}, {4*RING-1}")
    if ROT:
        A(f"s_add_u32 s{S_SIG}, s{S_SIG}, 1")
        A(f"s_cmp_eq_u32 s{S_SIG}, {NST}")
        A(f"s_cselect_b32 s{S_T1}, {NST*4096}, 0")
        A(f"s_cselect_b32 s{S_T2}, s{S_WWR}, 0")
        A(f"s_cselect_b32 s{S_SIG}, 0, s{S_SIG}")
        A(f"s_sub_u32 s{S_XOFF}, s{S_XOFF}, s{S_T1}")
        A(f"s_sub_u32 s{S_WOFF}, s{S_WOFF}, s{S_T2}")

def stage(A0, trans, last=False):
    def A(x):
        if EXPT['noread'] and x.startswith('ds_read'): return
        if EXPT['nomfma'] and x.startswith('v_mfma'): return
        A0(x)
    for step in range(4):
        cur = step & 1; nxt = cur ^ 1
        M = mfmas(cur, trans)
        A("s_waitcnt lgkmcnt(0)")
        if step < 3:
            R = reads(nxt, step+1)
            A(M[0]); A(R[0]); A(R[1])
            A(M[1]); A(R[2]); A(R[3])
            A(M[2]); A(R[4]); A(R[5])
            A(M[3])
        elif not last:
            A(M[0])
            A(f"v_add_u32 v{V_XR}, {RING}, v{V_XR}")
            A(f"v_add_u32 v{V_WR}, {RING}, v{V_WR}")
            A(f"v_and_b32 v{V_XR}, {4*RING-1}, v{V_XR}")
            A(f"v_and_b32 v{V_WR}, {4*RING-1}, v{V_WR}")
            A(M[1])
            A("s_barrier")
            R = reads(0, 0)
            A(R[0]); A(R[1]); A(R[2])
            A(M[2])
            A(R[3]); A(R[4]); A(R[5])
            A(M[3])
        else:
            for m in M: A(m)

def mainloop(A, trans, tag):
    L = f"L_w2_loop_{tag}"
    A(f"s_mov_b32 s{S_CNT}, {NST-1}")
    A(".p2align 4")
    A.label(L)
    stage(A, trans)
    A(f"s_sub_u32 s{S_CNT}, s{S_CNT}, 1")
    A(f"s_cmp_lg_u32 s{S_CNT}, 0")
    A(f"s_cbranch_scc1 {L}")
    stage(A, trans, last=True)

def srd_off(A, d, base, soff, ssize):
    A(f"s_add_u32 s{d}, s{base}, s{soff}")
    A(f"s_addc_u32 s{d+1}, s{base+1}, 0")
    A(f"s_mov_b32 s{d+2}, {ssize}")
    A(f"s_mov_b32 s{d+3}, 0x20000")

def gen_wide2():
    A = Asm(); descs = ""; names = []
    COMMON = "L_w2_common"; END = "L_w2_end"; LOADER = "L_w2_loader"
    for kind, layer in (("qkv", 0), ("qkv", 1), ("ffa", 0), ("ffa", 1)):
        name = f"{kind}{layer+1}_kernel"
        names.append(name)
        entry(A, name)
        stamp(A, 0); stamp(A, 6, True)
        xi = 2*layer + (0 if kind == "qkv" else 1)
        A(f"""
        s_load_dwordx2 s[4:5], s[0:1], {KA_WS}
        s_load_dwordx2 s[6:7], s[0:1], {KA_WQKV if kind=='qkv' else KA_W1}
        s_and_b32 s{S_T0}, s2, 7
        s_lshr_b32 s{S_T1}, s2, 3
        s_and_b32 s{S_TB}, s{S_T0}, 3
        s_lshl_b32 s{S_TB}, s{S_TB}, 2
        s_and_b32 s{S_T2}, s{S_T1}, 3
        s_add_u32 s{S_TB}, s{S_TB}, s{S_T2}
        s_lshr_b32 s{S_T0}, s{S_T0}, 2
        s_lshr_b32 s{S_T1}, s{S_T1}, 2
        s_mov_b32 s{S_XB}, {hex(XF[xi])}
        s_mov_b32 s{S_STB}, {hex(ST[xi])}
        """)
        if kind == "qkv":
            A(f"""
            s_lshl_b32 s{S_CB}, s{S_T0}, 3
            s_add_u32 s{S_CB}, s{S_CB}, s{S_T1}
            s_cmp_ge_u32 s2, 256
            s_cbranch_scc1 {END}
            s_cmp_ge_u32 s{S_CB}, 15
            s_cbranch_scc1 {END}
            s_mov_b32 s{S_LDW}, 3840
            s_mov_b32 s{S_CSROW}, 7680
            s_cmp_ge_u32 s{S_CB}, 5
            s_cselect_b32 s{S_MODE}, 1, 0
            s_cmp_ge_u32 s{S_CB}, 10
            s_cselect_b32 s{S_MODE}, 2, s{S_MODE}
            s_mul_i32 s{S_OUTB}, s{S_MODE}, {XSZ}
            s_add_u32 s{S_OUTB}, s{S_OUTB}, {hex(QF)}
            s_mov_b32 s{S_OUTSZ}, {XSZ}
            s_mov_b32 s{S_WSZ}, {640*3840}
            s_mov_b32 s{S_CSB}, {hex(CSQ)}
            s_mov_b32 s{S_CSSZ}, {CSQSZ}
            """)
        else:
            A(f"""
            s_mul_i32 s{S_CB}, s{S_T0}, 7
            s_add_u32 s{S_CB}, s{S_CB}, s{S_T1}
            s_cmp_ge_u32 s2, 256
            s_cbranch_scc1 {END}
            s_cmp_ge_u32 s{S_T1}, 7
            s_cbranch_scc1 {END}
            s_mov_b32 s{S_LDW}, 3456
            s_mov_b32 s{S_CSROW}, 6912
            s_mov_b32 s{S_MODE}, 3
            s_mov_b32 s{S_OUTB}, {hex(HF)}
            s_mov_b32 s{S_OUTSZ}, {HSZ}
            s_mov_b32 s{S_WSZ}, {640*3456}
            s_mov_b32 s{S_CSB}, {hex(CS1)}
            s_mov_b32 s{S_CSSZ}, {CS1SZ}
            """)
        A(f"s_branch {COMMON}")
        descs += descriptor(name, 224, 64)
    A(".p2align 6")
    A.label(COMMON)
    A(f"""
    v_lshrrev_b32 v{V_TMP}, 6, v0
    v_and_b32 v{V_LANE}, 63, v0
    v_readfirstlane_b32 s{S_WAVE}, v{V_TMP}
    v_lshlrev_b32 v{V_XD}, 4, v{V_LANE}
    s_lshl_b32 s{S_N0}, s{S_CB}, 7
    s_cmp_ge_u32 s{S_WAVE}, 4
    s_cbranch_scc1 {LOADER}
    """)
    A(f"""
    v_lshrrev_b32 v{V_H}, 5, v{V_LANE}
    v_and_b32 v{V_T}, 31, v{V_LANE}
    s_and_b32 s{S_WN}, s{S_WAVE}, 1
    s_lshr_b32 s{S_WT}, s{S_WAVE}, 1
    s_lshl_b32 s{S_T0}, s{S_TB}, 2
    s_lshl_b32 s{S_T1}, s{S_WT}, 1
    s_add_u32 s{S_T0}, s{S_T0}, s{S_T1}
    s_lshl_b32 s{S_T0}, s{S_T0}, 12
    s_add_u32 s{S_T1}, s{S_T0}, 4096
    v_lshlrev_b32 v{V_TMP}, 4, v{V_T}
    v_lshlrev_b32 v{V_TMP+1}, 11, v{V_H}
    v_add_u32 v{V_TMP}, v{V_TMP}, v{V_TMP+1}
    v_and_b32 v{V_TMP+2}, 127, v0
    v_add_u32 v{V_TMP+2}, s{S_N0}, v{V_TMP+2}
    v_lshlrev_b32 v{V_TMP+2}, 2, v{V_TMP+2}
    s_waitcnt lgkmcnt(0)
    """)
    stamp(A, 8)
    srd_off(A, S_ST, 4, S_STB, STSZ)
    srd_off(A, S_CS, 4, S_CSB, f"s{S_CSSZ}")
    for ip in range(2):
        for k in range(4):
            A(f"buffer_load_dwordx4 {v(V_FR+16*ip+4*k,4)}, v{V_TMP}, s[{S_ST}:{S_ST+3}], s{S_T0+ip} offen" + (f" offset:{512*k}" if k else ""))
    A(f"""
    s_lshl_b32 s{S_T1}, s{S_CSROW}, 1
    s_add_u32 s{S_T2}, s{S_T1}, s{S_CSROW}
    buffer_load_dword v{V_E}, v{V_TMP+2}, s[{S_CS}:{S_CS+3}], 0 offen
    buffer_load_dword v{V_E+1}, v{V_TMP+2}, s[{S_CS}:{S_CS+3}], s{S_CSROW} offen
    buffer_load_dword v{V_E+2}, v{V_TMP+2}, s[{S_CS}:{S_CS+3}], s{S_T1} offen
    buffer_load_dword v{V_E+3}, v{V_TMP+2}, s[{S_CS}:{S_CS+3}], s{S_T2} offen
    """)
    srd_off(A, S_OUT, 4, S_OUTB, f"s{S_OUTSZ}")
    A(f"""
    s_lshl_b32 s{S_T0}, s{S_WT}, 13
    v_add_u32 v{V_XR}, s{S_T0}, v{V_XD}
    v_lshlrev_b32 v{V_WR}, 10, v{V_H}
    v_bfe_u32 v{V_TMP}, v{V_LANE}, 2, 2
    v_lshlrev_b32 v{V_TMP}, 6, v{V_TMP}
    v_add_u32 v{V_WR}, v{V_WR}, v{V_TMP}
    v_bfe_u32 v{V_TMP}, v{V_LANE}, 4, 1
    v_lshlrev_b32 v{V_TMP}, 5, v{V_TMP}
    v_add_u32 v{V_WR}, v{V_WR}, v{V_TMP}
    v_and_b32 v{V_TMP}, 3, v{V_LANE}
    v_lshlrev_b32 v{V_TMP}, 3, v{V_TMP}
    v_add_u32 v{V_WR}, v{V_WR}, v{V_TMP}
    s_lshl_b32 s{S_T0}, s{S_WN}, 9
    s_add_u32 s{S_T0}, s{S_T0}, 16384
    v_add_u32 v{V_WR}, s{S_T0}, v{V_WR}
    """)
    for r in range(64): A(f"v_mov_b32 v{V_ACC+r}, 0")
    A("s_waitcnt vmcnt(0)")
    for ip in range(2):
        b = V_FR + 16*ip
        A(f"""
        v_pk_add_f32 {v(b,2)}, {v(b,2)}, {v(b+2,2)}
        v_pk_add_f32 {v(b+4,2)}, {v(b+4,2)}, {v(b+6,2)}
        v_pk_add_f32 {v(b+8,2)}, {v(b+8,2)}, {v(b+10,2)}
        v_pk_add_f32 {v(b+12,2)}, {v(b+12,2)}, {v(b+14,2)}
        v_pk_add_f32 {v(b,2)}, {v(b,2)}, {v(b+4,2)}
        v_pk_add_f32 {v(b+8,2)}, {v(b+8,2)}, {v(b+12,2)}
        v_pk_add_f32 {v(b,2)}, {v(b,2)}, {v(b+8,2)}
        """)
        halfsum(A, b, V_TMP)
        halfsum(A, b+1, V_TMP+1)
        A(f"""
        v_mul_f32 v{b}, {hex(f2u(1.0/640))}, v{b}
        v_mul_f32 v{b+1}, {hex(f2u(1.0/640))}, v{b+1}
        v_fma_f32 v{b+1}, -v{b}, v{b}, v{b+1}
        v_max_f32 v{b+1}, 0, v{b+1}
        v_add_f32 v{b+1}, {hex(f2u(1e-5))}, v{b+1}
        v_rsq_f32 v{b+1}, v{b+1}
        v_sub_f32 v{V_NB+2*ip}, 0, v{b}
        v_sub_f32 v{V_NB+2*ip+1}, 0, v{b}
        v_mov_b32 v{V_AA+2*ip}, v{b+1}
        v_mov_b32 v{V_AA+2*ip+1}, v{b+1}
        v_mul_f32 v{V_A2+2*ip}, {hex(f2u(-1.4426950408889634))}, v{b+1}
        v_mul_f32 v{V_A2+2*ip+1}, {hex(f2u(-1.4426950408889634))}, v{b+1}
        v_mul_f32 v{b+2}, v{b}, v{b+1}
        s_lshl_b32 s{S_T0}, s{S_WT}, 8
        s_add_u32 s{S_T0}, s{S_T0}, {SCR + 512 + 128*ip}
        v_lshlrev_b32 v{V_TMP}, 2, v{V_T}
        v_add_u32 v{V_TMP}, s{S_T0}, v{V_TMP}
        ds_write_b32 v{V_TMP}, v{b+1}
        ds_write_b32 v{V_TMP}, v{b+2} offset:512
        """)
    A(f"""
    s_cmp_eq_u32 s{S_MODE}, 0
    s_cselect_b32 s{S_T0}, {hex(f2u(QSCALE))}, 1.0
    v_mul_f32 v{V_AA}, s{S_T0}, v{V_AA}
    v_mul_f32 v{V_AA+1}, s{S_T0}, v{V_AA+1}
    v_mul_f32 v{V_AA+2}, s{S_T0}, v{V_AA+2}
    v_mul_f32 v{V_AA+3}, s{S_T0}, v{V_AA+3}
    v_add_f32 v{V_E}, v{V_E}, v{V_E+1}
    v_add_f32 v{V_E+2}, v{V_E+2}, v{V_E+3}
    v_add_f32 v{V_E}, v{V_E}, v{V_E+2}
    v_and_b32 v{V_TMP}, 127, v0
    v_lshlrev_b32 v{V_TMP}, 2, v{V_TMP}
    v_add_u32 v{V_TMP}, {SCR}, v{V_TMP}
    ds_write_b32 v{V_TMP}, v{V_E}
    s_waitcnt lgkmcnt(0)
    """)
    stamp(A, 1)
    A("s_barrier")
    stamp(A, 2)
    for r in reads(0, 0): A(r)
    LV = "L_w2_vmode"
    A(f"s_cmp_eq_u32 s{S_MODE}, 2")
    A(f"s_cbranch_scc1 {LV}")
    mainloop(A, True, "t")
    stamp(A, 3)
    A(f"""
    s_lshl_b32 s{S_T0}, s{S_WN}, 8
    s_add_u32 s{S_T0}, s{S_T0}, {SCR}
    v_lshlrev_b32 v{V_TMP}, 4, v{V_H}
    v_add_u32 v{V_TMP}, s{S_T0}, v{V_TMP}
    """)
    for i in range(2):
        for g in range(4):
            A(f"ds_read_b128 {v(V_E+16*i+4*g,4)}, v{V_TMP} offset:{128*i + 32*g}")
    LF = "L_w2_ffn"
    A(f"s_cmp_eq_u32 s{S_MODE}, 3")
    A(f"s_cbranch_scc1 {LF}")
    A(f"""
    s_mul_i32 s{S_T0}, s{S_MODE}, 640
    s_sub_u32 s{S_T0}, s{S_N0}, s{S_T0}
    s_lshl_b32 s{S_T1}, s{S_WN}, 6
    s_add_u32 s{S_T0}, s{S_T0}, s{S_T1}
    v_lshlrev_b32 v{V_TMP}, 2, v{V_H}
    v_add_u32 v{V_TMP}, s{S_T0}, v{V_TMP}
    s_movk_i32 s{S_T1}, 3277
    v_lshlrev_b32 v{V_TMP+6}, 4, v{V_T}
    v_lshlrev_b32 v{V_TMP+5}, 3, v{V_T}
    """)
    VA = V_E + 32
    for i in range(2):
        for g in range(4):
            r = VA + 4*i + g
            A(f"""
            v_add_u32 v{V_TMP+1}, {32*i+8*g}, v{V_TMP}
            v_mul_u32_u24 v{V_TMP+2}, s{S_T1}, v{V_TMP+1}
            v_lshrrev_b32 v{V_TMP+2}, 16, v{V_TMP+2}
            v_mul_u32_u24 v{V_TMP+3}, 20, v{V_TMP+2}
            v_sub_u32 v{V_TMP+3}, v{V_TMP+1}, v{V_TMP+3}
            v_mul_u32_u24 v{r}, {64*1280}, v{V_TMP+2}
            v_lshrrev_b32 v{V_TMP+4}, 3, v{V_TMP+3}
            v_lshlrev_b32 v{V_TMP+4}, 9, v{V_TMP+4}
            v_add_u32 v{r}, v{r}, v{V_TMP+4}
            v_bfe_u32 v{V_TMP+4}, v{V_TMP+3}, 2, 1
            v_lshlrev_b32 v{V_TMP+4}, 3, v{V_TMP+4}
            v_add_u32 v{r}, v{r}, v{V_TMP+4}
            v_cmp_eq_u32 vcc, 16, v{V_TMP+3}
            v_cndmask_b32 v{V_TMP+4}, v{V_TMP+6}, v{V_TMP+5}, vcc
            v_add_u32 v{r}, v{r}, v{V_TMP+4}
            """)
    A(f"""
    s_lshl_b32 s{S_T0}, s{S_TB}, 2
    s_lshl_b32 s{S_T1}, s{S_WT}, 1
    s_add_u32 s{S_T0}, s{S_T0}, s{S_T1}
    s_mul_i32 s{S_T0}, s{S_T0}, 1280
    s_waitcnt lgkmcnt(0)
    """)
    VP = V_E + 40
    for i in range(2):
        for ip in range(2):
            c = acc(i, ip)
            for p in range(8):
                A(f"v_pk_fma_f32 {v(c+2*p,2)}, {v(V_E+16*i+2*p,2)}, {v(V_NB+2*ip,2)}, {v(c+2*p,2)}")
            for p in range(8):
                A(f"v_pk_mul_f32 {v(c+2*p,2)}, {v(c+2*p,2)}, {v(V_AA+2*ip,2)}")
            pk = VP + 8*((2*i+ip) & 1)
            for p in range(8):
                A(f"v_cvt_pk_bf16_f32 v{pk+p}, v{c+2*p}, v{c+2*p+1}")
            for g in range(4):
                A(f"buffer_store_dwordx2 {v(pk+2*g,2)}, v{VA+4*i+g}, s[{S_OUT}:{S_OUT+3}], s{S_T0} offen offset:{1280*ip}")
    A(f"s_branch L_w2_fin")
    A.label(LF)
    A(f"""
    s_lshl_b32 s{S_T0}, s{S_WN}, 6
    s_add_u32 s{S_T0}, s{S_T0}, s{S_N0}
    s_cmp_ge_u32 s{S_T0}, {F}
    s_cbranch_scc1 L_w2_fin
    s_lshr_b32 s{S_T0}, s{S_T0}, 4
    s_lshl_b32 s{S_T1}, s{S_TB}, 2
    s_lshl_b32 s{S_T2}, s{S_WT}, 1
    s_add_u32 s{S_T1}, s{S_T1}, s{S_T2}
    s_mul_i32 s{S_T1}, s{S_T1}, 108
    s_add_u32 s{S_T0}, s{S_T0}, s{S_T1}
    s_lshl_b32 s{S_T0}, s{S_T0}, 10
    s_add_u32 s{S_T1}, s{S_T0}, {108*1024}
    s_waitcnt lgkmcnt(0)
    """)
    VZ = V_E + 32; VP = V_E + 48
    for ip in range(2):
        for i in range(2):
            c = acc(i, ip)
            for p in range(8):
                A(f"v_pk_fma_f32 {v(c+2*p,2)}, {v(V_E+16*i+2*p,2)}, {v(V_NB+2*ip,2)}, {v(c+2*p,2)}")
            for p in range(8):
                A(f"v_pk_mul_f32 {v(VZ+2*p,2)}, {v(c+2*p,2)}, {v(V_A2+2*ip,2)}")
            for r in range(16):
                A(f"v_exp_f32 v{VZ+r}, v{VZ+r}")
                if r % 2 == 1: A(f"v_pk_mul_f32 {v(c+r-1,2)}, {v(c+r-1,2)}, {v(V_AA+2*ip,2)}")
            for p in range(8):
                A(f"v_pk_add_f32 {v(VZ+2*p,2)}, {v(VZ+2*p,2)}, 1.0 op_sel_hi:[1,0]")
            for r in range(16):
                A(f"v_rcp_f32 v{VZ+r}, v{VZ+r}")
            for p in range(8):
                A(f"v_pk_mul_f32 {v(c+2*p,2)}, {v(c+2*p,2)}, {v(VZ+2*p,2)}")
            pk = VP + 8*i
            for p in range(8):
                A(f"v_cvt_pk_bf16_f32 v{pk+p}, v{c+2*p}, v{c+2*p+1}")
            so = S_T0 if ip == 0 else S_T1
            off0 = f" offset:{2048*i}" if i else ""
            A(f"buffer_store_dwordx4 {v(pk,4)}, v{V_XD}, s[{S_OUT}:{S_OUT+3}], s{so} offen{off0}")
            A(f"buffer_store_dwordx4 {v(pk+4,4)}, v{V_XD}, s[{S_OUT}:{S_OUT+3}], s{so} offen offset:{2048*i+1024}")
    A(f"s_branch L_w2_fin")
    A.label(LV)
    mainloop(A, False, "v")
    stamp(A, 3)
    A(f"""
    s_lshl_b32 s{S_T0}, s{S_WN}, 6
    v_add_u32 v{V_TMP}, s{S_T0}, v{V_T}
    v_lshlrev_b32 v{V_TMP+1}, 2, v{V_TMP}
    v_add_u32 v{V_TMP+1}, {SCR}, v{V_TMP+1}
    ds_read_b32 v{V_E+64}, v{V_TMP+1}
    ds_read_b32 v{V_E+66}, v{V_TMP+1} offset:128
    s_sub_u32 s{S_T0}, s{S_N0}, 1280
    v_add_u32 v{V_TMP}, s{S_T0}, v{V_TMP}
    s_movk_i32 s{S_T1}, 3277
    """)
    VA = V_E + 68
    for i in range(2):
        A(f"""
        v_add_u32 v{V_TMP+1}, {32*i}, v{V_TMP}
        v_mul_u32_u24 v{V_TMP+2}, s{S_T1}, v{V_TMP+1}
        v_lshrrev_b32 v{V_TMP+2}, 16, v{V_TMP+2}
        v_mul_u32_u24 v{V_TMP+3}, 20, v{V_TMP+2}
        v_sub_u32 v{V_TMP+3}, v{V_TMP+1}, v{V_TMP+3}
        v_mul_u32_u24 v{VA+i}, {64*1280}, v{V_TMP+2}
        v_mul_u32_u24 v{V_TMP+4}, 20, v{V_H}
        v_add_u32 v{V_TMP+4}, v{V_TMP+4}, v{V_TMP+3}
        v_lshlrev_b32 v{V_TMP+4}, 4, v{V_TMP+4}
        v_add_u32 v{VA+i}, v{VA+i}, v{V_TMP+4}
        """)
    A(f"""
    s_lshl_b32 s{S_T0}, s{S_TB}, 2
    s_lshl_b32 s{S_T1}, s{S_WT}, 1
    s_add_u32 s{S_T0}, s{S_T0}, s{S_T1}
    s_mul_i32 s{S_T0}, s{S_T0}, 1280
    s_lshl_b32 s{S_T1}, s{S_WT}, 8
    s_add_u32 s{S_T1}, s{S_T1}, {SCR+512}
    v_lshlrev_b32 v{V_TMP}, 4, v{V_H}
    v_add_u32 v{V_TMP}, s{S_T1}, v{V_TMP}
    """)
    for ip in range(2):
        for g in range(4):
            A(f"ds_read_b128 {v(V_E+32*ip+4*g,4)}, v{V_TMP} offset:{128*ip + 32*g}")
            A(f"ds_read_b128 {v(V_E+32*ip+16+4*g,4)}, v{V_TMP} offset:{512 + 128*ip + 32*g}")
    A("s_waitcnt lgkmcnt(0)")
    A(f"""
    v_sub_f32 v{V_E+64}, 0, v{V_E+64}
    v_sub_f32 v{V_E+66}, 0, v{V_E+66}
    v_mov_b32 v{V_E+65}, v{V_E+64}
    v_mov_b32 v{V_E+67}, v{V_E+66}
    """)
    VP = V_E + 72
    for ip in range(2):
        for i in range(2):
            c = acc(i, ip)
            for p in range(8):
                A(f"v_pk_mul_f32 {v(c+2*p,2)}, {v(c+2*p,2)}, {v(V_E+32*ip+2*p,2)}")
            for p in range(8):
                A(f"v_pk_fma_f32 {v(c+2*p,2)}, {v(V_E+32*ip+16+2*p,2)}, {v(V_E+64+2*i,2)}, {v(c+2*p,2)}")
            pk = VP + 8*i
            for p in range(8):
                A(f"v_cvt_pk_bf16_f32 v{pk+p}, v{c+2*p}, v{c+2*p+1}")
            A(f"buffer_store_dwordx4 {v(pk,4)}, v{VA+i}, s[{S_OUT}:{S_OUT+3}], s{S_T0} offen offset:{1280*ip}")
            A(f"buffer_store_dwordx4 {v(pk+4,4)}, v{VA+i}, s[{S_OUT}:{S_OUT+3}], s{S_T0} offen offset:{1280*ip+640}")
    A.label("L_w2_fin")
    stamp(A, 4)
    if asmlib.STAMP: A("s_waitcnt vmcnt(0)")
    stamp(A, 5); stamp(A, 7, True)
    stamp_flush(A, 13, 1)
    A("s_endpgm")
    A(".p2align 6")
    A.label(LOADER)
    A(f"""
    s_sub_u32 s{S_WAVE}, s{S_WAVE}, 4
    s_mov_b32 s{S_OOB}, 0x7f000000
    s_lshl_b32 s{S_T0}, s{S_TB}, 2
    s_add_u32 s{S_T0}, s{S_T0}, s{S_WAVE}
    s_mul_i32 s{S_XOFF}, s{S_T0}, 40960
    v_lshrrev_b32 v{V_TMP}, 4, v{V_LANE}
    v_lshlrev_b32 v{V_WD}, 6, v{V_TMP}
    v_and_b32 v{V_TMP+1}, 3, v{V_LANE}
    v_lshlrev_b32 v{V_TMP+1}, 4, v{V_TMP+1}
    v_add_u32 v{V_WD}, v{V_WD}, v{V_TMP+1}
    v_bfe_u32 v{V_TMP+1}, v{V_LANE}, 2, 2
    v_mul_lo_u32 v{V_TMP+1}, v{V_TMP+1}, s{S_LDW}
    v_add_u32 v{V_WD}, v{V_WD}, v{V_TMP+1}
    s_cmp_eq_u32 s{S_MODE}, 3
    s_cselect_b32 s{S_T0}, s{S_CB}, 0
    s_cmp_eq_u32 s{S_T0}, 13
    s_cselect_b32 s{S_T0}, s{S_OOB}, 0
    v_cmp_le_u32 vcc, 2, v{V_TMP}
    v_mov_b32 v{V_TMP+1}, s{S_T0}
    s_lshl_b32 s{S_T0}, s{S_LDW}, 2
    s_sub_u32 s{S_T0}, s{S_T0}, 1024
    v_cndmask_b32 v{V_TMP+1}, 0, v{V_TMP+1}, vcc
    v_add_u32 v{V_WD}, v{V_WD}, v{V_TMP+1}
    v_add_u32 v{V_WD+1}, s{S_T0}, v{V_WD}
    v_add_u32 v{V_WD+2}, s{S_T0}, v{V_WD+1}
    v_add_u32 v{V_WD+3}, s{S_T0}, v{V_WD+2}
    s_lshl_b32 s{S_WADV}, s{S_LDW}, 6
    s_lshl_b32 s{S_T0}, s{S_LDW}, 4
    s_mul_i32 s{S_T0}, s{S_T0}, s{S_WAVE}
    s_lshl_b32 s{S_WOFF}, s{S_N0}, 1
    s_add_u32 s{S_WOFF}, s{S_WOFF}, s{S_T0}
    s_lshl_b32 s{S_M0}, s{S_WAVE}, 12
    s_mov_b32 s{S_FREE}, 0
    """)
    if ROT:
        A(f"""
        s_lshr_b32 s{S_T0}, s2, 5
        s_lshr_b32 s{S_T1}, s2, 3
        s_and_b32 s{S_T1}, s{S_T1}, 3
        s_mul_i32 s{S_T1}, s{S_T1}, 3
        s_add_u32 s{S_SIG}, s{S_T0}, s{S_T1}
        s_cmp_ge_u32 s{S_SIG}, {NST}
        s_cselect_b32 s{S_T0}, {NST}, 0
        s_sub_u32 s{S_SIG}, s{S_SIG}, s{S_T0}
        s_lshl_b32 s{S_T0}, s{S_SIG}, 12
        s_add_u32 s{S_XOFF}, s{S_XOFF}, s{S_T0}
        s_mul_i32 s{S_T0}, s{S_SIG}, s{S_WADV}
        s_add_u32 s{S_WOFF}, s{S_WOFF}, s{S_T0}
        s_mul_i32 s{S_WWR}, s{S_WADV}, {NST}
        """)
    A("s_waitcnt lgkmcnt(0)")
    srd_off(A, S_X, 4, S_XB, XSZ)
    A(f"""
    s_mov_b32 s{S_W}, s6
    s_mov_b32 s{S_W+1}, s7
    s_mov_b32 s{S_W+2}, s{S_WSZ}
    s_mov_b32 s{S_W+3}, 0x20000
    """)
    emit_loader(A, loader_schedule(NST, 4, burst=2, first=2), issue_stage, 8, S_CNT, "w2ld")
    A.label(END)
    A("s_endpgm")
    return A, descs, names
```

```python
from asmlib import *
from layout import *
from k_prep import srd, descriptor, entry
import struct
def f2u(x): return struct.unpack("<I", struct.pack("<f", x))[0]

S_Q=8; S_K=12; S_V=16; S_O=20
S_HEAD=24; S_QB=25; S_WAVE=26; S_QG=27; S_KH=28; S_KOFF=29; S_VOFF=30; S_CNT=31
S_T0=32; S_T1=33; S_T2=34; S_FLAG=35; S_K0=36; S_TT0=37
S_VMASK=40
S_LO=42
V_LANE=1; V_H=2; V_T=3
V_AK0=4; V_AK1=5; V_AV=6; V_AO=7
V_TMP=10
V_Q=16; V_O=48; V_S=112; V_P=144; V_K=152; V_V=168; V_M=184; V_X=188; V_J=200
V_S4=192
LDS_BYTES = 32768

def Q0(q): return V_Q + 8*q
def Q1(q): return V_Q + 8*q + 4
def O(q): return V_O + 16*q
def S(b): return V_S + 16*b
def K0(p): return V_K + 8*p
def K1(p): return V_K + 8*p + 4
def V0(p): return V_V + 8*p
def V1(p): return V_V + 8*p + 4

def mf(d, a_, b_, c):
    cs = v(c,16) if c is not None else "0"
    return f"v_mfma_f32_32x32x16_bf16 {v(d,16)}, {v(a_,4)}, {v(b_,4)}, {cs}"

def load_k(A, p):
    A(f"buffer_load_dwordx4 {v(K0(p),4)}, v{V_AK0}, s[{S_K}:{S_K+3}], s{S_KOFF} offen")
    A(f"buffer_load_dwordx2 {v(K1(p),2)}, v{V_AK1}, s[{S_K}:{S_K+3}], s{S_KOFF} offen")
    A(f"s_add_u32 s{S_KOFF}, s{S_KOFF}, 1280")
def load_v(A, p):
    A(f"s_mov_b64 exec, s[{S_VMASK}:{S_VMASK+1}]")
    A(f"buffer_load_dwordx4 {v(V0(p),4)}, v{V_AV}, s[{S_V}:{S_V+3}], s{S_VOFF} offen")
    A(f"buffer_load_dwordx4 {v(V1(p),4)}, v{V_AV}, s[{S_V}:{S_V+3}], s{S_VOFF} offen offset:640")
    A(f"s_mov_b64 exec, -1")
    A(f"s_add_u32 s{S_VOFF}, s{S_VOFF}, 1280")

OPT = dict(s4=False, sched=0, noload=False, nomfma=0, noexp=False)
def period(A, p, q):
    if OPT['s4']:
        s_ = V_S4 + 16*q; sn = V_S4 + 16*((q+1)&3); sp_ = V_S4 + 16*((q-1)&3)
    else:
        b = q & 1
        s_ = S(b); sn = S(b ^ 1)
    qn = (q + 1) & 3; kp = p if q < 3 else p ^ 1
    qp = (q - 1) & 3; vp = p if q > 0 else p ^ 1
    e = lambda r: A(f"v_exp_f32 v{s_+r}, v{s_+r}")
    c = lambda k: A(f"v_cvt_pk_bf16_f32 v{V_P+k}, v{s_+2*k}, v{s_+2*k+1}")
    if OPT['noexp']:
        e = lambda r: None
    mq = (lambda x: None) if OPT['nomfma'] & 1 else A
    mp = (lambda x: None) if OPT['nomfma'] & 2 else A
    lk = (lambda p_: None) if OPT['noload'] else (lambda p_: load_k(A, p_))
    lv = (lambda p_: None) if OPT['noload'] else (lambda p_: load_v(A, p_))
    wt = (lambda x: None) if OPT['noload'] else A
    sched = OPT['sched']
    if sched == 0:
        if q == 3: wt("s_waitcnt vmcnt(2)")
        mq(mf(sn, K0(kp), Q0(qn), None))
        e(0); e(1); e(2); e(3); c(0)
        mq(mf(sn, K1(kp), Q1(qn), sn))
        e(4); e(5); c(1)
        if q == 3: lk(p)
        if q == 1: lv(p ^ 1)
        e(6); e(7); c(2)
        mp(mf(O(qp), V1(vp), V_P+4, O(qp)))
        e(8); e(9); c(3); e(10); e(11); c(4)
        if q == 0: wt("s_waitcnt vmcnt(2)")
        mp(mf(O(q), V0(p), V_P, O(q)))
        e(12); e(13); c(5); e(14); e(15); c(6); c(7)
    elif sched == 1:
        cprev = lambda: A(f"v_cvt_pk_bf16_f32 v{V_P+7}, v{sp_+14}, v{sp_+15}")
        if q == 3: wt("s_waitcnt vmcnt(2)")
        mq(mf(sn, K0(kp), Q0(qn), None))
        e(0); e(1); cprev(); e(2); e(3); c(0)
        mq(mf(sn, K1(kp), Q1(qn), sn))
        e(4); e(5); c(1)
        if q == 3: lk(p)
        if q == 1: lv(p ^ 1)
        e(6); e(7); c(2)
        mp(mf(O(qp), V1(vp), V_P+4, O(qp)))
        e(8); e(9); c(3); e(10); e(11); c(4)
        if q == 0: wt("s_waitcnt vmcnt(2)")
        mp(mf(O(q), V0(p), V_P, O(q)))
        e(12); e(13); c(5); e(14); e(15); c(6)
    elif sched == 2:
        cprev = lambda k: A(f"v_cvt_pk_bf16_f32 v{V_P+k}, v{sp_+2*k}, v{sp_+2*k+1}")
        if q == 3: wt("s_waitcnt vmcnt(2)")
        mq(mf(sn, K0(kp), Q0(qn), None))
        cprev(6); cprev(7); e(0); e(1); e(2); e(3)
        mq(mf(sn, K1(kp), Q1(qn), sn))
        c(0); c(1); e(4); e(5)
        if q == 3: lk(p)
        if q == 1: lv(p ^ 1)
        e(6); e(7)
        mp(mf(O(qp), V1(vp), V_P+4, O(qp)))
        c(2); c(3); e(8); e(9); e(10); e(11)
        if q == 0: wt("s_waitcnt vmcnt(2)")
        mp(mf(O(q), V0(p), V_P, O(q)))
        c(4); c(5); e(12); e(13); e(14); e(15)

def rowmax(A, dst, src):
    A(f"v_max3_f32 v{dst}, v{src}, v{src+1}, v{src+2}")
    for r in range(3, 15, 2):
        A(f"v_max3_f32 v{dst}, v{dst}, v{src+r}, v{src+r+1}")
    A(f"v_max_f32 v{dst}, v{dst}, v{src+15}")
    A(f"v_mov_b32 v{V_TMP}, v{dst}")
    A(f"v_permlane32_swap_b32 v{dst}, v{V_TMP}")
    A(f"v_max_f32 v{dst}, v{dst}, v{V_TMP}")

def reset_ptrs(A):
    A(f"s_mov_b32 s{S_KOFF}, s{S_K0}")
    A(f"s_mov_b32 s{S_VOFF}, s{S_K0}")

def gen_attn(prefetch=True):
    A = Asm(); descs = ""; names = []
    COMMON = "L_attn_common"; END = "L_attn_end"
    name = "attn_kernel"
    names.append(name)
    entry(A, name)
    descs += descriptor(name, 256 if OPT['s4'] else 224, 64)
    stamp(A, 0); stamp(A, 6, True)
    A(f"""
    s_load_dwordx2 s[4:5], s[0:1], {KA_WS}
    s_cmp_ge_u32 s2, 256
    s_cbranch_scc1 {END}
    s_and_b32 s{S_HEAD}, s2, 31
    s_lshr_b32 s{S_QB}, s2, 5
    v_lshrrev_b32 v{V_TMP}, 6, v0
    v_and_b32 v{V_LANE}, 63, v0
    v_readfirstlane_b32 s{S_WAVE}, v{V_TMP}
    v_lshrrev_b32 v{V_H}, 5, v{V_LANE}
    v_and_b32 v{V_T}, 31, v{V_LANE}
    s_mov_b32 s{S_VMASK}, 0x000fffff
    s_mov_b32 s{S_VMASK+1}, 0x000fffff
    s_mov_b32 s{S_LO}, -1
    s_mov_b32 s{S_LO+1}, 0
    s_and_b32 s{S_QG}, s{S_WAVE}, 1
    s_lshr_b32 s{S_KH}, s{S_WAVE}, 1
    s_lshl_b32 s{S_T0}, s{S_HEAD}, 6
    s_lshl_b32 s{S_T1}, s{S_KH}, 5
    s_add_u32 s{S_T1}, s{S_T1}, s{S_T0}
    s_mul_i32 s{S_K0}, s{S_T1}, 1280
    s_lshl_b32 s{S_TT0}, s{S_QB}, 3
    s_lshl_b32 s{S_T2}, s{S_QG}, 2
    s_add_u32 s{S_TT0}, s{S_TT0}, s{S_T2}
    s_add_u32 s{S_T0}, s{S_T0}, s{S_TT0}
    s_mul_i32 s{S_T0}, s{S_T0}, 1280
    v_lshlrev_b32 v{V_AK0}, 4, v{V_LANE}
    v_lshlrev_b32 v{V_AK1}, 3, v{V_T}
    v_add_u32 v{V_AK1}, 1024, v{V_AK1}
    v_mul_u32_u24 v{V_AV}, 20, v{V_H}
    v_add_u32 v{V_AV}, v{V_AV}, v{V_T}
    v_lshlrev_b32 v{V_AV}, 4, v{V_AV}
    s_mov_b32 s{S_FLAG}, 0
    s_waitcnt lgkmcnt(0)
    """)
    srd(A, S_Q, 4, QF, XSZ); srd(A, S_K, 4, KF, XSZ); srd(A, S_V, 4, VF, XSZ); srd(A, S_O, 4, OF, XSZ)
    for q in range(4):
        for r in range(4): A(f"v_mov_b32 v{Q1(q)+r}, 0")
    for q in range(4):
        A(f"buffer_load_dwordx4 {v(Q0(q),4)}, v{V_AK0}, s[{S_Q}:{S_Q+3}], s{S_T0} offen offset:{0}" if q == 0 else
          f"buffer_load_dwordx4 {v(Q0(q),4)}, v{V_AK0}, s[{S_Q}:{S_Q+3}], s{S_T0} offen offset:{1280*q}")
    A(f"s_mov_b64 exec, s[{S_LO}:{S_LO+1}]")
    for q in range(4):
        A(f"buffer_load_dwordx2 {v(Q1(q),2)}, v{V_AK1}, s[{S_Q}:{S_Q+3}], s{S_T0} offen" + (f" offset:{1280*q}" if q else ""))
    A("s_mov_b64 exec, -1")
    for p in range(2):
        A(f"v_mov_b32 v{K1(p)+2}, 0x3f803f80")
        A(f"v_mov_b32 v{K1(p)+3}, 0x00003f80")
        for r in range(8): A(f"v_mov_b32 v{V0(p)+r}, 0x3f803f80")
    reset_ptrs(A)
    load_k(A, 0)
    if prefetch:
        A(f"""
        s_lshl_b32 s{S_T0}, s{S_HEAD}, 6
        s_mul_i32 s{S_T0}, s{S_T0}, 1280
        s_mul_i32 s{S_T1}, s{S_QB}, 10240
        s_add_u32 s{S_T0}, s{S_T0}, s{S_T1}
        v_lshlrev_b32 v{V_TMP}, 4, v0
        v_add_u32 v{V_TMP}, s{S_T0}, v{V_TMP}
        s_movk_i32 s{S_T1}, 4096
        s_movk_i32 s{S_T2}, 8192
        """)
        for j,so in enumerate(("0", f"s{S_T1}", f"s{S_T2}")):
            vj = V_S + 8 if OPT['s4'] else V_J
            A(f"buffer_load_dwordx4 {v(vj+8*j,4)}, v{V_TMP}, s[{S_K}:{S_K+3}], {so} offen")
            A(f"buffer_load_dwordx4 {v(vj+8*j+4,4)}, v{V_TMP}, s[{S_V}:{S_V+3}], {so} offen")
    npf = 6 if prefetch else 0
    A(f"s_waitcnt vmcnt({npf})")
    stamp(A, 1)
    for q in range(4):
        A(mf(O(q), K0(0), Q0(q), None))
        A(mf(O(q), K1(0), Q1(q), O(q)))
    for q in range(4):
        rowmax(A, V_M+q, O(q))
    SETUP = "L_attn_setup"; LOOP = "L_attn_loop"; TRUEMAX = "L_attn_truemax"; COMBINE = "L_attn_combine"
    A.label(SETUP)
    reset_ptrs(A)
    load_k(A, 0); load_v(A, 0); load_k(A, 1)
    A(f"s_mov_b64 exec, s[{S_LO}:{S_LO+1}]")
    for q in range(4):
        m = V_M + q
        A(f"""
        v_sub_f32 v{V_TMP}, 0, v{m}
        v_and_b32 v{V_TMP+1}, 0xffff0000, v{V_TMP}
        v_sub_f32 v{V_TMP}, v{V_TMP}, v{V_TMP+1}
        v_and_b32 v{V_TMP+2}, 0xffff0000, v{V_TMP}
        v_sub_f32 v{V_TMP}, v{V_TMP}, v{V_TMP+2}
        v_lshrrev_b32 v{V_TMP+1}, 16, v{V_TMP+1}
        v_or_b32 v{Q1(q)+2}, v{V_TMP+1}, v{V_TMP+2}
        v_lshrrev_b32 v{Q1(q)+3}, 16, v{V_TMP}
        """)
    A("s_mov_b64 exec, -1")
    for r in range(64): A(f"v_mov_b32 v{V_O+r}, 0")
    for r in range(8): A(f"v_mov_b32 v{V_P+r}, 0")
    A(f"s_mov_b64 exec, s[{S_VMASK}:{S_VMASK+1}]")
    for r in range(4): A(f"v_mov_b32 v{V1(1)+r}, 0")
    A("s_mov_b64 exec, -1")
    A("s_waitcnt vmcnt(4)")
    s00 = V_S4 if OPT['s4'] else S(0)
    A(mf(s00, K0(0), Q0(0), None))
    A(mf(s00, K1(0), Q1(0), s00))
    if OPT['sched'] in (1, 2):
        for r in range(12, 16): A(f"v_mov_b32 v{V_S4+48+r}, 0")
    A(f"s_mov_b32 s{S_CNT}, 16")
    stamp(A, 2)
    A("s_nop 7")
    A(".p2align 6")
    A.label(LOOP)
    for p in range(2):
        for q in range(4):
            period(A, p, q)
    A(f"s_sub_u32 s{S_CNT}, s{S_CNT}, 1")
    A(f"s_cmp_lg_u32 s{S_CNT}, 0")
    A(f"s_cbranch_scc1 {LOOP}")
    stamp(A, 3)
    if OPT['sched'] == 1:
        A(f"v_cvt_pk_bf16_f32 v{V_P+7}, v{V_S4+48+14}, v{V_S4+48+15}")
    if OPT['sched'] == 2:
        A(f"v_cvt_pk_bf16_f32 v{V_P+6}, v{V_S4+48+12}, v{V_S4+48+13}")
        A(f"v_cvt_pk_bf16_f32 v{V_P+7}, v{V_S4+48+14}, v{V_S4+48+15}")
    A(mf(O(3), V1(1), V_P+4, O(3)))
    A("s_waitcnt vmcnt(0)")
    A(f"s_cmp_lg_u32 s{S_FLAG}, 0")
    A(f"s_cbranch_scc1 {COMBINE}")
    A(f"v_mov_b32 v{V_TMP}, 0")
    for q in range(4):
        for r in range(0, 12, 2):
            A(f"v_max3_f32 v{V_TMP}, v{V_TMP}, |v{O(q)+r}|, |v{O(q)+r+1}|")
    A(f"""
    v_add_f32 v{V_TMP+2}, v{O(0)+12}, v{O(1)+12}
    v_add_f32 v{V_TMP+3}, v{O(2)+12}, v{O(3)+12}
    v_add_f32 v{V_TMP+2}, v{V_TMP+2}, v{V_TMP+3}
    s_mov_b32 s{S_T0}, {hex(f2u(2.0**40))}
    s_mov_b32 s{S_T1}, {hex(f2u(2.0**120))}
    v_cmp_gt_f32 vcc, s{S_T0}, v{V_TMP+2}
    v_cmp_gt_f32 s[{S_T2+10}:{S_T2+11}], s{S_T1}, v{V_TMP}
    s_and_b64 vcc, vcc, s[{S_T2+10}:{S_T2+11}]
    s_cmp_eq_u64 vcc, exec
    s_cbranch_scc1 {COMBINE}
    """)
    A.label(TRUEMAX)
    A(f"s_mov_b32 s{S_FLAG}, 1")
    A(f"s_mov_b64 exec, s[{S_LO}:{S_LO+1}]")
    for q in range(4):
        A(f"v_mov_b32 v{Q1(q)+2}, 0")
        A(f"v_mov_b32 v{Q1(q)+3}, 0")

    A("s_mov_b64 exec, -1")
    for q in range(4): A(f"v_mov_b32 v{V_X+q}, 0xff800000")
    reset_ptrs(A)
    A(f"s_mov_b32 s{S_CNT}, 32")
    TL = "L_attn_tm_loop"
    A.label(TL)
    load_k(A, 0)
    A("s_waitcnt vmcnt(0)")
    for q in range(4):
        A(mf(O(q), K0(0), Q0(q), None))
        A(mf(O(q), K1(0), Q1(q), O(q)))
    for q in range(4):
        rowmax(A, V_M+q, O(q))
        A(f"v_max_f32 v{V_X+q}, v{V_X+q}, v{V_M+q}")
    A(f"s_sub_u32 s{S_CNT}, s{S_CNT}, 1")
    A(f"s_cmp_lg_u32 s{S_CNT}, 0")
    A(f"s_cbranch_scc1 {TL}")
    for q in range(4): A(f"v_mov_b32 v{V_M+q}, v{V_X+q}")
    A(f"s_branch {SETUP}")
    A.label(COMBINE)
    stamp(A, 4)
    for q in range(4): A(f"v_mov_b32 v{O(q)+13}, v{V_M+q}")
    A(f"""
    s_lshl_b32 s{S_T0}, s{S_WAVE}, 13
    v_lshlrev_b32 v{V_TMP}, 4, v{V_LANE}
    v_add_u32 v{V_TMP+1}, s{S_T0}, v{V_TMP}
    s_xor_b32 s{S_T1}, s{S_WAVE}, 2
    s_lshl_b32 s{S_T1}, s{S_T1}, 13
    v_add_u32 v{V_TMP+2}, s{S_T1}, v{V_TMP}
    s_cmp_eq_u32 s{S_KH}, 0
    """)
    C1 = "L_attn_c1"; C2 = "L_attn_c2"
    A(f"s_cbranch_scc0 {C1}")
    for kh in range(2):
        if kh == 1: A.label(C1)
        send = (2, 3) if kh == 0 else (0, 1)
        keep = (0, 1) if kh == 0 else (2, 3)
        for j, q in enumerate(send):
            for g in range(4):
                A(f"ds_write_b128 v{V_TMP+1}, {v(O(q)+4*g,4)} offset:{4096*j + 1024*g}")
        A("s_waitcnt lgkmcnt(0)")
        A("s_barrier")
        for j in range(2):
            for g in range(4):
                A(f"ds_read_b128 {v(V_S+16*j+4*g,4)}, v{V_TMP+2} offset:{4096*j + 1024*g}")
        A("s_waitcnt lgkmcnt(0)")
        for j, q in enumerate(keep):
            o = O(q); r_ = V_S + 16*j
            A(f"""
            v_max_f32 v{V_X}, v{o+13}, v{r_+13}
            v_sub_f32 v{V_X+1}, v{o+13}, v{V_X}
            v_sub_f32 v{V_X+2}, v{r_+13}, v{V_X}
            v_exp_f32 v{V_X+1}, v{V_X+1}
            v_exp_f32 v{V_X+2}, v{V_X+2}
            s_nop 0
            v_mul_f32 v{V_X+3}, v{V_X+1}, v{o+12}
            v_fmac_f32 v{V_X+3}, v{V_X+2}, v{r_+12}
            v_rcp_f32 v{V_X+3}, v{V_X+3}
            s_nop 0
            v_mul_f32 v{V_X+4}, v{V_X+1}, v{V_X+3}
            v_mul_f32 v{V_X+6}, v{V_X+2}, v{V_X+3}
            v_mov_b32 v{V_X+5}, v{V_X+4}
            v_mov_b32 v{V_X+7}, v{V_X+6}
            """)
            for pr in range(6):
                A(f"v_pk_mul_f32 {v(o+2*pr,2)}, {v(o+2*pr,2)}, {v(V_X+4,2)}")
            for pr in range(6):
                A(f"v_pk_fma_f32 {v(o+2*pr,2)}, {v(r_+2*pr,2)}, {v(V_X+6,2)}, {v(o+2*pr,2)}")
            for pr in range(6):
                A(f"v_cvt_pk_bf16_f32 v{V_P+pr}, v{o+2*pr}, v{o+2*pr+1}")
            if j == 0:
                A(f"s_mul_i32 s{S_T0}, s{S_HEAD}, 5")
                for a_ in range(3):
                    A(f"""
                    v_add_u32 v{V_TMP+3}, s{S_T0}, v{V_H}
                    v_add_u32 v{V_TMP+3}, {2*a_}, v{V_TMP+3}
                    v_lshrrev_b32 v{V_TMP+4}, 2, v{V_TMP+3}
                    v_lshlrev_b32 v{V_AO+a_}, 10, v{V_TMP+4}
                    v_and_b32 v{V_TMP+4}, 1, v{V_TMP+3}
                    v_lshlrev_b32 v{V_TMP+4}, 9, v{V_TMP+4}
                    v_add_u32 v{V_AO+a_}, v{V_AO+a_}, v{V_TMP+4}
                    v_bfe_u32 v{V_TMP+4}, v{V_TMP+3}, 1, 1
                    v_lshlrev_b32 v{V_TMP+4}, 3, v{V_TMP+4}
                    v_add_u32 v{V_AO+a_}, v{V_AO+a_}, v{V_TMP+4}
                    v_lshlrev_b32 v{V_TMP+4}, 4, v{V_T}
                    v_add_u32 v{V_AO+a_}, v{V_AO+a_}, v{V_TMP+4}
                    """)
            A(f"""
            s_add_u32 s{S_T1}, s{S_TT0}, {q}
            s_mul_i32 s{S_T1}, s{S_T1}, 40960
            buffer_store_dwordx2 {v(V_P,2)}, v{V_AO}, s[{S_O}:{S_O+3}], s{S_T1} offen
            buffer_store_dwordx2 {v(V_P+2,2)}, v{V_AO+1}, s[{S_O}:{S_O+3}], s{S_T1} offen
            s_mov_b64 exec, s[{S_LO}:{S_LO+1}]
            buffer_store_dwordx2 {v(V_P+4,2)}, v{V_AO+2}, s[{S_O}:{S_O+3}], s{S_T1} offen
            s_mov_b64 exec, -1
            """)
            if j == 0: A("s_nop 1")
        stamp(A, 5); stamp(A, 7, True)
        stamp_flush(A, 8, 2)
        A(f"s_branch {END}")
    A.label(END)
    A("s_endpgm")
    return A, descs, names
```

```python
from asmlib import *
from layout import *

def srd(A, d, base, off, size):
    if off:
        A(f"s_add_u32 s{d}, s{base}, {hex(off)}")
        A(f"s_addc_u32 s{d+1}, s{base+1}, 0")
    else:
        A(f"s_mov_b32 s{d}, s{base}")
        A(f"s_mov_b32 s{d+1}, s{base+1}")
    A(f"s_mov_b32 s{d+2}, {hex(size)}")
    A(f"s_mov_b32 s{d+3}, 0x20000")

def descriptor(name, vgpr, sgpr, accum=None):
    import asmlib
    if asmlib.STAMP: vgpr = 256; sgpr = 100; accum = 256
    if accum is None: accum = (vgpr + 3) // 4 * 4
    return f""".section .rodata,"a"
.p2align 6
.amdhsa_kernel {name}
  .amdhsa_next_free_vgpr {vgpr}
  .amdhsa_next_free_sgpr {sgpr}
  .amdhsa_accum_offset {accum}
  .amdhsa_group_segment_fixed_size 0
  .amdhsa_kernarg_size 72
  .amdhsa_user_sgpr_count 2
  .amdhsa_user_sgpr_kernarg_segment_ptr 1
  .amdhsa_system_sgpr_workgroup_id_x 1
  .amdhsa_float_denorm_mode_32 3
.end_amdhsa_kernel
.text
"""

def entry(A, name):
    A(f".globl {name}")
    A(".p2align 8")
    A(f".type {name},@function")
    A.label(name)

def halfsum(A, x, tmp):
    A(f"v_mov_b32 v{tmp}, v{x}")
    A(f"v_permlane32_swap_b32 v{x}, v{tmp}")
    A(f"v_add_f32 v{x}, v{x}, v{tmp}")

def gen_prep(name="prep_kernel"):
    A = Asm()
    entry(A, name)
    END = f"L_{name}_end"
    A(f"""
    s_load_dwordx4 s[4:7], s[0:1], {KA_X}
    s_load_dwordx2 s[8:9], s[0:1], {KA_WO}
    s_load_dwordx4 s[12:15], s[0:1], {KA_W1}
    s_load_dwordx2 s[10:11], s[0:1], {KA_WS}
    s_cmp_ge_u32 s2, 256
    s_cbranch_scc1 {END}
    v_lshrrev_b32 v1, 6, v0
    v_and_b32 v2, 63, v0
    v_readfirstlane_b32 s16, v1
    v_lshrrev_b32 v3, 5, v2
    v_and_b32 v4, 31, v2
    s_lshr_b32 s17, s2, 2
    s_and_b32 s18, s2, 3
    """)
    A(f"""
    s_lshl_b32 s19, s17, 5
    v_add_u32 v5, s19, v4
    v_mul_u32_u24 v5, 1280, v5
    v_lshlrev_b32 v6, 4, v3
    v_add_u32 v5, v5, v6
    s_mul_i32 s19, s18, 320
    s_lshl_b32 s20, s16, 5
    s_add_u32 s19, s19, s20
    v_add_u32 v5, s19, v5
    s_mov_b32 s63, 0x7f000000
    s_cmp_lt_u32 s16, 2
    s_cselect_b32 s21, 256, s63
    s_waitcnt lgkmcnt(0)
    """)
    srd(A, 24, 4, 0, XSZ)
    srd(A, 28, 10, XF[0], XSZ)
    srd(A, 32, 10, ST[0], STSZ)
    srd(A, 36, 8, 0, 640*1280)
    srd(A, 40, 14, 0, F*1280)
    srd(A, 84, 10, WOP, WOPSZ)
    srd(A, 88, 10, W2P, W2PSZ)
    A(f"""
    buffer_load_dwordx4 v[8:11], v5, s[24:27], 0 offen
    buffer_load_dwordx4 v[12:15], v5, s[24:27], 0 offen offset:128
    buffer_load_dwordx4 v[16:19], v5, s[24:27], s21 offen
    """)
    NOCS = f"L_{name}_nocs"; CSW1 = f"L_{name}_csw1"; CSGO = f"L_{name}_csgo"
    A(f"""
    s_cmp_ge_u32 s2, 228
    s_cselect_b32 s22, 1, 0
    s_cmp_ge_u32 s2, 120
    s_cbranch_scc1 {CSW1}
    """)
    srd(A, 44, 6, 0, 640*3840)
    srd(A, 48, 10, CSQ, CSQSZ)
    A(f"""
    s_mov_b32 s52, 3840
    s_mov_b32 s53, 7680
    s_mov_b32 s54, s2
    s_branch {CSGO}
    """)
    A.label(CSW1)
    srd(A, 44, 12, 0, 640*3456)
    srd(A, 48, 10, CS1, CS1SZ)
    A(f"""
    s_mov_b32 s52, 3456
    s_mov_b32 s53, 6912
    s_sub_u32 s54, s2, 120
    """)
    A.label(CSGO)
    A(f"""
    s_lshr_b32 s55, s54, 2
    s_and_b32 s56, s54, 3
    v_lshrrev_b32 v6, 3, v0
    s_mul_i32 s57, s56, 160
    v_add_u32 v6, s57, v6
    v_mul_lo_u32 v6, v6, s52
    v_and_b32 v7, 7, v0
    v_lshlrev_b32 v7, 4, v7
    v_add_u32 v6, v6, v7
    s_lshl_b32 s57, s55, 7
    v_add_u32 v6, s57, v6
    s_lshl_b32 s58, s52, 5
    s_cmp_eq_u32 s22, 1
    s_cselect_b32 s59, s63, 0
    """)
    for i in range(5):
        A(f"buffer_load_dwordx4 v[{20+4*i}:{23+4*i}], v6, s[44:47], s59 offen")
        if i < 4: A("s_add_u32 s59, s59, s58")
    A(f"""
    s_lshl_b32 s60, s2, 12
    v_lshlrev_b32 v7, 4, v0
    v_add_u32 v7, s60, v7
    s_mov_b32 s61, 0x100000
    s_mov_b32 s62, 0x200000
    buffer_load_dwordx4 v[40:43], v7, s[36:39], 0 offen
    buffer_load_dwordx4 v[44:47], v7, s[40:43], 0 offen
    buffer_load_dwordx4 v[48:51], v7, s[40:43], s61 offen
    buffer_load_dwordx4 v[52:55], v7, s[40:43], s62 offen
    """)
    def packaddr(dst, add, kq640):
        A(f"""
        v_lshrrev_b32 v72, 4, v7
        v_add_u32 v72, {add}, v72
        s_mov_b32 s64, 0xcccccccd
        v_mul_hi_u32 v73, v72, s64
        v_lshrrev_b32 v73, 6, v73
        v_mul_u32_u24 v74, 80, v73
        v_sub_u32 v74, v72, v74
        v_mul_u32_u24 v75, 6554, v74
        v_lshrrev_b32 v75, 16, v75
        v_mul_u32_u24 v76, 10, v75
        v_sub_u32 v76, v74, v76
        s_mov_b32 s64, {kq640}
        v_mul_lo_u32 v{dst}, v75, s64
        v_lshrrev_b32 v77, 2, v73
        v_mul_u32_u24 v77, 640, v77
        v_add_u32 v{dst}, v{dst}, v77
        v_and_b32 v73, 3, v73
        v_lshrrev_b32 v77, 2, v76
        v_lshlrev_b32 v77, 8, v77
        v_lshlrev_b32 v78, 6, v73
        v_add_u32 v77, v77, v78
        v_and_b32 v78, 3, v76
        v_lshlrev_b32 v78, 4, v78
        v_add_u32 v77, v77, v78
        v_lshlrev_b32 v78, 5, v73
        v_and_b32 v79, 1, v76
        v_lshlrev_b32 v79, 4, v79
        v_add_u32 v78, v78, v79
        v_add_u32 v78, 512, v78
        v_cmp_gt_u32 vcc, 8, v76
        v_cndmask_b32 v77, v78, v77, vcc
        v_add_u32 v{dst}, v{dst}, v77
        v_cmp_gt_u32 vcc, {kq640*8//16}, v72
        v_mov_b32 v78, s63
        v_cndmask_b32 v{dst}, v78, v{dst}, vcc
        """)
    packaddr(80, 0, 160*640)
    packaddr(81, 0, 432*640)
    packaddr(82, 65536, 432*640)
    packaddr(83, 131072, 432*640)
    A("s_waitcnt vmcnt(9)")
    A("v_mov_b32 v56, 0\nv_mov_b32 v57, 0")
    for r in range(8, 20):
        A(f"""
        v_lshlrev_b32 v58, 16, v{r}
        v_and_b32 v59, 0xffff0000, v{r}
        v_add_f32 v56, v56, v58
        v_fmac_f32 v57, v58, v58
        v_add_f32 v56, v56, v59
        v_fmac_f32 v57, v59, v59
        """)
    for b in (8, 12, 16):
        A(f"v_permlane32_swap_b32 v{b}, v{b+2}")
        A(f"v_permlane32_swap_b32 v{b+1}, v{b+3}")
    A(f"""
    s_mul_i32 s19, s17, 40
    s_mul_i32 s20, s18, 10
    s_add_u32 s19, s19, s20
    s_add_u32 s19, s19, s16
    s_lshl_b32 s19, s19, 10
    v_lshlrev_b32 v60, 4, v2
    v_add_u32 v60, s19, v60
    s_cmp_lt_u32 s16, 2
    s_cselect_b32 s21, 8192, s63
    s_mov_b32 s23, 4096
    buffer_store_dwordx4 v[8:11], v60, s[28:31], 0 offen
    buffer_store_dwordx4 v[12:15], v60, s[28:31], s23 offen
    buffer_store_dwordx4 v[16:19], v60, s[28:31], s21 offen
    """)
    halfsum(A, 56, 58)
    halfsum(A, 57, 59)
    A(f"""
    s_lshl_b32 s19, s17, 12
    s_lshl_b32 s20, s18, 2
    s_add_u32 s20, s20, s16
    s_lshr_b32 s23, s20, 1
    s_lshl_b32 s23, s23, 9
    s_add_u32 s19, s19, s23
    s_and_b32 s20, s20, 1
    s_lshl_b32 s20, s20, 3
    s_add_u32 s19, s19, s20
    v_lshlrev_b32 v60, 4, v4
    v_add_u32 v60, s19, v60
    buffer_store_dwordx2 v[56:57], v60, s[32:35], 0 offen
    """)
    A("s_waitcnt vmcnt(4)")
    A("""
    buffer_store_dwordx4 v[40:43], v80, s[84:87], 0 offen
    buffer_store_dwordx4 v[44:47], v81, s[88:91], 0 offen
    buffer_store_dwordx4 v[48:51], v82, s[88:91], 0 offen
    buffer_store_dwordx4 v[52:55], v83, s[88:91], 0 offen
    """)
    for j in range(8): A(f"v_mov_b32 v{64+j}, 0")
    for i in range(5):
        for rr in range(4):
            r = 20 + 4*i + rr
            A(f"""
            v_lshlrev_b32 v58, 16, v{r}
            v_and_b32 v59, 0xffff0000, v{r}
            v_add_f32 v{64+2*rr}, v{64+2*rr}, v58
            v_add_f32 v{65+2*rr}, v{65+2*rr}, v59
            """)
    A(f"""
    v_lshlrev_b32 v58, 5, v0
    ds_write_b128 v58, v[64:67]
    ds_write_b128 v58, v[68:71] offset:16
    s_waitcnt lgkmcnt(0)
    s_barrier
    """)
    A(f"""
    v_lshlrev_b32 v58, 2, v2
    s_lshl_b32 s19, s16, 11
    v_add_u32 v58, s19, v58
    """)
    for k in range(8): A(f"ds_read_b32 v{64+k}, v58 offset:{256*k}")
    A("s_waitcnt lgkmcnt(0)")
    A("""
    v_add_f32 v64, v64, v65
    v_add_f32 v66, v66, v67
    v_add_f32 v68, v68, v69
    v_add_f32 v70, v70, v71
    v_add_f32 v64, v64, v66
    v_add_f32 v68, v68, v70
    v_add_f32 v64, v64, v68
    v_lshlrev_b32 v58, 2, v0
    s_barrier
    ds_write_b32 v58, v64
    s_waitcnt lgkmcnt(0)
    s_barrier
    v_lshlrev_b32 v58, 2, v2
    ds_read_b32 v64, v58
    ds_read_b32 v65, v58 offset:256
    ds_read_b32 v66, v58 offset:512
    ds_read_b32 v67, v58 offset:768
    s_waitcnt lgkmcnt(0)
    v_add_f32 v64, v64, v65
    v_add_f32 v66, v66, v67
    v_add_f32 v64, v64, v66
    """)
    A(f"""
    s_mul_i32 s19, s56, s53
    s_lshl_b32 s20, s55, 8
    s_add_u32 s19, s19, s20
    s_cmp_lg_u32 s16, 0
    s_cselect_b32 s19, s63, s19
    s_cmp_eq_u32 s22, 1
    s_cselect_b32 s19, s63, s19
    v_add_u32 v58, s19, v58
    buffer_store_dword v64, v58, s[48:51], 0 offen
    s_waitcnt vmcnt(0)
    """)
    A.label(END)
    A("s_endpgm")
    return A, descriptor(name, 88, 96), 8192
```

```python
import sys; sys.path.insert(0,'gen')
from build import *
import k2_wide, k_attn, k2_narrow
def make(path, attn=None):
    P,pd,pl=k_prep.gen_prep()
    A,d,wn=k2_wide.gen_wide2()
    if attn is None:
        T_,td,tn=k_attn.gen_attn(); AB=256; AL=k_attn.LDS_BYTES
    else:
        T_,td,tn=attn.gen_attn2(); AB=512; AL=attn.LDS_BYTES
    N,nd,nn=k2_narrow.gen_narrow2()
    WL=k2_wide.LDS_BYTES; NL=k2_narrow.LDS_BYTES
    launches=[('prep_kernel',256,256,pl),
      ('qkv1_kernel',256,512,WL),('attn_kernel',256,AB,AL),('oproj1_kernel',256,512,NL),('ffa1_kernel',256,512,WL),('ffb1_kernel',256,512,NL),
      ('qkv2_kernel',256,512,WL),('attn_kernel',256,AB,AL),('oproj2_kernel',256,512,NL),('ffa2_kernel',256,512,WL),('ffb2_kernel',256,512,NL)]
    t,n=assemble([(P,pd),(A,d),(T_,td),(N,nd)],launches)
    open(path,'w').write(t); print('nops',n, len(t.splitlines()), len(t))
if __name__=="__main__":
    import asmlib
    make('cur.s')
    asmlib.STAMP=True
    make('stamp.s')
```

```python
import sys
from asmlib import *
from layout import *
import k_prep

HEADER = open('interleave_layers__mha_block__dense_activation_silu__prompt.s.ref').read().split("; Override launch")[0]

def assemble(kernels, launches):
    out = HEADER
    for (name, grid, block, lds) in launches:
        out += f"; @launch kernel={name} grid=({grid},1,1) block=({block},1,1) lds={lds}\n"
    out += '.amdgcn_target "amdgcn-amd-amdhsa--gfx950"\n.text\n'
    tot = 0
    for idx, (A, descs) in enumerate(kernels):
        lines, n = hazard_pass(A.lines)
        tot += n
        A.lines = lines
        if idx == 1: out += "L_code_lo:\n"
        out += f"L_blk{idx}_lo:\n"
        out += A.text()
        out += f"L_blk{idx}_hi:\n"
        if idx == len(kernels)-1: out += "L_code_hi:\n"
        out += descs
    return out, tot
```

```python
from asmlib import *
from layout import *
from k_prep import srd, descriptor, entry
import struct, asmlib
def f2u(x): return struct.unpack("<I", struct.pack("<f", x))[0]

LDS_BYTES = 163840
VB = 81920
S_Q=8; S_KV=12; S_O=16
S_HEAD=20; S_QB=21; S_WAVE=22; S_GOFF=23; S_LOFF=24; S_CNT=25; S_T0=26; S_T1=27; S_T2=28; S_FLAG=29
S_TT=30; S_W3=31; S_EV=32; S_T3=33
S_VMASK=40; S_LO=42; S_M40=44; S_M56=46; S_CC=48
V_LANE=1; V_H=2; V_T=3
V_AK0=4; V_AK1=5; V_AV=6; V_DMA=7; V_AO=8
V_TMP=11
V_M=18; V_X=20
V_Q0=28; V_Q1=32; V_P=36; V_K=44; V_V=60; V_O=76; V_S=92
NV = 124
OPT = dict(onesrows=12, prio=0, noexec=False, nolds=False, sched=0)

def S(b): return V_S + 16*b
def K0(p): return V_K + 8*p
def K1(p): return V_K + 8*p + 4
def V0(p): return V_V + 8*p
def V1(p): return V_V + 8*p + 4
def mf(d, a_, b_, c):
    cs = v(c,16) if c is not None else "0"
    return f"v_mfma_f32_32x32x16_bf16 {v(d,16)}, {v(a_,4)}, {v(b_,4)}, {cs}"
def rd_k(A, p, t):
    if OPT['nolds']: return
    A(f"ds_read_b128 {v(K0(p),4)}, v{V_AK0} offset:{1280*t}")
    A(f"ds_read_b64 {v(K1(p),2)}, v{V_AK1} offset:{1280*t}")
def rd_v(A, p, t):
    if OPT['nolds']: return
    if OPT['noexec']:
        A(f"ds_read_b128 {v(V0(p),4)}, v{V_AV} offset:{1280*t}")
        A(f"ds_read_b128 {v(V1(p),4)}, v{V_AV} offset:{1280*t+640}")
        return
    A(f"s_mov_b64 exec, s[{S_VMASK}:{S_VMASK+1}]")
    A(f"ds_read_b128 {v(V0(p),4)}, v{V_AV} offset:{1280*t}")
    A(f"ds_read_b128 {v(V1(p),4)}, v{V_AV} offset:{1280*t+640}")
    A("s_mov_b64 exec, -1")

def dma(A, n, first_off=0):
    nb = n*320
    A(f"s_mul_i32 s{S_T0}, s{S_W3}, {nb}")
    A(f"s_add_u32 s{S_T1}, s{S_T0}, s{S_GOFF}")
    A(f"s_add_u32 m0, s{S_T0}, s{S_LOFF}")
    full = nb // 1024; rem = (nb % 1024) // 16
    for k in range(full):
        if k == 4:
            A(f"s_add_u32 m0, m0, 4096"); A(f"s_add_u32 s{S_T1}, s{S_T1}, 4096")
        off = (k % 4)*1024
        A(f"buffer_load_dwordx4 v{V_DMA}, s[{S_KV}:{S_KV+3}], s{S_T1} offen" + (f" offset:{off}" if off else "") + " lds")
    if rem:
        assert full < 4
        m = (1 << rem) - 1
        A(f"s_mov_b32 exec_lo, {hex(m & 0xffffffff)}")
        A(f"s_mov_b32 exec_hi, {hex(m >> 32)}")
        off = full*1024
        A(f"buffer_load_dwordx4 v{V_DMA}, s[{S_KV}:{S_KV+3}], s{S_T1} offen" + (f" offset:{off}" if off else "") + " lds")
        A("s_mov_b64 exec, -1")
    A(f"s_add_u32 s{S_GOFF}, s{S_GOFF}, {n*1280}")
    A(f"s_add_u32 s{S_LOFF}, s{S_LOFF}, {n*1280}")
    return full + (1 if rem else 0)

def period(A, pos, event=None):
    p = pos & 1
    s_ = S(p); sn = S(p ^ 1)
    e = lambda r: A(f"v_exp_f32 v{s_+r}, v{s_+r}")
    c = lambda k: A(f"v_cvt_pk_bf16_f32 v{V_P+k}, v{s_+2*k}, v{s_+2*k+1}")
    if event: event()
    if OPT['sched'] == 0:
        A("s_waitcnt lgkmcnt(2)")
        A(mf(sn, K0(p ^ 1), V_Q0, None))
        rd_k(A, p, pos + 2)
        e(0); e(1); e(2); e(3); c(0)
        A(mf(sn, K1(p ^ 1), V_Q1, sn))
        e(4); e(5); c(1); e(6); e(7); c(2)
        A(mf(V_O, V1(p ^ 1), V_P+4, V_O))
        e(8); e(9); c(3); e(10); e(11); c(4)
        A("s_waitcnt lgkmcnt(2)")
        A(mf(V_O, V0(p), V_P, V_O))
        rd_v(A, p ^ 1, pos + 1)
        e(12); e(13); c(5); e(14); e(15); c(6); c(7)
    else:
        A("s_waitcnt lgkmcnt(0)")
        if OPT['prio'] == 2: A("s_setprio 1")
        A(mf(sn, K0(p ^ 1), V_Q0, None))
        A(mf(V_O, V0(p ^ 1), V_P, V_O))
        A(mf(sn, K1(p ^ 1), V_Q1, sn))
        A(mf(V_O, V1(p ^ 1), V_P+4, V_O))
        if OPT['prio'] == 2: A("s_setprio 0")
        rd_k(A, p, pos + 2)
        rd_v(A, p, pos)
        if OPT['sched'] == 1:
            e(0); e(1); e(2); e(3); c(0); e(4); e(5); c(1); e(6); e(7); c(2); e(8); e(9); c(3); e(10); e(11); c(4)
            e(12); e(13); c(5); e(14); e(15); c(6); c(7)
        else:
            for r in range(16): e(r)
            for k in range(8): c(k)

def rowmax(A, dst, src):
    A(f"v_max3_f32 v{dst}, v{src}, v{src+1}, v{src+2}")
    for r in range(3, 15, 2):
        A(f"v_max3_f32 v{dst}, v{dst}, v{src+r}, v{src+r+1}")
    A(f"v_max_f32 v{dst}, v{dst}, v{src+15}")
    A(f"v_mov_b32 v{V_TMP}, v{dst}")
    A(f"v_permlane32_swap_b32 v{dst}, v{V_TMP}")
    A(f"v_max_f32 v{dst}, v{dst}, v{V_TMP}")

def lds_addrs(A):
    A(f"v_lshlrev_b32 v{V_AK0}, 4, v{V_LANE}")
    A(f"v_lshlrev_b32 v{V_AK1}, 3, v{V_T}")
    A(f"v_add_u32 v{V_AK1}, 1024, v{V_AK1}")
    A(f"v_mul_u32_u24 v{V_AV}, 20, v{V_H}")
    A(f"v_add_u32 v{V_AV}, v{V_AV}, v{V_T}")
    A(f"v_lshlrev_b32 v{V_AV}, 4, v{V_AV}")
    A(f"v_add_u32 v{V_AV}, {VB}, v{V_AV}")

def gen_attn2():
    A = Asm(); descs = ""; names = []
    END = "L_a2_end"
    name = "attn_kernel"
    names.append(name)
    entry(A, name)
    descs += descriptor(name, NV, 64)
    stamp(A, 0); stamp(A, 6, True)
    A(f"""
    s_load_dwordx2 s[4:5], s[0:1], {KA_WS}
    s_cmp_ge_u32 s2, 256
    s_cbranch_scc1 {END}
    v_lshrrev_b32 v{V_TMP}, 6, v0
    v_and_b32 v{V_LANE}, 63, v0
    v_readfirstlane_b32 s{S_WAVE}, v{V_TMP}
    s_and_b32 s{S_HEAD}, s2, 31
    s_lshr_b32 s{S_QB}, s2, 5
    v_lshlrev_b32 v{V_DMA}, 4, v{V_LANE}
    v_lshrrev_b32 v{V_H}, 5, v{V_LANE}
    v_and_b32 v{V_T}, 31, v{V_LANE}
    s_mul_i32 s{S_GOFF}, s{S_HEAD}, {64*1280}
    s_and_b32 s{S_W3}, s{S_WAVE}, 3
    s_cmp_ge_u32 s{S_WAVE}, 4
    s_cselect_b32 s{S_LOFF}, {VB}, 0
    s_mov_b32 s{S_T0}, {hex(KF)}
    s_cselect_b32 s{S_T2}, {hex(VF)}, s{S_T0}
    s_lshl_b32 s{S_TT}, s{S_QB}, 3
    s_add_u32 s{S_TT}, s{S_TT}, s{S_WAVE}
    s_lshl_b32 s{S_T3}, s{S_HEAD}, 6
    s_add_u32 s{S_T3}, s{S_T3}, s{S_TT}
    s_mul_i32 s{S_T3}, s{S_T3}, 1280
    v_lshlrev_b32 v{V_TMP+1}, 3, v{V_T}
    v_add_u32 v{V_TMP+1}, 1024, v{V_TMP+1}
    s_waitcnt lgkmcnt(0)
    s_add_u32 s{S_KV}, s4, s{S_T2}
    s_addc_u32 s{S_KV+1}, s5, 0
    s_mov_b32 s{S_KV+2}, {XSZ}
    s_mov_b32 s{S_KV+3}, 0x20000
    """)
    n1 = dma(A, 2)
    srd(A, S_Q, 4, QF, XSZ)
    A(f"""
    v_mov_b32 v{V_Q1}, 0
    v_mov_b32 v{V_Q1+1}, 0
    v_mov_b32 v{V_Q1+2}, 0
    v_mov_b32 v{V_Q1+3}, 0
    buffer_load_dwordx4 {v(V_Q0,4)}, v{V_DMA}, s[{S_Q}:{S_Q+3}], s{S_T3} offen
    s_mov_b32 exec_hi, 0
    buffer_load_dwordx2 {v(V_Q1,2)}, v{V_TMP+1}, s[{S_Q}:{S_Q+3}], s{S_T3} offen
    s_mov_b32 exec_hi, -1
    """)
    n2 = dma(A, 6)
    srd(A, S_O, 4, OF, XSZ)
    A(f"""
    s_mov_b32 s{S_VMASK}, 0x000fffff
    s_mov_b32 s{S_VMASK+1}, 0x000fffff
    s_mov_b32 s{S_LO}, -1
    s_mov_b32 s{S_LO+1}, 0
    s_mov_b32 s{S_FLAG}, 0
    """)
    lds_addrs(A)
    for p in range(2):
        A(f"v_mov_b32 v{K1(p)+2}, 0x3f803f80")
        A(f"v_mov_b32 v{K1(p)+3}, 0x00003f80")
    if OPT['onesrows'] == 12:
        for p in range(2):
            for r in range(8): A(f"v_mov_b32 v{V0(p)+r}, 0x3f803f80")
    else:
        A(f"v_cmp_eq_u32 vcc, 20, v{V_T}")
        A(f"v_cmp_eq_u32 s[{S_CC}:{S_CC+1}], 24, v{V_T}")
        A(f"s_or_b64 vcc, vcc, s[{S_CC}:{S_CC+1}]")
        A(f"v_mov_b32 v{V_TMP+2}, 0x3f803f80")
        A(f"v_cndmask_b32 v{V_TMP+2}, 0, v{V_TMP+2}, vcc")
        for p in range(2):
            for r in range(8): A(f"v_mov_b32 v{V0(p)+r}, v{V_TMP+2}")
    A(f"s_waitcnt vmcnt({n2})")
    A("s_barrier")
    stamp(A, 1)
    rd_k(A, 0, 0)
    n3 = dma(A, 16)
    A("s_waitcnt lgkmcnt(0)")
    A(mf(S(0), K0(0), V_Q0, None))
    A(mf(S(0), K1(0), V_Q1, S(0)))
    rowmax(A, V_M, S(0))
    A(f"s_waitcnt vmcnt({n3})")
    A("s_barrier")
    SETUP = "L_a2_setup"; LOOP = "L_a2_loop"; TRUEMAX = "L_a2_truemax"; FINAL = "L_a2_final"
    A.label(SETUP)
    lds_addrs(A)
    rd_k(A, 0, 0); rd_k(A, 1, 1)
    if OPT['sched'] == 0: rd_v(A, 0, 0)
    A(f"s_mov_b64 exec, s[{S_LO}:{S_LO+1}]")
    A(f"""
    v_sub_f32 v{V_TMP}, 0, v{V_M}
    v_and_b32 v{V_TMP+1}, 0xffff0000, v{V_TMP}
    v_sub_f32 v{V_TMP}, v{V_TMP}, v{V_TMP+1}
    v_and_b32 v{V_TMP+2}, 0xffff0000, v{V_TMP}
    v_sub_f32 v{V_TMP}, v{V_TMP}, v{V_TMP+2}
    v_lshrrev_b32 v{V_TMP+1}, 16, v{V_TMP+1}
    v_or_b32 v{V_Q1+2}, v{V_TMP+1}, v{V_TMP+2}
    v_lshrrev_b32 v{V_Q1+3}, 16, v{V_TMP}
    s_mov_b64 exec, -1
    """)
    for r in range(16): A(f"v_mov_b32 v{V_O+r}, 0")
    for r in range(8): A(f"v_mov_b32 v{V_P+r}, 0")
    A(f"s_mov_b64 exec, s[{S_VMASK}:{S_VMASK+1}]")
    for r in range(4): A(f"v_mov_b32 v{V1(1)+r}, 0")
    if OPT['sched'] != 0:
        for r in range(4): A(f"v_mov_b32 v{V0(1)+r}, 0")
    A("s_mov_b64 exec, -1")
    A("s_waitcnt lgkmcnt(4)" if OPT['sched'] == 0 else "s_waitcnt lgkmcnt(2)")
    A(mf(S(0), K0(0), V_Q0, None))
    A(mf(S(0), K1(0), V_Q1, S(0)))
    A(f"s_mov_b32 s{S_CNT}, 0")
    stamp(A, 2)
    if OPT['prio']:
        A(f"s_cmp_ge_u32 s{S_WAVE}, 4")
        A(f"s_cbranch_scc0 L_a2_noprio")
        A("s_setprio 1")
        A.label("L_a2_noprio")
    A("s_nop 7")
    A(".p2align 6")
    A.label(LOOP)
    def event():
        SK = "L_a2_ev_skip"; NOD = "L_a2_ev_nodma"; D8 = "L_a2_ev_d8"
        A(f"s_or_b32 s{S_T0}, s{S_CNT}, s{S_FLAG}")
        A(f"s_bitcmp1_b32 s{S_T0}, 0")
        A(f"s_cbranch_scc1 {SK}")
        A("s_waitcnt vmcnt(0)")
        A("s_barrier")
        A(f"s_cmp_ge_u32 s{S_CNT}, 6")
        A(f"s_cbranch_scc1 {SK}")
        A(f"s_cmp_eq_u32 s{S_CNT}, 4")
        A(f"s_cbranch_scc1 {D8}")
        dma(A, 16)
        A(f"s_branch {SK}")
        A.label(D8)
        dma(A, 8)
        A.label(SK)
    for pos in range(8):
        period(A, pos, event if pos == 6 else None)
    A(f"v_add_u32 v{V_AK0}, {8*1280}, v{V_AK0}")
    A(f"v_add_u32 v{V_AK1}, {8*1280}, v{V_AK1}")
    A(f"v_add_u32 v{V_AV}, {8*1280}, v{V_AV}")
    A(f"s_add_u32 s{S_CNT}, s{S_CNT}, 1")
    A(f"s_cmp_lg_u32 s{S_CNT}, 8")
    A(f"s_cbranch_scc1 {LOOP}")
    stamp(A, 3)
    if OPT['sched'] != 0:
        A("s_waitcnt lgkmcnt(0)")
        A(mf(V_O, V0(1), V_P, V_O))
    A(mf(V_O, V1(1), V_P+4, V_O))
    A("s_waitcnt lgkmcnt(0)")
    A(f"s_cmp_lg_u32 s{S_FLAG}, 0")
    A(f"s_cbranch_scc1 {FINAL}")
    A(f"v_mov_b32 v{V_TMP}, 0")
    for r in range(0, 12, 2):
        A(f"v_max3_f32 v{V_TMP}, v{V_TMP}, |v{V_O+r}|, |v{V_O+r+1}|")
    A(f"""
    s_mov_b32 s{S_T0}, {hex(f2u(2.0**40))}
    s_mov_b32 s{S_T1}, {hex(f2u(2.0**120))}
    v_cmp_gt_f32 vcc, s{S_T0}, v{V_O+12}
    v_cmp_gt_f32 s[{S_CC}:{S_CC+1}], s{S_T1}, v{V_TMP}
    s_and_b64 vcc, vcc, s[{S_CC}:{S_CC+1}]
    s_cmp_eq_u64 vcc, exec
    s_cbranch_scc1 {FINAL}
    """)
    A.label(TRUEMAX)
    A(f"s_mov_b32 s{S_FLAG}, 1")
    A(f"s_mov_b64 exec, s[{S_LO}:{S_LO+1}]")
    A(f"v_mov_b32 v{V_Q1+2}, 0")
    A(f"v_mov_b32 v{V_Q1+3}, 0")
    A("s_mov_b64 exec, -1")
    A(f"v_mov_b32 v{V_X}, 0xff800000")
    lds_addrs(A)
    A(f"s_mov_b32 s{S_CNT}, 64")
    TL = "L_a2_tm_loop"
    A.label(TL)
    rd_k(A, 0, 0)
    A("s_waitcnt lgkmcnt(0)")
    A(mf(S(0), K0(0), V_Q0, None))
    A(mf(S(0), K1(0), V_Q1, S(0)))
    rowmax(A, V_M, S(0))
    A(f"v_max_f32 v{V_X}, v{V_X}, v{V_M}")
    A(f"v_add_u32 v{V_AK0}, 1280, v{V_AK0}")
    A(f"v_add_u32 v{V_AK1}, 1280, v{V_AK1}")
    A(f"s_sub_u32 s{S_CNT}, s{S_CNT}, 1")
    A(f"s_cmp_lg_u32 s{S_CNT}, 0")
    A(f"s_cbranch_scc1 {TL}")
    A(f"v_mov_b32 v{V_M}, v{V_X}")
    A(f"s_branch {SETUP}")
    A.label(FINAL)
    stamp(A, 4)
    A(f"v_rcp_f32 v{V_X}, v{V_O+12}")
    A(f"s_mul_i32 s{S_T0}, s{S_HEAD}, 5")
    for a_ in range(3):
        A(f"""
        v_add_u32 v{V_TMP+3}, s{S_T0}, v{V_H}
        v_add_u32 v{V_TMP+3}, {2*a_}, v{V_TMP+3}
        v_lshrrev_b32 v{V_TMP+4}, 2, v{V_TMP+3}
        v_lshlrev_b32 v{V_AO+a_}, 10, v{V_TMP+4}
        v_and_b32 v{V_TMP+4}, 1, v{V_TMP+3}
        v_lshlrev_b32 v{V_TMP+4}, 9, v{V_TMP+4}
        v_add_u32 v{V_AO+a_}, v{V_AO+a_}, v{V_TMP+4}
        v_bfe_u32 v{V_TMP+4}, v{V_TMP+3}, 1, 1
        v_lshlrev_b32 v{V_TMP+4}, 3, v{V_TMP+4}
        v_add_u32 v{V_AO+a_}, v{V_AO+a_}, v{V_TMP+4}
        v_lshlrev_b32 v{V_TMP+4}, 4, v{V_T}
        v_add_u32 v{V_AO+a_}, v{V_AO+a_}, v{V_TMP+4}
        """)
    A(f"v_mov_b32 v{V_X+1}, v{V_X}")
    for pr in range(6):
        A(f"v_pk_mul_f32 {v(V_O+2*pr,2)}, {v(V_O+2*pr,2)}, {v(V_X,2)}")
    for pr in range(6):
        A(f"v_cvt_pk_bf16_f32 v{V_P+pr}, v{V_O+2*pr}, v{V_O+2*pr+1}")
    A(f"""
    s_mul_i32 s{S_T1}, s{S_TT}, 40960
    buffer_store_dwordx2 {v(V_P,2)}, v{V_AO}, s[{S_O}:{S_O+3}], s{S_T1} offen
    buffer_store_dwordx2 {v(V_P+2,2)}, v{V_AO+1}, s[{S_O}:{S_O+3}], s{S_T1} offen
    s_mov_b64 exec, s[{S_LO}:{S_LO+1}]
    buffer_store_dwordx2 {v(V_P+4,2)}, v{V_AO+2}, s[{S_O}:{S_O+3}], s{S_T1} offen
    s_mov_b64 exec, -1
    """)
    stamp(A, 5); stamp(A, 7, True)
    stamp_flush(A, 8, 2)
    A.label(END)
    A("s_endpgm")
    return A, descs, names
```

```python
from asmlib import *
from layout import *
from k_prep import srd, descriptor, entry
import struct
def f2u(x): return struct.unpack("<I", struct.pack("<f", x))[0]

S_Q=8; S_K=12; S_V=16; S_O=20
S_HEAD=24; S_QB=25; S_WAVE=26; S_QG=27; S_KH=28; S_KOFF=29; S_VOFF=30; S_CNT=31
S_T0=32; S_T1=33; S_T2=34; S_FLAG=35; S_K0=36; S_TT0=37
S_VMASK=40
S_LO=42
V_LANE=1; V_H=2; V_T=3
V_AK0=4; V_AK1=5; V_AV=6; V_AO=7
V_TMP=10
V_Q=16; V_O=48; V_S=112; V_P=144; V_K=152; V_V=168; V_M=184; V_X=188; V_J=200
V_S4=192
LDS_BYTES = 32768

OPT = dict(s4=False, sched=0, noload=False, nomfma=0, noexp=False, w8=False, noexec=False)
def Q0(q): return V_Q + 8*q
def Q1(q): return V_Q + 8*q + 4
def O(q): return V_O + 16*q
def S(b): return V_S + 16*b
def K0(p): return V_K + 8*p
def K1(p): return V_K + 8*p + 4
def V0(p): return V_V + 8*p
def V1(p): return V_V + 8*p + 4

def mf(d, a_, b_, c):
    cs = v(c,16) if c is not None else "0"
    return f"v_mfma_f32_32x32x16_bf16 {v(d,16)}, {v(a_,4)}, {v(b_,4)}, {cs}"

def load_k(A, p):
    A(f"buffer_load_dwordx4 {v(K0(p),4)}, v{V_AK0}, s[{S_K}:{S_K+3}], s{S_KOFF} offen")
    A(f"buffer_load_dwordx2 {v(K1(p),2)}, v{V_AK1}, s[{S_K}:{S_K+3}], s{S_KOFF} offen")
    A(f"s_add_u32 s{S_KOFF}, s{S_KOFF}, 1280")
def load_v(A, p):
    if OPT['noexec']:
        A(f"buffer_load_dwordx4 {v(V0(p),4)}, v{V_AV}, s[{S_V}:{S_V+3}], s{S_VOFF} offen")
        A(f"buffer_load_dwordx4 {v(V1(p),4)}, v{V_AV}, s[{S_V}:{S_V+3}], s{S_VOFF} offen offset:640")
        A(f"s_add_u32 s{S_VOFF}, s{S_VOFF}, 1280")
        return
    A(f"s_mov_b64 exec, s[{S_VMASK}:{S_VMASK+1}]")
    A(f"buffer_load_dwordx4 {v(V0(p),4)}, v{V_AV}, s[{S_V}:{S_V+3}], s{S_VOFF} offen")
    A(f"buffer_load_dwordx4 {v(V1(p),4)}, v{V_AV}, s[{S_V}:{S_V+3}], s{S_VOFF} offen offset:640")
    A(f"s_mov_b64 exec, -1")
    A(f"s_add_u32 s{S_VOFF}, s{S_VOFF}, 1280")

def period(A, p, q):
    if OPT['s4']:
        s_ = V_S4 + 16*q; sn = V_S4 + 16*((q+1)&3); sp_ = V_S4 + 16*((q-1)&3)
    else:
        b = q & 1
        s_ = S(b); sn = S(b ^ 1)
    qn = (q + 1) & 3; kp = p if q < 3 else p ^ 1
    qp = (q - 1) & 3; vp = p if q > 0 else p ^ 1
    e = lambda r: A(f"v_exp_f32 v{s_+r}, v{s_+r}")
    c = lambda k: A(f"v_cvt_pk_bf16_f32 v{V_P+k}, v{s_+2*k}, v{s_+2*k+1}")
    if OPT['noexp']:
        e = lambda r: None
    mq = (lambda x: None) if OPT['nomfma'] & 1 else A
    mp = (lambda x: None) if OPT['nomfma'] & 2 else A
    lk = (lambda p_: None) if OPT['noload'] else (lambda p_: load_k(A, p_))
    lv = (lambda p_: None) if OPT['noload'] else (lambda p_: load_v(A, p_))
    wt = (lambda x: None) if OPT['noload'] else A
    sched = OPT['sched']
    if sched == 0:
        if q == 3: wt("s_waitcnt vmcnt(2)")
        mq(mf(sn, K0(kp), Q0(qn), None))
        e(0); e(1); e(2); e(3); c(0)
        mq(mf(sn, K1(kp), Q1(qn), sn))
        e(4); e(5); c(1)
        if q == 3: lk(p)
        if q == 1: lv(p ^ 1)
        e(6); e(7); c(2)
        mp(mf(O(qp), V1(vp), V_P+4, O(qp)))
        e(8); e(9); c(3); e(10); e(11); c(4)
        if q == 0: wt("s_waitcnt vmcnt(2)")
        mp(mf(O(q), V0(p), V_P, O(q)))
        e(12); e(13); c(5); e(14); e(15); c(6); c(7)
    elif sched == 1:
        cprev = lambda: A(f"v_cvt_pk_bf16_f32 v{V_P+7}, v{sp_+14}, v{sp_+15}")
        if q == 3: wt("s_waitcnt vmcnt(2)")
        mq(mf(sn, K0(kp), Q0(qn), None))
        e(0); e(1); cprev(); e(2); e(3); c(0)
        mq(mf(sn, K1(kp), Q1(qn), sn))
        e(4); e(5); c(1)
        if q == 3: lk(p)
        if q == 1: lv(p ^ 1)
        e(6); e(7); c(2)
        mp(mf(O(qp), V1(vp), V_P+4, O(qp)))
        e(8); e(9); c(3); e(10); e(11); c(4)
        if q == 0: wt("s_waitcnt vmcnt(2)")
        mp(mf(O(q), V0(p), V_P, O(q)))
        e(12); e(13); c(5); e(14); e(15); c(6)
    elif sched == 2:
        cprev = lambda k: A(f"v_cvt_pk_bf16_f32 v{V_P+k}, v{sp_+2*k}, v{sp_+2*k+1}")
        if q == 3: wt("s_waitcnt vmcnt(2)")
        mq(mf(sn, K0(kp), Q0(qn), None))
        cprev(6); cprev(7); e(0); e(1); e(2); e(3)
        mq(mf(sn, K1(kp), Q1(qn), sn))
        c(0); c(1); e(4); e(5)
        if q == 3: lk(p)
        if q == 1: lv(p ^ 1)
        e(6); e(7)
        mp(mf(O(qp), V1(vp), V_P+4, O(qp)))
        c(2); c(3); e(8); e(9); e(10); e(11)
        if q == 0: wt("s_waitcnt vmcnt(2)")
        mp(mf(O(q), V0(p), V_P, O(q)))
        c(4); c(5); e(12); e(13); e(14); e(15)

def rowmax(A, dst, src):
    A(f"v_max3_f32 v{dst}, v{src}, v{src+1}, v{src+2}")
    for r in range(3, 15, 2):
        A(f"v_max3_f32 v{dst}, v{dst}, v{src+r}, v{src+r+1}")
    A(f"v_max_f32 v{dst}, v{dst}, v{src+15}")
    A(f"v_mov_b32 v{V_TMP}, v{dst}")
    A(f"v_permlane32_swap_b32 v{dst}, v{V_TMP}")
    A(f"v_max_f32 v{dst}, v{dst}, v{V_TMP}")

def reset_ptrs(A):
    A(f"s_mov_b32 s{S_KOFF}, s{S_K0}")
    A(f"s_mov_b32 s{S_VOFF}, s{S_K0}")

def gen_attn(prefetch=True):
    A = Asm(); descs = ""; names = []
    COMMON = "L_attn_common"; END = "L_attn_end"
    name = "attn_kernel"
    names.append(name)
    entry(A, name)
    descs += descriptor(name, 256 if OPT['s4'] else 224, 64)
    stamp(A, 0); stamp(A, 6, True)
    A(f"""
    s_load_dwordx2 s[4:5], s[0:1], {KA_WS}
    s_cmp_ge_u32 s2, 256
    s_cbranch_scc1 {END}
    s_and_b32 s{S_HEAD}, s2, 31
    s_lshr_b32 s{S_QB}, s2, 5
    v_lshrrev_b32 v{V_TMP}, 6, v0
    v_and_b32 v{V_LANE}, 63, v0
    v_readfirstlane_b32 s{S_WAVE}, v{V_TMP}
    v_lshrrev_b32 v{V_H}, 5, v{V_LANE}
    v_and_b32 v{V_T}, 31, v{V_LANE}
    s_mov_b32 s{S_VMASK}, 0x000fffff
    s_mov_b32 s{S_VMASK+1}, 0x000fffff
    s_mov_b32 s{S_LO}, -1
    s_mov_b32 s{S_LO+1}, 0
    s_and_b32 s{S_QG}, s{S_WAVE}, 1
    s_lshr_b32 s{S_KH}, s{S_WAVE}, 1
    s_lshl_b32 s{S_T0}, s{S_HEAD}, 6
    s_lshl_b32 s{S_T1}, s{S_KH}, {4 if OPT['w8'] else 5}
    s_add_u32 s{S_T1}, s{S_T1}, s{S_T0}
    s_mul_i32 s{S_K0}, s{S_T1}, 1280
    s_lshl_b32 s{S_TT0}, s{S_QB}, 3
    s_lshl_b32 s{S_T2}, s{S_QG}, 2
    s_add_u32 s{S_TT0}, s{S_TT0}, s{S_T2}
    s_add_u32 s{S_T0}, s{S_T0}, s{S_TT0}
    s_mul_i32 s{S_T0}, s{S_T0}, 1280
    v_lshlrev_b32 v{V_AK0}, 4, v{V_LANE}
    v_lshlrev_b32 v{V_AK1}, 3, v{V_T}
    v_add_u32 v{V_AK1}, 1024, v{V_AK1}
    v_mul_u32_u24 v{V_AV}, 20, v{V_H}
    v_add_u32 v{V_AV}, v{V_AV}, v{V_T}
    v_lshlrev_b32 v{V_AV}, 4, v{V_AV}
    s_mov_b32 s{S_FLAG}, 0
    s_waitcnt lgkmcnt(0)
    """)
    srd(A, S_Q, 4, QF, XSZ); srd(A, S_K, 4, KF, XSZ); srd(A, S_V, 4, VF, XSZ); srd(A, S_O, 4, OF, XSZ)
    for q in range(4):
        for r in range(4): A(f"v_mov_b32 v{Q1(q)+r}, 0")
    for q in range(4):
        A(f"buffer_load_dwordx4 {v(Q0(q),4)}, v{V_AK0}, s[{S_Q}:{S_Q+3}], s{S_T0} offen offset:{0}" if q == 0 else
          f"buffer_load_dwordx4 {v(Q0(q),4)}, v{V_AK0}, s[{S_Q}:{S_Q+3}], s{S_T0} offen offset:{1280*q}")
    A(f"s_mov_b64 exec, s[{S_LO}:{S_LO+1}]")
    for q in range(4):
        A(f"buffer_load_dwordx2 {v(Q1(q),2)}, v{V_AK1}, s[{S_Q}:{S_Q+3}], s{S_T0} offen" + (f" offset:{1280*q}" if q else ""))
    A("s_mov_b64 exec, -1")
    for p in range(2):
        A(f"v_mov_b32 v{K1(p)+2}, 0x3f803f80")
        A(f"v_mov_b32 v{K1(p)+3}, 0x00003f80")
        for r in range(8): A(f"v_mov_b32 v{V0(p)+r}, 0x3f803f80")
    reset_ptrs(A)
    load_k(A, 0)
    if prefetch:
        A(f"""
        s_lshl_b32 s{S_T0}, s{S_HEAD}, 6
        s_mul_i32 s{S_T0}, s{S_T0}, 1280
        s_mul_i32 s{S_T1}, s{S_QB}, 10240
        s_add_u32 s{S_T0}, s{S_T0}, s{S_T1}
        v_lshlrev_b32 v{V_TMP}, 4, v0
        v_add_u32 v{V_TMP}, s{S_T0}, v{V_TMP}
        s_movk_i32 s{S_T1}, 4096
        s_movk_i32 s{S_T2}, 8192
        """)
        for j,so in enumerate(("0", f"s{S_T1}", f"s{S_T2}")):
            vj = V_S + 8 if OPT['s4'] else V_J
            A(f"buffer_load_dwordx4 {v(vj+8*j,4)}, v{V_TMP}, s[{S_K}:{S_K+3}], {so} offen")
            A(f"buffer_load_dwordx4 {v(vj+8*j+4,4)}, v{V_TMP}, s[{S_V}:{S_V+3}], {so} offen")
    npf = 6 if prefetch else 0
    A(f"s_waitcnt vmcnt({npf})")
    stamp(A, 1)
    for q in range(4):
        A(mf(O(q), K0(0), Q0(q), None))
        A(mf(O(q), K1(0), Q1(q), O(q)))
    for q in range(4):
        rowmax(A, V_M+q, O(q))
    SETUP = "L_attn_setup"; LOOP = "L_attn_loop"; TRUEMAX = "L_attn_truemax"; COMBINE = "L_attn_combine"
    A.label(SETUP)
    reset_ptrs(A)
    load_k(A, 0); load_v(A, 0); load_k(A, 1)
    A(f"s_mov_b64 exec, s[{S_LO}:{S_LO+1}]")
    for q in range(4):
        m = V_M + q
        A(f"""
        v_sub_f32 v{V_TMP}, 0, v{m}
        v_and_b32 v{V_TMP+1}, 0xffff0000, v{V_TMP}
        v_sub_f32 v{V_TMP}, v{V_TMP}, v{V_TMP+1}
        v_and_b32 v{V_TMP+2}, 0xffff0000, v{V_TMP}
        v_sub_f32 v{V_TMP}, v{V_TMP}, v{V_TMP+2}
        v_lshrrev_b32 v{V_TMP+1}, 16, v{V_TMP+1}
        v_or_b32 v{Q1(q)+2}, v{V_TMP+1}, v{V_TMP+2}
        v_lshrrev_b32 v{Q1(q)+3}, 16, v{V_TMP}
        """)
    A("s_mov_b64 exec, -1")
    for r in range(64): A(f"v_mov_b32 v{V_O+r}, 0")
    for r in range(8): A(f"v_mov_b32 v{V_P+r}, 0")
    A(f"s_mov_b64 exec, s[{S_VMASK}:{S_VMASK+1}]")
    for r in range(4): A(f"v_mov_b32 v{V1(1)+r}, 0")
    A("s_mov_b64 exec, -1")
    A("s_waitcnt vmcnt(4)")
    s00 = V_S4 if OPT['s4'] else S(0)
    A(mf(s00, K0(0), Q0(0), None))
    A(mf(s00, K1(0), Q1(0), s00))
    if OPT['sched'] in (1, 2):
        for r in range(12, 16): A(f"v_mov_b32 v{V_S4+48+r}, 0")
    A(f"s_mov_b32 s{S_CNT}, {8 if OPT['w8'] else 16}")
    stamp(A, 2)
    A("s_nop 7")
    A(".p2align 6")
    A.label(LOOP)
    for p in range(2):
        for q in range(4):
            period(A, p, q)
    A(f"s_sub_u32 s{S_CNT}, s{S_CNT}, 1")
    A(f"s_cmp_lg_u32 s{S_CNT}, 0")
    A(f"s_cbranch_scc1 {LOOP}")
    stamp(A, 3)
    if OPT['sched'] == 1:
        A(f"v_cvt_pk_bf16_f32 v{V_P+7}, v{V_S4+48+14}, v{V_S4+48+15}")
    if OPT['sched'] == 2:
        A(f"v_cvt_pk_bf16_f32 v{V_P+6}, v{V_S4+48+12}, v{V_S4+48+13}")
        A(f"v_cvt_pk_bf16_f32 v{V_P+7}, v{V_S4+48+14}, v{V_S4+48+15}")
    A(mf(O(3), V1(1), V_P+4, O(3)))
    A("s_waitcnt vmcnt(0)")
    if OPT['w8']:
        stamp(A, 4); stamp(A, 5); stamp(A, 7, True)
        stamp_flush(A, 8, 2)
        A(f"s_branch {END}")
    A(f"s_cmp_lg_u32 s{S_FLAG}, 0")
    A(f"s_cbranch_scc1 {COMBINE}")
    A(f"v_mov_b32 v{V_TMP}, 0")
    for q in range(4):
        for r in range(0, 12, 2):
            A(f"v_max3_f32 v{V_TMP}, v{V_TMP}, |v{O(q)+r}|, |v{O(q)+r+1}|")
    A(f"""
    v_add_f32 v{V_TMP+2}, v{O(0)+12}, v{O(1)+12}
    v_add_f32 v{V_TMP+3}, v{O(2)+12}, v{O(3)+12}
    v_add_f32 v{V_TMP+2}, v{V_TMP+2}, v{V_TMP+3}
    s_mov_b32 s{S_T0}, {hex(f2u(2.0**40))}
    s_mov_b32 s{S_T1}, {hex(f2u(2.0**120))}
    v_cmp_gt_f32 vcc, s{S_T0}, v{V_TMP+2}
    v_cmp_gt_f32 s[{S_T2+10}:{S_T2+11}], s{S_T1}, v{V_TMP}
    s_and_b64 vcc, vcc, s[{S_T2+10}:{S_T2+11}]
    s_cmp_eq_u64 vcc, exec
    s_cbranch_scc1 {COMBINE}
    """)
    A.label(TRUEMAX)
    A(f"s_mov_b32 s{S_FLAG}, 1")
    A(f"s_mov_b64 exec, s[{S_LO}:{S_LO+1}]")
    for q in range(4):
        A(f"v_mov_b32 v{Q1(q)+2}, 0")
        A(f"v_mov_b32 v{Q1(q)+3}, 0")

    A("s_mov_b64 exec, -1")
    for q in range(4): A(f"v_mov_b32 v{V_X+q}, 0xff800000")
    reset_ptrs(A)
    A(f"s_mov_b32 s{S_CNT}, 32")
    TL = "L_attn_tm_loop"
    A.label(TL)
    load_k(A, 0)
    A("s_waitcnt vmcnt(0)")
    for q in range(4):
        A(mf(O(q), K0(0), Q0(q), None))
        A(mf(O(q), K1(0), Q1(q), O(q)))
    for q in range(4):
        rowmax(A, V_M+q, O(q))
        A(f"v_max_f32 v{V_X+q}, v{V_X+q}, v{V_M+q}")
    A(f"s_sub_u32 s{S_CNT}, s{S_CNT}, 1")
    A(f"s_cmp_lg_u32 s{S_CNT}, 0")
    A(f"s_cbranch_scc1 {TL}")
    for q in range(4): A(f"v_mov_b32 v{V_M+q}, v{V_X+q}")
    A(f"s_branch {SETUP}")
    A.label(COMBINE)
    stamp(A, 4)
    for q in range(4): A(f"v_mov_b32 v{O(q)+13}, v{V_M+q}")
    A(f"""
    s_lshl_b32 s{S_T0}, s{S_WAVE}, 13
    v_lshlrev_b32 v{V_TMP}, 4, v{V_LANE}
    v_add_u32 v{V_TMP+1}, s{S_T0}, v{V_TMP}
    s_xor_b32 s{S_T1}, s{S_WAVE}, 2
    s_lshl_b32 s{S_T1}, s{S_T1}, 13
    v_add_u32 v{V_TMP+2}, s{S_T1}, v{V_TMP}
    s_cmp_eq_u32 s{S_KH}, 0
    """)
    C1 = "L_attn_c1"; C2 = "L_attn_c2"
    A(f"s_cbranch_scc0 {C1}")
    for kh in range(2):
        if kh == 1: A.label(C1)
        send = (2, 3) if kh == 0 else (0, 1)
        keep = (0, 1) if kh == 0 else (2, 3)
        for j, q in enumerate(send):
            for g in range(4):
                A(f"ds_write_b128 v{V_TMP+1}, {v(O(q)+4*g,4)} offset:{4096*j + 1024*g}")
        A("s_waitcnt lgkmcnt(0)")
        A("s_barrier")
        for j in range(2):
            for g in range(4):
                A(f"ds_read_b128 {v(V_S+16*j+4*g,4)}, v{V_TMP+2} offset:{4096*j + 1024*g}")
        A("s_waitcnt lgkmcnt(0)")
        for j, q in enumerate(keep):
            o = O(q); r_ = V_S + 16*j
            A(f"""
            v_max_f32 v{V_X}, v{o+13}, v{r_+13}
            v_sub_f32 v{V_X+1}, v{o+13}, v{V_X}
            v_sub_f32 v{V_X+2}, v{r_+13}, v{V_X}
            v_exp_f32 v{V_X+1}, v{V_X+1}
            v_exp_f32 v{V_X+2}, v{V_X+2}
            s_nop 0
            v_mul_f32 v{V_X+3}, v{V_X+1}, v{o+12}
            v_fmac_f32 v{V_X+3}, v{V_X+2}, v{r_+12}
            v_rcp_f32 v{V_X+3}, v{V_X+3}
            s_nop 0
            v_mul_f32 v{V_X+4}, v{V_X+1}, v{V_X+3}
            v_mul_f32 v{V_X+6}, v{V_X+2}, v{V_X+3}
            v_mov_b32 v{V_X+5}, v{V_X+4}
            v_mov_b32 v{V_X+7}, v{V_X+6}
            """)
            for pr in range(6):
                A(f"v_pk_mul_f32 {v(o+2*pr,2)}, {v(o+2*pr,2)}, {v(V_X+4,2)}")
            for pr in range(6):
                A(f"v_pk_fma_f32 {v(o+2*pr,2)}, {v(r_+2*pr,2)}, {v(V_X+6,2)}, {v(o+2*pr,2)}")
            for pr in range(6):
                A(f"v_cvt_pk_bf16_f32 v{V_P+pr}, v{o+2*pr}, v{o+2*pr+1}")
            if j == 0:
                A(f"s_mul_i32 s{S_T0}, s{S_HEAD}, 5")
                for a_ in range(3):
                    A(f"""
                    v_add_u32 v{V_TMP+3}, s{S_T0}, v{V_H}
                    v_add_u32 v{V_TMP+3}, {2*a_}, v{V_TMP+3}
                    v_lshrrev_b32 v{V_TMP+4}, 2, v{V_TMP+3}
                    v_lshlrev_b32 v{V_AO+a_}, 10, v{V_TMP+4}
                    v_and_b32 v{V_TMP+4}, 1, v{V_TMP+3}
                    v_lshlrev_b32 v{V_TMP+4}, 9, v{V_TMP+4}
                    v_add_u32 v{V_AO+a_}, v{V_AO+a_}, v{V_TMP+4}
                    v_bfe_u32 v{V_TMP+4}, v{V_TMP+3}, 1, 1
                    v_lshlrev_b32 v{V_TMP+4}, 3, v{V_TMP+4}
                    v_add_u32 v{V_AO+a_}, v{V_AO+a_}, v{V_TMP+4}
                    v_lshlrev_b32 v{V_TMP+4}, 4, v{V_T}
                    v_add_u32 v{V_AO+a_}, v{V_AO+a_}, v{V_TMP+4}
                    """)
            A(f"""
            s_add_u32 s{S_T1}, s{S_TT0}, {q}
            s_mul_i32 s{S_T1}, s{S_T1}, 40960
            buffer_store_dwordx2 {v(V_P,2)}, v{V_AO}, s[{S_O}:{S_O+3}], s{S_T1} offen
            buffer_store_dwordx2 {v(V_P+2,2)}, v{V_AO+1}, s[{S_O}:{S_O+3}], s{S_T1} offen
            s_mov_b64 exec, s[{S_LO}:{S_LO+1}]
            buffer_store_dwordx2 {v(V_P+4,2)}, v{V_AO+2}, s[{S_O}:{S_O+3}], s{S_T1} offen
            s_mov_b64 exec, -1
            """)
            if j == 0: A("s_nop 1")
        stamp(A, 5); stamp(A, 7, True)
        stamp_flush(A, 8, 2)
        A(f"s_branch {END}")
    A.label(END)
    A("s_endpgm")
    return A, descs, names
```

```python
from asmlib import *
from layout import *

def srd(A, d, base, off, size):
    if off:
        A(f"s_add_u32 s{d}, s{base}, {hex(off)}")
        A(f"s_addc_u32 s{d+1}, s{base+1}, 0")
    else:
        A(f"s_mov_b32 s{d}, s{base}")
        A(f"s_mov_b32 s{d+1}, s{base+1}")
    A(f"s_mov_b32 s{d+2}, {hex(size)}")
    A(f"s_mov_b32 s{d+3}, 0x20000")

def descriptor(name, vgpr, sgpr, accum=None):
    import asmlib
    if asmlib.STAMP: vgpr = 256; sgpr = 100; accum = 256
    if accum is None: accum = (vgpr + 3) // 4 * 4
    return f""".section .rodata,"a"
.p2align 6
.amdhsa_kernel {name}
  .amdhsa_next_free_vgpr {vgpr}
  .amdhsa_next_free_sgpr {sgpr}
  .amdhsa_accum_offset {accum}
  .amdhsa_group_segment_fixed_size 0
  .amdhsa_kernarg_size 72
  .amdhsa_user_sgpr_count 2
  .amdhsa_user_sgpr_kernarg_segment_ptr 1
  .amdhsa_system_sgpr_workgroup_id_x 1
  .amdhsa_float_denorm_mode_32 3
.end_amdhsa_kernel
.text
"""

def entry(A, name):
    A(f".globl {name}")
    A(".p2align 8")
    A(f".type {name},@function")
    A.label(name)

def halfsum(A, x, tmp):
    A(f"v_mov_b32 v{tmp}, v{x}")
    A(f"v_permlane32_swap_b32 v{x}, v{tmp}")
    A(f"v_add_f32 v{x}, v{x}, v{tmp}")

CODE_PF = True
def code_prefetch(A, sreg, lo_label, hi_label, part_sreg, vaddr, vdst, nload=1, tag='pf'):
    L = A.newlabel(tag)
    A(f"s_getpc_b64 s[{sreg}:{sreg+1}]")
    A.label(L)
    A(f"s_add_u32 s{sreg}, s{sreg}, {lo_label}-{L}")
    A(f"s_addc_u32 s{sreg+1}, s{sreg+1}, 0" )
    A(f"s_mov_b32 s{sreg+2}, {hi_label}-{lo_label}")
    A(f"s_mov_b32 s{sreg+3}, 0x20000")

def gen_prep(name="prep_kernel"):
    A = Asm()
    entry(A, name)
    END = f"L_{name}_end"
    A(f"""
    s_load_dwordx4 s[4:7], s[0:1], {KA_X}
    s_load_dwordx2 s[8:9], s[0:1], {KA_WO}
    s_load_dwordx4 s[12:15], s[0:1], {KA_W1}
    s_load_dwordx2 s[10:11], s[0:1], {KA_WS}
    s_cmp_ge_u32 s2, 256
    s_cbranch_scc1 {END}
    v_lshrrev_b32 v1, 6, v0
    v_and_b32 v2, 63, v0
    v_readfirstlane_b32 s16, v1
    v_lshrrev_b32 v3, 5, v2
    v_and_b32 v4, 31, v2
    s_lshr_b32 s17, s2, 2
    s_and_b32 s18, s2, 3
    """)
    A(f"""
    s_lshl_b32 s19, s17, 5
    v_add_u32 v5, s19, v4
    v_mul_u32_u24 v5, 1280, v5
    v_lshlrev_b32 v6, 4, v3
    v_add_u32 v5, v5, v6
    s_mul_i32 s19, s18, 320
    s_lshl_b32 s20, s16, 5
    s_add_u32 s19, s19, s20
    v_add_u32 v5, s19, v5
    s_mov_b32 s63, 0x7f000000
    s_cmp_lt_u32 s16, 2
    s_cselect_b32 s21, 256, s63
    s_waitcnt lgkmcnt(0)
    """)
    srd(A, 24, 4, 0, XSZ)
    srd(A, 28, 10, XF[0], XSZ)
    srd(A, 32, 10, ST[0], STSZ)
    srd(A, 36, 8, 0, 640*1280)
    srd(A, 40, 14, 0, F*1280)
    srd(A, 84, 10, WOP, WOPSZ)
    srd(A, 88, 10, W2P, W2PSZ)
    A(f"""
    buffer_load_dwordx4 v[8:11], v5, s[24:27], 0 offen
    buffer_load_dwordx4 v[12:15], v5, s[24:27], 0 offen offset:128
    buffer_load_dwordx4 v[16:19], v5, s[24:27], s21 offen
    """)
    NOCS = f"L_{name}_nocs"; CSW1 = f"L_{name}_csw1"; CSGO = f"L_{name}_csgo"
    A(f"""
    s_cmp_ge_u32 s2, 228
    s_cselect_b32 s22, 1, 0
    s_cmp_ge_u32 s2, 120
    s_cbranch_scc1 {CSW1}
    """)
    srd(A, 44, 6, 0, 640*3840)
    srd(A, 48, 10, CSQ, CSQSZ)
    A(f"""
    s_mov_b32 s52, 3840
    s_mov_b32 s53, 7680
    s_mov_b32 s54, s2
    s_branch {CSGO}
    """)
    A.label(CSW1)
    srd(A, 44, 12, 0, 640*3456)
    srd(A, 48, 10, CS1, CS1SZ)
    A(f"""
    s_mov_b32 s52, 3456
    s_mov_b32 s53, 6912
    s_sub_u32 s54, s2, 120
    """)
    A.label(CSGO)
    A(f"""
    s_lshr_b32 s55, s54, 2
    s_and_b32 s56, s54, 3
    v_lshrrev_b32 v6, 3, v0
    s_mul_i32 s57, s56, 160
    v_add_u32 v6, s57, v6
    v_mul_lo_u32 v6, v6, s52
    v_and_b32 v7, 7, v0
    v_lshlrev_b32 v7, 4, v7
    v_add_u32 v6, v6, v7
    s_lshl_b32 s57, s55, 7
    v_add_u32 v6, s57, v6
    s_lshl_b32 s58, s52, 5
    s_cmp_eq_u32 s22, 1
    s_cselect_b32 s59, s63, 0
    """)
    for i in range(5):
        A(f"buffer_load_dwordx4 v[{20+4*i}:{23+4*i}], v6, s[44:47], s59 offen")
        if i < 4: A("s_add_u32 s59, s59, s58")
    A(f"""
    s_lshl_b32 s60, s2, 12
    v_lshlrev_b32 v7, 4, v0
    v_add_u32 v7, s60, v7
    s_mov_b32 s61, 0x100000
    s_mov_b32 s62, 0x200000
    buffer_load_dwordx4 v[40:43], v7, s[36:39], 0 offen
    buffer_load_dwordx4 v[44:47], v7, s[40:43], 0 offen
    buffer_load_dwordx4 v[48:51], v7, s[40:43], s61 offen
    buffer_load_dwordx4 v[52:55], v7, s[40:43], s62 offen
    """)
    def packaddr(dst, add, kq640):
        A(f"""
        v_lshrrev_b32 v72, 4, v7
        v_add_u32 v72, {add}, v72
        s_mov_b32 s64, 0xcccccccd
        v_mul_hi_u32 v73, v72, s64
        v_lshrrev_b32 v73, 6, v73
        v_mul_u32_u24 v74, 80, v73
        v_sub_u32 v74, v72, v74
        v_mul_u32_u24 v75, 6554, v74
        v_lshrrev_b32 v75, 16, v75
        v_mul_u32_u24 v76, 10, v75
        v_sub_u32 v76, v74, v76
        s_mov_b32 s64, {kq640}
        v_mul_lo_u32 v{dst}, v75, s64
        v_lshrrev_b32 v77, 2, v73
        v_mul_u32_u24 v77, 640, v77
        v_add_u32 v{dst}, v{dst}, v77
        v_and_b32 v73, 3, v73
        v_lshrrev_b32 v77, 2, v76
        v_lshlrev_b32 v77, 8, v77
        v_lshlrev_b32 v78, 6, v73
        v_add_u32 v77, v77, v78
        v_and_b32 v78, 3, v76
        v_lshlrev_b32 v78, 4, v78
        v_add_u32 v77, v77, v78
        v_lshlrev_b32 v78, 5, v73
        v_and_b32 v79, 1, v76
        v_lshlrev_b32 v79, 4, v79
        v_add_u32 v78, v78, v79
        v_add_u32 v78, 512, v78
        v_cmp_gt_u32 vcc, 8, v76
        v_cndmask_b32 v77, v78, v77, vcc
        v_add_u32 v{dst}, v{dst}, v77
        v_cmp_gt_u32 vcc, {kq640*8//16}, v72
        v_mov_b32 v78, s63
        v_cndmask_b32 v{dst}, v78, v{dst}, vcc
        """)
    packaddr(80, 0, 160*640)
    packaddr(81, 0, 432*640)
    packaddr(82, 65536, 432*640)
    packaddr(83, 131072, 432*640)
    if CODE_PF:
        code_prefetch(A, 92, "L_code_lo", "L_code_hi", None, None, None)
        A("""
        s_lshr_b32 s65, s2, 3
        s_lshl_b32 s65, s65, 12
        v_lshlrev_b32 v84, 4, v0
        buffer_load_dwordx4 v[88:91], v84, s[92:95], s65 offen
        """)
    A(f"s_waitcnt vmcnt({10 if CODE_PF else 9})")
    A("v_mov_b32 v56, 0\nv_mov_b32 v57, 0")
    for r in range(8, 20):
        A(f"""
        v_lshlrev_b32 v58, 16, v{r}
        v_and_b32 v59, 0xffff0000, v{r}
        v_add_f32 v56, v56, v58
        v_fmac_f32 v57, v58, v58
        v_add_f32 v56, v56, v59
        v_fmac_f32 v57, v59, v59
        """)
    for b in (8, 12, 16):
        A(f"v_permlane32_swap_b32 v{b}, v{b+2}")
        A(f"v_permlane32_swap_b32 v{b+1}, v{b+3}")
    A(f"""
    s_mul_i32 s19, s17, 40
    s_mul_i32 s20, s18, 10
    s_add_u32 s19, s19, s20
    s_add_u32 s19, s19, s16
    s_lshl_b32 s19, s19, 10
    v_lshlrev_b32 v60, 4, v2
    v_add_u32 v60, s19, v60
    s_cmp_lt_u32 s16, 2
    s_cselect_b32 s21, 8192, s63
    s_mov_b32 s23, 4096
    buffer_store_dwordx4 v[8:11], v60, s[28:31], 0 offen
    buffer_store_dwordx4 v[12:15], v60, s[28:31], s23 offen
    buffer_store_dwordx4 v[16:19], v60, s[28:31], s21 offen
    """)
    halfsum(A, 56, 58)
    halfsum(A, 57, 59)
    A(f"""
    s_lshl_b32 s19, s17, 12
    s_lshl_b32 s20, s18, 2
    s_add_u32 s20, s20, s16
    s_lshr_b32 s23, s20, 1
    s_lshl_b32 s23, s23, 9
    s_add_u32 s19, s19, s23
    s_and_b32 s20, s20, 1
    s_lshl_b32 s20, s20, 3
    s_add_u32 s19, s19, s20
    v_lshlrev_b32 v60, 4, v4
    v_add_u32 v60, s19, v60
    buffer_store_dwordx2 v[56:57], v60, s[32:35], 0 offen
    """)
    A("s_waitcnt vmcnt(4)")
    A("""
    buffer_store_dwordx4 v[40:43], v80, s[84:87], 0 offen
    buffer_store_dwordx4 v[44:47], v81, s[88:91], 0 offen
    buffer_store_dwordx4 v[48:51], v82, s[88:91], 0 offen
    buffer_store_dwordx4 v[52:55], v83, s[88:91], 0 offen
    """)
    for j in range(8): A(f"v_mov_b32 v{64+j}, 0")
    for i in range(5):
        for rr in range(4):
            r = 20 + 4*i + rr
            A(f"""
            v_lshlrev_b32 v58, 16, v{r}
            v_and_b32 v59, 0xffff0000, v{r}
            v_add_f32 v{64+2*rr}, v{64+2*rr}, v58
            v_add_f32 v{65+2*rr}, v{65+2*rr}, v59
            """)
    A(f"""
    v_lshlrev_b32 v58, 5, v0
    ds_write_b128 v58, v[64:67]
    ds_write_b128 v58, v[68:71] offset:16
    s_waitcnt lgkmcnt(0)
    s_barrier
    """)
    A(f"""
    v_lshlrev_b32 v58, 2, v2
    s_lshl_b32 s19, s16, 11
    v_add_u32 v58, s19, v58
    """)
    for k in range(8): A(f"ds_read_b32 v{64+k}, v58 offset:{256*k}")
    A("s_waitcnt lgkmcnt(0)")
    A("""
    v_add_f32 v64, v64, v65
    v_add_f32 v66, v66, v67
    v_add_f32 v68, v68, v69
    v_add_f32 v70, v70, v71
    v_add_f32 v64, v64, v66
    v_add_f32 v68, v68, v70
    v_add_f32 v64, v64, v68
    v_lshlrev_b32 v58, 2, v0
    s_barrier
    ds_write_b32 v58, v64
    s_waitcnt lgkmcnt(0)
    s_barrier
    v_lshlrev_b32 v58, 2, v2
    ds_read_b32 v64, v58
    ds_read_b32 v65, v58 offset:256
    ds_read_b32 v66, v58 offset:512
    ds_read_b32 v67, v58 offset:768
    s_waitcnt lgkmcnt(0)
    v_add_f32 v64, v64, v65
    v_add_f32 v66, v66, v67
    v_add_f32 v64, v64, v66
    """)
    A(f"""
    s_mul_i32 s19, s56, s53
    s_lshl_b32 s20, s55, 8
    s_add_u32 s19, s19, s20
    s_cmp_lg_u32 s16, 0
    s_cselect_b32 s19, s63, s19
    s_cmp_eq_u32 s22, 1
    s_cselect_b32 s19, s63, s19
    v_add_u32 v58, s19, v58
    buffer_store_dword v64, v58, s[48:51], 0 offen
    s_waitcnt vmcnt(0)
    """)
    A.label(END)
    A("s_endpgm")
    return A, descriptor(name, 92, 100), 8192
```

```python
import sys; sys.path.insert(0,'gen')
from build import *
import k2_wide, k_attn, k2_narrow, k2_attn
def make(path, attn=None):
    P,pd,pl=k_prep.gen_prep()
    A,d,wn=k2_wide.gen_wide2()
    if attn is None:
        T_,td,tn=k_attn.gen_attn(); AB=256; AL=k_attn.LDS_BYTES
    else:
        T_,td,tn=attn.gen_attn2(); AB=512; AL=attn.LDS_BYTES
    N,nd,nn=k2_narrow.gen_narrow2()
    WL=k2_wide.LDS_BYTES; NL=k2_narrow.LDS_BYTES
    launches=[('prep_kernel',256,256,pl),
      ('qkv1_kernel',256,512,WL),('attn_kernel',256,AB,AL),('oproj1_kernel',256,512,NL),('ffa1_kernel',256,512,WL),('ffb1_kernel',256,512,NL),
      ('qkv2_kernel',256,512,WL),('attn_kernel',256,AB,AL),('oproj2_kernel',256,512,NL),('ffa2_kernel',256,512,WL),('ffb2_kernel',256,512,NL)]
    t,n=assemble([(P,pd),(A,d),(T_,td),(N,nd)],launches)
    open(path,'w').write(t); print('nops',n, len(t.splitlines()), len(t))
if __name__=="__main__":
    import asmlib
    make("cur.s", None)
    asmlib.STAMP=True
    make("stamp.s", None)
```

```python
import re

class Asm:
    def __init__(self):
        self.lines = []
        self._lab = 0
    def __call__(self, text):
        for l in text.split("\n"):
            l = l.strip()
            if l:
                self.lines.append(l)
    def label(self, name):
        self.lines.append(name + ":")
    _glab = [0]
    def newlabel(self, base):
        Asm._glab[0] += 1
        return f"L_{base}_{Asm._glab[0]}"
    def text(self):
        out = []
        for l in self.lines:
            if l.endswith(":") or l.startswith("."):
                out.append(l)
            else:
                out.append("    " + l)
        return "\n".join(out) + "\n"

def v(i, n=1):
    return f"v{i}" if n == 1 else f"v[{i}:{i+n-1}]"
def s(i, n=1):
    return f"s{i}" if n == 1 else f"s[{i}:{i+n-1}]"
def a(i, n=1):
    return f"a{i}" if n == 1 else f"a[{i}:{i+n-1}]"

class Regs:
    def __init__(self, start, limit, kind):
        self.next = start; self.limit = limit; self.kind = kind; self.names = {}
    def alloc(self, name, n=1, align=1):
        self.next = (self.next + align - 1) // align * align
        r = self.next
        self.next += n
        assert self.next <= self.limit, f"out of {self.kind} regs at {name}"
        self.names[name] = (r, n)
        return r

_REG = re.compile(r"^(-?\|?|abs\()?([vsa])(\d+)\)?\|?$")
_RNG = re.compile(r"^-?([vsa])\[(\d+):(\d+)\]$")
def regs_of(op):
    op = op.strip()
    m = _RNG.match(op)
    if m:
        return {(m.group(1), i) for i in range(int(m.group(2)), int(m.group(3)) + 1)}
    m = _REG.match(op)
    if m:
        return {(m.group(2), int(m.group(3)))}
    if op in ("vcc", "vcc_lo", "vcc_hi"):
        return {("s", 106), ("s", 107)}
    if op in ("exec", "exec_lo", "exec_hi"):
        return {("x", 0)}
    if op == "m0":
        return {("m", 0)}
    return set()

TRANS = ("v_exp_", "v_log_", "v_rcp_", "v_rsq_", "v_sqrt_", "v_sin_", "v_cos_")
NO_DST_SALU = ("s_cmp", "s_waitcnt", "s_barrier", "s_branch", "s_nop", "s_cbranch", "s_bitcmp", "s_setprio",
               "s_endpgm", "s_sleep", "s_setreg", "s_sendmsg", "s_inst", "s_set_gpr")

class Ins:
    __slots__ = ("text", "op", "kind", "defs", "uses", "passes", "A", "B", "C", "trans", "dpp", "perm", "rdlane",
                 "wide_store", "ldsdma", "nops", "sdefs", "suses", "target", "isbranch", "uncond", "label", "storedata", "mask")
    def __init__(self, text):
        self.text = text
        self.label = None
        if text.endswith(":"):
            self.label = text[:-1]; self.kind = "label"; self.op = ""; self.defs = set(); self.uses = set(); self.isbranch = False
            self.uncond = False; self.target = None; self.nops = 0
            return
        t = text.split(";")[0].strip()
        parts = t.split(None, 1)
        op = parts[0]; self.op = op
        rest = parts[1] if len(parts) > 1 else ""
        ops = []; depth = 0; cur = ""
        for ch in rest:
            if ch == "[": depth += 1
            if ch == "]": depth -= 1
            if ch == "," and depth == 0:
                ops.append(cur.strip()); cur = ""
            else:
                cur += ch
        if cur.strip(): ops.append(cur.strip())
        mods = ""
        if ops:
            lastparts = ops[-1].split()
            ops[-1] = lastparts[0]
            mods = " ".join(lastparts[1:])
        self.defs = set(); self.uses = set(); self.passes = 0
        self.A = self.B = self.C = set()
        self.trans = False; self.dpp = False; self.perm = False; self.rdlane = False
        self.wide_store = False; self.ldsdma = False; self.nops = 1
        self.target = None; self.isbranch = False; self.uncond = False; self.storedata = set(); self.mask = set()
        R = [regs_of(o) for o in ops]
        if op.startswith("."):
            self.kind = "dir"; self.nops = 0
        elif op.startswith("v_mfma"):
            self.kind = "mfma"
            self.defs = set(R[0]); self.A = R[1]; self.B = R[2]; self.C = R[3] if len(R) > 3 else set()
            self.uses = self.A | self.B | self.C
            if "32x32x16" in op or "32x32x8" in op: self.passes = 8
            elif "16x16x32" in op or "16x16x16" in op: self.passes = 4
            else: raise ValueError("unknown mfma " + op)
        elif op.startswith("v_"):
            self.kind = "valu"
            self.trans = op.startswith(TRANS)
            self.dpp = ("row_" in mods or "quad_perm" in mods or "wave_" in mods or "row_" in rest) and "dpp" in op
            if op.startswith("v_permlane"):
                self.perm = True
                self.defs = R[0] | R[1]; self.uses = R[0] | R[1]
            elif op.startswith("v_cmp"):
                self.defs = set(R[0]); self.uses = set().union(*R[1:])
            elif op.startswith("v_readfirstlane") or op.startswith("v_readlane"):
                self.rdlane = True
                self.defs = set(R[0]); self.uses = set().union(*R[1:])
            elif op.startswith(("v_add_co", "v_sub_co", "v_addc_co", "v_subb_co")):
                self.defs = R[0] | R[1]; self.uses = set().union(*R[2:])
            else:
                self.defs = set(R[0]); self.uses = set().union(*R[1:]) if len(R) > 1 else set()
                if op.startswith(("v_fmac", "v_dot2c", "v_mac", "v_pk_fmac", "v_writelane", "v_accvgpr_write")) or "UNUSED_PRESERVE" in mods:
                    if not op.startswith("v_accvgpr_write"): self.uses |= R[0]
                if op.startswith("v_cndmask") and len(R) > 3:
                    self.mask = set(R[3])
        elif op.startswith(("buffer_", "global_")):
            self.kind = "vmem"
            islds = bool(re.search(r"\blds\b", mods)) or op.startswith("global_load_lds")
            if "load" in op:
                if islds:
                    self.ldsdma = True
                    self.uses = set().union(*R)
                    self.uses |= {("m", 0)}
                else:
                    self.defs = set(R[0]); self.uses = set().union(*R[1:])
            elif "store" in op:
                if op.startswith("buffer_"):
                    self.storedata = set(R[0])
                else:
                    self.storedata = set(R[1])
                self.uses = set().union(*R)
                self.wide_store = op.endswith(("x3", "x4"))
            elif "atomic" in op:
                self.uses = set().union(*R)
                if "sc0" in mods: self.defs = set(R[0])
            elif op.startswith(("buffer_wbl2", "buffer_inv")):
                pass
            else:
                raise ValueError("unknown vmem " + op)
        elif op.startswith("ds_"):
            self.kind = "ds"
            if op.startswith(("ds_read", "ds_bpermute", "ds_permute", "ds_swizzle")):
                self.defs = set(R[0]); self.uses = set().union(*R[1:])
            else:
                self.uses = set().union(*R)
        elif op.startswith("s_"):
            self.kind = "salu"
            if op == "s_nop":
                self.nops = int(ops[0], 0) + 1
            if op.startswith(("s_cbranch", "s_branch")):
                self.isbranch = True; self.target = ops[0]; self.uncond = op == "s_branch"
            elif op == "s_endpgm":
                self.isbranch = True; self.uncond = True; self.target = None
            elif op.startswith(("s_load", "s_memtime", "s_memrealtime", "s_getreg", "s_getpc")):
                self.defs = set(R[0]); self.uses = set().union(*R[1:]) if len(R) > 1 else set()
            elif op.startswith(NO_DST_SALU):
                self.uses = set().union(*R) if R else set()
            else:
                self.defs = set(R[0]); self.uses = set().union(*R[1:]) if len(R) > 1 else set()
        else:
            raise ValueError("unknown instruction: " + text)

def vregs(S): return {r for r in S if r[0] in "va"}
def sregs(S): return {r for r in S if r[0] == "s"}

def required(p, c):
    n = 0
    if p.kind == "valu":
        pv = vregs(p.defs); ps = sregs(p.defs)
        if c.kind == "mfma" and pv & c.uses: n = max(n, 2)
        if c.kind == "valu":
            if c.rdlane and pv & c.uses: n = max(n, 1)
            if c.perm and pv & c.uses: n = max(n, 2)
            if c.dpp and pv & c.uses: n = max(n, 2)
            if p.trans and not c.trans and pv & c.uses: n = max(n, 1)
            if ps & (sregs(c.uses)): n = max(n, 2)
        if c.kind in ("vmem",) and ps & c.uses: n = max(n, 5)
        if c.kind in ("vmem", "ds") and p.trans and pv & c.uses: n = max(n, 1)
        if c.kind == "salu" and ps & c.uses: n = max(n, 2)
    if p.kind == "mfma":
        D = p.defs
        big = {8: 12, 4: 8}[p.passes]
        if c.kind == "mfma":
            if D & c.C:
                if c.C == D and c.passes == p.passes: pass
                else: n = max(n, {8: 10, 4: 6}[p.passes])
            if D & (c.A | c.B): n = max(n, big)
            if (D & c.defs) and not (c.C == D and c.defs == D):
                n = max(n, {8: 10, 4: 6}[p.passes])
        elif c.kind == "valu":
            if D & (c.uses | c.defs): n = max(n, big)
            if p.C & c.defs: n = max(n, {8: 7, 4: 3}[p.passes])
        elif c.kind in ("vmem", "ds"):
            if D & (c.uses | c.defs): n = max(n, big)
    if p.kind == "salu":
        if ("m", 0) in p.defs and c.kind == "vmem" and c.ldsdma: n = max(n, 1)
    if p.kind == "vmem" and p.wide_store:
        if c.kind == "valu" and p.storedata & c.defs: n = max(n, 2)
        elif c.kind in ("vmem", "ds") and p.storedata & c.defs: n = max(n, 1)
    return n

def hazard_pass(lines, verbose=False, maxwin=14):
    total_inserted = 0
    for _iter in range(2000):
        ins = [Ins(l) for l in lines]
        labels = {x.label: i for i, x in enumerate(ins) if x.label}
        preds = [[] for _ in ins]
        for i, x in enumerate(ins):
            if i + 1 < len(ins) and not (x.kind != "label" and x.kind != "dir" and x.isbranch and x.uncond):
                preds[i + 1].append(i)
            if x.kind not in ("label", "dir") and x.isbranch and x.target is not None:
                if x.target in labels:
                    preds[labels[x.target]].append(i)
        inserts = {}
        for i, c in enumerate(ins):
            if c.kind in ("label", "dir"): continue
            need = 0; who = None
            stack = [(p, 0) for p in preds[i]]
            seen = {}
            while stack:
                j, dist = stack.pop()
                if dist >= maxwin: continue
                if seen.get(j, 99) <= dist: continue
                seen[j] = dist
                p = ins[j]
                if p.kind not in ("label", "dir"):
                    r = required(p, c)
                    if r - dist > need:
                        need = r - dist; who = p
                    nd = dist + p.nops
                else:
                    nd = dist
                for q in preds[j]: stack.append((q, nd))
            if need > 0:
                inserts[i] = (need, who)
        if not inserts:
            return lines, total_inserted
        new = []
        last = -10**9
        for i, l in enumerate(lines):
            if i in inserts and i - last > maxwin:
                last = i
                need, who = inserts[i]
                if verbose: print(f"hazard: +{need} before '{l}' after '{who.text}'")
                total_inserted += need
                k = need
                while k > 0:
                    m = min(k, 16)
                    new.append(f"s_nop {m-1}")
                    k -= m
            new.append(l)
        lines = new
    raise RuntimeError("hazard pass did not converge")

STAMP = False
STAMP_BASE = 64
STAMP_WS_OFF = 0x2000000
def stamp(A, i, real=False):
    if not STAMP: return
    A(f"s_mem{'real' if real else ''}time s[{STAMP_BASE+2*i}:{STAMP_BASE+2*i+1}]")
def stamp_flush(A, n, kid, ws=4):
    if not STAMP: return
    A("s_waitcnt lgkmcnt(0)")
    A(f"s_add_u32 s92, s{ws}, {hex(STAMP_WS_OFF + kid*0x20000)}")
    A(f"s_addc_u32 s93, s{ws+1}, 0")
    A("s_mov_b32 s94, 0x20000")
    A("s_mov_b32 s95, 0x20000")
    A("v_lshrrev_b32 v250, 6, v0")
    A("v_lshlrev_b32 v250, 6, v250")
    A("s_lshl_b32 s96, s2, 9")
    A("v_add_u32 v250, s96, v250")
    for i in range(n):
        A(f"v_mov_b32 v251, s{STAMP_BASE+2*i}")
        A(f"buffer_store_dword v251, v250, s[92:95], 0 offen offset:{4*i}")
    A("s_waitcnt vmcnt(0)")

def loader_schedule(nst, nslot, burst=2, first=2):
    out = []; issued = 0
    for j in range(-1, nst-1):
        n = 0; lim = first if j == -1 else burst
        while issued < nst and issued - nslot + 1 <= j and (n < lim or issued <= j + 1):
            issued += 1; n += 1
        out.append((n, issued - (j + 2)))
    return out
def emit_loader(A, sched, issue_fn, cnt, scnt, tag):
    i = 0; k = 0
    while i < len(sched):
        j = i
        while j < len(sched) and sched[j] == sched[i]: j += 1
        run = j - i; n, w = sched[i]
        def body():
            for _ in range(n): issue_fn(A)
            A(f"s_waitcnt vmcnt({cnt*w})")
            A("s_barrier")
        if run >= 3:
            L = f"L_{tag}_{k}"; k += 1
            A(f"s_mov_b32 s{scnt}, {run}")
            A.label(L)
            body()
            A(f"s_sub_u32 s{scnt}, s{scnt}, 1")
            A(f"s_cmp_lg_u32 s{scnt}, 0")
            A(f"s_cbranch_scc1 {L}")
        else:
            for _ in range(run): body()
        i = j

def l2_prefetch(A, srd, soff, vaddr, vjunk, nload, stride):
    for k in range(nload):
        A(f"buffer_load_dwordx4 v[{vjunk+4*(k%4)}:{vjunk+4*(k%4)+3}], v{vaddr}, s[{srd}:{srd+3}], s{soff} offen")
        if k < nload-1: A(f"s_add_u32 s{soff}, s{soff}, {stride}")

NEXT_PF = False
def next_code_prefetch(A, sreg, lo, hi, stmp, vtmp, vjunk):
    if not NEXT_PF: return 0
    L = A.newlabel("npf")
    A(f"s_getpc_b64 s[{sreg}:{sreg+1}]")
    A.label(L)
    A(f"s_add_u32 s{sreg}, s{sreg}, {lo}-{L}")
    A(f"s_addc_u32 s{sreg+1}, s{sreg+1}, ({lo}-{L})>>32")
    A(f"s_mov_b32 s{sreg+2}, {hi}-{lo}")
    A(f"s_mov_b32 s{sreg+3}, 0x20000")
    A(f"s_lshr_b32 s{stmp}, s2, 3")
    A(f"s_lshl_b32 s{stmp}, s{stmp}, 10")
    A(f"v_and_b32 v{vtmp}, 63, v0")
    A(f"v_lshlrev_b32 v{vtmp}, 4, v{vtmp}")
    A(f"buffer_load_dwordx4 v[{vjunk}:{vjunk+3}], v{vtmp}, s[{sreg}:{sreg+3}], s{stmp} offen")
    return 1
```

```python
from asmlib import *
from layout import *
from k_prep import srd, descriptor, entry, halfsum
from k2_wide import srd_off
import asmlib
EXPT = dict(noread=False, nomfma=False)

SLOT = 18432; NSLOT = 8
LDS_BYTES = SLOT*NSLOT
LDW = 1280
S_X=8; S_W=12; S_R=16; S_OUT=20; S_ST=24
S_WAVE=28; S_TB=29; S_CB=30; S_MODE=31; S_XOFF=32; S_WOFF=33; S_FREE=34; S_CUR=35; S_CNT=36
S_T0=37; S_T1=38; S_T2=39; S_WT=40; S_WK=41; S_OOB=42; S_XM0=43; S_WM0=44; S_NK=45; S_SLOT=48
S_XB=49; S_XSZ=50; S_RB=51; S_OB=52; S_STB=53; S_WSZ=54; S_NST=55; S_WB=56; S_SIG=57; S_XWR=58; S_WWR=59
V_LANE=1; V_H=2; V_T=3
V_XD=4; V_WR2=5; V_XR=8; V_WR=9
V_TMP=10; V_RES=20; V_FR=40; V_ACC=72; V_E=120

def frW(setn, b): return V_FR + 16*setn + 4*b
def frX(setn): return V_FR + 16*setn + 12
def acc(b): return V_ACC + 16*b
def reads(setn, j):
    L = []
    for b in range(3):
        for jj in range(2):
            if b < 2: L.append(f"ds_read_b64_tr_b16 {v(frW(setn,b)+2*jj,2)}, v{V_WR} offset:{j*5120 + jj*1280 + b*256}")
            else:     L.append(f"ds_read_b64_tr_b16 {v(frW(setn,b)+2*jj,2)}, v{V_WR2} offset:{j*5120 + jj*1280}")
    L.insert(2, f"ds_read_b128 {v(frX(setn),4)}, v{V_XR} offset:{j*2048}")
    return L
def mfmas(setn):
    return [f"v_mfma_f32_32x32x16_bf16 {v(acc(b),16)}, {v(frW(setn,b),4)}, {v(frX(setn),4)}, {v(acc(b),16)}" for b in range(3)]
def dma_x(k): return f"buffer_load_dwordx4 v{V_XD}, s[{S_X}:{S_X+3}], s{S_XOFF} offen" + (f" offset:{1024*k}" if k else "") + " lds"
def dma_w(k): return f"buffer_load_dwordx4 v{V_XD}, s[{S_W}:{S_W+3}], s{S_WOFF} offen" + (f" offset:{1024*k}" if k else "") + " lds"

ROT = False
WPF = False
def make_issue(nw):
    def issue_stage(A):
        A(f"s_add_u32 m0, s{S_FREE}, s{S_XM0}")
        A(f"s_add_u32 s{S_T0}, s{S_FREE}, s{S_WM0}")
        A(dma_x(0)); A(dma_x(1))
        A(f"s_mov_b32 m0, s{S_T0}")
        A(f"s_add_u32 s{S_XOFF}, s{S_XOFF}, 4096")
        for k in range(nw): A(dma_w(k))
        A(f"s_add_u32 s{S_WOFF}, s{S_WOFF}, 10240")
        A(f"s_add_u32 s{S_FREE}, s{S_FREE}, {SLOT}")
        A(f"s_cmp_eq_u32 s{S_FREE}, {SLOT*NSLOT}")
        A(f"s_cselect_b32 s{S_FREE}, 0, s{S_FREE}")
        if ROT:
            A(f"s_add_u32 s{S_SIG}, s{S_SIG}, 1")
            A(f"s_cmp_eq_u32 s{S_SIG}, s{S_NST}")
            A(f"s_cselect_b32 s{S_T1}, s{S_XWR}, 0")
            A(f"s_cselect_b32 s{S_T2}, s{S_WWR}, 0")
            A(f"s_cselect_b32 s{S_SIG}, 0, s{S_SIG}")
            A(f"s_sub_u32 s{S_XOFF}, s{S_XOFF}, s{S_T1}")
            A(f"s_sub_u32 s{S_WOFF}, s{S_WOFF}, s{S_T2}")
    return issue_stage

def stage(A0, last=False):
    def A(x):
        if EXPT['noread'] and x.startswith('ds_read'): return
        if EXPT['nomfma'] and x.startswith('v_mfma'): return
        A0(x)
    M = mfmas(0); R = reads(1, 1)
    A("s_waitcnt lgkmcnt(0)")
    A(M[0]); A(R[0]); A(R[1]); A(R[2])
    A(M[1]); A(R[3]); A(R[4])
    A(M[2]); A(R[5]); A(R[6])
    M = mfmas(1)
    A("s_waitcnt lgkmcnt(0)")
    if last:
        for m in M: A(m)
        return
    A(M[0])
    A(f"s_add_u32 s{S_CUR}, s{S_CUR}, {SLOT}")
    A(f"s_cmp_eq_u32 s{S_CUR}, {SLOT*NSLOT}")
    A(f"s_cselect_b32 s{S_T1}, {hex(-SLOT*(NSLOT-1) & 0xffffffff)}, s{S_SLOT}")
    A(f"s_cselect_b32 s{S_CUR}, 0, s{S_CUR}")
    A(f"v_add_u32 v{V_XR}, s{S_T1}, v{V_XR}")
    A(f"v_add_u32 v{V_WR}, s{S_T1}, v{V_WR}")
    A(f"v_add_u32 v{V_WR2}, s{S_T1}, v{V_WR2}")
    A("s_barrier")
    R = reads(0, 0)
    A(R[0]); A(R[1]); A(R[2])
    A(M[1])
    A(R[3]); A(R[4]); A(R[5]); A(R[6])
    A(M[2])

def gen_narrow2():
    A = Asm(); descs = ""; names = []
    COMMON = "L_n2_common"; END = "L_n2_end"; LOADER = "L_n2_loader"
    variants = [
        ("oproj1_kernel", OF, XSZ, 640,  WOP, 0, 1),
        ("ffb1_kernel",   HF, HSZ, F,    W2P, 1, 2),
        ("oproj2_kernel", OF, XSZ, 640,  WOP, 2, 3),
        ("ffb2_kernel",   HF, HSZ, F,    W2P, 3, None),
    ]
    for (name, xb, xsz, K, kaw, ri, oi) in variants:
        names.append(name)
        entry(A, name)
        stamp(A, 0); stamp(A, 6, True)
        A(f"""
        s_load_dwordx2 s[4:5], s[0:1], {KA_WS}
        s_load_dwordx2 s[46:47], s[0:1], {KA_OUT}
        s_cmp_ge_u32 s2, 256
        s_cbranch_scc1 {END}
        s_and_b32 s{S_T0}, s2, 7
        s_lshr_b32 s{S_T1}, s2, 3
        s_and_b32 s{S_TB}, s{S_T0}, 3
        s_lshl_b32 s{S_TB}, s{S_TB}, 3
        s_and_b32 s{S_T2}, s{S_T1}, 7
        s_add_u32 s{S_TB}, s{S_TB}, s{S_T2}
        s_lshr_b32 s{S_T0}, s{S_T0}, 2
        s_lshl_b32 s{S_T0}, s{S_T0}, 2
        s_lshr_b32 s{S_T1}, s{S_T1}, 3
        s_add_u32 s{S_CB}, s{S_T0}, s{S_T1}
        s_mov_b32 s{S_NK}, {K//16}
        s_mov_b32 s{S_NST}, {K//64}
        s_mov_b32 s{S_MODE}, {0 if oi is not None else 1}
        s_mov_b32 s{S_XB}, {hex(xb)}
        s_mov_b32 s{S_XSZ}, {xsz}
        s_mov_b32 s{S_WSZ}, {K*LDW}
        s_mov_b32 s{S_WB}, {hex(kaw)}
        s_mov_b32 s{S_RB}, {hex(XF[ri])}
        s_mov_b32 s{S_OB}, {hex(XF[oi]) if oi is not None else 0}
        s_mov_b32 s{S_STB}, {hex(ST[oi]) if oi is not None else 0}
        s_branch {COMMON}
        """)
        descs += descriptor(name, 160, 64)
    A(".p2align 6")
    A.label(COMMON)
    A(f"""
    v_lshrrev_b32 v{V_TMP}, 6, v0
    v_and_b32 v{V_LANE}, 63, v0
    v_readfirstlane_b32 s{S_WAVE}, v{V_TMP}
    v_lshlrev_b32 v{V_XD}, 4, v{V_LANE}
    s_mov_b32 s{S_SLOT}, {SLOT}
    s_cmp_ge_u32 s{S_WAVE}, 4
    s_cbranch_scc1 {LOADER}
    """)
    A(f"""
    v_lshrrev_b32 v{V_H}, 5, v{V_LANE}
    v_and_b32 v{V_T}, 31, v{V_LANE}
    s_and_b32 s{S_WT}, s{S_WAVE}, 1
    s_lshr_b32 s{S_WK}, s{S_WAVE}, 1
    s_lshl_b32 s{S_T0}, s{S_TB}, 1
    s_add_u32 s{S_T0}, s{S_T0}, s{S_WT}
    s_mul_i32 s{S_T0}, s{S_T0}, 40
    s_mul_i32 s{S_T1}, s{S_CB}, 5
    s_add_u32 s{S_T0}, s{S_T0}, s{S_T1}
    s_lshl_b32 s{S_T0}, s{S_T0}, 10
    s_add_u32 s{S_T1}, s{S_T0}, 4096
    s_mov_b32 s{S_CUR}, 0
    s_waitcnt lgkmcnt(0)
    """)
    srd_off(A, S_R, 4, S_RB, XSZ)
    for k in range(4):
        A(f"buffer_load_dwordx4 {v(V_RES+4*k,4)}, v{V_XD}, s[{S_R}:{S_R+3}], s{S_T0} offen" + (f" offset:{1024*k}" if k else ""))
    A(f"buffer_load_dwordx4 {v(V_RES+16,4)}, v{V_XD}, s[{S_R}:{S_R+3}], s{S_T1} offen")
    A(f"""
    s_cmp_eq_u32 s{S_MODE}, 1
    s_cselect_b32 s{S_OUT}, s46, s4
    s_cselect_b32 s{S_OUT+1}, s47, s5
    s_add_u32 s{S_OUT}, s{S_OUT}, s{S_OB}
    s_addc_u32 s{S_OUT+1}, s{S_OUT+1}, 0
    s_mov_b32 s{S_OUT+2}, {XSZ}
    s_mov_b32 s{S_OUT+3}, 0x20000
    """)
    srd_off(A, S_ST, 4, S_STB, STSZ)
    A(f"""
    s_lshl_b32 s{S_T0}, s{S_WT}, 12
    s_lshl_b32 s{S_T1}, s{S_WK}, 10
    s_add_u32 s{S_T0}, s{S_T0}, s{S_T1}
    v_add_u32 v{V_XR}, s{S_T0}, v{V_XD}
    s_lshl_b32 s{S_T0}, s{S_WK}, 2
    v_add_u32 v{V_TMP}, s{S_T0}, v{V_H}
    v_mul_u32_u24 v{V_WR}, 640, v{V_TMP}
    v_add_u32 v{V_WR}, 8192, v{V_WR}
    v_and_b32 v{V_TMP}, 3, v{V_LANE}
    v_lshlrev_b32 v{V_TMP}, 3, v{V_TMP}
    v_add_u32 v{V_WR}, v{V_WR}, v{V_TMP}
    v_bfe_u32 v{V_TMP}, v{V_LANE}, 2, 2
    v_lshlrev_b32 v{V_TMP+1}, 5, v{V_TMP}
    v_add_u32 v{V_WR2}, v{V_WR}, v{V_TMP+1}
    v_add_u32 v{V_WR2}, 512, v{V_WR2}
    v_lshlrev_b32 v{V_TMP}, 6, v{V_TMP}
    v_add_u32 v{V_WR}, v{V_WR}, v{V_TMP}
    v_bfe_u32 v{V_TMP}, v{V_LANE}, 4, 1
    v_lshlrev_b32 v{V_TMP}, 5, v{V_TMP}
    v_add_u32 v{V_WR}, v{V_WR}, v{V_TMP}
    """)
    next_code_prefetch(A, 60, "L_blk1_lo", "L_blk1_hi", S_T0, V_TMP, V_E+32)
    for r in range(48): A(f"v_mov_b32 v{V_ACC+r}, 0")
    A(f"s_sub_u32 s{S_CNT}, s{S_NST}, 1")
    stamp(A, 1)
    A("s_barrier")
    stamp(A, 2)
    for r in reads(0, 0): A(r)
    L = "L_n2_loop"
    A(".p2align 4")
    A.label(L)
    stage(A)
    A(f"s_sub_u32 s{S_CNT}, s{S_CNT}, 1")
    A(f"s_cmp_lg_u32 s{S_CNT}, 0")
    A(f"s_cbranch_scc1 {L}")
    stage(A, last=True)
    stamp(A, 3)
    A("s_barrier")
    A(f"""
    s_mul_i32 s{S_T0}, s{S_WAVE}, 6144
    v_add_u32 v{V_TMP}, s{S_T0}, v{V_XD}
    s_xor_b32 s{S_T1}, s{S_WAVE}, 2
    s_mul_i32 s{S_T1}, s{S_T1}, 6144
    v_add_u32 v{V_TMP+1}, s{S_T1}, v{V_XD}
    s_lshl_b32 s{S_T0}, s{S_TB}, 1
    s_add_u32 s{S_T0}, s{S_T0}, s{S_WT}
    s_mul_i32 s{S_T1}, s{S_T0}, 40
    s_mul_i32 s{S_T2}, s{S_CB}, 5
    s_add_u32 s{S_T1}, s{S_T1}, s{S_T2}
    s_lshl_b32 s{S_T1}, s{S_T1}, 10
    """)
    def areg(k): return acc(k >> 1) + 8*(k & 1)
    W1 = "L_n2_wk1"
    A(f"s_cmp_eq_u32 s{S_WK}, 0")
    A(f"s_cbranch_scc0 {W1}")
    for wk in range(2):
        if wk == 1: A.label(W1)
        keep = (0, 1, 2) if wk == 0 else (3, 4)
        send = (3, 4) if wk == 0 else (0, 1, 2)
        for j, k in enumerate(send):
            A(f"ds_write_b128 v{V_TMP}, {v(areg(k),4)} offset:{2048*j}")
            A(f"ds_write_b128 v{V_TMP}, {v(areg(k)+4,4)} offset:{2048*j+1024}")
        A("s_waitcnt lgkmcnt(0)")
        A("s_barrier")
        for j, k in enumerate(keep):
            A(f"ds_read_b128 {v(V_E+8*j,4)}, v{V_TMP+1} offset:{2048*j}")
            A(f"ds_read_b128 {v(V_E+8*j+4,4)}, v{V_TMP+1} offset:{2048*j+1024}")
        A(f"v_mov_b32 v{V_TMP+2}, 0")
        A(f"v_mov_b32 v{V_TMP+3}, 0")
        A("s_waitcnt vmcnt(0) lgkmcnt(0)")
        for j, k in enumerate(keep):
            a_ = areg(k); p_ = V_E + 8*j; r_ = V_RES + 4*k
            for pr in range(4):
                A(f"v_pk_add_f32 {v(a_+2*pr,2)}, {v(a_+2*pr,2)}, {v(p_+2*pr,2)}")
            for pr in range(4):
                A(f"v_lshlrev_b32 v{p_+2*pr}, 16, v{r_+pr}")
                A(f"v_and_b32 v{p_+2*pr+1}, 0xffff0000, v{r_+pr}")
            for pr in range(4):
                A(f"v_pk_add_f32 {v(a_+2*pr,2)}, {v(a_+2*pr,2)}, {v(p_+2*pr,2)}")
            for pr in range(4):
                A(f"v_cvt_pk_bf16_f32 v{r_+pr}, v{a_+2*pr}, v{a_+2*pr+1}")
        OUTF = f"L_n2_rowmajor_{wk}"
        A(f"s_cmp_eq_u32 s{S_MODE}, 1")
        A(f"s_cbranch_scc1 {OUTF}")
        for j, k in enumerate(keep):
            r_ = V_RES + 4*k
            if k < 4:
                A(f"buffer_store_dwordx4 {v(r_,4)}, v{V_XD}, s[{S_OUT}:{S_OUT+3}], s{S_T1} offen" + (f" offset:{1024*k}" if k else ""))
            else:
                A(f"s_add_u32 s{S_T2}, s{S_T1}, 4096")
                A(f"buffer_store_dwordx4 {v(r_,4)}, v{V_XD}, s[{S_OUT}:{S_OUT+3}], s{S_T2} offen")
        for j, k in enumerate(keep):
            a_ = areg(k)
            for x in range(8):
                A(f"v_add_f32 v{V_TMP+2}, v{V_TMP+2}, v{a_+x}")
                A(f"v_fmac_f32 v{V_TMP+3}, v{a_+x}, v{a_+x}")
        halfsum(A, V_TMP+2, V_TMP+4)
        halfsum(A, V_TMP+3, V_TMP+5)
        A(f"""
        s_lshl_b32 s{S_T0}, s{S_T0}, 12
        s_lshl_b32 s{S_T2}, s{S_CB}, 9
        s_add_u32 s{S_T0}, s{S_T0}, s{S_T2}
        s_add_u32 s{S_T0}, s{S_T0}, {8*wk}
        v_lshlrev_b32 v{V_TMP+4}, 4, v{V_T}
        buffer_store_dwordx2 {v(V_TMP+2,2)}, v{V_TMP+4}, s[{S_ST}:{S_ST+3}], s{S_T0} offen
        s_branch L_n2_fin
        """)
        A.label(OUTF)
        A(f"""
        s_lshl_b32 s{S_T0}, s{S_T0}, 5
        v_add_u32 v{V_TMP+4}, s{S_T0}, v{V_T}
        v_mul_u32_u24 v{V_TMP+4}, 1280, v{V_TMP+4}
        v_lshlrev_b32 v{V_TMP+5}, 4, v{V_H}
        v_add_u32 v{V_TMP+4}, v{V_TMP+4}, v{V_TMP+5}
        s_mul_i32 s{S_T2}, s{S_CB}, 160
        """)
        for j, k in enumerate(keep):
            r_ = V_RES + 4*k
            A(f"v_permlane32_swap_b32 v{r_}, v{r_+2}")
            A(f"v_permlane32_swap_b32 v{r_+1}, v{r_+3}")
        for j, k in enumerate(keep):
            r_ = V_RES + 4*k
            A(f"buffer_store_dwordx4 {v(r_,4)}, v{V_TMP+4}, s[{S_OUT}:{S_OUT+3}], s{S_T2} offen" + (f" offset:{32*k}" if k else ""))
        A(f"s_branch L_n2_fin")
    A.label("L_n2_fin")
    stamp(A, 4)
    if asmlib.STAMP: A("s_waitcnt vmcnt(0)")
    stamp(A, 5); stamp(A, 7, True)
    stamp_flush(A, 8, 3)
    A("s_endpgm")
    A(".p2align 6")
    A.label(LOADER)
    A(f"""
    s_sub_u32 s{S_WAVE}, s{S_WAVE}, 4
    s_mov_b32 s{S_OOB}, 0x7f000000
    s_and_b32 s{S_WT}, s{S_WAVE}, 1
    s_lshr_b32 s{S_WK}, s{S_WAVE}, 1
    s_lshl_b32 s{S_T0}, s{S_TB}, 1
    s_add_u32 s{S_T0}, s{S_T0}, s{S_WT}
    s_mul_i32 s{S_T0}, s{S_T0}, s{S_NK}
    s_lshl_b32 s{S_T1}, s{S_WK}, 1
    s_add_u32 s{S_T0}, s{S_T0}, s{S_T1}
    s_lshl_b32 s{S_XOFF}, s{S_T0}, 10
    s_lshl_b32 s{S_XM0}, s{S_WT}, 12
    s_lshl_b32 s{S_T1}, s{S_WK}, 11
    s_add_u32 s{S_XM0}, s{S_XM0}, s{S_T1}
    """)
    A(f"""
    s_mul_i32 s{S_T0}, s{S_WAVE}, 3072
    s_cmp_eq_u32 s{S_WAVE}, 3
    s_cselect_b32 s{S_T0}, 8192, s{S_T0}
    s_add_u32 s{S_WM0}, s{S_T0}, 8192
    s_lshl_b32 s{S_T1}, s{S_NK}, 2
    s_mul_i32 s{S_T1}, s{S_T1}, 640
    s_mul_i32 s{S_T1}, s{S_T1}, s{S_CB}
    s_add_u32 s{S_WOFF}, s{S_T1}, s{S_T0}
    s_mov_b32 s{S_FREE}, 0
    """)
    if ROT:
        A(f"""
        s_lshr_b32 s{S_T0}, s2, 3
        s_and_b32 s{S_T1}, s{S_T0}, 7
        s_lshr_b32 s{S_T0}, s{S_T0}, 3
        s_cmp_eq_u32 s{S_NST}, 10
        s_cselect_b32 s{S_T2}, 1, 3
        s_mul_i32 s{S_T1}, s{S_T1}, s{S_T2}
        s_cselect_b32 s{S_T2}, 3, 7
        s_mul_i32 s{S_T0}, s{S_T0}, s{S_T2}
        s_add_u32 s{S_SIG}, s{S_T0}, s{S_T1}
        s_cmp_ge_u32 s{S_SIG}, s{S_NST}
        s_cselect_b32 s{S_T0}, s{S_NST}, 0
        s_sub_u32 s{S_SIG}, s{S_SIG}, s{S_T0}
        s_lshl_b32 s{S_T0}, s{S_SIG}, 12
        s_add_u32 s{S_XOFF}, s{S_XOFF}, s{S_T0}
        s_mul_i32 s{S_T0}, s{S_SIG}, 10240
        s_add_u32 s{S_WOFF}, s{S_WOFF}, s{S_T0}
        s_lshl_b32 s{S_XWR}, s{S_NST}, 12
        s_mul_i32 s{S_WWR}, s{S_NST}, 10240
        """)
    A(f"""
    s_waitcnt lgkmcnt(0)
    s_add_u32 s{S_X}, s4, s{S_XB}
    s_addc_u32 s{S_X+1}, s5, 0
    s_mov_b32 s{S_X+2}, s{S_XSZ}
    s_mov_b32 s{S_X+3}, 0x20000
    s_add_u32 s{S_W}, s4, s{S_WB}
    s_addc_u32 s{S_W+1}, s5, 0
    s_mov_b32 s{S_W+2}, s{S_WSZ}
    s_mov_b32 s{S_W+3}, 0x20000
    """)
    for nw in (3, 2):
        for nst in (10, 27):
            nxt = f"L_n2_ld_next_{nw}_{nst}"
            A(f"s_cmp_lt_u32 s{S_WAVE}, 2")
            A(f"s_cbranch_scc{0 if nw == 3 else 1} {nxt}")
            A(f"s_cmp_eq_u32 s{S_NST}, {nst}")
            A(f"s_cbranch_scc0 {nxt}")
            emit_loader(A, loader_schedule(nst, NSLOT, burst=2, first=2), make_issue(nw), 2+nw, S_CNT, f"n2ld{nw}_{nst}")
            if WPF: A("s_branch L_n2_wpf")
            else: A("s_endpgm")
            A.label(nxt)
    if WPF:
        A(f"s_branch {END}")
        A.label("L_n2_wpf")
        A(f"""
        s_cmp_eq_u32 s{S_MODE}, 1
        s_cbranch_scc1 {END}
        s_load_dwordx2 s[8:9], s[0:1], {KA_W1}
        s_load_dwordx2 s[12:13], s[0:1], {KA_WQKV}
        s_movk_i32 s{S_T1}, 3840
        s_movk_i32 s{S_T2}, 2048
        s_cmp_eq_u32 s{S_NST}, 10
        s_cselect_b32 s{S_T1}, 3456, s{S_T1}
        s_cselect_b32 s{S_T2}, 1792, s{S_T2}
        s_waitcnt lgkmcnt(0)
        s_cselect_b32 s8, s8, s12
        s_cselect_b32 s9, s9, s13
        s_mul_i32 s10, s{S_T1}, 640
        s_mov_b32 s11, 0x20000
        s_bfe_u32 s{S_T0}, s2, 0x10002
        s_mul_i32 s{S_T0}, s{S_T0}, s{S_T2}
        s_lshr_b32 s{S_T2}, s2, 3
        s_mul_i32 s{S_T2}, s{S_T2}, 20
        s_mul_i32 s{S_CNT}, s{S_WAVE}, 5
        s_add_u32 s{S_T2}, s{S_T2}, s{S_CNT}
        s_mul_i32 s{S_T2}, s{S_T2}, s{S_T1}
        s_add_u32 s{S_T0}, s{S_T0}, s{S_T2}
        """)
        for r in range(5):
            A(f"buffer_load_dwordx4 v[16:19], v{V_XD}, s[8:11], s{S_T0} offen")
            A(f"buffer_load_dwordx4 v[20:23], v{V_XD}, s[8:11], s{S_T0} offen offset:1024")
            if r < 4: A(f"s_add_u32 s{S_T0}, s{S_T0}, s{S_T1}")
    A.label(END)
    A("s_endpgm")
    return A, descs, names
```

```python
from asmlib import *
from layout import *
from k_prep import srd, descriptor, entry, halfsum
import struct, asmlib
EXPT = dict(noread=False, nomfma=False)
def f2u(x): return struct.unpack("<I", struct.pack("<f", x))[0]

RING = 32768
SCR = 4*RING
LDS_BYTES = SCR + 2048
QSCALE = (DH ** -0.5) * 1.4426950408889634
NST = 10

S_X=8; S_W=12; S_ST=16; S_CS=20; S_OUT=24
S_WAVE=28; S_TB=29; S_CB=30; S_MODE=31; S_XOFF=32; S_WOFF=33; S_M0=34; S_WADV=35; S_FREE=36; S_CNT=37
S_LDW=38; S_N0=39; S_CSROW=40; S_T0=41; S_T1=42; S_T2=43; S_WN=44; S_WT=45; S_OOB=46
S_SIG=55; S_XWR=56; S_WWR=57; S_TS=58; S_HS=59
S_XB=48; S_STB=49; S_CSB=50; S_OUTB=51; S_WSZ=52; S_CSSZ=53; S_OUTSZ=54
V_LANE=1; V_H=2; V_T=3
V_XD=4; V_WD=5
V_XR=9; V_WR=10
V_TMP=11
V_AA=20; V_NB=24; V_A2=28
V_FR=32; V_ACC=64; V_E=128

def fr(setn, kind, i): return V_FR + 16*setn + (0 if kind == 'W' else 8) + 4*i
def acc(i, ip): return V_ACC + 16*(2*i + ip)
def reads(setn, step):
    L = []
    for i in range(2):
        for jj in range(2):
            L.append(f"ds_read_b64_tr_b16 {v(fr(setn,'W',i)+2*jj,2)}, v{V_WR} offset:{step*4096 + jj*2048 + i*256}")
        L.append(f"ds_read_b128 {v(fr(setn,'X',i),4)}, v{V_XR} offset:{i*4096 + step*1024}")
    return L
def mfmas(setn, trans):
    L = []
    for (i, ip) in ((0,0),(0,1),(1,0),(1,1)):
        w = v(fr(setn,'W',i),4); x = v(fr(setn,'X',ip),4); d = v(acc(i,ip),16)
        L.append(f"v_mfma_f32_32x32x16_bf16 {d}, {w}, {x}, {d}" if trans else f"v_mfma_f32_32x32x16_bf16 {d}, {x}, {w}, {d}")
    return L
def dma_x(k): return f"buffer_load_dwordx4 v{V_XD}, s[{S_X}:{S_X+3}], s{S_XOFF} offen" + (f" offset:{k*1024}" if k else "") + " lds"
def dma_w(k): return f"buffer_load_dwordx4 v{V_WD+k}, s[{S_W}:{S_W+3}], s{S_WOFF} offen" + (f" offset:{k*1024}" if k else "") + " lds"

ROT = False
WPF = False
def issue_stage(A):
    A(f"s_add_u32 m0, s{S_FREE}, s{S_M0}")
    A(f"s_add_u32 s{S_T0}, s{S_FREE}, s{S_M0}")
    for k in range(4): A(dma_x(k))
    A(f"s_add_u32 m0, s{S_T0}, 16384")
    A(f"s_add_u32 s{S_XOFF}, s{S_XOFF}, 4096")
    for k in range(4): A(dma_w(k))
    A(f"s_add_u32 s{S_WOFF}, s{S_WOFF}, s{S_WADV}")
    A(f"s_add_u32 s{S_FREE}, s{S_FREE}, {RING}")
    A(f"s_and_b32 s{S_FREE}, s{S_FREE}, {4*RING-1}")
    if ROT:
        A(f"s_add_u32 s{S_SIG}, s{S_SIG}, 1")
        A(f"s_cmp_eq_u32 s{S_SIG}, {NST}")
        A(f"s_cselect_b32 s{S_T1}, {NST*4096}, 0")
        A(f"s_cselect_b32 s{S_T2}, s{S_WWR}, 0")
        A(f"s_cselect_b32 s{S_SIG}, 0, s{S_SIG}")
        A(f"s_sub_u32 s{S_XOFF}, s{S_XOFF}, s{S_T1}")
        A(f"s_sub_u32 s{S_WOFF}, s{S_WOFF}, s{S_T2}")

def stage(A0, trans, last=False):
    def A(x):
        if EXPT['noread'] and x.startswith('ds_read'): return
        if EXPT['nomfma'] and x.startswith('v_mfma'): return
        A0(x)
    for step in range(4):
        cur = step & 1; nxt = cur ^ 1
        M = mfmas(cur, trans)
        A("s_waitcnt lgkmcnt(0)")
        if step < 3:
            R = reads(nxt, step+1)
            A(M[0]); A(R[0]); A(R[1])
            A(M[1]); A(R[2]); A(R[3])
            A(M[2]); A(R[4]); A(R[5])
            A(M[3])
        elif not last:
            A(M[0])
            A(f"v_add_u32 v{V_XR}, {RING}, v{V_XR}")
            A(f"v_add_u32 v{V_WR}, {RING}, v{V_WR}")
            A(f"v_and_b32 v{V_XR}, {4*RING-1}, v{V_XR}")
            A(f"v_and_b32 v{V_WR}, {4*RING-1}, v{V_WR}")
            A(M[1])
            A("s_barrier")
            R = reads(0, 0)
            A(R[0]); A(R[1]); A(R[2])
            A(M[2])
            A(R[3]); A(R[4]); A(R[5])
            A(M[3])
        else:
            for m in M: A(m)

def mainloop(A, trans, tag):
    L = f"L_w2_loop_{tag}"
    A(f"s_mov_b32 s{S_CNT}, {NST-1}")
    A(".p2align 4")
    A.label(L)
    stage(A, trans)
    A(f"s_sub_u32 s{S_CNT}, s{S_CNT}, 1")
    A(f"s_cmp_lg_u32 s{S_CNT}, 0")
    A(f"s_cbranch_scc1 {L}")
    stage(A, trans, last=True)

def srd_off(A, d, base, soff, ssize):
    A(f"s_add_u32 s{d}, s{base}, s{soff}")
    A(f"s_addc_u32 s{d+1}, s{base+1}, 0")
    A(f"s_mov_b32 s{d+2}, {ssize}")
    A(f"s_mov_b32 s{d+3}, 0x20000")

def gen_wide2():
    A = Asm(); descs = ""; names = []
    COMMON = "L_w2_common"; END = "L_w2_end"; LOADER = "L_w2_loader"
    for kind, layer in (("qkv", 0), ("qkv", 1), ("ffa", 0), ("ffa", 1)):
        name = f"{kind}{layer+1}_kernel"
        names.append(name)
        entry(A, name)
        stamp(A, 0); stamp(A, 6, True)
        xi = 2*layer + (0 if kind == "qkv" else 1)
        A(f"""
        s_load_dwordx2 s[4:5], s[0:1], {KA_WS}
        s_load_dwordx2 s[6:7], s[0:1], {KA_WQKV if kind=='qkv' else KA_W1}
        s_and_b32 s{S_T0}, s2, 7
        s_lshr_b32 s{S_T1}, s2, 3
        s_and_b32 s{S_TB}, s{S_T0}, 3
        s_lshl_b32 s{S_TB}, s{S_TB}, 2
        s_and_b32 s{S_T2}, s{S_T1}, 3
        s_add_u32 s{S_TB}, s{S_TB}, s{S_T2}
        s_lshr_b32 s{S_T0}, s{S_T0}, 2
        s_lshr_b32 s{S_T1}, s{S_T1}, 2
        s_mov_b32 s{S_XB}, {hex(XF[xi])}
        s_mov_b32 s{S_STB}, {hex(ST[xi])}
        """)
        if kind == "qkv":
            A(f"""
            s_lshl_b32 s{S_CB}, s{S_T0}, 3
            s_add_u32 s{S_CB}, s{S_CB}, s{S_T1}
            s_cmp_ge_u32 s2, 256
            s_cbranch_scc1 {END}
            s_cmp_ge_u32 s{S_CB}, 15
            s_cbranch_scc1 {END}
            s_mov_b32 s{S_LDW}, 3840
            s_mov_b32 s{S_CSROW}, 7680
            s_cmp_ge_u32 s{S_CB}, 5
            s_cselect_b32 s{S_MODE}, 1, 0
            s_cmp_ge_u32 s{S_CB}, 10
            s_cselect_b32 s{S_MODE}, 2, s{S_MODE}
            s_mov_b32 s{S_OUTB}, {hex(QF)}
            s_cmp_eq_u32 s{S_MODE}, 1
            s_cselect_b32 s{S_OUTB}, {hex(KF)}, s{S_OUTB}
            s_cmp_eq_u32 s{S_MODE}, 2
            s_cselect_b32 s{S_OUTB}, {hex(VF)}, s{S_OUTB}
            s_cmp_eq_u32 s{S_MODE}, 0
            s_movk_i32 s{S_TS}, {KTS}
            s_cselect_b32 s{S_TS}, {QTS}, s{S_TS}
            s_mov_b32 s{S_OUTSZ}, {KVSZ}
            s_mov_b32 s{S_WSZ}, {640*3840}
            s_mov_b32 s{S_CSB}, {hex(CSQ)}
            s_mov_b32 s{S_CSSZ}, {CSQSZ}
            """)
        else:
            A(f"""
            s_mul_i32 s{S_CB}, s{S_T0}, 7
            s_add_u32 s{S_CB}, s{S_CB}, s{S_T1}
            s_cmp_ge_u32 s2, 256
            s_cbranch_scc1 {END}
            s_cmp_ge_u32 s{S_T1}, 7
            s_cbranch_scc1 {END}
            s_mov_b32 s{S_LDW}, 3456
            s_mov_b32 s{S_CSROW}, 6912
            s_mov_b32 s{S_MODE}, 3
            s_mov_b32 s{S_OUTB}, {hex(HF)}
            s_mov_b32 s{S_OUTSZ}, {HSZ}
            s_mov_b32 s{S_WSZ}, {640*3456}
            s_mov_b32 s{S_CSB}, {hex(CS1)}
            s_mov_b32 s{S_CSSZ}, {CS1SZ}
            """)
        A(f"s_branch {COMMON}")
        descs += descriptor(name, 224, 64)
    A(".p2align 6")
    A.label(COMMON)
    A(f"""
    v_lshrrev_b32 v{V_TMP}, 6, v0
    v_and_b32 v{V_LANE}, 63, v0
    v_readfirstlane_b32 s{S_WAVE}, v{V_TMP}
    v_lshlrev_b32 v{V_XD}, 4, v{V_LANE}
    s_lshl_b32 s{S_N0}, s{S_CB}, 7
    s_cmp_ge_u32 s{S_WAVE}, 4
    s_cbranch_scc1 {LOADER}
    """)
    A(f"""
    v_lshrrev_b32 v{V_H}, 5, v{V_LANE}
    v_and_b32 v{V_T}, 31, v{V_LANE}
    s_and_b32 s{S_WN}, s{S_WAVE}, 1
    s_lshr_b32 s{S_WT}, s{S_WAVE}, 1
    s_lshl_b32 s{S_T0}, s{S_TB}, 2
    s_lshl_b32 s{S_T1}, s{S_WT}, 1
    s_add_u32 s{S_T0}, s{S_T0}, s{S_T1}
    s_lshl_b32 s{S_T0}, s{S_T0}, 12
    s_add_u32 s{S_T1}, s{S_T0}, 4096
    v_lshlrev_b32 v{V_TMP}, 4, v{V_T}
    v_lshlrev_b32 v{V_TMP+1}, 11, v{V_H}
    v_add_u32 v{V_TMP}, v{V_TMP}, v{V_TMP+1}
    v_and_b32 v{V_TMP+2}, 127, v0
    v_add_u32 v{V_TMP+2}, s{S_N0}, v{V_TMP+2}
    v_lshlrev_b32 v{V_TMP+2}, 2, v{V_TMP+2}
    s_waitcnt lgkmcnt(0)
    """)
    stamp(A, 8)
    srd_off(A, S_ST, 4, S_STB, STSZ)
    srd_off(A, S_CS, 4, S_CSB, f"s{S_CSSZ}")
    for ip in range(2):
        for k in range(4):
            A(f"buffer_load_dwordx4 {v(V_FR+16*ip+4*k,4)}, v{V_TMP}, s[{S_ST}:{S_ST+3}], s{S_T0+ip} offen" + (f" offset:{512*k}" if k else ""))
    A(f"""
    s_lshl_b32 s{S_T1}, s{S_CSROW}, 1
    s_add_u32 s{S_T2}, s{S_T1}, s{S_CSROW}
    buffer_load_dword v{V_E}, v{V_TMP+2}, s[{S_CS}:{S_CS+3}], 0 offen
    buffer_load_dword v{V_E+1}, v{V_TMP+2}, s[{S_CS}:{S_CS+3}], s{S_CSROW} offen
    buffer_load_dword v{V_E+2}, v{V_TMP+2}, s[{S_CS}:{S_CS+3}], s{S_T1} offen
    buffer_load_dword v{V_E+3}, v{V_TMP+2}, s[{S_CS}:{S_CS+3}], s{S_T2} offen
    """)
    srd_off(A, S_OUT, 4, S_OUTB, f"s{S_OUTSZ}")
    A(f"""
    s_lshl_b32 s{S_T0}, s{S_WT}, 13
    v_add_u32 v{V_XR}, s{S_T0}, v{V_XD}
    v_lshlrev_b32 v{V_WR}, 10, v{V_H}
    v_bfe_u32 v{V_TMP}, v{V_LANE}, 2, 2
    v_lshlrev_b32 v{V_TMP}, 6, v{V_TMP}
    v_add_u32 v{V_WR}, v{V_WR}, v{V_TMP}
    v_bfe_u32 v{V_TMP}, v{V_LANE}, 4, 1
    v_lshlrev_b32 v{V_TMP}, 5, v{V_TMP}
    v_add_u32 v{V_WR}, v{V_WR}, v{V_TMP}
    v_and_b32 v{V_TMP}, 3, v{V_LANE}
    v_lshlrev_b32 v{V_TMP}, 3, v{V_TMP}
    v_add_u32 v{V_WR}, v{V_WR}, v{V_TMP}
    s_lshl_b32 s{S_T0}, s{S_WN}, 9
    s_add_u32 s{S_T0}, s{S_T0}, 16384
    v_add_u32 v{V_WR}, s{S_T0}, v{V_WR}
    """)
    for r in range(64): A(f"v_mov_b32 v{V_ACC+r}, 0")
    A("s_waitcnt vmcnt(0)")
    if asmlib.NEXT_PF:
        LN = "L_w2_npf_n"; LD = "L_w2_npf_d"
        A(f"s_cmp_eq_u32 s{S_MODE}, 3")
        A(f"s_cbranch_scc1 {LN}")
        next_code_prefetch(A, 60, "L_blk2_lo", "L_blk2_hi", S_T0, V_TMP, V_E+80)
        A(f"s_branch {LD}")
        A.label(LN)
        next_code_prefetch(A, 60, "L_blk3_lo", "L_blk3_hi", S_T0, V_TMP, V_E+80)
        A.label(LD)
    for ip in range(2):
        b = V_FR + 16*ip
        A(f"""
        v_pk_add_f32 {v(b,2)}, {v(b,2)}, {v(b+2,2)}
        v_pk_add_f32 {v(b+4,2)}, {v(b+4,2)}, {v(b+6,2)}
        v_pk_add_f32 {v(b+8,2)}, {v(b+8,2)}, {v(b+10,2)}
        v_pk_add_f32 {v(b+12,2)}, {v(b+12,2)}, {v(b+14,2)}
        v_pk_add_f32 {v(b,2)}, {v(b,2)}, {v(b+4,2)}
        v_pk_add_f32 {v(b+8,2)}, {v(b+8,2)}, {v(b+12,2)}
        v_pk_add_f32 {v(b,2)}, {v(b,2)}, {v(b+8,2)}
        """)
        halfsum(A, b, V_TMP)
        halfsum(A, b+1, V_TMP+1)
        A(f"""
        v_mul_f32 v{b}, {hex(f2u(1.0/640))}, v{b}
        v_mul_f32 v{b+1}, {hex(f2u(1.0/640))}, v{b+1}
        v_fma_f32 v{b+1}, -v{b}, v{b}, v{b+1}
        v_max_f32 v{b+1}, 0, v{b+1}
        v_add_f32 v{b+1}, {hex(f2u(1e-5))}, v{b+1}
        v_rsq_f32 v{b+1}, v{b+1}
        v_sub_f32 v{V_NB+2*ip}, 0, v{b}
        v_sub_f32 v{V_NB+2*ip+1}, 0, v{b}
        v_mov_b32 v{V_AA+2*ip}, v{b+1}
        v_mov_b32 v{V_AA+2*ip+1}, v{b+1}
        v_mul_f32 v{V_A2+2*ip}, {hex(f2u(-1.4426950408889634))}, v{b+1}
        v_mul_f32 v{V_A2+2*ip+1}, {hex(f2u(-1.4426950408889634))}, v{b+1}
        v_mul_f32 v{b+2}, v{b}, v{b+1}
        s_lshl_b32 s{S_T0}, s{S_WT}, 8
        s_add_u32 s{S_T0}, s{S_T0}, {SCR + 512 + 128*ip}
        v_lshlrev_b32 v{V_TMP}, 2, v{V_T}
        v_add_u32 v{V_TMP}, s{S_T0}, v{V_TMP}
        ds_write_b32 v{V_TMP}, v{b+1}
        ds_write_b32 v{V_TMP}, v{b+2} offset:512
        """)
    A(f"""
    s_cmp_eq_u32 s{S_MODE}, 0
    s_cselect_b32 s{S_T0}, {hex(f2u(QSCALE))}, 1.0
    v_mul_f32 v{V_AA}, s{S_T0}, v{V_AA}
    v_mul_f32 v{V_AA+1}, s{S_T0}, v{V_AA+1}
    v_mul_f32 v{V_AA+2}, s{S_T0}, v{V_AA+2}
    v_mul_f32 v{V_AA+3}, s{S_T0}, v{V_AA+3}
    v_add_f32 v{V_E}, v{V_E}, v{V_E+1}
    v_add_f32 v{V_E+2}, v{V_E+2}, v{V_E+3}
    v_add_f32 v{V_E}, v{V_E}, v{V_E+2}
    v_and_b32 v{V_TMP}, 127, v0
    v_lshlrev_b32 v{V_TMP}, 2, v{V_TMP}
    v_add_u32 v{V_TMP}, {SCR}, v{V_TMP}
    ds_write_b32 v{V_TMP}, v{V_E}
    s_waitcnt lgkmcnt(0)
    """)
    stamp(A, 1)
    A("s_barrier")
    stamp(A, 2)
    for r in reads(0, 0): A(r)
    LV = "L_w2_vmode"
    A(f"s_cmp_eq_u32 s{S_MODE}, 2")
    A(f"s_cbranch_scc1 {LV}")
    mainloop(A, True, "t")
    stamp(A, 3)
    A("s_waitcnt vmcnt(0)")
    A(f"""
    s_lshl_b32 s{S_T0}, s{S_WN}, 8
    s_add_u32 s{S_T0}, s{S_T0}, {SCR}
    v_lshlrev_b32 v{V_TMP}, 4, v{V_H}
    v_add_u32 v{V_TMP}, s{S_T0}, v{V_TMP}
    """)
    for i in range(2):
        for g in range(4):
            A(f"ds_read_b128 {v(V_E+16*i+4*g,4)}, v{V_TMP} offset:{128*i + 32*g}")
    LF = "L_w2_ffn"
    A(f"s_cmp_eq_u32 s{S_MODE}, 3")
    A(f"s_cbranch_scc1 {LF}")
    A(f"""
    s_mul_i32 s{S_T0}, s{S_MODE}, 640
    s_sub_u32 s{S_T0}, s{S_N0}, s{S_T0}
    s_lshl_b32 s{S_T1}, s{S_WN}, 6
    s_add_u32 s{S_T0}, s{S_T0}, s{S_T1}
    v_lshlrev_b32 v{V_TMP}, 2, v{V_H}
    v_add_u32 v{V_TMP}, s{S_T0}, v{V_TMP}
    s_movk_i32 s{S_T1}, 3277
    v_lshlrev_b32 v{V_TMP+6}, 4, v{V_T}
    v_lshlrev_b32 v{V_TMP+5}, 3, v{V_T}
    s_lshl_b32 s{S_HS}, s{S_TS}, 6
    """)
    VA = V_E + 32
    for i in range(2):
        for g in range(4):
            r = VA + 4*i + g
            A(f"""
            v_add_u32 v{V_TMP+1}, {32*i+8*g}, v{V_TMP}
            v_mul_u32_u24 v{V_TMP+2}, s{S_T1}, v{V_TMP+1}
            v_lshrrev_b32 v{V_TMP+2}, 16, v{V_TMP+2}
            v_mul_u32_u24 v{V_TMP+3}, 20, v{V_TMP+2}
            v_sub_u32 v{V_TMP+3}, v{V_TMP+1}, v{V_TMP+3}
            v_mul_lo_u32 v{r}, v{V_TMP+2}, s{S_HS}
            v_lshrrev_b32 v{V_TMP+4}, 3, v{V_TMP+3}
            v_lshlrev_b32 v{V_TMP+4}, 9, v{V_TMP+4}
            v_add_u32 v{r}, v{r}, v{V_TMP+4}
            v_bfe_u32 v{V_TMP+4}, v{V_TMP+3}, 2, 1
            v_lshlrev_b32 v{V_TMP+4}, 3, v{V_TMP+4}
            v_add_u32 v{r}, v{r}, v{V_TMP+4}
            v_cmp_eq_u32 vcc, 16, v{V_TMP+3}
            v_cndmask_b32 v{V_TMP+4}, v{V_TMP+6}, v{V_TMP+5}, vcc
            v_add_u32 v{r}, v{r}, v{V_TMP+4}
            """)
    A(f"""
    s_lshl_b32 s{S_T0}, s{S_TB}, 2
    s_lshl_b32 s{S_T1}, s{S_WT}, 1
    s_add_u32 s{S_T0}, s{S_T0}, s{S_T1}
    s_mul_i32 s{S_T0}, s{S_T0}, s{S_TS}
    s_add_u32 s{S_T1}, s{S_T0}, s{S_TS}
    s_waitcnt lgkmcnt(0)
    """)
    VP = V_E + 40
    for i in range(2):
        for ip in range(2):
            c = acc(i, ip)
            for p in range(8):
                A(f"v_pk_fma_f32 {v(c+2*p,2)}, {v(V_E+16*i+2*p,2)}, {v(V_NB+2*ip,2)}, {v(c+2*p,2)}")
            for p in range(8):
                A(f"v_pk_mul_f32 {v(c+2*p,2)}, {v(c+2*p,2)}, {v(V_AA+2*ip,2)}")
            pk = VP + 8*((2*i+ip) & 1)
            for p in range(8):
                A(f"v_cvt_pk_bf16_f32 v{pk+p}, v{c+2*p}, v{c+2*p+1}")
            for g in range(4):
                A(f"buffer_store_dwordx2 {v(pk+2*g,2)}, v{VA+4*i+g}, s[{S_OUT}:{S_OUT+3}], s{S_T0+ip} offen")
    A(f"s_branch L_w2_fin")
    A.label(LF)
    A(f"""
    s_lshl_b32 s{S_T0}, s{S_WN}, 6
    s_add_u32 s{S_T0}, s{S_T0}, s{S_N0}
    s_cmp_ge_u32 s{S_T0}, {F}
    s_cbranch_scc1 L_w2_fin
    s_lshr_b32 s{S_T0}, s{S_T0}, 4
    s_lshl_b32 s{S_T1}, s{S_TB}, 2
    s_lshl_b32 s{S_T2}, s{S_WT}, 1
    s_add_u32 s{S_T1}, s{S_T1}, s{S_T2}
    s_mul_i32 s{S_T1}, s{S_T1}, 108
    s_add_u32 s{S_T0}, s{S_T0}, s{S_T1}
    s_lshl_b32 s{S_T0}, s{S_T0}, 10
    s_add_u32 s{S_T1}, s{S_T0}, {108*1024}
    s_waitcnt lgkmcnt(0)
    """)
    VZ = V_E + 32; VP = V_E + 48
    for ip in range(2):
        for i in range(2):
            c = acc(i, ip)
            for p in range(8):
                A(f"v_pk_fma_f32 {v(c+2*p,2)}, {v(V_E+16*i+2*p,2)}, {v(V_NB+2*ip,2)}, {v(c+2*p,2)}")
            for p in range(8):
                A(f"v_pk_mul_f32 {v(VZ+2*p,2)}, {v(c+2*p,2)}, {v(V_A2+2*ip,2)}")
            for r in range(16):
                A(f"v_exp_f32 v{VZ+r}, v{VZ+r}")
                if r % 2 == 1: A(f"v_pk_mul_f32 {v(c+r-1,2)}, {v(c+r-1,2)}, {v(V_AA+2*ip,2)}")
            for p in range(8):
                A(f"v_pk_add_f32 {v(VZ+2*p,2)}, {v(VZ+2*p,2)}, 1.0 op_sel_hi:[1,0]")
            for r in range(16):
                A(f"v_rcp_f32 v{VZ+r}, v{VZ+r}")
            for p in range(8):
                A(f"v_pk_mul_f32 {v(c+2*p,2)}, {v(c+2*p,2)}, {v(VZ+2*p,2)}")
            pk = VP + 8*i
            for p in range(8):
                A(f"v_cvt_pk_bf16_f32 v{pk+p}, v{c+2*p}, v{c+2*p+1}")
            so = S_T0 if ip == 0 else S_T1
            off0 = f" offset:{2048*i}" if i else ""
            A(f"buffer_store_dwordx4 {v(pk,4)}, v{V_XD}, s[{S_OUT}:{S_OUT+3}], s{so} offen{off0}")
            A(f"buffer_store_dwordx4 {v(pk+4,4)}, v{V_XD}, s[{S_OUT}:{S_OUT+3}], s{so} offen offset:{2048*i+1024}")
    A(f"s_branch L_w2_fin")
    A.label(LV)
    mainloop(A, False, "v")
    stamp(A, 3)
    A("s_waitcnt vmcnt(0)")
    A(f"""
    s_lshl_b32 s{S_T0}, s{S_WN}, 6
    v_add_u32 v{V_TMP}, s{S_T0}, v{V_T}
    v_lshlrev_b32 v{V_TMP+1}, 2, v{V_TMP}
    v_add_u32 v{V_TMP+1}, {SCR}, v{V_TMP+1}
    ds_read_b32 v{V_E+64}, v{V_TMP+1}
    ds_read_b32 v{V_E+66}, v{V_TMP+1} offset:128
    s_sub_u32 s{S_T0}, s{S_N0}, 1280
    v_add_u32 v{V_TMP}, s{S_T0}, v{V_TMP}
    s_movk_i32 s{S_T1}, 3277
    """)
    VA = V_E + 68
    for i in range(2):
        A(f"""
        v_add_u32 v{V_TMP+1}, {32*i}, v{V_TMP}
        v_mul_u32_u24 v{V_TMP+2}, s{S_T1}, v{V_TMP+1}
        v_lshrrev_b32 v{V_TMP+2}, 16, v{V_TMP+2}
        v_mul_u32_u24 v{V_TMP+3}, 20, v{V_TMP+2}
        v_sub_u32 v{V_TMP+3}, v{V_TMP+1}, v{V_TMP+3}
        v_mul_u32_u24 v{VA+i}, {64*VTS}, v{V_TMP+2}
        v_mul_u32_u24 v{V_TMP+4}, 22, v{V_H}
        v_add_u32 v{V_TMP+4}, v{V_TMP+4}, v{V_TMP+3}
        v_lshlrev_b32 v{V_TMP+4}, 4, v{V_TMP+4}
        v_add_u32 v{VA+i}, v{VA+i}, v{V_TMP+4}
        """)
    A(f"""
    s_lshl_b32 s{S_T0}, s{S_TB}, 2
    s_lshl_b32 s{S_T1}, s{S_WT}, 1
    s_add_u32 s{S_T0}, s{S_T0}, s{S_T1}
    s_mul_i32 s{S_T0}, s{S_T0}, {VTS}
    s_lshl_b32 s{S_T1}, s{S_WT}, 8
    s_add_u32 s{S_T1}, s{S_T1}, {SCR+512}
    v_lshlrev_b32 v{V_TMP}, 4, v{V_H}
    v_add_u32 v{V_TMP}, s{S_T1}, v{V_TMP}
    """)
    for ip in range(2):
        for g in range(4):
            A(f"ds_read_b128 {v(V_E+32*ip+4*g,4)}, v{V_TMP} offset:{128*ip + 32*g}")
            A(f"ds_read_b128 {v(V_E+32*ip+16+4*g,4)}, v{V_TMP} offset:{512 + 128*ip + 32*g}")
    A("s_waitcnt lgkmcnt(0)")
    A(f"""
    v_sub_f32 v{V_E+64}, 0, v{V_E+64}
    v_sub_f32 v{V_E+66}, 0, v{V_E+66}
    v_mov_b32 v{V_E+65}, v{V_E+64}
    v_mov_b32 v{V_E+67}, v{V_E+66}
    """)
    VP = V_E + 72
    for ip in range(2):
        for i in range(2):
            c = acc(i, ip)
            for p in range(8):
                A(f"v_pk_mul_f32 {v(c+2*p,2)}, {v(c+2*p,2)}, {v(V_E+32*ip+2*p,2)}")
            for p in range(8):
                A(f"v_pk_fma_f32 {v(c+2*p,2)}, {v(V_E+32*ip+16+2*p,2)}, {v(V_E+64+2*i,2)}, {v(c+2*p,2)}")
            pk = VP + 8*i
            for p in range(8):
                A(f"v_cvt_pk_bf16_f32 v{pk+p}, v{c+2*p}, v{c+2*p+1}")
            A(f"buffer_store_dwordx4 {v(pk,4)}, v{VA+i}, s[{S_OUT}:{S_OUT+3}], s{S_T0} offen offset:{VTS*ip}")
            A(f"buffer_store_dwordx4 {v(pk+4,4)}, v{VA+i}, s[{S_OUT}:{S_OUT+3}], s{S_T0} offen offset:{VTS*ip+704}")
    A.label("L_w2_fin")
    stamp(A, 4)
    if asmlib.STAMP: A("s_waitcnt vmcnt(0)")
    stamp(A, 5); stamp(A, 7, True)
    stamp_flush(A, 13, 1)
    A("s_endpgm")
    A(".p2align 6")
    A.label(LOADER)
    A(f"""
    s_sub_u32 s{S_WAVE}, s{S_WAVE}, 4
    s_mov_b32 s{S_OOB}, 0x7f000000
    s_lshl_b32 s{S_T0}, s{S_TB}, 2
    s_add_u32 s{S_T0}, s{S_T0}, s{S_WAVE}
    s_mul_i32 s{S_XOFF}, s{S_T0}, 40960
    v_lshrrev_b32 v{V_TMP}, 4, v{V_LANE}
    v_lshlrev_b32 v{V_WD}, 6, v{V_TMP}
    v_and_b32 v{V_TMP+1}, 3, v{V_LANE}
    v_lshlrev_b32 v{V_TMP+1}, 4, v{V_TMP+1}
    v_add_u32 v{V_WD}, v{V_WD}, v{V_TMP+1}
    v_bfe_u32 v{V_TMP+1}, v{V_LANE}, 2, 2
    v_mul_lo_u32 v{V_TMP+1}, v{V_TMP+1}, s{S_LDW}
    v_add_u32 v{V_WD}, v{V_WD}, v{V_TMP+1}
    s_cmp_eq_u32 s{S_MODE}, 3
    s_cselect_b32 s{S_T0}, s{S_CB}, 0
    s_cmp_eq_u32 s{S_T0}, 13
    s_cselect_b32 s{S_T0}, s{S_OOB}, 0
    v_cmp_le_u32 vcc, 2, v{V_TMP}
    v_mov_b32 v{V_TMP+1}, s{S_T0}
    s_lshl_b32 s{S_T0}, s{S_LDW}, 2
    s_sub_u32 s{S_T0}, s{S_T0}, 1024
    v_cndmask_b32 v{V_TMP+1}, 0, v{V_TMP+1}, vcc
    v_add_u32 v{V_WD}, v{V_WD}, v{V_TMP+1}
    v_add_u32 v{V_WD+1}, s{S_T0}, v{V_WD}
    v_add_u32 v{V_WD+2}, s{S_T0}, v{V_WD+1}
    v_add_u32 v{V_WD+3}, s{S_T0}, v{V_WD+2}
    s_lshl_b32 s{S_WADV}, s{S_LDW}, 6
    s_lshl_b32 s{S_T0}, s{S_LDW}, 4
    s_mul_i32 s{S_T0}, s{S_T0}, s{S_WAVE}
    s_lshl_b32 s{S_WOFF}, s{S_N0}, 1
    s_add_u32 s{S_WOFF}, s{S_WOFF}, s{S_T0}
    s_lshl_b32 s{S_M0}, s{S_WAVE}, 12
    s_mov_b32 s{S_FREE}, 0
    """)
    if ROT:
        A(f"""
        s_lshr_b32 s{S_T0}, s2, 5
        s_lshr_b32 s{S_T1}, s2, 3
        s_and_b32 s{S_T1}, s{S_T1}, 3
        s_mul_i32 s{S_T1}, s{S_T1}, 3
        s_add_u32 s{S_SIG}, s{S_T0}, s{S_T1}
        s_cmp_ge_u32 s{S_SIG}, {NST}
        s_cselect_b32 s{S_T0}, {NST}, 0
        s_sub_u32 s{S_SIG}, s{S_SIG}, s{S_T0}
        s_lshl_b32 s{S_T0}, s{S_SIG}, 12
        s_add_u32 s{S_XOFF}, s{S_XOFF}, s{S_T0}
        s_mul_i32 s{S_T0}, s{S_SIG}, s{S_WADV}
        s_add_u32 s{S_WOFF}, s{S_WOFF}, s{S_T0}
        s_mul_i32 s{S_WWR}, s{S_WADV}, {NST}
        """)
    A("s_waitcnt lgkmcnt(0)")
    srd_off(A, S_X, 4, S_XB, XSZ)
    A(f"""
    s_mov_b32 s{S_W}, s6
    s_mov_b32 s{S_W+1}, s7
    s_mov_b32 s{S_W+2}, s{S_WSZ}
    s_mov_b32 s{S_W+3}, 0x20000
    """)
    emit_loader(A, loader_schedule(NST, 4, burst=2, first=2), issue_stage, 8, S_CNT, "w2ld")
    if WPF:
        A(f"s_cmp_eq_u32 s{S_MODE}, 3")
        A(f"s_cbranch_scc0 {END}")
        A(f"""
        s_add_u32 s{S_X}, s4, {hex(W2P)}
        s_addc_u32 s{S_X+1}, s5, 0
        s_mov_b32 s{S_X+2}, {W2PSZ}
        s_bfe_u32 s{S_T0}, s2, 0x10002
        s_mul_i32 s{S_T0}, s{S_T0}, {W2PSZ//2}
        s_lshr_b32 s{S_T1}, s2, 3
        s_lshl_b32 s{S_T1}, s{S_T1}, 2
        s_add_u32 s{S_T1}, s{S_T1}, s{S_WAVE}
        s_mul_i32 s{S_T1}, s{S_T1}, 10240
        s_add_u32 s{S_T0}, s{S_T0}, s{S_T1}
        """)
        l2_prefetch(A, S_X, S_T0, V_XD, 16, 10, 1024)
    A.label(END)
    A("s_endpgm")
    return A, descs, names
```

```python
from asmlib import *
from layout import *
from k_prep import srd, descriptor, entry
import struct, asmlib
def f2u(x): return struct.unpack("<I", struct.pack("<f", x))[0]

S_Q=8; S_K=12; S_V=16; S_O=20
S_HEAD=24; S_QB=25; S_WAVE=26; S_QG=27; S_KH=28; S_KV=29; S_CNT=31
S_T0=32; S_T1=33; S_T2=34; S_FLAG=35; S_K0=36; S_TT0=37
S_LO=42; S_CC=44
V_LANE=1; V_H=2; V_T=3
V_AK0=4; V_AK1=5; V_AV=6; V_AO=7
V_TMP=10
V_Q=16; V_O=48; V_S=112; V_P=144; V_K=152; V_V=168; V_M=184; V_X=188; V_J=200
LDS_BYTES = 32768
TS = KTS
OPT = dict(prefetch=True)

def Q0(q): return V_Q + 8*q
def Q1(q): return V_Q + 8*q + 4
def O(q): return V_O + 16*q
def S(b): return V_S + 16*b
def K0(p): return V_K + 8*p
def K1(p): return V_K + 8*p + 4
def V0(p): return V_V + 8*p
def V1(p): return V_V + 8*p + 4
def mf(d, a_, b_, c):
    cs = v(c,16) if c is not None else "0"
    return f"v_mfma_f32_32x32x16_bf16 {v(d,16)}, {v(a_,4)}, {v(b_,4)}, {cs}"
def off(x): return f" offset:{x}" if x else ""
def load_k(A, p, tile_off):
    A(f"buffer_load_dwordx4 {v(K0(p),4)}, v{V_AK0}, s[{S_K}:{S_K+3}], s{S_KV} offen{off(TS*tile_off)}")
    A(f"buffer_load_dwordx2 {v(K1(p),2)}, v{V_AK1}, s[{S_K}:{S_K+3}], s{S_KV} offen{off(TS*tile_off)}")
def load_v(A, p, tile_off):
    A(f"buffer_load_dwordx4 {v(V0(p),4)}, v{V_AV}, s[{S_V}:{S_V+3}], s{S_KV} offen{off(TS*tile_off)}")
    A(f"buffer_load_dwordx4 {v(V1(p),4)}, v{V_AV}, s[{S_V}:{S_V+3}], s{S_KV} offen{off(TS*tile_off+704)}")

def period(A, p, q):
    b = q & 1
    s_ = S(b); sn = S(b ^ 1)
    qn = (q + 1) & 3; kp = p if q < 3 else p ^ 1
    qp = (q - 1) & 3; vp = p if q > 0 else p ^ 1
    e = lambda r: A(f"v_exp_f32 v{s_+r}, v{s_+r}")
    c = lambda k: A(f"v_cvt_pk_bf16_f32 v{V_P+k}, v{s_+2*k}, v{s_+2*k+1}")
    if q == 3: A("s_waitcnt vmcnt(2)")
    A(mf(sn, K0(kp), Q0(qn), None))
    e(0); e(1); e(2); e(3); c(0)
    A(mf(sn, K1(kp), Q1(qn), sn))
    e(4); e(5); c(1)
    if q == 3: load_k(A, p, p + 1)
    if q == 1: load_v(A, p ^ 1, p)
    e(6); e(7); c(2)
    A(mf(O(qp), V1(vp), V_P+4, O(qp)))
    e(8); e(9); c(3); e(10); e(11); c(4)
    if q == 0: A("s_waitcnt vmcnt(2)")
    A(mf(O(q), V0(p), V_P, O(q)))
    e(12); e(13); c(5); e(14); e(15); c(6); c(7)

def rowmax(A, dst, src, tmp):
    A(f"v_max3_f32 v{dst}, v{src}, v{src+1}, v{src+2}")
    for r in range(3, 15, 2):
        A(f"v_max3_f32 v{dst}, v{dst}, v{src+r}, v{src+r+1}")
    A(f"v_max_f32 v{dst}, v{dst}, v{src+15}")
    A(f"v_mov_b32 v{tmp}, v{dst}")
    A(f"v_permlane32_swap_b32 v{dst}, v{tmp}")
    A(f"v_max_f32 v{dst}, v{dst}, v{tmp}")

def set_shift(A):
    A(f"s_mov_b64 exec, s[{S_LO}:{S_LO+1}]")
    for q in range(4):
        m = V_M + q; t = V_X + 2*(q & 1)*0
        A(f"""
        v_xor_b32 v{V_TMP}, 0x80000000, v{m}
        v_and_b32 v{V_TMP+1}, 0xffff0000, v{V_TMP}
        v_sub_f32 v{V_TMP}, v{V_TMP}, v{V_TMP+1}
        v_and_b32 v{V_TMP+2}, 0xffff0000, v{V_TMP}
        v_sub_f32 v{V_TMP}, v{V_TMP}, v{V_TMP+2}
        v_lshrrev_b32 v{V_TMP+1}, 16, v{V_TMP+1}
        v_or_b32 v{Q1(q)+2}, v{V_TMP+1}, v{V_TMP+2}
        v_lshrrev_b32 v{Q1(q)+3}, 16, v{V_TMP}
        """)
    A("s_mov_b64 exec, -1")

def zero_state(A):
    for r in range(64): A(f"v_mov_b32 v{V_O+r}, 0")
    for r in range(8): A(f"v_mov_b32 v{V_P+r}, 0")
    for r in range(4): A(f"v_mov_b32 v{V1(1)+r}, 0")

def gen_attn3():
    A = Asm(); descs = ""; names = []
    END = "L_a3_end"
    name = "attn_kernel"
    names.append(name)
    entry(A, name)
    descs += descriptor(name, 224, 64)
    stamp(A, 0); stamp(A, 6, True)
    A(f"""
    s_load_dwordx2 s[4:5], s[0:1], {KA_WS}
    s_cmp_ge_u32 s2, 256
    s_cbranch_scc1 {END}
    v_lshrrev_b32 v{V_TMP}, 6, v0
    v_and_b32 v{V_LANE}, 63, v0
    v_readfirstlane_b32 s{S_WAVE}, v{V_TMP}
    s_and_b32 s{S_HEAD}, s2, 31
    s_lshr_b32 s{S_QB}, s2, 5
    v_lshrrev_b32 v{V_H}, 5, v{V_LANE}
    v_and_b32 v{V_T}, 31, v{V_LANE}
    v_lshlrev_b32 v{V_AK0}, 4, v{V_LANE}
    v_lshlrev_b32 v{V_AK1}, 3, v{V_T}
    v_add_u32 v{V_AK1}, 1024, v{V_AK1}
    v_min_u32 v{V_TMP+1}, 20, v{V_T}
    v_cmp_lt_u32 vcc, 20, v{V_T}
    v_mul_u32_u24 v{V_AV}, 22, v{V_H}
    v_addc_co_u32 v{V_TMP+1}, vcc, 0, v{V_TMP+1}, vcc
    s_and_b32 s{S_QG}, s{S_WAVE}, 1
    s_lshr_b32 s{S_KH}, s{S_WAVE}, 1
    v_add_u32 v{V_AV}, v{V_AV}, v{V_TMP+1}
    v_lshlrev_b32 v{V_AV}, 4, v{V_AV}
    s_lshl_b32 s{S_T0}, s{S_HEAD}, 6
    s_lshl_b32 s{S_T1}, s{S_KH}, 5
    s_add_u32 s{S_T1}, s{S_T1}, s{S_T0}
    s_mul_i32 s{S_K0}, s{S_T1}, {TS}
    s_lshl_b32 s{S_TT0}, s{S_QB}, 3
    s_lshl_b32 s{S_T2}, s{S_QG}, 2
    s_add_u32 s{S_TT0}, s{S_TT0}, s{S_T2}
    s_add_u32 s{S_T0}, s{S_T0}, s{S_TT0}
    s_mul_i32 s{S_T0}, s{S_T0}, {QTS}
    s_mov_b32 s{S_KV}, s{S_K0}
    s_mov_b32 s{S_LO}, -1
    s_mov_b32 s{S_LO+1}, 0
    """)
    for q in range(4):
        for r in range(4): A(f"v_mov_b32 v{Q1(q)+r}, 0")
    A("s_waitcnt lgkmcnt(0)")
    srd(A, S_K, 4, KF, KVSZ)
    srd(A, S_Q, 4, QF, XSZ)
    load_k(A, 0, 0)
    for q in range(4):
        A(f"buffer_load_dwordx4 {v(Q0(q),4)}, v{V_AK0}, s[{S_Q}:{S_Q+3}], s{S_T0} offen{off(QTS*q)}")
    A(f"s_mov_b64 exec, s[{S_LO}:{S_LO+1}]")
    for q in range(4):
        A(f"buffer_load_dwordx2 {v(Q1(q),2)}, v{V_AK1}, s[{S_Q}:{S_Q+3}], s{S_T0} offen{off(QTS*q)}")
    A("s_mov_b64 exec, -1")
    srd(A, S_V, 4, VF, KVSZ)
    load_v(A, 0, 0)
    load_k(A, 1, 1)
    npf = 0
    if OPT['prefetch']:
        A(f"""
        s_lshl_b32 s{S_T0}, s{S_HEAD}, 6
        s_mul_i32 s{S_T0}, s{S_T0}, {TS}
        s_mul_i32 s{S_T1}, s{S_QB}, {8*TS}
        s_add_u32 s{S_T0}, s{S_T0}, s{S_T1}
        v_lshlrev_b32 v{V_TMP}, 4, v0
        s_add_u32 s{S_T1}, s{S_T0}, 4096
        s_add_u32 s{S_T2}, s{S_T0}, 8192
        """)
        for j,so in enumerate((S_T0, S_T1, S_T2)):
            A(f"buffer_load_dwordx4 {v(V_J+8*j,4)}, v{V_TMP}, s[{S_K}:{S_K+3}], s{so} offen")
            A(f"buffer_load_dwordx4 {v(V_J+8*j+4,4)}, v{V_TMP}, s[{S_V}:{S_V+3}], s{so} offen")
        npf = 6
    srd(A, S_O, 4, OF, XSZ)
    A(f"s_mov_b32 s{S_FLAG}, 0")
    A(f"s_add_u32 s{S_KV}, s{S_K0}, {TS}")
    for p in range(2):
        A(f"v_mov_b32 v{K1(p)+2}, 0x3f803f80")
        A(f"v_mov_b32 v{K1(p)+3}, 0x00003f80")
    for r in range(8): A(f"v_mov_b32 v{V_P+r}, 0")
    for r in range(4): A(f"v_mov_b32 v{V1(1)+r}, 0")
    A(f"s_waitcnt vmcnt({4+npf})")
    stamp(A, 1)
    for q in range(4):
        A(mf(O(q), K0(0), Q0(q), None))
        A(mf(O(q), K1(0), Q1(q), O(q)))
    for q in range(4):
        rowmax(A, V_M+q, O(q), V_X+q)
    set_shift(A)
    for r in range(64): A(f"v_mov_b32 v{V_O+r}, 0")
    SETUP = "L_a3_setup"; LOOP = "L_a3_loop"; TRUEMAX = "L_a3_truemax"; COMBINE = "L_a3_combine"
    A.label(SETUP)
    A(mf(S(0), K0(0), Q0(0), None))
    A(mf(S(0), K1(0), Q1(0), S(0)))
    A(f"s_mov_b32 s{S_CNT}, 16")
    stamp(A, 2)
    A("s_nop 7")
    A(".p2align 6")
    A.label(LOOP)
    for p in range(2):
        for q in range(4):
            period(A, p, q)
    A(f"s_add_u32 s{S_KV}, s{S_KV}, {2*TS}")
    A(f"s_sub_u32 s{S_CNT}, s{S_CNT}, 1")
    A(f"s_cmp_lg_u32 s{S_CNT}, 0")
    A(f"s_cbranch_scc1 {LOOP}")
    stamp(A, 3)
    A(mf(O(3), V1(1), V_P+4, O(3)))
    A("s_waitcnt vmcnt(0)")
    for q in range(4):
        A(f"v_mov_b32 v{O(q)+12}, v{O(q)+8}")
        A(f"v_mov_b32 v{O(q)+13}, v{O(q)+8}")
    for q in range(4):
        A(f"v_permlane32_swap_b32 v{O(q)+13}, v{O(q)+12}")
    A(f"s_cmp_lg_u32 s{S_FLAG}, 0")
    A(f"s_cbranch_scc1 {COMBINE}")
    A(f"v_mov_b32 v{V_TMP}, 0")
    for q in range(4):
        for r in range(0, 12, 2):
            A(f"v_max3_f32 v{V_TMP}, v{V_TMP}, |v{O(q)+r}|, |v{O(q)+r+1}|")
    A(f"""
    v_add_f32 v{V_TMP+2}, v{O(0)+12}, v{O(1)+12}
    v_add_f32 v{V_TMP+3}, v{O(2)+12}, v{O(3)+12}
    v_add_f32 v{V_TMP+2}, v{V_TMP+2}, v{V_TMP+3}
    s_mov_b32 s{S_T0}, {hex(f2u(2.0**40))}
    s_mov_b32 s{S_T1}, {hex(f2u(2.0**120))}
    v_cmp_gt_f32 vcc, s{S_T0}, v{V_TMP+2}
    v_cmp_gt_f32 s[{S_CC}:{S_CC+1}], s{S_T1}, v{V_TMP}
    s_and_b64 vcc, vcc, s[{S_CC}:{S_CC+1}]
    s_cmp_eq_u64 vcc, exec
    s_cbranch_scc1 {COMBINE}
    """)
    A.label(TRUEMAX)
    A(f"s_mov_b32 s{S_FLAG}, 1")
    A(f"s_mov_b64 exec, s[{S_LO}:{S_LO+1}]")
    for q in range(4):
        A(f"v_mov_b32 v{Q1(q)+2}, 0")
        A(f"v_mov_b32 v{Q1(q)+3}, 0")
    A("s_mov_b64 exec, -1")
    for q in range(4): A(f"v_mov_b32 v{V_X+4+q}, 0xff800000")
    A(f"s_mov_b32 s{S_KV}, s{S_K0}")
    A(f"s_mov_b32 s{S_CNT}, 32")
    TL = "L_a3_tm_loop"
    A.label(TL)
    load_k(A, 0, 0)
    A(f"s_add_u32 s{S_KV}, s{S_KV}, {TS}")
    A("s_waitcnt vmcnt(0)")
    for q in range(4):
        A(mf(O(q), K0(0), Q0(q), None))
        A(mf(O(q), K1(0), Q1(q), O(q)))
    for q in range(4):
        rowmax(A, V_M+q, O(q), V_X+q)
        A(f"v_max_f32 v{V_X+4+q}, v{V_X+4+q}, v{V_M+q}")
    A(f"s_sub_u32 s{S_CNT}, s{S_CNT}, 1")
    A(f"s_cmp_lg_u32 s{S_CNT}, 0")
    A(f"s_cbranch_scc1 {TL}")
    for q in range(4): A(f"v_mov_b32 v{V_M+q}, v{V_X+4+q}")
    A(f"s_mov_b32 s{S_KV}, s{S_K0}")
    load_k(A, 0, 0); load_v(A, 0, 0); load_k(A, 1, 1)
    A(f"s_add_u32 s{S_KV}, s{S_K0}, {TS}")
    set_shift(A)
    zero_state(A)
    A("s_waitcnt vmcnt(4)")
    A(f"s_branch {SETUP}")
    A.label(COMBINE)
    stamp(A, 4)
    for q in range(4): A(f"v_mov_b32 v{O(q)+13}, v{V_M+q}")
    A(f"""
    s_lshl_b32 s{S_T0}, s{S_WAVE}, 13
    v_add_u32 v{V_TMP+1}, s{S_T0}, v{V_AK0}
    s_xor_b32 s{S_T1}, s{S_WAVE}, 2
    s_lshl_b32 s{S_T1}, s{S_T1}, 13
    v_add_u32 v{V_TMP+2}, s{S_T1}, v{V_AK0}
    s_cmp_eq_u32 s{S_KH}, 0
    """)
    C1 = "L_a3_c1"
    A(f"s_cbranch_scc0 {C1}")
    for kh in range(2):
        if kh == 1: A.label(C1)
        send = (2, 3) if kh == 0 else (0, 1)
        keep = (0, 1) if kh == 0 else (2, 3)
        for j, q in enumerate(send):
            for g in range(4):
                A(f"ds_write_b128 v{V_TMP+1}, {v(O(q)+4*g,4)} offset:{4096*j + 1024*g}")
        A(f"s_mul_i32 s{S_T0}, s{S_HEAD}, 5")
        A(f"v_add_u32 v{V_TMP+5}, s{S_T0}, v{V_H}")
        A(f"v_lshlrev_b32 v{V_X+8}, 4, v{V_T}")
        for a_ in range(3):
            A(f"""
            v_add_u32 v{V_TMP+3}, {2*a_}, v{V_TMP+5}
            v_lshrrev_b32 v{V_TMP+4}, 2, v{V_TMP+3}
            v_lshl_add_u32 v{V_AO+a_}, v{V_TMP+4}, 10, v{V_X+8}
            v_and_b32 v{V_TMP+4}, 1, v{V_TMP+3}
            v_lshl_add_u32 v{V_AO+a_}, v{V_TMP+4}, 9, v{V_AO+a_}
            v_bfe_u32 v{V_TMP+4}, v{V_TMP+3}, 1, 1
            v_lshl_add_u32 v{V_AO+a_}, v{V_TMP+4}, 3, v{V_AO+a_}
            """)
        A("s_waitcnt lgkmcnt(0)")
        A("s_barrier")
        for j in range(2):
            for g in range(4):
                A(f"ds_read_b128 {v(V_S+16*j+4*g,4)}, v{V_TMP+2} offset:{4096*j + 1024*g}")
        for j, q in enumerate(keep):
            o = O(q); r_ = V_S + 16*j
            A(f"s_waitcnt lgkmcnt({4 if j == 0 else 0})")
            A(f"""
            v_max_f32 v{V_X}, v{o+13}, v{r_+13}
            v_sub_f32 v{V_X+1}, v{o+13}, v{V_X}
            v_sub_f32 v{V_X+2}, v{r_+13}, v{V_X}
            v_exp_f32 v{V_X+1}, v{V_X+1}
            v_exp_f32 v{V_X+2}, v{V_X+2}
            s_nop 0
            v_mul_f32 v{V_X+3}, v{V_X+1}, v{o+12}
            v_fmac_f32 v{V_X+3}, v{V_X+2}, v{r_+12}
            v_rcp_f32 v{V_X+3}, v{V_X+3}
            s_nop 0
            v_mul_f32 v{V_X+4}, v{V_X+1}, v{V_X+3}
            v_mul_f32 v{V_X+6}, v{V_X+2}, v{V_X+3}
            v_mov_b32 v{V_X+5}, v{V_X+4}
            v_mov_b32 v{V_X+7}, v{V_X+6}
            """)
            for pr in range(6):
                A(f"v_pk_mul_f32 {v(o+2*pr,2)}, {v(o+2*pr,2)}, {v(V_X+4,2)}")
            for pr in range(6):
                A(f"v_pk_fma_f32 {v(o+2*pr,2)}, {v(r_+2*pr,2)}, {v(V_X+6,2)}, {v(o+2*pr,2)}")
            pk = V_P if j == 0 else V_K
            for pr in range(6):
                A(f"v_cvt_pk_bf16_f32 v{pk+pr}, v{o+2*pr}, v{o+2*pr+1}")
            A(f"""
            s_add_u32 s{S_T1}, s{S_TT0}, {q}
            s_mul_i32 s{S_T1}, s{S_T1}, 40960
            buffer_store_dwordx2 {v(pk,2)}, v{V_AO}, s[{S_O}:{S_O+3}], s{S_T1} offen
            buffer_store_dwordx2 {v(pk+2,2)}, v{V_AO+1}, s[{S_O}:{S_O+3}], s{S_T1} offen
            s_mov_b64 exec, s[{S_LO}:{S_LO+1}]
            buffer_store_dwordx2 {v(pk+4,2)}, v{V_AO+2}, s[{S_O}:{S_O+3}], s{S_T1} offen
            s_mov_b64 exec, -1
            """)
        stamp(A, 5); stamp(A, 7, True)
        stamp_flush(A, 8, 2)
        A(f"s_branch {END}")
    A.label(END)
    A("s_endpgm")
    return A, descs, names
```

```python
from asmlib import *
from layout import *

def srd(A, d, base, off, size):
    if off:
        A(f"s_add_u32 s{d}, s{base}, {hex(off)}")
        A(f"s_addc_u32 s{d+1}, s{base+1}, 0")
    else:
        A(f"s_mov_b32 s{d}, s{base}")
        A(f"s_mov_b32 s{d+1}, s{base+1}")
    A(f"s_mov_b32 s{d+2}, {hex(size)}")
    A(f"s_mov_b32 s{d+3}, 0x20000")

def descriptor(name, vgpr, sgpr, accum=None):
    import asmlib
    if asmlib.STAMP: vgpr = 256; sgpr = 100; accum = 256
    if accum is None: accum = (vgpr + 3) // 4 * 4
    return f""".section .rodata,"a"
.p2align 6
.amdhsa_kernel {name}
  .amdhsa_next_free_vgpr {vgpr}
  .amdhsa_next_free_sgpr {sgpr}
  .amdhsa_accum_offset {accum}
  .amdhsa_group_segment_fixed_size 0
  .amdhsa_kernarg_size 72
  .amdhsa_user_sgpr_count 2
  .amdhsa_user_sgpr_kernarg_segment_ptr 1
  .amdhsa_system_sgpr_workgroup_id_x 1
  .amdhsa_float_denorm_mode_32 3
.end_amdhsa_kernel
.text
"""

def entry(A, name):
    A(f".globl {name}")
    A(".p2align 8")
    A(f".type {name},@function")
    A.label(name)

def halfsum(A, x, tmp):
    A(f"v_mov_b32 v{tmp}, v{x}")
    A(f"v_permlane32_swap_b32 v{x}, v{tmp}")
    A(f"v_add_f32 v{x}, v{x}, v{tmp}")

CODE_PF = True
TLB_PF = False
def code_prefetch(A, sreg, lo_label, hi_label, part_sreg, vaddr, vdst, nload=1, tag='pf'):
    L = A.newlabel(tag)
    A(f"s_getpc_b64 s[{sreg}:{sreg+1}]")
    A.label(L)
    A(f"s_add_u32 s{sreg}, s{sreg}, {lo_label}-{L}")
    A(f"s_addc_u32 s{sreg+1}, s{sreg+1}, 0" )
    A(f"s_mov_b32 s{sreg+2}, {hi_label}-{lo_label}")
    A(f"s_mov_b32 s{sreg+3}, 0x20000")

def gen_prep(name="prep_kernel"):
    A = Asm()
    entry(A, name)
    END = f"L_{name}_end"
    A(f"""
    s_load_dwordx4 s[4:7], s[0:1], {KA_X}
    s_load_dwordx2 s[8:9], s[0:1], {KA_WO}
    s_load_dwordx4 s[12:15], s[0:1], {KA_W1}
    s_load_dwordx2 s[10:11], s[0:1], {KA_WS}
    s_cmp_ge_u32 s2, 256
    s_cbranch_scc1 {END}
    v_lshrrev_b32 v1, 6, v0
    v_and_b32 v2, 63, v0
    v_readfirstlane_b32 s16, v1
    v_lshrrev_b32 v3, 5, v2
    v_and_b32 v4, 31, v2
    s_lshr_b32 s17, s2, 2
    s_and_b32 s18, s2, 3
    """)
    A(f"""
    s_lshl_b32 s19, s17, 5
    v_add_u32 v5, s19, v4
    v_mul_u32_u24 v5, 1280, v5
    v_lshlrev_b32 v6, 4, v3
    v_add_u32 v5, v5, v6
    s_mul_i32 s19, s18, 320
    s_lshl_b32 s20, s16, 5
    s_add_u32 s19, s19, s20
    v_add_u32 v5, s19, v5
    s_mov_b32 s63, 0x7f000000
    s_cmp_lt_u32 s16, 2
    s_cselect_b32 s21, 256, s63
    s_waitcnt lgkmcnt(0)
    """)
    srd(A, 24, 4, 0, XSZ)
    srd(A, 28, 10, XF[0], XSZ)
    srd(A, 32, 10, ST[0], STSZ)
    srd(A, 36, 8, 0, 640*1280)
    srd(A, 40, 14, 0, F*1280)
    srd(A, 84, 10, WOP, WOPSZ)
    srd(A, 88, 10, W2P, W2PSZ)
    A(f"""
    buffer_load_dwordx4 v[8:11], v5, s[24:27], 0 offen
    buffer_load_dwordx4 v[12:15], v5, s[24:27], 0 offen offset:128
    buffer_load_dwordx4 v[16:19], v5, s[24:27], s21 offen
    """)
    NOCS = f"L_{name}_nocs"; CSW1 = f"L_{name}_csw1"; CSGO = f"L_{name}_csgo"
    A(f"""
    s_cmp_ge_u32 s2, 228
    s_cselect_b32 s22, 1, 0
    s_cmp_ge_u32 s2, 120
    s_cbranch_scc1 {CSW1}
    """)
    srd(A, 44, 6, 0, 640*3840)
    srd(A, 48, 10, CSQ, CSQSZ)
    A(f"""
    s_mov_b32 s52, 3840
    s_mov_b32 s53, 7680
    s_mov_b32 s54, s2
    s_branch {CSGO}
    """)
    A.label(CSW1)
    srd(A, 44, 12, 0, 640*3456)
    srd(A, 48, 10, CS1, CS1SZ)
    A(f"""
    s_mov_b32 s52, 3456
    s_mov_b32 s53, 6912
    s_sub_u32 s54, s2, 120
    """)
    A.label(CSGO)
    A(f"""
    s_lshr_b32 s55, s54, 2
    s_and_b32 s56, s54, 3
    v_lshrrev_b32 v6, 3, v0
    s_mul_i32 s57, s56, 160
    v_add_u32 v6, s57, v6
    v_mul_lo_u32 v6, v6, s52
    v_and_b32 v7, 7, v0
    v_lshlrev_b32 v7, 4, v7
    v_add_u32 v6, v6, v7
    s_lshl_b32 s57, s55, 7
    v_add_u32 v6, s57, v6
    s_lshl_b32 s58, s52, 5
    s_cmp_eq_u32 s22, 1
    s_cselect_b32 s59, s63, 0
    """)
    for i in range(5):
        A(f"buffer_load_dwordx4 v[{20+4*i}:{23+4*i}], v6, s[44:47], s59 offen")
        if i < 4: A("s_add_u32 s59, s59, s58")
    A(f"""
    s_lshl_b32 s60, s2, 12
    v_lshlrev_b32 v7, 4, v0
    v_add_u32 v7, s60, v7
    s_mov_b32 s61, 0x100000
    s_mov_b32 s62, 0x200000
    buffer_load_dwordx4 v[40:43], v7, s[36:39], 0 offen
    buffer_load_dwordx4 v[44:47], v7, s[40:43], 0 offen
    buffer_load_dwordx4 v[48:51], v7, s[40:43], s61 offen
    buffer_load_dwordx4 v[52:55], v7, s[40:43], s62 offen
    """)
    def packaddr(dst, add, kq640):
        A(f"""
        v_lshrrev_b32 v72, 4, v7
        v_add_u32 v72, {add}, v72
        s_mov_b32 s64, 0xcccccccd
        v_mul_hi_u32 v73, v72, s64
        v_lshrrev_b32 v73, 6, v73
        v_mul_u32_u24 v74, 80, v73
        v_sub_u32 v74, v72, v74
        v_mul_u32_u24 v75, 6554, v74
        v_lshrrev_b32 v75, 16, v75
        v_mul_u32_u24 v76, 10, v75
        v_sub_u32 v76, v74, v76
        s_mov_b32 s64, {kq640}
        v_mul_lo_u32 v{dst}, v75, s64
        v_lshrrev_b32 v77, 2, v73
        v_mul_u32_u24 v77, 640, v77
        v_add_u32 v{dst}, v{dst}, v77
        v_and_b32 v73, 3, v73
        v_lshrrev_b32 v77, 2, v76
        v_lshlrev_b32 v77, 8, v77
        v_lshlrev_b32 v78, 6, v73
        v_add_u32 v77, v77, v78
        v_and_b32 v78, 3, v76
        v_lshlrev_b32 v78, 4, v78
        v_add_u32 v77, v77, v78
        v_lshlrev_b32 v78, 5, v73
        v_and_b32 v79, 1, v76
        v_lshlrev_b32 v79, 4, v79
        v_add_u32 v78, v78, v79
        v_add_u32 v78, 512, v78
        v_cmp_gt_u32 vcc, 8, v76
        v_cndmask_b32 v77, v78, v77, vcc
        v_add_u32 v{dst}, v{dst}, v77
        v_cmp_gt_u32 vcc, {kq640*8//16}, v72
        v_mov_b32 v78, s63
        v_cndmask_b32 v{dst}, v78, v{dst}, vcc
        """)
    packaddr(80, 0, 160*640)
    packaddr(81, 0, 432*640)
    packaddr(82, 65536, 432*640)
    packaddr(83, 131072, 432*640)
    if CODE_PF:
        code_prefetch(A, 92, "L_code_lo", "L_code_hi", None, None, None)
        A("""
        s_lshr_b32 s65, s2, 3
        s_lshl_b32 s65, s65, 12
        v_lshlrev_b32 v84, 4, v0
        buffer_load_dwordx4 v[88:91], v84, s[92:95], s65 offen
        """)
    if TLB_PF:
        A(f"""
        s_load_dwordx2 s[96:97], s[0:1], {KA_OUT}
        s_mov_b32 s68, s10
        s_mov_b32 s69, s11
        s_mov_b32 s70, 0x2000000
        s_mov_b32 s71, 0x20000
        s_lshr_b32 s65, s2, 3
        s_lshl_b32 s65, s65, 20
        v_and_b32 v85, 15, v0
        v_lshlrev_b32 v85, 16, v85
        v_cmp_gt_u32 vcc, 16, v0
        v_mov_b32 v86, s63
        v_cndmask_b32 v85, v86, v85, vcc
        buffer_load_dword v92, v85, s[68:71], s65 offen
        s_waitcnt lgkmcnt(0)
        s_mov_b32 s72, s96
        s_mov_b32 s73, s97
        s_mov_b32 s74, {XSZ}
        s_mov_b32 s75, 0x20000
        buffer_load_dword v93, v85, s[72:75], s65 offen
        """)
    srd(A, 76, 10, VF, KVSZ)
    A(f"""
    v_and_b32 v94, 63, v0
    v_lshrrev_b32 v95, 1, v94
    s_lshl_b32 s65, s2, 5
    v_add_u32 v95, s65, v95
    v_mul_u32_u24 v95, 352, v95
    v_and_b32 v94, 1, v94
    v_lshlrev_b32 v96, 4, v94
    v_add_u32 v95, v95, v96
    v_add_u32 v95, 320, v95
    v_mov_b32 v96, 0x3f803f80
    v_cmp_eq_u32 vcc, 0, v94
    v_cndmask_b32 v96, 0, v96, vcc
    v_mov_b32 v97, v96
    v_mov_b32 v98, v96
    v_mov_b32 v99, v96
    v_cmp_gt_u32 vcc, 64, v0
    v_mov_b32 v94, s63
    v_cndmask_b32 v95, v94, v95, vcc
    buffer_store_dwordx4 v[96:99], v95, s[76:79], 0 offen
    """)
    A(f"s_waitcnt vmcnt({10 + (1 if CODE_PF else 0) + (2 if TLB_PF else 0)})")
    A("v_mov_b32 v56, 0\nv_mov_b32 v57, 0")
    for r in range(8, 20):
        A(f"""
        v_lshlrev_b32 v58, 16, v{r}
        v_and_b32 v59, 0xffff0000, v{r}
        v_add_f32 v56, v56, v58
        v_fmac_f32 v57, v58, v58
        v_add_f32 v56, v56, v59
        v_fmac_f32 v57, v59, v59
        """)
    for b in (8, 12, 16):
        A(f"v_permlane32_swap_b32 v{b}, v{b+2}")
        A(f"v_permlane32_swap_b32 v{b+1}, v{b+3}")
    A(f"""
    s_mul_i32 s19, s17, 40
    s_mul_i32 s20, s18, 10
    s_add_u32 s19, s19, s20
    s_add_u32 s19, s19, s16
    s_lshl_b32 s19, s19, 10
    v_lshlrev_b32 v60, 4, v2
    v_add_u32 v60, s19, v60
    s_cmp_lt_u32 s16, 2
    s_cselect_b32 s21, 8192, s63
    s_mov_b32 s23, 4096
    buffer_store_dwordx4 v[8:11], v60, s[28:31], 0 offen
    buffer_store_dwordx4 v[12:15], v60, s[28:31], s23 offen
    buffer_store_dwordx4 v[16:19], v60, s[28:31], s21 offen
    """)
    halfsum(A, 56, 58)
    halfsum(A, 57, 59)
    A(f"""
    s_lshl_b32 s19, s17, 12
    s_lshl_b32 s20, s18, 2
    s_add_u32 s20, s20, s16
    s_lshr_b32 s23, s20, 1
    s_lshl_b32 s23, s23, 9
    s_add_u32 s19, s19, s23
    s_and_b32 s20, s20, 1
    s_lshl_b32 s20, s20, 3
    s_add_u32 s19, s19, s20
    v_lshlrev_b32 v60, 4, v4
    v_add_u32 v60, s19, v60
    buffer_store_dwordx2 v[56:57], v60, s[32:35], 0 offen
    """)
    A("s_waitcnt vmcnt(4)")
    A("""
    buffer_store_dwordx4 v[40:43], v80, s[84:87], 0 offen
    buffer_store_dwordx4 v[44:47], v81, s[88:91], 0 offen
    buffer_store_dwordx4 v[48:51], v82, s[88:91], 0 offen
    buffer_store_dwordx4 v[52:55], v83, s[88:91], 0 offen
    """)
    for j in range(8): A(f"v_mov_b32 v{64+j}, 0")
    for i in range(5):
        for rr in range(4):
            r = 20 + 4*i + rr
            A(f"""
            v_lshlrev_b32 v58, 16, v{r}
            v_and_b32 v59, 0xffff0000, v{r}
            v_add_f32 v{64+2*rr}, v{64+2*rr}, v58
            v_add_f32 v{65+2*rr}, v{65+2*rr}, v59
            """)
    A(f"""
    v_lshlrev_b32 v58, 5, v0
    ds_write_b128 v58, v[64:67]
    ds_write_b128 v58, v[68:71] offset:16
    s_waitcnt lgkmcnt(0)
    s_barrier
    """)
    A(f"""
    v_lshlrev_b32 v58, 2, v2
    s_lshl_b32 s19, s16, 11
    v_add_u32 v58, s19, v58
    """)
    for k in range(8): A(f"ds_read_b32 v{64+k}, v58 offset:{256*k}")
    A("s_waitcnt lgkmcnt(0)")
    A("""
    v_add_f32 v64, v64, v65
    v_add_f32 v66, v66, v67
    v_add_f32 v68, v68, v69
    v_add_f32 v70, v70, v71
    v_add_f32 v64, v64, v66
    v_add_f32 v68, v68, v70
    v_add_f32 v64, v64, v68
    v_lshlrev_b32 v58, 2, v0
    s_barrier
    ds_write_b32 v58, v64
    s_waitcnt lgkmcnt(0)
    s_barrier
    v_lshlrev_b32 v58, 2, v2
    ds_read_b32 v64, v58
    ds_read_b32 v65, v58 offset:256
    ds_read_b32 v66, v58 offset:512
    ds_read_b32 v67, v58 offset:768
    s_waitcnt lgkmcnt(0)
    v_add_f32 v64, v64, v65
    v_add_f32 v66, v66, v67
    v_add_f32 v64, v64, v66
    """)
    A(f"""
    s_mul_i32 s19, s56, s53
    s_lshl_b32 s20, s55, 8
    s_add_u32 s19, s19, s20
    s_cmp_lg_u32 s16, 0
    s_cselect_b32 s19, s63, s19
    s_cmp_eq_u32 s22, 1
    s_cselect_b32 s19, s63, s19
    v_add_u32 v58, s19, v58
    buffer_store_dword v64, v58, s[48:51], 0 offen
    s_waitcnt vmcnt(0)
    """)
    A.label(END)
    A("s_endpgm")
    return A, descriptor(name, 104, 100), 8192
```

```python
T=2048; D=640; H=32; DH=20; F=1728
XSZ = T*D*2
XF = [0x000000, 0x280000, 0x500000, 0x780000]
STSZ = T*16*8
ST = [0xA00000, 0xA40000, 0xA80000, 0xAC0000]
QF = 0xB00000; KF = 0xD80000; VF = 0x1000000; OF = 0x1280000
HF = 0x1500000; HSZ = T*F*2
CSQ = 0x1BC0000; CSQSZ = 4*1920*4
CS1 = 0x1BC8000; CS1SZ = 4*1728*4
KA_X=0; KA_WQKV=8; KA_WO=16; KA_W1=32; KA_W2=40; KA_OUT=48; KA_DBG=56; KA_WS=64
SRD3 = 0x00020000
WOP = 0x1C00000; WOPSZ = 640*1280
W2P = 0x1D00000; W2PSZ = 1728*1280
QTS = 1280
KTS = 1408
VTS = 1408
KVSZ = 32*64*1408
KF = 0x2100000; VF = 0x2400000
```

```python
import sys; sys.path.insert(0,'gen')
from build import *
import k2_wide, k2_narrow, k3_attn
def make(path, attn=None):
    P,pd,pl=k_prep.gen_prep()
    A,d,wn=k2_wide.gen_wide2()
    T_,td,tn=k3_attn.gen_attn3(); AB=256; AL=k3_attn.LDS_BYTES
    N,nd,nn=k2_narrow.gen_narrow2()
    WL=k2_wide.LDS_BYTES; NL=k2_narrow.LDS_BYTES
    launches=[('prep_kernel',256,256,pl),
      ('qkv1_kernel',256,512,WL),('attn_kernel',256,AB,AL),('oproj1_kernel',256,512,NL),('ffa1_kernel',256,512,WL),('ffb1_kernel',256,512,NL),
      ('qkv2_kernel',256,512,WL),('attn_kernel',256,AB,AL),('oproj2_kernel',256,512,NL),('ffa2_kernel',256,512,WL),('ffb2_kernel',256,512,NL)]
    t,n=assemble([(P,pd),(A,d),(T_,td),(N,nd)],launches)
    open(path,'w').write(t); print('nops',n, len(t.splitlines()), len(t))
if __name__=="__main__":
    import asmlib
    make("cur.s", None)
    asmlib.STAMP=True
    make("stamp.s", None)
```

```python
T=2048; D=640; H=32; DH=20; F=1728
XSZ = T*D*2
XF = [0x0000000, 0x0280000, 0x0500000, 0x0780000]
STSZ = T*16*8
ST = [0x0A00000, 0x0A40000, 0x0A80000, 0x0AC0000]
LSTRIDE = 0x1400000
QP = 0x1000000
KP = 0x1280000
VF = 0x1500000
OF = 0x1800000
HF = 0x1A80000
PTS = 2560
VTS = 1408
VSZ = 32*64*VTS
HSZ = T*F*2
CSQ = 0x0B00000; CSQSZ = 4*1920*4
CS1 = 0x0B08000; CS1SZ = 4*1728*4
WOP = 0x0B40000; WOPSZ = 640*1280
W2P = 0x0C40000; W2PSZ = 1728*1280
FLAGS = 0x0E80000
FLAGSZ = 0x100000
NONCE = FLAGS + 0x88000
MB_QKV=0; MB_O=0x8000; MB_FA=0x10000; MB_FB=0x18000; MB_ATT=0x20000; MB_LAYER=0x40000
WS_USED = 0x1000000 + 2*LSTRIDE
assert HF + HSZ <= QP + LSTRIDE
KA_X=0; KA_WQKV=8; KA_WO=16; KA_W1=32; KA_W2=40; KA_OUT=48; KA_DBG=56; KA_WS=64
```

```python
from asmlib import *
from mlayout import *
import asmlib, struct
def f2u(x): return struct.unpack("<I", struct.pack("<f", x))[0]
QSCALE = (DH ** -0.5) * 1.4426950408889634
SC = " sc0 sc1"
OOB = 0x7f000000

S_WG=2; S_WAVE=3; S_WS=4; S_NONCE=6; S_L=7
S_FOFF=94; S_PCNT=95; S_FL=96; S_LW=100; S_OOB=101
V_LANE=1; V_H=2; V_T=3
V_RESP=232
W_RING=32768; W_SCR=4*W_RING
N_SLOT=18432; N_NSLOT=7; N_XCH=135168
A_CMB=131072
P_SCR=135168
LDS_BYTES=163840

def srd_const(A, d, off, size):
    A(f"s_add_u32 s{d}, s{S_WS}, {hex(off)}"); A(f"s_addc_u32 s{d+1}, s{S_WS+1}, 0")
    A(f"s_mov_b32 s{d+2}, {size}"); A(f"s_mov_b32 s{d+3}, 0x20000")
def srd_reg(A, d, soff, size):
    A(f"s_add_u32 s{d}, s{S_WS}, s{soff}"); A(f"s_addc_u32 s{d+1}, s{S_WS+1}, 0")
    A(f"s_mov_b32 s{d+2}, {size}"); A(f"s_mov_b32 s{d+3}, 0x20000")
def srd_ptr(A, d, p, size):
    A(f"s_mov_b32 s{d}, s{p}"); A(f"s_mov_b32 s{d+1}, s{p+1}")
    A(f"s_mov_b32 s{d+2}, {size}"); A(f"s_mov_b32 s{d+3}, 0x20000")
def halfsum(A, x, tmp):
    A(f"v_mov_b32 v{tmp}, v{x}"); A(f"v_permlane32_swap_b32 v{x}, v{tmp}"); A(f"v_add_f32 v{x}, v{x}, v{tmp}")
def off(x): return f" offset:{x}" if x else ""

def sched_wfirst(nst, nslot, pre, burst=2):
    out = []; nx = 0
    for j in range(-1, nst-1):
        ops = []; n = 0
        while nx < nst and (nx < pre or nx - nslot + 1 <= j) and (n < burst or nx <= j + 1):
            ops.append(('X' if nx < pre else 'S', nx)); nx += 1; n += 1
        out.append((ops, j + 1))
    return out
def emit_sched(A, sched, cx, cw, issue_x, issue_s, scnt, tag):
    q = []
    items = []
    for ops, tgt in sched:
        for kind, s_ in ops: q.append((s_, cx if kind == 'X' else cx + cw))
        idx = max(i for i, (st, c) in enumerate(q) if st == tgt)
        wait = sum(c for (st, c) in q[idx+1:])
        items.append((tuple(k for k, _ in ops), wait))
    i = 0; k = 0
    while i < len(items):
        j = i
        while j < len(items) and items[j] == items[i]: j += 1
        run = j - i; kinds, w = items[i]
        assert w <= 63
        def body():
            for kd in kinds: (issue_x if kd == 'X' else issue_s)(A)
            A(f"s_waitcnt vmcnt({w})"); A("s_barrier")
        if run >= 3:
            L = f"L_{tag}_{k}"; k += 1
            A(f"s_mov_b32 s{scnt}, {run}"); A.label(L); body()
            A(f"s_sub_u32 s{scnt}, s{scnt}, 1"); A(f"s_cmp_lg_u32 s{scnt}, 0"); A(f"s_cbranch_scc1 {L}")
        else:
            for _ in range(run): body()
        i = j

VP_OFF=10; VP_EXP=11; VP_OFF2=12; VP_EXP2=13; VP_D=14; VP_D2=15; VP_T=16; VP_MB=20
def notify(A):
    L = A.newlabel("fl")
    A(f"s_cmp_lg_u32 s{S_LW}, 0"); A(f"s_cbranch_scc1 {L}")
    A(f"v_mov_b32 v{VP_T}, s{S_NONCE}")
    A(f"buffer_store_dword v{VP_T}, v{VP_MB}, s[{S_FL}:{S_FL+3}], 0 offen sc0 sc1")
    A.label(L)
def mb_finish(A, idx, slot, nvalid_cmp, region, shift=7):
    A(f"v_lshlrev_b32 v{idx}, {shift}, v{idx}")
    A(f"v_lshl_add_u32 v{VP_MB}, v{slot}, 2, v{idx}")
    A(f"v_add_u32 v{VP_MB}, s{region}, v{VP_MB}")
    A(f"v_mov_b32 v{idx}, s{S_OOB}")
    A(f"v_cndmask_b32 v{VP_MB}, v{idx}, v{VP_MB}, vcc")
def region(A, dst, base, layer_add=0):
    A(f"s_add_u32 s{dst}, s{S_L}, {layer_add}") if layer_add else A(f"s_mov_b32 s{dst}, s{S_L}")
    A(f"s_mul_i32 s{dst}, s{dst}, {hex(MB_LAYER)}"); A(f"s_add_u32 s{dst}, s{dst}, {hex(base)}")
def poll(A, soff, two=False):
    L = A.newlabel("poll"); Dn = A.newlabel("polld")
    A(f"s_cmp_lg_u32 s{S_LW}, 0"); A(f"s_cbranch_scc1 {Dn}")
    A(f"s_mov_b32 s{S_PCNT}, 0x40000")
    A.label(L)
    A(f"buffer_load_dword v{VP_D}, v{VP_OFF}, s[{S_FL}:{S_FL+3}], s{soff} offen sc0 sc1")
    if two: A(f"buffer_load_dword v{VP_D2}, v{VP_OFF2}, s[{S_FL}:{S_FL+3}], s{soff} offen sc0 sc1")
    A("s_waitcnt vmcnt(0)")
    A(f"v_cmp_eq_u32 vcc, v{VP_D}, v{VP_EXP}")
    if two:
        A(f"v_cmp_eq_u32 s[92:93], v{VP_D2}, v{VP_EXP2}")
        A("s_and_b64 vcc, vcc, s[92:93]")
    A("s_cmp_eq_u64 vcc, exec")
    A(f"s_cbranch_scc1 {Dn}")
    A(f"s_sub_u32 s{S_PCNT}, s{S_PCNT}, 1"); A(f"s_cmp_lg_u32 s{S_PCNT}, 0"); A(f"s_cbranch_scc1 {L}")
    A.label(Dn)
def poll_slots(A, n_sreg_or_const):
    A(f"v_lshlrev_b32 v{VP_OFF}, 2, v{V_LANE}")
    A(f"v_cmp_gt_u32 vcc, {n_sreg_or_const}, v{V_LANE}")
    A(f"v_mov_b32 v{VP_T}, s{S_OOB}")
    A(f"v_mov_b32 v{VP_EXP}, s{S_NONCE}")
    A(f"v_cndmask_b32 v{VP_OFF}, v{VP_T}, v{VP_OFF}, vcc")
    A(f"v_cndmask_b32 v{VP_EXP}, 0, v{VP_EXP}, vcc")
def mb_from_prep(A, t):
    I=VP_T; S_=VP_T+1; X=VP_T+2
    A(f"""
    s_lshr_b32 s{t}, s{S_WG}, 4
    v_lshlrev_b32 v{I}, 4, v{V_LANE}
    v_add_u32 v{I}, s{t}, v{I}
    s_and_b32 s{t}, s{S_WG}, 15
    v_mov_b32 v{S_}, s{t}
    s_lshr_b32 s{t}, s{S_WG}, 3
    s_lshl_b32 s{t}, s{t}, 4
    s_sub_u32 s{t}, s{t}, 16
    v_add_u32 v{X}, s{t}, v{V_LANE}
    v_bfe_u32 v{X+1}, v{V_LANE}, 4, 2
    v_cmp_eq_u32 vcc, 1, v{X+1}
    s_and_b32 s{t}, s{S_WG}, 7
    s_add_u32 s{t}, s{t}, 16
    v_mov_b32 v{X+1}, s{t}
    v_cndmask_b32 v{I}, v{I}, v{X}, vcc
    v_cndmask_b32 v{S_}, v{S_}, v{X+1}, vcc
    s_cmp_lt_u32 s{S_WG}, 120
    s_cselect_b64 s[92:93], -1, 0
    s_and_b64 s[92:93], s[92:93], vcc
    v_cmp_gt_u32 vcc, 15, v{V_LANE}
    s_or_b64 vcc, vcc, s[92:93]
    s_mov_b32 s{t}, {MB_QKV}
    """)
    mb_finish(A, I, S_, None, t)
def mb_from_qkv(A, t0, t1, t2):
    I=VP_T; S_=VP_T+1; X=VP_T+2; Y=VP_T+3
    A(f"""
    s_mul_i32 s{t0}, s{W.CB}, 205
    s_lshr_b32 s{t0}, s{t0}, 10
    s_mul_i32 s{t1}, s{t0}, 5
    s_sub_u32 s{t1}, s{W.CB}, s{t1}
    s_lshl_b32 s{t2}, s{t1}, 7
    s_mul_i32 s{S_PCNT}, s{t2}, 3277
    s_lshr_b32 s{S_PCNT}, s{S_PCNT}, 16
    s_add_u32 s{t2}, s{t2}, 127
    s_mul_i32 s{t2}, s{t2}, 3277
    s_lshr_b32 s{t2}, s{t2}, 16
    """)
    LQ = A.newlabel("mbq"); LD = A.newlabel("mbd")
    A(f"s_cmp_eq_u32 s{t0}, 0"); A(f"s_cbranch_scc1 {LQ}")
    A(f"""
    v_lshrrev_b32 v{X}, 3, v{V_LANE}
    v_add_u32 v{X}, s{S_PCNT}, v{X}
    v_and_b32 v{I}, 7, v{V_LANE}
    v_lshl_add_u32 v{I}, v{I}, 5, v{X}
    v_mul_u32_u24 v{Y}, 20, v{X}
    v_lshrrev_b32 v{Y}, 7, v{Y}
    v_cmp_ne_u32 vcc, s{t1}, v{Y}
    s_sub_u32 s{t0}, s{t0}, 1
    s_lshl_b32 s{t0}, s{t0}, 5
    s_add_u32 s{t0}, s{t0}, s{W.TB}
    v_mov_b32 v{S_}, s{t0}
    v_add_u32 v{Y}, 16, v{S_}
    v_cndmask_b32 v{S_}, v{S_}, v{Y}, vcc
    v_cmp_ge_u32 vcc, s{t2}, v{X}
    s_branch {LD}
    """)
    A.label(LQ)
    A(f"""
    v_add_u32 v{X}, s{S_PCNT}, v{V_LANE}
    s_lshr_b32 s{t0}, s{W.TB}, 1
    s_lshl_b32 s{t0}, s{t0}, 5
    v_add_u32 v{I}, s{t0}, v{X}
    v_mul_u32_u24 v{Y}, 20, v{X}
    v_lshrrev_b32 v{Y}, 7, v{Y}
    v_cmp_ne_u32 vcc, s{t1}, v{Y}
    s_and_b32 s{t0}, s{W.TB}, 1
    s_add_u32 s{t0}, s{t0}, 64
    v_mov_b32 v{S_}, s{t0}
    v_add_u32 v{Y}, 2, v{S_}
    v_cndmask_b32 v{S_}, v{S_}, v{Y}, vcc
    v_cmp_ge_u32 vcc, s{t2}, v{X}
    v_cmp_gt_u32 s[92:93], 8, v{V_LANE}
    s_and_b64 vcc, vcc, s[92:93]
    """)
    A.label(LD)
    region(A, t0, MB_ATT)
    mb_finish(A, I, S_, None, t0, shift=9)
def mb_simple(A, t, idx_base_expr, lane_shift, slot_sreg, nvalid, base, layer_add=0):
    I=VP_T; S_=VP_T+1
    A(f"v_lshlrev_b32 v{I}, {lane_shift}, v{V_LANE}") if lane_shift else A(f"v_mov_b32 v{I}, v{V_LANE}")
    A(f"v_add_u32 v{I}, s{idx_base_expr}, v{I}")
    A(f"v_mov_b32 v{S_}, s{slot_sreg}")
    A(f"v_cmp_gt_u32 vcc, {nvalid}, v{V_LANE}")
    region(A, t, base, layer_add)
    mb_finish(A, I, S_, None, t)

def wide_coords(A, ffn, tb, cb, t0, t1, t2, idle_label):
    A(f"""
    s_and_b32 s{t0}, s{S_WG}, 7
    s_lshr_b32 s{t1}, s{S_WG}, 3
    s_and_b32 s{tb}, s{t0}, 3
    s_lshl_b32 s{tb}, s{tb}, 2
    s_and_b32 s{t2}, s{t1}, 3
    s_add_u32 s{tb}, s{tb}, s{t2}
    s_lshr_b32 s{t0}, s{t0}, 2
    s_lshr_b32 s{t1}, s{t1}, 2
    """)
    if ffn:
        A(f"s_mul_i32 s{cb}, s{t0}, 7"); A(f"s_add_u32 s{cb}, s{cb}, s{t1}")
        A(f"s_cmp_ge_u32 s{t1}, 7"); A(f"s_cbranch_scc1 {idle_label}")
    else:
        A(f"s_lshl_b32 s{cb}, s{t0}, 3"); A(f"s_add_u32 s{cb}, s{cb}, s{t1}")
        A(f"s_cmp_ge_u32 s{cb}, 15"); A(f"s_cbranch_scc1 {idle_label}")
def narrow_coords(A, tb, cb, t0, t1, t2):
    A(f"""
    s_and_b32 s{t0}, s{S_WG}, 7
    s_lshr_b32 s{t1}, s{S_WG}, 3
    s_and_b32 s{tb}, s{t0}, 3
    s_lshl_b32 s{tb}, s{tb}, 3
    s_and_b32 s{t2}, s{t1}, 7
    s_add_u32 s{tb}, s{tb}, s{t2}
    s_lshr_b32 s{t0}, s{t0}, 2
    s_lshl_b32 s{t0}, s{t0}, 2
    s_lshr_b32 s{t1}, s{t1}, 3
    s_add_u32 s{cb}, s{t0}, s{t1}
    """)

def c_prep(A):
    X=20; XF0=24; ST0=28; WO=32; W2=36; CS_S=40; CS_D=44; WOPD=48; W2PD=52; VF0=56; VF1=60
    TT=64; Q=65; T0=66; T1=67; T2=68; T3=69; LDW=76; CROW=77; TASK=78; STRIP=79; RQ=80; NOCS=81; K3=82; ADV=83; CO=84
    A(f"""
    s_load_dwordx4 s[8:11], s[0:1], {KA_X}
    s_load_dwordx2 s[12:13], s[0:1], {KA_WO}
    s_load_dwordx4 s[16:19], s[0:1], {KA_W1}
    s_lshr_b32 s{TT}, s{S_WG}, 2
    s_and_b32 s{Q}, s{S_WG}, 3
    s_lshl_b32 s{T0}, s{TT}, 5
    v_add_u32 v5, s{T0}, v{V_T}
    v_mul_u32_u24 v5, 1280, v5
    v_lshlrev_b32 v6, 4, v{V_H}
    v_add_u32 v5, v5, v6
    s_mul_i32 s{T0}, s{Q}, 320
    s_lshl_b32 s{T1}, s{S_WAVE}, 5
    s_add_u32 s{T0}, s{T0}, s{T1}
    v_add_u32 v5, s{T0}, v5
    s_cmp_lt_u32 s{S_WAVE}, 2
    s_cselect_b32 s{K3}, 256, s{S_OOB}
    s_waitcnt lgkmcnt(0)
    """)
    srd_ptr(A, X, 8, XSZ)
    A(f"""
    buffer_load_dwordx4 v[8:11], v5, s[{X}:{X+3}], 0 offen
    buffer_load_dwordx4 v[12:15], v5, s[{X}:{X+3}], 0 offen offset:128
    buffer_load_dwordx4 v[16:19], v5, s[{X}:{X+3}], s{K3} offen
    """)
    CSW1 = "L_cp_csw1"; CSGO = "L_cp_csgo"
    A(f"s_cmp_ge_u32 s{S_WG}, 228"); A(f"s_cselect_b32 s{NOCS}, 1, 0")
    A(f"s_cmp_ge_u32 s{S_WG}, 120"); A(f"s_cbranch_scc1 {CSW1}")
    srd_ptr(A, CS_S, 10, 640*3840); srd_const(A, CS_D, CSQ, CSQSZ)
    A(f"s_mov_b32 s{LDW}, 3840"); A(f"s_mov_b32 s{CROW}, 7680"); A(f"s_mov_b32 s{TASK}, s{S_WG}"); A(f"s_branch {CSGO}")
    A.label(CSW1)
    srd_ptr(A, CS_S, 16, 640*3456); srd_const(A, CS_D, CS1, CS1SZ)
    A(f"s_mov_b32 s{LDW}, 3456"); A(f"s_mov_b32 s{CROW}, 6912"); A(f"s_sub_u32 s{TASK}, s{S_WG}, 120")
    A.label(CSGO)
    A(f"""
    s_lshr_b32 s{STRIP}, s{TASK}, 2
    s_and_b32 s{RQ}, s{TASK}, 3
    v_lshrrev_b32 v6, 3, v0
    s_mul_i32 s{T0}, s{RQ}, 160
    v_add_u32 v6, s{T0}, v6
    v_mul_lo_u32 v6, v6, s{LDW}
    v_and_b32 v7, 7, v0
    v_lshlrev_b32 v7, 4, v7
    v_add_u32 v6, v6, v7
    s_lshl_b32 s{T0}, s{STRIP}, 7
    v_add_u32 v6, s{T0}, v6
    s_lshl_b32 s{ADV}, s{LDW}, 5
    s_cmp_eq_u32 s{NOCS}, 1
    s_cselect_b32 s{CO}, s{S_OOB}, 0
    """)
    for i in range(5):
        A(f"buffer_load_dwordx4 v[{20+4*i}:{23+4*i}], v6, s[{CS_S}:{CS_S+3}], s{CO} offen")
        if i < 4: A(f"s_add_u32 s{CO}, s{CO}, s{ADV}")
    srd_ptr(A, WO, 12, 640*1280); srd_ptr(A, W2, 18, F*1280)
    A(f"""
    s_lshl_b32 s{T0}, s{S_WG}, 12
    v_lshlrev_b32 v7, 4, v0
    v_add_u32 v7, s{T0}, v7
    s_mov_b32 s{T1}, 0x100000
    s_mov_b32 s{T2}, 0x200000
    buffer_load_dwordx4 v[40:43], v7, s[{WO}:{WO+3}], 0 offen
    buffer_load_dwordx4 v[44:47], v7, s[{W2}:{W2+3}], 0 offen
    buffer_load_dwordx4 v[48:51], v7, s[{W2}:{W2+3}], s{T1} offen
    buffer_load_dwordx4 v[52:55], v7, s[{W2}:{W2+3}], s{T2} offen
    """)
    srd_const(A, XF0, XF[0], XSZ); srd_const(A, ST0, ST[0], STSZ)
    srd_const(A, WOPD, WOP, WOPSZ); srd_const(A, W2PD, W2P, W2PSZ)
    srd_const(A, VF0, VF, VSZ); srd_const(A, VF1, VF + LSTRIDE, VSZ)
    def packaddr(dst, add, kq640):
        A(f"""
        v_lshrrev_b32 v72, 4, v7
        v_add_u32 v72, {add}, v72
        s_mov_b32 s{T3}, 0xcccccccd
        v_mul_hi_u32 v73, v72, s{T3}
        v_lshrrev_b32 v73, 6, v73
        v_mul_u32_u24 v74, 80, v73
        v_sub_u32 v74, v72, v74
        v_mul_u32_u24 v75, 6554, v74
        v_lshrrev_b32 v75, 16, v75
        v_mul_u32_u24 v76, 10, v75
        v_sub_u32 v76, v74, v76
        s_mov_b32 s{T3}, {kq640}
        v_mul_lo_u32 v{dst}, v75, s{T3}
        v_lshrrev_b32 v77, 2, v73
        v_mul_u32_u24 v77, 640, v77
        v_add_u32 v{dst}, v{dst}, v77
        v_and_b32 v73, 3, v73
        v_lshrrev_b32 v77, 2, v76
        v_lshlrev_b32 v77, 8, v77
        v_lshlrev_b32 v78, 6, v73
        v_add_u32 v77, v77, v78
        v_and_b32 v78, 3, v76
        v_lshlrev_b32 v78, 4, v78
        v_add_u32 v77, v77, v78
        v_lshlrev_b32 v78, 5, v73
        v_and_b32 v79, 1, v76
        v_lshlrev_b32 v79, 4, v79
        v_add_u32 v78, v78, v79
        v_add_u32 v78, 512, v78
        v_cmp_gt_u32 vcc, 8, v76
        v_cndmask_b32 v77, v78, v77, vcc
        v_add_u32 v{dst}, v{dst}, v77
        v_cmp_gt_u32 vcc, {kq640*8//16}, v72
        v_mov_b32 v78, s{S_OOB}
        v_cndmask_b32 v{dst}, v78, v{dst}, vcc
        """)
    packaddr(80, 0, 160*640); packaddr(81, 0, 432*640); packaddr(82, 65536, 432*640); packaddr(83, 131072, 432*640)
    A(f"""
    v_lshrrev_b32 v95, 1, v{V_LANE}
    s_lshl_b32 s{T0}, s{S_WG}, 5
    v_add_u32 v95, s{T0}, v95
    v_mul_u32_u24 v95, 352, v95
    v_and_b32 v94, 1, v{V_LANE}
    v_lshlrev_b32 v96, 4, v94
    v_add_u32 v95, v95, v96
    v_add_u32 v95, 320, v95
    v_mov_b32 v96, 0x3f803f80
    v_cmp_eq_u32 vcc, 0, v94
    v_cndmask_b32 v96, 0, v96, vcc
    v_mov_b32 v97, v96
    v_mov_b32 v98, v96
    v_mov_b32 v99, v96
    v_cmp_gt_u32 vcc, 64, v0
    v_mov_b32 v94, s{S_OOB}
    v_cndmask_b32 v95, v94, v95, vcc
    buffer_store_dwordx4 v[96:99], v95, s[{VF0}:{VF0+3}], 0 offen{SC}
    buffer_store_dwordx4 v[96:99], v95, s[{VF1}:{VF1+3}], 0 offen{SC}
    """)
    A("s_waitcnt vmcnt(11)")
    A("v_mov_b32 v56, 0\nv_mov_b32 v57, 0")
    for r in range(8, 20):
        A(f"""
        v_lshlrev_b32 v58, 16, v{r}
        v_and_b32 v59, 0xffff0000, v{r}
        v_add_f32 v56, v56, v58
        v_fmac_f32 v57, v58, v58
        v_add_f32 v56, v56, v59
        v_fmac_f32 v57, v59, v59
        """)
    for b in (8, 12, 16):
        A(f"v_permlane32_swap_b32 v{b}, v{b+2}"); A(f"v_permlane32_swap_b32 v{b+1}, v{b+3}")
    A(f"""
    s_mul_i32 s{T0}, s{TT}, 40
    s_mul_i32 s{T1}, s{Q}, 10
    s_add_u32 s{T0}, s{T0}, s{T1}
    s_add_u32 s{T0}, s{T0}, s{S_WAVE}
    s_lshl_b32 s{T0}, s{T0}, 10
    v_lshlrev_b32 v60, 4, v{V_LANE}
    v_add_u32 v60, s{T0}, v60
    s_cmp_lt_u32 s{S_WAVE}, 2
    s_cselect_b32 s{K3}, 8192, s{S_OOB}
    s_mov_b32 s{T1}, 4096
    buffer_store_dwordx4 v[8:11], v60, s[{XF0}:{XF0+3}], 0 offen{SC}
    buffer_store_dwordx4 v[12:15], v60, s[{XF0}:{XF0+3}], s{T1} offen{SC}
    buffer_store_dwordx4 v[16:19], v60, s[{XF0}:{XF0+3}], s{K3} offen{SC}
    """)
    halfsum(A, 56, 58); halfsum(A, 57, 59)
    A(f"""
    s_lshl_b32 s{T0}, s{TT}, 12
    s_lshl_b32 s{T1}, s{Q}, 2
    s_add_u32 s{T1}, s{T1}, s{S_WAVE}
    s_lshr_b32 s{T2}, s{T1}, 1
    s_lshl_b32 s{T2}, s{T2}, 9
    s_add_u32 s{T0}, s{T0}, s{T2}
    s_and_b32 s{T1}, s{T1}, 1
    s_lshl_b32 s{T1}, s{T1}, 3
    s_add_u32 s{T0}, s{T0}, s{T1}
    v_lshlrev_b32 v60, 4, v{V_T}
    v_add_u32 v60, s{T0}, v60
    buffer_store_dwordx2 v[56:57], v60, s[{ST0}:{ST0+3}], 0 offen{SC}
    s_waitcnt vmcnt(6)
    buffer_store_dwordx4 v[40:43], v80, s[{WOPD}:{WOPD+3}], 0 offen{SC}
    buffer_store_dwordx4 v[44:47], v81, s[{W2PD}:{W2PD+3}], 0 offen{SC}
    buffer_store_dwordx4 v[48:51], v82, s[{W2PD}:{W2PD+3}], 0 offen{SC}
    buffer_store_dwordx4 v[52:55], v83, s[{W2PD}:{W2PD+3}], 0 offen{SC}
    """)
    for j in range(8): A(f"v_mov_b32 v{64+j}, 0")
    for i in range(5):
        for rr in range(4):
            r = 20 + 4*i + rr
            A(f"""
            v_lshlrev_b32 v58, 16, v{r}
            v_and_b32 v59, 0xffff0000, v{r}
            v_add_f32 v{64+2*rr}, v{64+2*rr}, v58
            v_add_f32 v{65+2*rr}, v{65+2*rr}, v59
            """)
    A(f"""
    v_lshlrev_b32 v58, 5, v0
    v_add_u32 v58, {P_SCR}, v58
    ds_write_b128 v58, v[64:67]
    ds_write_b128 v58, v[68:71] offset:16
    s_waitcnt lgkmcnt(0)
    s_barrier
    v_lshlrev_b32 v58, 2, v{V_LANE}
    s_lshl_b32 s{T0}, s{S_WAVE}, 11
    s_add_u32 s{T0}, s{T0}, {P_SCR}
    v_add_u32 v58, s{T0}, v58
    """)
    for k in range(8): A(f"ds_read_b32 v{64+k}, v58 offset:{256*k}")
    A(f"""
    s_waitcnt lgkmcnt(0)
    v_add_f32 v64, v64, v65
    v_add_f32 v66, v66, v67
    v_add_f32 v68, v68, v69
    v_add_f32 v70, v70, v71
    v_add_f32 v64, v64, v66
    v_add_f32 v68, v68, v70
    v_add_f32 v64, v64, v68
    v_lshlrev_b32 v58, 2, v0
    v_add_u32 v58, {P_SCR}, v58
    s_barrier
    ds_write_b32 v58, v64
    s_waitcnt lgkmcnt(0)
    s_barrier
    v_lshlrev_b32 v59, 2, v{V_LANE}
    v_add_u32 v58, {P_SCR}, v59
    ds_read_b32 v64, v58
    ds_read_b32 v65, v58 offset:256
    ds_read_b32 v66, v58 offset:512
    ds_read_b32 v67, v58 offset:768
    s_waitcnt lgkmcnt(0)
    v_add_f32 v64, v64, v65
    v_add_f32 v66, v66, v67
    v_add_f32 v64, v64, v66
    s_mul_i32 s{T0}, s{RQ}, s{CROW}
    s_lshl_b32 s{T1}, s{STRIP}, 8
    s_add_u32 s{T0}, s{T0}, s{T1}
    s_cmp_lg_u32 s{S_WAVE}, 0
    s_cselect_b32 s{T0}, s{S_OOB}, s{T0}
    s_cmp_eq_u32 s{NOCS}, 1
    s_cselect_b32 s{T0}, s{S_OOB}, s{T0}
    v_add_u32 v59, s{T0}, v59
    buffer_store_dword v64, v59, s[{CS_D}:{CS_D+3}], 0 offen{SC}
    s_waitcnt vmcnt(0)
    s_barrier
    """)

class W:
    X=8; Wd=12; ST=16; CS=20; OUT=24
    TB=29; CB=30; MODE=31; XOFF=32; WOFF=33; M0=34; WADV=35; FREE=36; CNT=37; LDW=38; N0=39; CSROW=40
    T0=41; T1=42; T2=43; WN=44; WT=45; XB=46; T3=47; FREEX=48; WSZ=49
    V_XD=4; V_WD=5; V_XR=9; V_WR=10; V_TMP=11; V_AA=20; V_NB=24; V_A2=28; V_FR=32; V_ACC=64; V_E=128
    NST=10
def w_fr(setn, kind, i): return W.V_FR + 16*setn + (0 if kind == 'W' else 8) + 4*i
def w_acc(i, ip): return W.V_ACC + 16*(2*i + ip)
def w_reads(setn, step):
    L = []
    for i in range(2):
        for jj in range(2):
            L.append(f"ds_read_b64_tr_b16 {v(w_fr(setn,'W',i)+2*jj,2)}, v{W.V_WR} offset:{step*4096 + jj*2048 + i*256}")
        L.append(f"ds_read_b128 {v(w_fr(setn,'X',i),4)}, v{W.V_XR} offset:{i*4096 + step*1024}")
    return L
def w_mfmas(setn, trans):
    L = []
    for (i, ip) in ((0,0),(0,1),(1,0),(1,1)):
        w = v(w_fr(setn,'W',i),4); x = v(w_fr(setn,'X',ip),4); d = v(w_acc(i,ip),16)
        L.append(f"v_mfma_f32_32x32x16_bf16 {d}, {w}, {x}, {d}" if trans else f"v_mfma_f32_32x32x16_bf16 {d}, {x}, {w}, {d}")
    return L
def w_stage(A, trans, last=False):
    for step in range(4):
        cur = step & 1; nxt = cur ^ 1
        M = w_mfmas(cur, trans)
        A("s_waitcnt lgkmcnt(0)")
        if step < 3:
            R = w_reads(nxt, step+1)
            A(M[0]); A(R[0]); A(R[1]); A(M[1]); A(R[2]); A(R[3]); A(M[2]); A(R[4]); A(R[5]); A(M[3])
        elif not last:
            A(M[0])
            A(f"v_add_u32 v{W.V_XR}, {W_RING}, v{W.V_XR}"); A(f"v_add_u32 v{W.V_WR}, {W_RING}, v{W.V_WR}")
            A(f"v_and_b32 v{W.V_XR}, {4*W_RING-1}, v{W.V_XR}"); A(f"v_and_b32 v{W.V_WR}, {4*W_RING-1}, v{W.V_WR}")
            A(M[1]); A("s_barrier")
            R = w_reads(0, 0)
            A(R[0]); A(R[1]); A(R[2]); A(M[2]); A(R[3]); A(R[4]); A(R[5]); A(M[3])
        else:
            A(M[0]); A("s_barrier")
            A(M[1]); A(M[2]); A(M[3])
def w_mainloop(A, trans, tag):
    L = f"L_w_loop_{tag}"
    A(f"s_mov_b32 s{W.CNT}, {W.NST-1}")
    A(".p2align 4"); A.label(L)
    w_stage(A, trans)
    A(f"s_sub_u32 s{W.CNT}, s{W.CNT}, 1"); A(f"s_cmp_lg_u32 s{W.CNT}, 0"); A(f"s_cbranch_scc1 {L}")
    w_stage(A, trans, last=True)

def w_params(A, ffn):
    if ffn:
        A(f"s_mov_b32 s{W.MODE}, 3"); A(f"s_mov_b32 s{W.LDW}, 3456"); A(f"s_mov_b32 s{W.CSROW}, 6912")
    else:
        A(f"""
        s_cmp_ge_u32 s{W.CB}, 5
        s_cselect_b32 s{W.MODE}, 1, 0
        s_cmp_ge_u32 s{W.CB}, 10
        s_cselect_b32 s{W.MODE}, 2, s{W.MODE}
        s_mov_b32 s{W.LDW}, 3840
        s_mov_b32 s{W.CSROW}, 7680
        """)
    A(f"s_lshl_b32 s{W.N0}, s{W.CB}, 7")

def c_wide(A, L_TO_FB, L_TO_ATT):
    V_TMP=W.V_TMP; V_E=W.V_E; V_FR=W.V_FR; V_AA=W.V_AA; V_NB=W.V_NB; V_A2=W.V_A2; V_ACC=W.V_ACC
    T0=W.T0; T1=W.T1; T2=W.T2; T3=W.T3; MODE=W.MODE
    VA=V_E+32
    A(f"""
    s_and_b32 s{W.WN}, s{S_WAVE}, 1
    s_lshr_b32 s{W.WT}, s{S_WAVE}, 1
    s_cmp_eq_u32 s{MODE}, 3
    s_cselect_b32 s{T0}, 1, 0
    s_lshl_b32 s{T1}, s{S_L}, 1
    s_add_u32 s{T0}, s{T0}, s{T1}
    s_lshl_b32 s{T0}, s{T0}, 18
    s_add_u32 s{T0}, s{T0}, {hex(ST[0])}
    """)
    srd_reg(A, W.ST, T0, STSZ)
    A(f"""
    s_mov_b32 s{T0}, {hex(CSQ)}
    s_mov_b32 s{T1}, {CSQSZ}
    s_cmp_eq_u32 s{MODE}, 3
    s_cselect_b32 s{T0}, {hex(CS1)}, s{T0}
    s_cselect_b32 s{T1}, {CS1SZ}, s{T1}
    """)
    srd_reg(A, W.CS, T0, f"s{T1}")
    A(f"""
    s_mov_b32 s{T0}, {hex(QP)}
    s_mov_b32 s{T1}, {XSZ}
    s_cmp_eq_u32 s{MODE}, 1
    s_cselect_b32 s{T0}, {hex(KP)}, s{T0}
    s_cmp_eq_u32 s{MODE}, 2
    s_cselect_b32 s{T0}, {hex(VF)}, s{T0}
    s_cselect_b32 s{T1}, {VSZ}, s{T1}
    s_cmp_eq_u32 s{MODE}, 3
    s_cselect_b32 s{T0}, {hex(HF)}, s{T0}
    s_cselect_b32 s{T1}, {HSZ}, s{T1}
    s_mul_i32 s{T2}, s{S_L}, {hex(LSTRIDE)}
    s_add_u32 s{T0}, s{T0}, s{T2}
    """)
    srd_reg(A, W.OUT, T0, f"s{T1}")
    A(f"""
    v_lshlrev_b32 v{W.V_XD}, 4, v{V_LANE}
    s_lshl_b32 s{T0}, s{W.WT}, 13
    v_add_u32 v{W.V_XR}, s{T0}, v{W.V_XD}
    v_lshlrev_b32 v{W.V_WR}, 10, v{V_H}
    v_bfe_u32 v{V_TMP}, v{V_LANE}, 2, 2
    v_lshlrev_b32 v{V_TMP}, 6, v{V_TMP}
    v_add_u32 v{W.V_WR}, v{W.V_WR}, v{V_TMP}
    v_bfe_u32 v{V_TMP}, v{V_LANE}, 4, 1
    v_lshlrev_b32 v{V_TMP}, 5, v{V_TMP}
    v_add_u32 v{W.V_WR}, v{W.V_WR}, v{V_TMP}
    v_and_b32 v{V_TMP}, 3, v{V_LANE}
    v_lshlrev_b32 v{V_TMP}, 3, v{V_TMP}
    v_add_u32 v{W.V_WR}, v{W.V_WR}, v{V_TMP}
    s_lshl_b32 s{T0}, s{W.WN}, 9
    s_add_u32 s{T0}, s{T0}, 16384
    v_add_u32 v{W.V_WR}, s{T0}, v{W.V_WR}
    """)
    for r in list(range(VA, VA+4)) + [V_E+68, V_E+69]: A(f"v_mov_b32 v{r}, 0")
    LA1 = "L_cw_addr_v"; LA2 = "L_cw_addr_done"
    A(f"s_cmp_eq_u32 s{MODE}, 3"); A(f"s_cbranch_scc1 {LA2}")
    A(f"s_cmp_eq_u32 s{MODE}, 2"); A(f"s_cbranch_scc1 {LA1}")
    A(f"""
    s_mul_i32 s{T0}, s{MODE}, 640
    s_sub_u32 s{T0}, s{W.N0}, s{T0}
    s_lshl_b32 s{T1}, s{W.WN}, 6
    s_add_u32 s{T0}, s{T0}, s{T1}
    s_lshr_b32 s{T0}, s{T0}, 3
    v_add_u32 v{V_TMP}, s{T0}, v{V_H}
    v_lshlrev_b32 v{V_TMP+5}, 4, v{V_T}
    """)
    for i in range(2):
        for gp in range(2):
            r = VA + 2*i + gp
            A(f"""
            v_add_u32 v{V_TMP+1}, {4*i+2*gp}, v{V_TMP}
            v_mul_u32_u24 v{V_TMP+2}, 205, v{V_TMP+1}
            v_lshrrev_b32 v{V_TMP+2}, 10, v{V_TMP+2}
            v_mul_u32_u24 v{V_TMP+3}, 5, v{V_TMP+2}
            v_sub_u32 v{V_TMP+3}, v{V_TMP+1}, v{V_TMP+3}
            v_mul_u32_u24 v{r}, {64*PTS}, v{V_TMP+2}
            v_lshl_add_u32 v{r}, v{V_TMP+3}, 9, v{r}
            v_add_u32 v{r}, v{r}, v{V_TMP+5}
            """)
    A(f"s_branch {LA2}")
    A.label(LA1)
    A(f"""
    s_lshl_b32 s{T0}, s{W.WN}, 6
    v_add_u32 v{V_TMP}, s{T0}, v{V_T}
    s_sub_u32 s{T0}, s{W.N0}, 1280
    v_add_u32 v{V_TMP}, s{T0}, v{V_TMP}
    s_movk_i32 s{T1}, 3277
    """)
    for i in range(2):
        r = V_E + 68 + i
        A(f"""
        v_add_u32 v{V_TMP+1}, {32*i}, v{V_TMP}
        v_mul_u32_u24 v{V_TMP+2}, s{T1}, v{V_TMP+1}
        v_lshrrev_b32 v{V_TMP+2}, 16, v{V_TMP+2}
        v_mul_u32_u24 v{V_TMP+3}, 20, v{V_TMP+2}
        v_sub_u32 v{V_TMP+3}, v{V_TMP+1}, v{V_TMP+3}
        v_mul_u32_u24 v{r}, {64*VTS}, v{V_TMP+2}
        v_mul_u32_u24 v{V_TMP+4}, 22, v{V_H}
        v_add_u32 v{V_TMP+4}, v{V_TMP+4}, v{V_TMP+3}
        v_lshl_add_u32 v{r}, v{V_TMP+4}, 4, v{r}
        """)
    A.label(LA2)
    for r in range(64): A(f"v_mov_b32 v{V_ACC+r}, 0")
    A(f"""
    s_lshl_b32 s{T0}, s{W.TB}, 2
    s_lshl_b32 s{T1}, s{W.WT}, 1
    s_add_u32 s{T0}, s{T0}, s{T1}
    s_lshl_b32 s{T0}, s{T0}, 12
    s_add_u32 s{T1}, s{T0}, 4096
    v_lshlrev_b32 v{V_TMP}, 4, v{V_T}
    v_lshl_add_u32 v{V_TMP}, v{V_H}, 11, v{V_TMP}
    v_and_b32 v{V_TMP+2}, 127, v0
    v_add_u32 v{V_TMP+2}, s{W.N0}, v{V_TMP+2}
    v_lshlrev_b32 v{V_TMP+2}, 2, v{V_TMP+2}
    s_lshl_b32 s{T2}, s{W.CSROW}, 1
    s_add_u32 s{T3}, s{T2}, s{W.CSROW}
    """)
    stamp(A, 1)
    A("s_barrier")
    stamp(A, 2)
    for ip in range(2):
        for k in range(4):
            A(f"buffer_load_dwordx4 {v(V_FR+16*ip+4*k,4)}, v{V_TMP}, s[{W.ST}:{W.ST+3}], s{T0+ip} offen{off(512*k)}")
    A(f"""
    buffer_load_dword v{V_E}, v{V_TMP+2}, s[{W.CS}:{W.CS+3}], 0 offen
    buffer_load_dword v{V_E+1}, v{V_TMP+2}, s[{W.CS}:{W.CS+3}], s{W.CSROW} offen
    buffer_load_dword v{V_E+2}, v{V_TMP+2}, s[{W.CS}:{W.CS+3}], s{T2} offen
    buffer_load_dword v{V_E+3}, v{V_TMP+2}, s[{W.CS}:{W.CS+3}], s{T3} offen
    s_waitcnt vmcnt(0)
    """)
    for ip in range(2):
        b = V_FR + 16*ip
        A(f"""
        v_pk_add_f32 {v(b,2)}, {v(b,2)}, {v(b+2,2)}
        v_pk_add_f32 {v(b+4,2)}, {v(b+4,2)}, {v(b+6,2)}
        v_pk_add_f32 {v(b+8,2)}, {v(b+8,2)}, {v(b+10,2)}
        v_pk_add_f32 {v(b+12,2)}, {v(b+12,2)}, {v(b+14,2)}
        v_pk_add_f32 {v(b,2)}, {v(b,2)}, {v(b+4,2)}
        v_pk_add_f32 {v(b+8,2)}, {v(b+8,2)}, {v(b+12,2)}
        v_pk_add_f32 {v(b,2)}, {v(b,2)}, {v(b+8,2)}
        """)
        halfsum(A, b, V_TMP); halfsum(A, b+1, V_TMP+1)
        A(f"""
        v_mul_f32 v{b}, {hex(f2u(1.0/640))}, v{b}
        v_mul_f32 v{b+1}, {hex(f2u(1.0/640))}, v{b+1}
        v_fma_f32 v{b+1}, -v{b}, v{b}, v{b+1}
        v_max_f32 v{b+1}, 0, v{b+1}
        v_add_f32 v{b+3}, {hex(f2u(1e-5))}, v{b+1}
        v_rsq_f32 v{b+1}, v{b+3}
        v_sub_f32 v{V_NB+2*ip}, 0, v{b}
        v_sub_f32 v{V_NB+2*ip+1}, 0, v{b}
        v_mul_f32 v{b+3}, v{b+3}, v{b+1}
        v_mul_f32 v{V_A2+2*ip}, {hex(f2u(-1.4426950408889634))}, v{b+1}
        v_mul_f32 v{V_A2+2*ip+1}, {hex(f2u(-1.4426950408889634))}, v{b+1}
        v_mul_f32 v{b+2}, v{b}, v{b+1}
        s_cmp_eq_u32 s{MODE}, 0
        s_cselect_b32 s{T0}, {hex(f2u(QSCALE))}, 1.0
        v_mul_f32 v{V_AA+2*ip}, s{T0}, v{b+1}
        s_cmp_eq_u32 s{MODE}, 3
        s_cselect_b64 vcc, -1, 0
        v_cndmask_b32 v{V_AA+2*ip}, v{V_AA+2*ip}, v{b+3}, vcc
        v_mov_b32 v{V_AA+2*ip+1}, v{V_AA+2*ip}
        s_lshl_b32 s{T0}, s{W.WT}, 8
        s_add_u32 s{T0}, s{T0}, {W_SCR + 512 + 128*ip}
        v_lshlrev_b32 v{V_TMP}, 2, v{V_T}
        v_add_u32 v{V_TMP}, s{T0}, v{V_TMP}
        ds_write_b32 v{V_TMP}, v{b+1}
        ds_write_b32 v{V_TMP}, v{b+2} offset:512
        """)
    A(f"""
    v_add_f32 v{V_E}, v{V_E}, v{V_E+1}
    v_add_f32 v{V_E+2}, v{V_E+2}, v{V_E+3}
    v_add_f32 v{V_E}, v{V_E}, v{V_E+2}
    v_and_b32 v{V_TMP}, 127, v0
    v_lshlrev_b32 v{V_TMP}, 2, v{V_TMP}
    v_add_u32 v{V_TMP}, {W_SCR}, v{V_TMP}
    ds_write_b32 v{V_TMP}, v{V_E}
    s_waitcnt lgkmcnt(0)
    s_barrier
    """)
    stamp(A, 3)
    for r in w_reads(0, 0): A(r)
    LV = "L_cw_vmode"; LF = "L_cw_ffn"; FIN = "L_cw_fin"
    A(f"s_cmp_eq_u32 s{MODE}, 2"); A(f"s_cbranch_scc1 {LV}")
    A(f"""
    s_lshl_b32 s{T0}, s{W.WN}, 8
    s_add_u32 s{T0}, s{T0}, {W_SCR}
    v_lshlrev_b32 v{V_TMP}, 4, v{V_H}
    v_add_u32 v{V_TMP}, s{T0}, v{V_TMP}
    """)
    for i in range(2):
        for g in range(4):
            A(f"ds_read_b128 {v(V_E+16*i+4*g,4)}, v{V_TMP} offset:{128*i + 32*g}")
    w_mainloop(A, True, "t")
    stamp(A, 4)
    A(f"s_cmp_eq_u32 s{MODE}, 3"); A(f"s_cbranch_scc1 {LF}")
    A(f"""
    s_lshl_b32 s{T0}, s{W.TB}, 2
    s_lshl_b32 s{T1}, s{W.WT}, 1
    s_add_u32 s{T0}, s{T0}, s{T1}
    s_mul_i32 s{T0}, s{T0}, {PTS}
    s_add_u32 s{T1}, s{T0}, {PTS}
    """)
    VP = V_E + 40
    for i in range(2):
        for ip in range(2):
            c = w_acc(i, ip)
            for p in range(8): A(f"v_pk_fma_f32 {v(c+2*p,2)}, {v(V_E+16*i+2*p,2)}, {v(V_NB+2*ip,2)}, {v(c+2*p,2)}")
            for p in range(8): A(f"v_pk_mul_f32 {v(c+2*p,2)}, {v(c+2*p,2)}, {v(V_AA+2*ip,2)}")
            pk = VP + 8*((2*i+ip) & 1)
            for p in range(8): A(f"v_cvt_pk_bf16_f32 v{pk+p}, v{c+2*p}, v{c+2*p+1}")
            for gp in range(2):
                A(f"v_permlane32_swap_b32 v{pk+4*gp}, v{pk+4*gp+2}")
                A(f"v_permlane32_swap_b32 v{pk+4*gp+1}, v{pk+4*gp+3}")
            for gp in range(2):
                A(f"buffer_store_dwordx4 {v(pk+4*gp,4)}, v{VA+2*i+gp}, s[{W.OUT}:{W.OUT+3}], s{T0+ip} offen{SC}")
    A(f"s_branch {FIN}")
    A.label(LF)
    A(f"""
    s_lshl_b32 s{T0}, s{W.WN}, 6
    s_add_u32 s{T0}, s{T0}, s{W.N0}
    s_cmp_ge_u32 s{T0}, {F}
    s_cbranch_scc1 {FIN}
    s_lshr_b32 s{T0}, s{T0}, 4
    s_lshl_b32 s{T1}, s{W.TB}, 2
    s_lshl_b32 s{T2}, s{W.WT}, 1
    s_add_u32 s{T1}, s{T1}, s{T2}
    s_mul_i32 s{T1}, s{T1}, 108
    s_add_u32 s{T0}, s{T0}, s{T1}
    s_lshl_b32 s{T0}, s{T0}, 10
    s_add_u32 s{T1}, s{T0}, {108*1024}
    """)
    VZ = V_E + 32; VP = V_E + 48
    for ip in range(2):
        for i in range(2):
            c = w_acc(i, ip)
            for p in range(8): A(f"v_pk_fma_f32 {v(c+2*p,2)}, {v(V_E+16*i+2*p,2)}, {v(V_NB+2*ip,2)}, {v(c+2*p,2)}")
            for p in range(8): A(f"v_pk_mul_f32 {v(VZ+2*p,2)}, {v(c+2*p,2)}, {v(V_A2+2*ip,2)}")
            for r in range(16): A(f"v_exp_f32 v{VZ+r}, v{VZ+r}")
            for p in range(8): A(f"v_pk_fma_f32 {v(VZ+2*p,2)}, {v(VZ+2*p,2)}, {v(V_AA+2*ip,2)}, {v(V_AA+2*ip,2)}")
            for r in range(16): A(f"v_rcp_f32 v{VZ+r}, v{VZ+r}")
            for p in range(8): A(f"v_pk_mul_f32 {v(c+2*p,2)}, {v(c+2*p,2)}, {v(VZ+2*p,2)}")
            pk = VP + 8*i
            for p in range(8): A(f"v_cvt_pk_bf16_f32 v{pk+p}, v{c+2*p}, v{c+2*p+1}")
            so = T0 if ip == 0 else T1
            A(f"buffer_store_dwordx4 {v(pk,4)}, v{W.V_XD}, s[{W.OUT}:{W.OUT+3}], s{so} offen{off(2048*i)}{SC}")
            A(f"buffer_store_dwordx4 {v(pk+4,4)}, v{W.V_XD}, s[{W.OUT}:{W.OUT+3}], s{so} offen{off(2048*i+1024)}{SC}")
    A(f"s_branch {FIN}")
    A.label(LV)
    A(f"""
    s_lshl_b32 s{T0}, s{W.WN}, 6
    v_add_u32 v{V_TMP}, s{T0}, v{V_T}
    v_lshlrev_b32 v{V_TMP+1}, 2, v{V_TMP}
    v_add_u32 v{V_TMP+1}, {W_SCR}, v{V_TMP+1}
    ds_read_b32 v{V_E+64}, v{V_TMP+1}
    ds_read_b32 v{V_E+66}, v{V_TMP+1} offset:128
    s_lshl_b32 s{T1}, s{W.WT}, 8
    s_add_u32 s{T1}, s{T1}, {W_SCR+512}
    v_lshlrev_b32 v{V_TMP}, 4, v{V_H}
    v_add_u32 v{V_TMP}, s{T1}, v{V_TMP}
    """)
    for ip in range(2):
        for g in range(4):
            A(f"ds_read_b128 {v(V_E+32*ip+4*g,4)}, v{V_TMP} offset:{128*ip + 32*g}")
            A(f"ds_read_b128 {v(V_E+32*ip+16+4*g,4)}, v{V_TMP} offset:{512 + 128*ip + 32*g}")
    w_mainloop(A, False, "v")
    stamp(A, 4)
    VAv = V_E + 68
    A(f"""
    s_lshl_b32 s{T0}, s{W.TB}, 2
    s_lshl_b32 s{T1}, s{W.WT}, 1
    s_add_u32 s{T0}, s{T0}, s{T1}
    s_mul_i32 s{T0}, s{T0}, {VTS}
    v_sub_f32 v{V_E+64}, 0, v{V_E+64}
    v_sub_f32 v{V_E+66}, 0, v{V_E+66}
    v_mov_b32 v{V_E+65}, v{V_E+64}
    v_mov_b32 v{V_E+67}, v{V_E+66}
    """)
    VP = V_E + 72
    for ip in range(2):
        for i in range(2):
            c = w_acc(i, ip)
            for p in range(8): A(f"v_pk_mul_f32 {v(c+2*p,2)}, {v(c+2*p,2)}, {v(V_E+32*ip+2*p,2)}")
            for p in range(8): A(f"v_pk_fma_f32 {v(c+2*p,2)}, {v(V_E+32*ip+16+2*p,2)}, {v(V_E+64+2*i,2)}, {v(c+2*p,2)}")
            pk = VP + 8*i
            for p in range(8): A(f"v_cvt_pk_bf16_f32 v{pk+p}, v{c+2*p}, v{c+2*p+1}")
            A(f"buffer_store_dwordx4 {v(pk,4)}, v{VAv+i}, s[{W.OUT}:{W.OUT+3}], s{T0} offen{off(VTS*ip)}{SC}")
            A(f"buffer_store_dwordx4 {v(pk+4,4)}, v{VAv+i}, s[{W.OUT}:{W.OUT+3}], s{T0} offen{off(VTS*ip+704)}{SC}")
    A.label(FIN)
    stamp(A, 5)
    A("s_waitcnt vmcnt(0)")
    A("s_barrier")
    stamp(A, 6)
    stamp_phase(A)
    A(f"s_cmp_eq_u32 s{MODE}, 3"); A(f"s_cbranch_scc1 {L_TO_FB}")
    A(f"s_branch {L_TO_ATT}")

def lw_setup_w(A, kaoff_reg_pair):
    V_TMP=W.V_TMP; T0=W.T0
    A(f"""
    v_lshlrev_b32 v{W.V_XD}, 4, v{V_LANE}
    v_lshrrev_b32 v{V_TMP}, 4, v{V_LANE}
    v_lshlrev_b32 v{W.V_WD}, 6, v{V_TMP}
    v_and_b32 v{V_TMP+1}, 3, v{V_LANE}
    v_lshlrev_b32 v{V_TMP+1}, 4, v{V_TMP+1}
    v_add_u32 v{W.V_WD}, v{W.V_WD}, v{V_TMP+1}
    v_bfe_u32 v{V_TMP+1}, v{V_LANE}, 2, 2
    v_mul_lo_u32 v{V_TMP+1}, v{V_TMP+1}, s{W.LDW}
    v_add_u32 v{W.V_WD}, v{W.V_WD}, v{V_TMP+1}
    s_cmp_eq_u32 s{W.MODE}, 3
    s_cselect_b32 s{T0}, s{W.CB}, 0
    s_cmp_eq_u32 s{T0}, 13
    s_cselect_b32 s{T0}, s{S_OOB}, 0
    v_cmp_le_u32 vcc, 2, v{V_TMP}
    v_mov_b32 v{V_TMP+1}, s{T0}
    s_lshl_b32 s{T0}, s{W.LDW}, 2
    s_sub_u32 s{T0}, s{T0}, 1024
    v_cndmask_b32 v{V_TMP+1}, 0, v{V_TMP+1}, vcc
    v_add_u32 v{W.V_WD}, v{W.V_WD}, v{V_TMP+1}
    v_add_u32 v{W.V_WD+1}, s{T0}, v{W.V_WD}
    v_add_u32 v{W.V_WD+2}, s{T0}, v{W.V_WD+1}
    v_add_u32 v{W.V_WD+3}, s{T0}, v{W.V_WD+2}
    s_lshl_b32 s{W.WADV}, s{W.LDW}, 6
    s_lshl_b32 s{T0}, s{W.LDW}, 4
    s_mul_i32 s{T0}, s{T0}, s{S_LW}
    s_lshl_b32 s{W.WOFF}, s{W.N0}, 1
    s_add_u32 s{W.WOFF}, s{W.WOFF}, s{T0}
    s_lshl_b32 s{W.M0}, s{S_LW}, 12
    s_mul_i32 s{W.WSZ}, s{W.LDW}, 640
    s_mov_b32 s{W.Wd}, s{kaoff_reg_pair}
    s_mov_b32 s{W.Wd+1}, s{kaoff_reg_pair+1}
    s_mov_b32 s{W.Wd+2}, s{W.WSZ}
    s_mov_b32 s{W.Wd+3}, 0x20000
    s_mov_b32 s{W.FREE}, 0
    s_mov_b32 s{W.FREEX}, 0
    """)
def lw_dma_x(k): return f"buffer_load_dwordx4 v{W.V_XD}, s[{W.X}:{W.X+3}], s{W.XOFF} offen{off(k*1024)} lds"
def lw_dma_w(k): return f"buffer_load_dwordx4 v{W.V_WD+k}, s[{W.Wd}:{W.Wd+3}], s{W.WOFF} offen{off(k*1024)} lds"
def lw_issue_w(A):
    A(f"s_add_u32 s{W.T0}, s{W.FREE}, s{W.M0}"); A(f"s_add_u32 m0, s{W.T0}, 16384")
    A(f"s_add_u32 s{W.FREE}, s{W.FREE}, {W_RING}")
    for k in range(4): A(lw_dma_w(k))
    A(f"s_add_u32 s{W.WOFF}, s{W.WOFF}, s{W.WADV}")
    A(f"s_and_b32 s{W.FREE}, s{W.FREE}, {4*W_RING-1}")
def lw_issue_x(A):
    A(f"s_add_u32 m0, s{W.FREEX}, s{W.M0}")
    A(f"s_add_u32 s{W.FREEX}, s{W.FREEX}, {W_RING}")
    for k in range(4): A(lw_dma_x(k))
    A(f"s_add_u32 s{W.XOFF}, s{W.XOFF}, 4096")
    A(f"s_and_b32 s{W.FREEX}, s{W.FREEX}, {4*W_RING-1}")
def lw_issue_s(A):
    lw_issue_x(A); lw_issue_w(A)
def lw_prefetch_w(A):
    for s_ in range(4): lw_issue_w(A)

class T:
    Q=8; K=12; V=16; O=20
    HEAD=24; QB=25; QG=27; KH=28; KO=29; VO=30; CNT=31; T0=32; T1=33; T2=34; FLAG=35; K0=36; V0=38; TT0=37; LO=42; CC=44
    V_AK0=4; V_AK1=5; V_AV=6; V_AO=7; V_TMP=10
    V_Q=16; V_O=48; V_S=112; V_P=144; V_K=152; V_V=168; V_M=184; V_X=188; V_J=200
def tQ0(q): return T.V_Q + 8*q
def tQ1(q): return T.V_Q + 8*q + 4
def tO(q): return T.V_O + 16*q
def tS(b): return T.V_S + 16*b
def tK0(p): return T.V_K + 8*p
def tK1(p): return T.V_K + 8*p + 4
def tV0(p): return T.V_V + 8*p
def tV1(p): return T.V_V + 8*p + 4
def mf(d, a_, b_, c):
    cs = v(c,16) if c is not None else "0"
    return f"v_mfma_f32_32x32x16_bf16 {v(d,16)}, {v(a_,4)}, {v(b_,4)}, {cs}"
def t_load_k(A, p, o):
    A(f"buffer_load_dwordx4 {v(tK0(p),4)}, v{T.V_AK0}, s[{T.K}:{T.K+3}], s{T.KO} offen{off(o)}")
    A(f"buffer_load_dwordx2 {v(tK1(p),2)}, v{T.V_AK1}, s[{T.K}:{T.K+3}], s{T.KO} offen{off(o)}")
def t_load_v(A, p, o):
    A(f"buffer_load_dwordx4 {v(tV0(p),4)}, v{T.V_AV}, s[{T.V}:{T.V+3}], s{T.VO} offen{off(o)}")
    A(f"buffer_load_dwordx4 {v(tV1(p),4)}, v{T.V_AV}, s[{T.V}:{T.V+3}], s{T.VO} offen{off(o+704)}")
def t_period(A, p, q):
    b = q & 1
    s_ = tS(b); sn = tS(b ^ 1)
    qn = (q + 1) & 3; kp = p if q < 3 else p ^ 1
    qp = (q - 1) & 3; vp = p if q > 0 else p ^ 1
    e = lambda r: A(f"v_exp_f32 v{s_+r}, v{s_+r}")
    c = lambda k: A(f"v_cvt_pk_bf16_f32 v{T.V_P+k}, v{s_+2*k}, v{s_+2*k+1}")
    if q == 3: A("s_waitcnt vmcnt(2)")
    A(mf(sn, tK0(kp), tQ0(qn), None))
    e(0); e(1); e(2); e(3); c(0)
    A(mf(sn, tK1(kp), tQ1(qn), sn))
    e(4); e(5); c(1)
    if q == 3: t_load_k(A, p, p*PTS)
    if q == 1: t_load_v(A, p ^ 1, p*VTS)
    e(6); e(7); c(2)
    A(mf(tO(qp), tV1(vp), T.V_P+4, tO(qp)))
    e(8); e(9); c(3); e(10); e(11); c(4)
    if q == 0: A("s_waitcnt vmcnt(2)")
    A(mf(tO(q), tV0(p), T.V_P, tO(q)))
    e(12); e(13); c(5); e(14); e(15); c(6); c(7)
def t_rowmax(A, dst, src, tmp):
    A(f"v_max3_f32 v{dst}, v{src}, v{src+1}, v{src+2}")
    for r in range(3, 15, 2): A(f"v_max3_f32 v{dst}, v{dst}, v{src+r}, v{src+r+1}")
    A(f"v_max_f32 v{dst}, v{dst}, v{src+15}")
    A(f"v_mov_b32 v{tmp}, v{dst}"); A(f"v_permlane32_swap_b32 v{dst}, v{tmp}"); A(f"v_max_f32 v{dst}, v{dst}, v{tmp}")
def t_set_shift(A):
    V_TMP = T.V_TMP
    A(f"s_mov_b64 exec, s[{T.LO}:{T.LO+1}]")
    for q in range(4):
        A(f"""
        v_xor_b32 v{V_TMP}, 0x80000000, v{T.V_M+q}
        v_and_b32 v{V_TMP+1}, 0xffff0000, v{V_TMP}
        v_sub_f32 v{V_TMP}, v{V_TMP}, v{V_TMP+1}
        v_and_b32 v{V_TMP+2}, 0xffff0000, v{V_TMP}
        v_sub_f32 v{V_TMP}, v{V_TMP}, v{V_TMP+2}
        v_lshrrev_b32 v{V_TMP+1}, 16, v{V_TMP+1}
        v_or_b32 v{tQ1(q)+2}, v{V_TMP+1}, v{V_TMP+2}
        v_lshrrev_b32 v{tQ1(q)+3}, 16, v{V_TMP}
        """)
    A("s_mov_b64 exec, -1")
def t_first_loads(A):
    A(f"s_mov_b32 s{T.KO}, s{T.K0}"); A(f"s_mov_b32 s{T.VO}, s{T.V0}")
    t_load_k(A, 0, 0); t_load_v(A, 0, 0); t_load_k(A, 1, PTS)
    A(f"s_add_u32 s{T.KO}, s{T.K0}, {2*PTS}"); A(f"s_add_u32 s{T.VO}, s{T.V0}, {VTS}")

def c_att(A, L_NEXT):
    V_TMP=T.V_TMP; T0=T.T0; T1=T.T1; T2=T.T2; V_X=T.V_X; V_M=T.V_M; V_P=T.V_P
    A(f"""
    s_and_b32 s{T.HEAD}, s{S_WG}, 31
    s_lshr_b32 s{T.QB}, s{S_WG}, 5
    s_and_b32 s{T.QG}, s{S_WAVE}, 1
    s_lshr_b32 s{T.KH}, s{S_WAVE}, 1
    s_and_b32 s{T2}, s{T.HEAD}, 1
    s_mul_i32 s{T0}, s{T2}, 1536
    v_lshlrev_b32 v{T.V_AK0}, 4, v{V_LANE}
    v_add_u32 v{T.V_AK0}, s{T0}, v{T.V_AK0}
    s_lshl_b32 s{T0}, s{T2}, 3
    s_add_u32 s{T0}, s{T0}, 1024
    v_lshlrev_b32 v{T.V_AK1}, 4, v{V_T}
    v_add_u32 v{T.V_AK1}, s{T0}, v{T.V_AK1}
    v_min_u32 v{V_TMP+1}, 20, v{V_T}
    v_cmp_lt_u32 vcc, 20, v{V_T}
    v_mul_u32_u24 v{T.V_AV}, 22, v{V_H}
    v_addc_co_u32 v{V_TMP+1}, vcc, 0, v{V_TMP+1}, vcc
    v_add_u32 v{T.V_AV}, v{T.V_AV}, v{V_TMP+1}
    v_lshlrev_b32 v{T.V_AV}, 4, v{T.V_AV}
    s_lshl_b32 s{T0}, s{T.KH}, 5
    s_mul_i32 s{T.K0}, s{T0}, {PTS}
    s_mul_i32 s{T.V0}, s{T0}, {VTS}
    s_lshl_b32 s{T.TT0}, s{T.QB}, 3
    s_lshl_b32 s{T2}, s{T.QG}, 2
    s_add_u32 s{T.TT0}, s{T.TT0}, s{T2}
    s_mov_b32 s{T.LO}, -1
    s_mov_b32 s{T.LO+1}, 0
    s_mov_b32 s{T.FLAG}, 0
    s_mul_i32 s{T2}, s{S_L}, {hex(LSTRIDE)}
    s_lshr_b32 s{T0}, s{T.HEAD}, 1
    s_mul_i32 s{T0}, s{T0}, {64*PTS}
    s_add_u32 s{T0}, s{T0}, s{T2}
    s_add_u32 s{T1}, s{T0}, {hex(KP)}
    """)
    srd_reg(A, T.K, T1, 64*PTS)
    A(f"s_add_u32 s{T1}, s{T0}, {hex(QP)}")
    srd_reg(A, T.Q, T1, 64*PTS)
    A(f"s_mul_i32 s{T0}, s{T.HEAD}, {64*VTS}"); A(f"s_add_u32 s{T0}, s{T0}, s{T2}"); A(f"s_add_u32 s{T1}, s{T0}, {hex(VF)}")
    srd_reg(A, T.V, T1, 64*VTS)
    A(f"s_add_u32 s{T1}, s{T2}, {hex(OF)}")
    srd_reg(A, T.O, T1, XSZ)
    for q in range(4):
        for r in range(4): A(f"v_mov_b32 v{tQ1(q)+r}, 0")
    for p in range(2):
        A(f"v_mov_b32 v{tK1(p)+2}, 0x3f803f80"); A(f"v_mov_b32 v{tK1(p)+3}, 0x00003f80")
    for r in range(8): A(f"v_mov_b32 v{V_P+r}, 0")
    for r in range(4): A(f"v_mov_b32 v{tV1(1)+r}, 0")
    A(f"s_mul_i32 s{T0}, s{T.TT0}, {PTS}")
    A(f"s_add_u32 s{T1}, s{T0}, {2*PTS}")
    A(f"s_mov_b32 s{T.KO}, s{T.K0}"); A(f"s_mov_b32 s{T.VO}, s{T.V0}")
    stamp(A, 1)
    A("s_barrier")
    stamp(A, 2)
    t_load_k(A, 0, 0)
    for q in range(4):
        so = T0 if q < 2 else T1
        A(f"buffer_load_dwordx4 {v(tQ0(q),4)}, v{T.V_AK0}, s[{T.Q}:{T.Q+3}], s{so} offen{off(PTS*(q&1))}")
    A(f"s_mov_b64 exec, s[{T.LO}:{T.LO+1}]")
    for q in range(4):
        so = T0 if q < 2 else T1
        A(f"buffer_load_dwordx2 {v(tQ1(q),2)}, v{T.V_AK1}, s[{T.Q}:{T.Q+3}], s{so} offen{off(PTS*(q&1))}")
    A("s_mov_b64 exec, -1")
    t_load_v(A, 0, 0); t_load_k(A, 1, PTS)
    A(f"s_add_u32 s{T.KO}, s{T.K0}, {2*PTS}"); A(f"s_add_u32 s{T.VO}, s{T.V0}, {VTS}")
    A(f"""
    s_mul_i32 s{T0}, s{T.QB}, {8*PTS}
    s_mul_i32 s{T1}, s{T.QB}, {8*VTS}
    v_lshlrev_b32 v{V_TMP}, 4, v0
    """)
    npf = 0
    for j in range(5):
        A(f"buffer_load_dwordx4 {v(T.V_J+4*(j%3),4)}, v{V_TMP}, s[{T.K}:{T.K+3}], s{T0} offen"); npf += 1
        if j < 4: A(f"s_add_u32 s{T0}, s{T0}, 4096")
    for j in range(3):
        A(f"buffer_load_dwordx4 {v(T.V_J+12+4*j,4)}, v{V_TMP}, s[{T.V}:{T.V+3}], s{T1} offen"); npf += 1
        if j < 2: A(f"s_add_u32 s{T1}, s{T1}, 4096")
    A(f"s_waitcnt vmcnt({4+npf})")
    stamp(A, 3)
    for q in range(4):
        A(mf(tO(q), tK0(0), tQ0(q), None)); A(mf(tO(q), tK1(0), tQ1(q), tO(q)))
    for q in range(4): t_rowmax(A, V_M+q, tO(q), V_X+q)
    t_set_shift(A)
    for r in range(64): A(f"v_mov_b32 v{T.V_O+r}, 0")
    SETUP = "L_ca_setup"; LOOP = "L_ca_loop"; COMBINE = "L_ca_combine"
    A.label(SETUP)
    A(mf(tS(0), tK0(0), tQ0(0), None)); A(mf(tS(0), tK1(0), tQ1(0), tS(0)))
    A(f"s_mov_b32 s{T.CNT}, 16")
    A("s_nop 7")
    A(".p2align 6"); A.label(LOOP)
    for p in range(2):
        for q in range(4): t_period(A, p, q)
    A(f"s_add_u32 s{T.KO}, s{T.KO}, {2*PTS}"); A(f"s_add_u32 s{T.VO}, s{T.VO}, {2*VTS}")
    A(f"s_sub_u32 s{T.CNT}, s{T.CNT}, 1"); A(f"s_cmp_lg_u32 s{T.CNT}, 0"); A(f"s_cbranch_scc1 {LOOP}")
    stamp(A, 4)
    A(mf(tO(3), tV1(1), V_P+4, tO(3)))
    A("s_waitcnt vmcnt(0)")
    for q in range(4):
        A(f"v_mov_b32 v{tO(q)+12}, v{tO(q)+8}"); A(f"v_mov_b32 v{tO(q)+13}, v{tO(q)+8}")
    for q in range(4): A(f"v_permlane32_swap_b32 v{tO(q)+13}, v{tO(q)+12}")
    A(f"s_cmp_lg_u32 s{T.FLAG}, 0"); A(f"s_cbranch_scc1 {COMBINE}")
    A(f"v_mov_b32 v{V_TMP}, 0")
    for q in range(4):
        for r in range(0, 12, 2): A(f"v_max3_f32 v{V_TMP}, v{V_TMP}, |v{tO(q)+r}|, |v{tO(q)+r+1}|")
    A(f"""
    v_add_f32 v{V_TMP+2}, v{tO(0)+12}, v{tO(1)+12}
    v_add_f32 v{V_TMP+3}, v{tO(2)+12}, v{tO(3)+12}
    v_add_f32 v{V_TMP+2}, v{V_TMP+2}, v{V_TMP+3}
    s_mov_b32 s{T0}, {hex(f2u(2.0**40))}
    s_mov_b32 s{T1}, {hex(f2u(2.0**120))}
    v_cmp_gt_f32 vcc, s{T0}, v{V_TMP+2}
    v_cmp_gt_f32 s[{T.CC}:{T.CC+1}], s{T1}, v{V_TMP}
    s_and_b64 vcc, vcc, s[{T.CC}:{T.CC+1}]
    s_cmp_eq_u64 vcc, exec
    s_cbranch_scc1 {COMBINE}
    """)
    A(f"s_mov_b32 s{T.FLAG}, 1")
    A(f"s_mov_b64 exec, s[{T.LO}:{T.LO+1}]")
    for q in range(4): A(f"v_mov_b32 v{tQ1(q)+2}, 0"); A(f"v_mov_b32 v{tQ1(q)+3}, 0")
    A("s_mov_b64 exec, -1")
    for q in range(4): A(f"v_mov_b32 v{V_X+4+q}, 0xff800000")
    A(f"s_mov_b32 s{T.KO}, s{T.K0}"); A(f"s_mov_b32 s{T.CNT}, 32")
    TL = "L_ca_tm_loop"
    A.label(TL)
    t_load_k(A, 0, 0)
    A(f"s_add_u32 s{T.KO}, s{T.KO}, {PTS}")
    A("s_waitcnt vmcnt(0)")
    for q in range(4):
        A(mf(tO(q), tK0(0), tQ0(q), None)); A(mf(tO(q), tK1(0), tQ1(q), tO(q)))
    for q in range(4):
        t_rowmax(A, V_M+q, tO(q), V_X+q); A(f"v_max_f32 v{V_X+4+q}, v{V_X+4+q}, v{V_M+q}")
    A(f"s_sub_u32 s{T.CNT}, s{T.CNT}, 1"); A(f"s_cmp_lg_u32 s{T.CNT}, 0"); A(f"s_cbranch_scc1 {TL}")
    for q in range(4): A(f"v_mov_b32 v{V_M+q}, v{V_X+4+q}")
    t_first_loads(A)
    t_set_shift(A)
    for r in range(64): A(f"v_mov_b32 v{T.V_O+r}, 0")
    for r in range(8): A(f"v_mov_b32 v{V_P+r}, 0")
    for r in range(4): A(f"v_mov_b32 v{tV1(1)+r}, 0")
    A("s_waitcnt vmcnt(4)")
    A(f"s_branch {SETUP}")
    A.label(COMBINE)
    for q in range(4): A(f"v_mov_b32 v{tO(q)+13}, v{V_M+q}")
    A(f"""
    s_lshl_b32 s{T0}, s{S_WAVE}, 13
    s_add_u32 s{T0}, s{T0}, {A_CMB}
    v_lshlrev_b32 v{V_TMP}, 4, v{V_LANE}
    v_add_u32 v{V_TMP+1}, s{T0}, v{V_TMP}
    s_xor_b32 s{T1}, s{S_WAVE}, 2
    s_lshl_b32 s{T1}, s{T1}, 13
    s_add_u32 s{T1}, s{T1}, {A_CMB}
    v_add_u32 v{V_TMP+2}, s{T1}, v{V_TMP}
    s_cmp_eq_u32 s{T.KH}, 0
    """)
    C1 = "L_ca_c1"; FIN = "L_ca_fin"
    A(f"s_cbranch_scc0 {C1}")
    for kh in range(2):
        if kh == 1: A.label(C1)
        send = (2, 3) if kh == 0 else (0, 1); keep = (0, 1) if kh == 0 else (2, 3)
        for j, q in enumerate(send):
            for g in range(4): A(f"ds_write_b128 v{V_TMP+1}, {v(tO(q)+4*g,4)} offset:{4096*j + 1024*g}")
        A(f"s_mul_i32 s{T0}, s{T.HEAD}, 5"); A(f"v_add_u32 v{V_TMP+5}, s{T0}, v{V_H}"); A(f"v_lshlrev_b32 v{V_X+8}, 4, v{V_T}")
        for a_ in range(3):
            A(f"""
            v_add_u32 v{V_TMP+3}, {2*a_}, v{V_TMP+5}
            v_lshrrev_b32 v{V_TMP+4}, 2, v{V_TMP+3}
            v_lshl_add_u32 v{T.V_AO+a_}, v{V_TMP+4}, 10, v{V_X+8}
            v_and_b32 v{V_TMP+4}, 1, v{V_TMP+3}
            v_lshl_add_u32 v{T.V_AO+a_}, v{V_TMP+4}, 9, v{T.V_AO+a_}
            v_bfe_u32 v{V_TMP+4}, v{V_TMP+3}, 1, 1
            v_lshl_add_u32 v{T.V_AO+a_}, v{V_TMP+4}, 3, v{T.V_AO+a_}
            """)
        A("s_waitcnt lgkmcnt(0)"); A("s_barrier")
        for j in range(2):
            for g in range(4): A(f"ds_read_b128 {v(T.V_S+16*j+4*g,4)}, v{V_TMP+2} offset:{4096*j + 1024*g}")
        for j, q in enumerate(keep):
            o = tO(q); r_ = T.V_S + 16*j
            A(f"s_waitcnt lgkmcnt({4 if j == 0 else 0})")
            A(f"""
            v_max_f32 v{V_X}, v{o+13}, v{r_+13}
            v_sub_f32 v{V_X+1}, v{o+13}, v{V_X}
            v_sub_f32 v{V_X+2}, v{r_+13}, v{V_X}
            v_exp_f32 v{V_X+1}, v{V_X+1}
            v_exp_f32 v{V_X+2}, v{V_X+2}
            s_nop 0
            v_mul_f32 v{V_X+3}, v{V_X+1}, v{o+12}
            v_fmac_f32 v{V_X+3}, v{V_X+2}, v{r_+12}
            v_rcp_f32 v{V_X+3}, v{V_X+3}
            s_nop 0
            v_mul_f32 v{V_X+4}, v{V_X+1}, v{V_X+3}
            v_mul_f32 v{V_X+6}, v{V_X+2}, v{V_X+3}
            v_mov_b32 v{V_X+5}, v{V_X+4}
            v_mov_b32 v{V_X+7}, v{V_X+6}
            """)
            for pr in range(6): A(f"v_pk_mul_f32 {v(o+2*pr,2)}, {v(o+2*pr,2)}, {v(V_X+4,2)}")
            for pr in range(6): A(f"v_pk_fma_f32 {v(o+2*pr,2)}, {v(r_+2*pr,2)}, {v(V_X+6,2)}, {v(o+2*pr,2)}")
            pk = V_P if j == 0 else T.V_K
            for pr in range(6): A(f"v_cvt_pk_bf16_f32 v{pk+pr}, v{o+2*pr}, v{o+2*pr+1}")
            A(f"""
            s_add_u32 s{T1}, s{T.TT0}, {q}
            s_mul_i32 s{T1}, s{T1}, 40960
            buffer_store_dwordx2 {v(pk,2)}, v{T.V_AO}, s[{T.O}:{T.O+3}], s{T1} offen{SC}
            buffer_store_dwordx2 {v(pk+2,2)}, v{T.V_AO+1}, s[{T.O}:{T.O+3}], s{T1} offen{SC}
            s_mov_b64 exec, s[{T.LO}:{T.LO+1}]
            buffer_store_dwordx2 {v(pk+4,2)}, v{T.V_AO+2}, s[{T.O}:{T.O+3}], s{T1} offen{SC}
            s_mov_b64 exec, -1
            """)
        A(f"s_branch {FIN}")
    A.label(FIN)
    stamp(A, 5)
    A("s_waitcnt vmcnt(0)")
    A("s_barrier")
    stamp(A, 6)
    stamp_phase(A)
    A(f"s_branch {L_NEXT}")

class N:
    X=8; Wd=12; R=16; OUT=20; ST=24
    TB=29; CB=30; FINAL=31; XOFF=32; WOFF=33; FREE=34; CUR=35; CNT=36; T0=37; T1=38; T2=39; WT=40; WK=41
    XM0=43; WM0=44; NK=45; SLOT=48; NST=55; FREEX=56; T3=57
    V_XD=4; V_WR2=5; V_XR=8; V_WR=9; V_TMP=10; V_FR=40; V_ACC=72; V_E=120
def n_frW(setn, b): return N.V_FR + 16*setn + 4*b
def n_frX(setn): return N.V_FR + 16*setn + 12
def n_acc(b): return N.V_ACC + 16*b
def n_reads(setn, j):
    L = []
    for b in range(3):
        for jj in range(2):
            if b < 2: L.append(f"ds_read_b64_tr_b16 {v(n_frW(setn,b)+2*jj,2)}, v{N.V_WR} offset:{j*5120 + jj*1280 + b*256}")
            else:     L.append(f"ds_read_b64_tr_b16 {v(n_frW(setn,b)+2*jj,2)}, v{N.V_WR2} offset:{j*5120 + jj*1280}")
    L.insert(2, f"ds_read_b128 {v(n_frX(setn),4)}, v{N.V_XR} offset:{j*2048}")
    return L
def n_mfmas(setn):
    return [f"v_mfma_f32_32x32x16_bf16 {v(n_acc(b),16)}, {v(n_frW(setn,b),4)}, {v(n_frX(setn),4)}, {v(n_acc(b),16)}" for b in range(3)]
def n_stage(A, last=False):
    M = n_mfmas(0); R = n_reads(1, 1)
    A("s_waitcnt lgkmcnt(0)")
    A(M[0]); A(R[0]); A(R[1]); A(R[2]); A(M[1]); A(R[3]); A(R[4]); A(M[2]); A(R[5]); A(R[6])
    M = n_mfmas(1)
    A("s_waitcnt lgkmcnt(0)")
    if last:
        for m in M: A(m)
        return
    A(M[0])
    A(f"s_add_u32 s{N.CUR}, s{N.CUR}, {N_SLOT}")
    A(f"s_cmp_eq_u32 s{N.CUR}, {N_SLOT*N_NSLOT}")
    A(f"s_cselect_b32 s{N.T1}, {hex(-N_SLOT*(N_NSLOT-1) & 0xffffffff)}, s{N.SLOT}")
    A(f"s_cselect_b32 s{N.CUR}, 0, s{N.CUR}")
    A(f"v_add_u32 v{N.V_XR}, s{N.T1}, v{N.V_XR}"); A(f"v_add_u32 v{N.V_WR}, s{N.T1}, v{N.V_WR}"); A(f"v_add_u32 v{N.V_WR2}, s{N.T1}, v{N.V_WR2}")
    A("s_barrier")
    R = n_reads(0, 0)
    A(R[0]); A(R[1]); A(R[2]); A(M[1]); A(R[3]); A(R[4]); A(R[5]); A(R[6]); A(M[2])

def n_params(A, ffb):
    narrow_coords(A, N.TB, N.CB, N.T0, N.T1, N.T2)
    A(f"s_mov_b32 s{N.NST}, {27 if ffb else 10}"); A(f"s_mov_b32 s{N.NK}, {108 if ffb else 40}")

def c_narrow(A, L_TO_FA, L_TO_QKV, L_END):
    V_TMP=N.V_TMP; V_E=N.V_E; T0=N.T0; T1=N.T1; T2=N.T2; T3=N.T3
    A(f"""
    s_load_dwordx2 s[46:47], s[0:1], {KA_OUT}
    s_and_b32 s{N.WT}, s{S_WAVE}, 1
    s_lshr_b32 s{N.WK}, s{S_WAVE}, 1
    s_mov_b32 s{N.SLOT}, {N_SLOT}
    s_mov_b32 s{N.CUR}, 0
    s_cmp_eq_u32 s{N.NST}, 27
    s_cselect_b32 s{T0}, 2, 1
    s_cselect_b32 s{T2}, s{S_L}, 0
    s_mov_b32 s{N.FINAL}, s{T2}
    s_lshl_b32 s{T1}, s{S_L}, 1
    s_add_u32 s{T0}, s{T0}, s{T1}
    s_lshl_b32 s{T3}, s{T0}, 18
    s_add_u32 s{T3}, s{T3}, {hex(ST[0])}
    s_mul_i32 s{T0}, s{T0}, {XSZ}
    """)
    srd_reg(A, N.ST, T3, STSZ)
    A(f"""
    s_waitcnt lgkmcnt(0)
    s_cmp_eq_u32 s{N.FINAL}, 1
    s_cselect_b32 s{N.OUT}, s46, s{S_WS}
    s_cselect_b32 s{N.OUT+1}, s47, s{S_WS+1}
    s_cselect_b32 s{T0}, 0, s{T0}
    s_add_u32 s{N.OUT}, s{N.OUT}, s{T0}
    s_addc_u32 s{N.OUT+1}, s{N.OUT+1}, 0
    s_mov_b32 s{N.OUT+2}, {XSZ}
    s_mov_b32 s{N.OUT+3}, 0x20000
    v_lshlrev_b32 v{N.V_XD}, 4, v{V_LANE}
    s_lshl_b32 s{T0}, s{N.WT}, 12
    s_lshl_b32 s{T1}, s{N.WK}, 10
    s_add_u32 s{T0}, s{T0}, s{T1}
    v_add_u32 v{N.V_XR}, s{T0}, v{N.V_XD}
    s_lshl_b32 s{T0}, s{N.WK}, 2
    v_add_u32 v{V_TMP}, s{T0}, v{V_H}
    v_mul_u32_u24 v{N.V_WR}, 640, v{V_TMP}
    v_add_u32 v{N.V_WR}, 8192, v{N.V_WR}
    v_and_b32 v{V_TMP}, 3, v{V_LANE}
    v_lshlrev_b32 v{V_TMP}, 3, v{V_TMP}
    v_add_u32 v{N.V_WR}, v{N.V_WR}, v{V_TMP}
    v_bfe_u32 v{V_TMP}, v{V_LANE}, 2, 2
    v_lshlrev_b32 v{V_TMP+1}, 5, v{V_TMP}
    v_add_u32 v{N.V_WR2}, v{N.V_WR}, v{V_TMP+1}
    v_add_u32 v{N.V_WR2}, 512, v{N.V_WR2}
    v_lshlrev_b32 v{V_TMP}, 6, v{V_TMP}
    v_add_u32 v{N.V_WR}, v{N.V_WR}, v{V_TMP}
    v_bfe_u32 v{V_TMP}, v{V_LANE}, 4, 1
    v_lshlrev_b32 v{V_TMP}, 5, v{V_TMP}
    v_add_u32 v{N.V_WR}, v{N.V_WR}, v{V_TMP}
    """)
    for r in range(48): A(f"v_mov_b32 v{N.V_ACC+r}, 0")
    A(f"""
    s_lshl_b32 s{T0}, s{N.TB}, 1
    s_add_u32 s{T0}, s{T0}, s{N.WT}
    s_mul_i32 s{T0}, s{T0}, 40
    s_mul_i32 s{T1}, s{N.CB}, 5
    s_add_u32 s{T0}, s{T0}, s{T1}
    s_mul_i32 s{T1}, s{N.WK}, 3
    s_add_u32 s{T0}, s{T0}, s{T1}
    s_lshl_b32 s{T3}, s{T0}, 10
    s_sub_u32 s{N.CNT}, s{N.NST}, 1
    """)
    stamp(A, 1)
    A("s_barrier")
    stamp(A, 2)
    NR = "L_cn_nores"
    A(f"s_cmp_eq_u32 s{N.NST}, 10"); A(f"s_cselect_b32 s{T0}, s{S_L}, 1"); A(f"s_cmp_lg_u32 s{T0}, 0"); A(f"s_cbranch_scc1 {NR}")
    srd_const(A, N.R, XF[0], XSZ)
    for k in range(3):
        A(f"buffer_load_dwordx4 {v(V_RESP+4*k,4)}, v{N.V_XD}, s[{N.R}:{N.R+3}], s{T3} offen{off(1024*k)}")
    A.label(NR)
    A("s_barrier")
    stamp(A, 3)
    for r in n_reads(0, 0): A(r)
    L = "L_cn_loop"
    A(".p2align 4"); A.label(L)
    n_stage(A)
    A(f"s_sub_u32 s{N.CNT}, s{N.CNT}, 1"); A(f"s_cmp_lg_u32 s{N.CNT}, 0"); A(f"s_cbranch_scc1 {L}")
    n_stage(A, last=True)
    stamp(A, 4)
    A(f"""
    s_mul_i32 s{T0}, s{S_WAVE}, 6144
    s_add_u32 s{T0}, s{T0}, {N_XCH}
    v_add_u32 v{V_TMP}, s{T0}, v{N.V_XD}
    s_xor_b32 s{T1}, s{S_WAVE}, 2
    s_mul_i32 s{T1}, s{T1}, 6144
    s_add_u32 s{T1}, s{T1}, {N_XCH}
    v_add_u32 v{V_TMP+1}, s{T1}, v{N.V_XD}
    s_lshl_b32 s{T0}, s{N.TB}, 1
    s_add_u32 s{T0}, s{T0}, s{N.WT}
    """)
    def areg(k): return n_acc(k >> 1) + 8*(k & 1)
    W1 = "L_cn_wk1"; FIN = "L_cn_fin"
    A(f"s_cmp_eq_u32 s{N.WK}, 0"); A(f"s_cbranch_scc0 {W1}")
    for wk in range(2):
        if wk == 1: A.label(W1)
        keep = (0, 1, 2) if wk == 0 else (3, 4)
        send = (3, 4) if wk == 0 else (0, 1, 2)
        for j, k in enumerate(send):
            A(f"ds_write_b128 v{V_TMP}, {v(areg(k),4)} offset:{2048*j}")
            A(f"ds_write_b128 v{V_TMP}, {v(areg(k)+4,4)} offset:{2048*j+1024}")
        A("s_waitcnt lgkmcnt(0)"); A("s_barrier")
        for j, k in enumerate(keep):
            A(f"ds_read_b128 {v(V_E+8*j,4)}, v{V_TMP+1} offset:{2048*j}")
            A(f"ds_read_b128 {v(V_E+8*j+4,4)}, v{V_TMP+1} offset:{2048*j+1024}")
        A(f"v_mov_b32 v{V_TMP+2}, 0"); A(f"v_mov_b32 v{V_TMP+3}, 0")
        A("s_waitcnt vmcnt(0) lgkmcnt(0)")
        for j, k in enumerate(keep):
            a_ = areg(k); p_ = V_E + 8*j; r_ = V_RESP + 4*j
            for pr in range(4): A(f"v_pk_add_f32 {v(a_+2*pr,2)}, {v(a_+2*pr,2)}, {v(p_+2*pr,2)}")
            for pr in range(4):
                A(f"v_lshlrev_b32 v{p_+2*pr}, 16, v{r_+pr}"); A(f"v_and_b32 v{p_+2*pr+1}, 0xffff0000, v{r_+pr}")
            for pr in range(4): A(f"v_pk_add_f32 {v(a_+2*pr,2)}, {v(a_+2*pr,2)}, {v(p_+2*pr,2)}")
            for pr in range(4): A(f"v_cvt_pk_bf16_f32 v{r_+pr}, v{a_+2*pr}, v{a_+2*pr+1}")
        OUTF = f"L_cn_rowmajor_{wk}"
        A(f"s_cmp_eq_u32 s{N.FINAL}, 1"); A(f"s_cbranch_scc1 {OUTF}")
        for j, k in enumerate(keep):
            A(f"buffer_store_dwordx4 {v(V_RESP+4*j,4)}, v{N.V_XD}, s[{N.OUT}:{N.OUT+3}], s{T3} offen{off(1024*j)}{SC}")
        for j, k in enumerate(keep):
            a_ = areg(k)
            for x in range(8):
                A(f"v_add_f32 v{V_TMP+2}, v{V_TMP+2}, v{a_+x}"); A(f"v_fmac_f32 v{V_TMP+3}, v{a_+x}, v{a_+x}")
        halfsum(A, V_TMP+2, V_TMP+4); halfsum(A, V_TMP+3, V_TMP+5)
        A(f"""
        s_lshl_b32 s{T0}, s{T0}, 12
        s_lshl_b32 s{T2}, s{N.CB}, 9
        s_add_u32 s{T0}, s{T0}, s{T2}
        s_add_u32 s{T0}, s{T0}, {8*wk}
        v_lshlrev_b32 v{V_TMP+4}, 4, v{V_T}
        buffer_store_dwordx2 {v(V_TMP+2,2)}, v{V_TMP+4}, s[{N.ST}:{N.ST+3}], s{T0} offen{SC}
        s_branch {FIN}
        """)
        A.label(OUTF)
        A(f"""
        s_lshl_b32 s{T0}, s{T0}, 5
        v_add_u32 v{V_TMP+4}, s{T0}, v{V_T}
        v_mul_u32_u24 v{V_TMP+4}, 1280, v{V_TMP+4}
        v_lshlrev_b32 v{V_TMP+5}, 4, v{V_H}
        v_add_u32 v{V_TMP+4}, v{V_TMP+4}, v{V_TMP+5}
        s_mul_i32 s{T2}, s{N.CB}, 160
        """)
        for j, k in enumerate(keep):
            r_ = V_RESP + 4*j
            A(f"v_permlane32_swap_b32 v{r_}, v{r_+2}"); A(f"v_permlane32_swap_b32 v{r_+1}, v{r_+3}")
        for j, k in enumerate(keep):
            A(f"buffer_store_dwordx4 {v(V_RESP+4*j,4)}, v{V_TMP+4}, s[{N.OUT}:{N.OUT+3}], s{T2} offen{off(32*k)}")
        stamp(A, 5); stamp(A, 6); stamp_phase(A)
        A(f"s_branch {L_END}")
    A.label(FIN)
    stamp(A, 5)
    A("s_waitcnt vmcnt(0)")
    A("s_barrier")
    stamp(A, 6)
    stamp_phase(A)
    A(f"s_cmp_eq_u32 s{N.NST}, 10"); A(f"s_cbranch_scc1 {L_TO_FA}")
    A(f"s_add_u32 s{S_L}, s{S_L}, 1")
    A(f"s_branch {L_TO_QKV}")

def ln_setup_w(A):
    T0=N.T0; T1=N.T1; T2=N.T2
    A(f"""
    v_lshlrev_b32 v{N.V_XD}, 4, v{V_LANE}
    s_mov_b32 s{T0}, {hex(WOP)}
    s_mov_b32 s{T1}, {WOPSZ}
    s_cmp_eq_u32 s{N.NST}, 27
    s_cselect_b32 s{T0}, {hex(W2P)}, s{T0}
    s_cselect_b32 s{T1}, {W2PSZ}, s{T1}
    """)
    srd_reg(A, N.Wd, T0, f"s{T1}")
    A(f"""
    s_mul_i32 s{T0}, s{S_LW}, 3072
    s_cmp_eq_u32 s{S_LW}, 3
    s_cselect_b32 s{T0}, 8192, s{T0}
    s_add_u32 s{N.WM0}, s{T0}, 8192
    s_lshl_b32 s{T1}, s{N.NK}, 2
    s_mul_i32 s{T1}, s{T1}, 640
    s_mul_i32 s{T1}, s{T1}, s{N.CB}
    s_add_u32 s{N.WOFF}, s{T1}, s{T0}
    s_mov_b32 s{N.FREE}, 0
    s_mov_b32 s{N.FREEX}, 0
    s_and_b32 s{N.WT}, s{S_LW}, 1
    s_lshr_b32 s{N.WK}, s{S_LW}, 1
    s_lshl_b32 s{N.XM0}, s{N.WT}, 12
    s_lshl_b32 s{T1}, s{N.WK}, 11
    s_add_u32 s{N.XM0}, s{N.XM0}, s{T1}
    """)
def ln_setup_x(A):
    T0=N.T0; T1=N.T1; T2=N.T2
    A(f"""
    s_mov_b32 s{T0}, {hex(OF)}
    s_mov_b32 s{T1}, {XSZ}
    s_cmp_eq_u32 s{N.NST}, 27
    s_cselect_b32 s{T0}, {hex(HF)}, s{T0}
    s_cselect_b32 s{T1}, {HSZ}, s{T1}
    s_mul_i32 s{T2}, s{S_L}, {hex(LSTRIDE)}
    s_add_u32 s{T0}, s{T0}, s{T2}
    """)
    srd_reg(A, N.X, T0, f"s{T1}")
    A(f"""
    s_lshl_b32 s{T0}, s{N.TB}, 1
    s_add_u32 s{T0}, s{T0}, s{N.WT}
    s_mul_i32 s{T0}, s{T0}, s{N.NK}
    s_lshl_b32 s{T1}, s{N.WK}, 1
    s_add_u32 s{T0}, s{T0}, s{T1}
    s_lshl_b32 s{N.XOFF}, s{T0}, 10
    """)
def ln_wrap(A, reg):
    A(f"s_add_u32 s{reg}, s{reg}, {N_SLOT}"); A(f"s_cmp_eq_u32 s{reg}, {N_SLOT*N_NSLOT}"); A(f"s_cselect_b32 s{reg}, 0, s{reg}")
def ln_issue_x(A):
    A(f"s_add_u32 m0, s{N.FREEX}, s{N.XM0}")
    ln_wrap(A, N.FREEX)
    for k in range(2): A(f"buffer_load_dwordx4 v{N.V_XD}, s[{N.X}:{N.X+3}], s{N.XOFF} offen{off(1024*k)} lds")
    A(f"s_add_u32 s{N.XOFF}, s{N.XOFF}, 4096")
def ln_make_issue_w(nw):
    def f(A):
        A(f"s_add_u32 m0, s{N.FREE}, s{N.WM0}")
        ln_wrap(A, N.FREE)
        for k in range(nw): A(f"buffer_load_dwordx4 v{N.V_XD}, s[{N.Wd}:{N.Wd+3}], s{N.WOFF} offen{off(1024*k)} lds")
        A(f"s_add_u32 s{N.WOFF}, s{N.WOFF}, 10240")
    return f
def ln_prefetch_w(A, tag):
    L2 = f"L_lnpf2_{tag}"; LD = f"L_lnpfd_{tag}"
    A(f"s_cmp_lt_u32 s{S_LW}, 2"); A(f"s_cbranch_scc0 {L2}")
    for s_ in range(N_NSLOT): ln_make_issue_w(3)(A)
    A(f"s_branch {LD}")
    A.label(L2)
    for s_ in range(N_NSLOT): ln_make_issue_w(2)(A)
    A.label(LD)

def stamp(A, i):
    if asmlib.STAMP: A(f"s_memtime s[{66+2*i}:{67+2*i}]")
def stamp_phase(A):
    if not asmlib.STAMP: return
    A("s_memrealtime s[80:81]")
    A("s_waitcnt lgkmcnt(0)")
    A(f"s_add_u32 s84, s{S_WS}, 0x4000000"); A(f"s_addc_u32 s85, s{S_WS+1}, 0"); A("s_mov_b32 s86, 0x400000"); A("s_mov_b32 s87, 0x20000")
    A(f"s_lshl_b32 s90, s91, 16"); A(f"v_mov_b32 v250, s{S_WG}"); A("v_lshlrev_b32 v250, 8, v250")
    A(f"v_mov_b32 v251, s{S_WAVE}"); A("v_lshlrev_b32 v251, 5, v251"); A("v_add_u32 v250, v250, v251")
    for i in range(7):
        A(f"v_mov_b32 v251, s{66+2*i}"); A(f"buffer_store_dword v251, v250, s[84:87], s90 offen offset:{4*i}")
    A("v_mov_b32 v251, s80"); A("buffer_store_dword v251, v250, s[84:87], s90 offen offset:28")
    A("s_add_u32 s91, s91, 1")

def gen_mega(name):
    A = Asm()
    END = "L_end"
    A(f".globl {name}"); A(".p2align 8"); A(f".type {name},@function"); A.label(name)
    A(f"""
    s_load_dwordx2 s[{S_WS}:{S_WS+1}], s[0:1], {KA_WS}
    s_cmp_ge_u32 s{S_WG}, 256
    s_cbranch_scc1 {END}
    v_lshrrev_b32 v4, 6, v0
    v_and_b32 v{V_LANE}, 63, v0
    v_readfirstlane_b32 s{S_WAVE}, v4
    v_lshrrev_b32 v{V_H}, 5, v{V_LANE}
    v_and_b32 v{V_T}, 31, v{V_LANE}
    s_mov_b32 s{S_L}, 0
    s_mov_b32 s{S_OOB}, {hex(OOB)}
    s_mov_b32 s91, 0
    s_and_b32 s{S_LW}, s{S_WAVE}, 3
    s_waitcnt lgkmcnt(0)
    """)
    srd_const(A, S_FL, FLAGS, FLAGSZ)
    A(f"s_cmp_ge_u32 s{S_WAVE}, 4"); A("s_cbranch_scc1 L_loader")
    c_prep(A)
    A.label("C_QKV")
    stamp(A, 0)
    wide_coords(A, False, W.TB, W.CB, W.T0, W.T1, W.T2, "C_ATT")
    w_params(A, False)
    A("s_branch C_WIDE")
    A.label("C_FA")
    stamp(A, 0)
    wide_coords(A, True, W.TB, W.CB, W.T0, W.T1, W.T2, "C_FB")
    w_params(A, True)
    A.label("C_WIDE")
    c_wide(A, "C_FB", "C_ATT")
    A.label("C_ATT")
    stamp(A, 0)
    c_att(A, "C_O")
    A.label("C_O")
    stamp(A, 0)
    n_params(A, False)
    A("s_branch C_NARROW")
    A.label("C_FB")
    stamp(A, 0)
    n_params(A, True)
    A.label("C_NARROW")
    c_narrow(A, "C_FA", "C_QKV", END)
    A(".p2align 6")
    A.label("L_loader")
    A(f"s_load_dwordx2 s[50:51], s[0:1], {KA_WQKV}"); A(f"s_load_dwordx2 s[52:53], s[0:1], {KA_DBG}")
    A("s_waitcnt lgkmcnt(0)")
    srd_ptr(A, W.Wd, 50, 640*3840); srd_const(A, W.X, XF[0], XSZ)
    for r in range(4, 9): A(f"v_mov_b32 v{r}, 0")
    A(f"s_or_b32 s92, s{S_WG}, s{S_LW}"); A("s_cmp_lg_u32 s92, 0"); A("s_cbranch_scc1 L_nonce_made")
    A("s_waitcnt lgkmcnt(0)")
    srd_ptr(A, 56, 52, 256)
    A(f"""
    v_mov_b32 v{VP_T}, {NONCE-FLAGS}
    buffer_load_dword v{VP_D}, v{VP_T}, s[{S_FL}:{S_FL+3}], 0 offen sc0 sc1
    v_lshlrev_b32 v{VP_T+1}, 7, v{V_LANE}
    s_waitcnt vmcnt(0)
    v_add_u32 v{VP_D}, 1, v{VP_D}
    v_mov_b32 v{VP_D2}, 1
    s_mov_b64 exec, 3
    buffer_store_dwordx2 v[{VP_D}:{VP_D2}], v{VP_T+1}, s[56:59], 0 offen sc0 sc1
    s_mov_b64 exec, 1
    buffer_store_dword v{VP_D}, v{VP_T}, s[{S_FL}:{S_FL+3}], 0 offen sc0 sc1
    s_mov_b64 exec, -1
    """)
    A.label("L_nonce_made")
    A(f"s_mov_b32 s{W.MODE}, 4")
    wide_coords(A, False, W.TB, W.CB, W.T0, W.T1, W.T2, "L_prep_nonce")
    w_params(A, False)
    A("s_waitcnt lgkmcnt(0)")
    lw_setup_w(A, 50)
    lw_prefetch_w(A)
    A.label("L_prep_nonce")
    A("s_waitcnt lgkmcnt(0)")
    srd_ptr(A, 56, 52, 256)
    A(f"s_cmp_lg_u32 s{S_LW}, 0"); A("s_cbranch_scc1 L_nonce_done")
    A.label("L_nonce_wait")
    A(f"s_mov_b32 s{S_PCNT}, 0x40000")
    A(f"s_and_b32 s92, s{S_WG}, 1"); A("s_lshl_b32 s92, s92, 7"); A(f"v_mov_b32 v{VP_T+1}, s92")
    A.label("L_nonce_poll")
    A(f"""
    buffer_load_dwordx2 v[{VP_D}:{VP_D2}], v{VP_T+1}, s[56:59], 0 offen sc0 sc1
    s_waitcnt vmcnt(0)
    v_readfirstlane_b32 s{S_NONCE}, v{VP_D}
    v_readfirstlane_b32 s92, v{VP_D2}
    s_cmp_eq_u32 s92, 1
    s_cbranch_scc1 L_nonce_done
    s_sleep 4
    s_sub_u32 s{S_PCNT}, s{S_PCNT}, 1
    s_cmp_lg_u32 s{S_PCNT}, 0
    s_cbranch_scc1 L_nonce_poll
    """)
    A.label("L_nonce_done")
    mb_from_prep(A, 40)
    for _ in range(4): A("s_barrier")
    notify(A)
    A(f"s_cmp_eq_u32 s{W.MODE}, 4"); A("s_cbranch_scc1 L_ATT_POLL")
    A.label("L_WIDE_POLL")
    A(f"""
    s_cmp_eq_u32 s{W.MODE}, 3
    s_cselect_b32 s{W.T0}, 1, 0
    s_lshl_b32 s{W.T1}, s{S_L}, 1
    s_add_u32 s{W.T0}, s{W.T0}, s{W.T1}
    s_mul_i32 s{W.T0}, s{W.T0}, {XSZ}
    """)
    srd_reg(A, W.X, W.T0, XSZ)
    A(f"""
    s_lshl_b32 s{W.T0}, s{W.TB}, 2
    s_add_u32 s{W.T0}, s{W.T0}, s{S_LW}
    s_mul_i32 s{W.XOFF}, s{W.T0}, 40960
    """)
    A(f"""
    s_lshl_b32 s{W.T0}, s{W.CB}, 4
    s_add_u32 s{W.T0}, s{W.T0}, s{W.TB}
    s_lshl_b32 s{W.T1}, s{W.TB}, 4
    s_add_u32 s{W.T1}, s{W.T1}, s{W.CB}
    s_cmp_eq_u32 s{W.MODE}, 3
    s_cselect_b32 s{W.T0}, s{W.T1}, s{W.T0}
    s_cselect_b32 s{W.T2}, {hex(MB_FA)}, {MB_QKV}
    s_lshl_b32 s{W.T0}, s{W.T0}, 7
    s_add_u32 s{W.T0}, s{W.T0}, s{W.T2}
    s_mul_i32 s{W.T3}, s{S_L}, {hex(MB_LAYER)}
    s_add_u32 s{W.T3}, s{W.T3}, s{W.T0}
    s_cmp_eq_u32 s{W.MODE}, 3
    s_cselect_b32 s{W.T1}, 1, s{S_L}
    s_cmp_eq_u32 s{W.T1}, 0
    s_cselect_b32 s{W.T1}, 24, 16
    """)
    poll_slots(A, f"s{W.T1}")
    poll(A, W.T3)
    A("s_barrier")
    emit_sched(A, sched_wfirst(W.NST, 4, 4), 4, 4, lw_issue_x, lw_issue_s, W.CNT, "lw")
    A("s_barrier")
    A(f"s_cmp_eq_u32 s{W.MODE}, 3"); A("s_cbranch_scc1 L_wide_fa_end")
    mb_from_qkv(A, W.T0, W.T1, W.T2)
    A("s_barrier")
    notify(A)
    A("s_branch L_ATT_POLL")
    A.label("L_wide_fa_end")
    A(f"s_lshl_b32 s{W.T0}, s{W.TB}, 4")
    mb_simple(A, W.T1, W.T0, 0, W.CB, 16, MB_FB)
    n_params(A, True); ln_setup_w(A); ln_prefetch_w(A, "fb")
    A("s_barrier")
    notify(A)
    A("s_branch L_NARROW_POLL")
    A.label("L_ATT_POLL")
    HEAD=40; QB=41; CA=42; CB_=43; T0=44; T1=45; SO=46
    A(f"""
    s_and_b32 s{HEAD}, s{S_WG}, 31
    s_lshr_b32 s{QB}, s{S_WG}, 5
    s_mul_i32 s{T0}, s{HEAD}, 20
    s_lshr_b32 s{CA}, s{T0}, 7
    s_add_u32 s{T0}, s{T0}, 19
    s_lshr_b32 s{CB_}, s{T0}, 7
    s_cmp_lg_u32 s{CA}, s{CB_}
    s_cselect_b64 s[92:93], -1, 0
    v_lshlrev_b32 v{VP_OFF}, 2, v{V_LANE}
    v_bfe_u32 v{VP_T}, v{V_LANE}, 4, 1
    v_cmp_eq_u32 vcc, 0, v{VP_T}
    s_or_b64 vcc, vcc, s[92:93]
    v_mov_b32 v{VP_T}, s{S_OOB}
    v_mov_b32 v{VP_EXP}, s{S_NONCE}
    v_cndmask_b32 v{VP_OFF}, v{VP_T}, v{VP_OFF}, vcc
    v_cndmask_b32 v{VP_EXP}, 0, v{VP_EXP}, vcc
    v_lshlrev_b32 v{VP_OFF2}, 2, v{V_LANE}
    v_add_u32 v{VP_OFF2}, 256, v{VP_OFF2}
    v_cmp_gt_u32 vcc, 2, v{V_LANE}
    v_cmp_gt_u32 s[88:89], 4, v{V_LANE}
    s_and_b64 s[88:89], s[88:89], s[92:93]
    s_or_b64 vcc, vcc, s[88:89]
    v_mov_b32 v{VP_EXP2}, s{S_NONCE}
    v_cndmask_b32 v{VP_OFF2}, v{VP_T}, v{VP_OFF2}, vcc
    v_cndmask_b32 v{VP_EXP2}, 0, v{VP_EXP2}, vcc
    """)
    region(A, SO, MB_ATT)
    A(f"s_lshl_b32 s{T0}, s{S_WG}, 9"); A(f"s_add_u32 s{SO}, s{SO}, s{T0}")
    poll(A, SO, two=True)
    A("s_barrier")
    A(f"s_lshl_b32 s{T0}, s{QB}, 5")
    mb_simple(A, T1, T0, 0, HEAD, 32, MB_O)
    n_params(A, False); ln_setup_w(A); ln_prefetch_w(A, "o")
    A("s_barrier")
    A("s_barrier")
    notify(A)
    A.label("L_NARROW_POLL")
    ln_setup_x(A)
    A(f"""
    s_lshl_b32 s{N.T0}, s{N.TB}, 3
    s_add_u32 s{N.T0}, s{N.T0}, s{N.CB}
    s_lshl_b32 s{N.T0}, s{N.T0}, 7
    s_cmp_eq_u32 s{N.NST}, 27
    s_cselect_b32 s{N.T1}, {hex(MB_FB)}, {hex(MB_O) if False else 0}
    s_cselect_b32 s{N.T2}, 14, 32
    s_cbranch_scc1 L_np_fb
    s_mov_b32 s{N.T1}, {hex(MB_O)}
    """)
    A.label("L_np_fb")
    A(f"s_add_u32 s{N.T0}, s{N.T0}, s{N.T1}"); A(f"s_mul_i32 s{N.T3}, s{S_L}, {hex(MB_LAYER)}"); A(f"s_add_u32 s{N.T3}, s{N.T3}, s{N.T0}")
    poll_slots(A, f"s{N.T2}")
    poll(A, N.T3)
    A("s_barrier")
    for nw in (3, 2):
        for nst in (10, 27):
            nxt = f"L_ln_next_{nw}_{nst}"
            A(f"s_cmp_lt_u32 s{S_LW}, 2"); A(f"s_cbranch_scc{0 if nw == 3 else 1} {nxt}")
            A(f"s_cmp_eq_u32 s{N.NST}, {nst}"); A(f"s_cbranch_scc0 {nxt}")
            iw = ln_make_issue_w(nw)
            def is_s(A_, iw=iw): ln_issue_x(A_); iw(A_)
            emit_sched(A, sched_wfirst(nst, N_NSLOT, N_NSLOT), 2, nw, ln_issue_x, is_s, N.CNT, f"ln{nw}_{nst}")
            A("s_branch L_ln_done")
            A.label(nxt)
    A.label("L_ln_done")
    A("s_barrier")
    A(f"s_and_b32 s60, s{N.TB}, 1"); A(f"s_lshl_b32 s60, s60, 3"); A(f"s_add_u32 s60, s60, s{N.CB}"); A(f"s_lshr_b32 s61, s{N.TB}, 1")
    A(f"s_cmp_eq_u32 s{N.NST}, 27"); A("s_cbranch_scc1 L_after_fb")
    A(f"s_lshl_b32 s61, s61, 4")
    mb_simple(A, 62, 61, 0, 60, 14, MB_FA)
    wide_coords(A, True, W.TB, W.CB, W.T0, W.T1, W.T2, "L_o_fa_idle")
    w_params(A, True)
    A(f"s_load_dwordx2 s[50:51], s[0:1], {KA_W1}"); A("s_waitcnt lgkmcnt(0)")
    lw_setup_w(A, 50); lw_prefetch_w(A)
    A("s_barrier"); notify(A)
    A("s_branch L_WIDE_POLL")
    A.label("L_o_fa_idle")
    n_params(A, True); ln_setup_w(A); ln_prefetch_w(A, "fb2")
    A("s_barrier"); notify(A)
    A("s_branch L_NARROW_POLL")
    A.label("L_after_fb")
    A(f"s_cmp_eq_u32 s{S_L}, 1"); A(f"s_cbranch_scc1 {END}")
    mb_simple(A, 62, 61, 4, 60, 15, MB_QKV, layer_add=1)
    A(f"s_mov_b32 s{S_L}, 1")
    wide_coords(A, False, W.TB, W.CB, W.T0, W.T1, W.T2, "L_fb_qkv_idle")
    w_params(A, False)
    A(f"s_load_dwordx2 s[50:51], s[0:1], {KA_WQKV}"); A("s_waitcnt lgkmcnt(0)")
    lw_setup_w(A, 50); lw_prefetch_w(A)
    A("s_barrier"); notify(A)
    A("s_branch L_WIDE_POLL")
    A.label("L_fb_qkv_idle")
    A("s_barrier"); notify(A)
    A("s_branch L_ATT_POLL")
    A.label(END)
    A("s_endpgm")
    desc = f""".section .rodata,"a"
.p2align 6
.amdhsa_kernel {name}
  .amdhsa_next_free_vgpr 256
  .amdhsa_next_free_sgpr 102
  .amdhsa_accum_offset 256
  .amdhsa_group_segment_fixed_size 0
  .amdhsa_kernarg_size 72
  .amdhsa_user_sgpr_count 2
  .amdhsa_user_sgpr_kernarg_segment_ptr 1
  .amdhsa_system_sgpr_workgroup_id_x 1
  .amdhsa_float_denorm_mode_32 3
.end_amdhsa_kernel
.text
"""
    return A, desc

def build(path, name="interleave_layers__mha_block__dense_activation_silu__prompt_kernel"):
    hdr = open('interleave_layers__mha_block__dense_activation_silu__prompt.s.ref').read().split("; Override launch")[0]
    A, desc = gen_mega(name)
    lines, n = hazard_pass(A.lines)
    A.lines = lines
    out = hdr + f"; @launch grid=(256,1,1) block=(512,1,1) lds={LDS_BYTES}\n" + '.amdgcn_target "amdgcn-amd-amdhsa--gfx950"\n.text\n' + A.text() + desc
    open(path, 'w').write(out)
    print(path, 'nops', n, 'lines', len(out.splitlines()), 'bytes', len(out))
if __name__ == "__main__":
    build('mega.s')
    asmlib.STAMP = True
    build('mega_stamp.s')
```

```python
from asmlib import *
from mlayout import *
import asmlib, struct
def f2u(x): return struct.unpack("<I", struct.pack("<f", x))[0]
QSCALE = (DH ** -0.5) * 1.4426950408889634
SC = " sc0 sc1"
OOB = 0x7f000000
EXP = dict(nowait=False, nomfma=False, nodma=False, nobar=False, noread=False)

S_WG=2; S_WAVE=3; S_WS=4; S_NONCE=6; S_L=7
S_K16=63; S_K8=62; S_K10=61; S_FOFF=94; S_PCNT=95; S_FL=96; S_LW=100; S_OOB=101
V_LANE=1; V_H=2; V_T=3
V_RESP=232
WW_BASE=0; WW_N=6; WX_BASE=98304; WX_N=3; W_SLOT=16384; W_SCR=147456
NX_BASE=0; NX_N=6; NX_SLOT=8192; NW_BASE=49152; NW_N=10; NW_SLOT=10240; N_XCH=120832
A_CMB=0
P_SCR=126976
LDS_BYTES=163840

def srd_const(A, d, off, size):
    A(f"s_add_u32 s{d}, s{S_WS}, {hex(off)}"); A(f"s_addc_u32 s{d+1}, s{S_WS+1}, 0")
    A(f"s_mov_b32 s{d+2}, {size}"); A(f"s_mov_b32 s{d+3}, 0x20000")
def srd_reg(A, d, soff, size):
    A(f"s_add_u32 s{d}, s{S_WS}, s{soff}"); A(f"s_addc_u32 s{d+1}, s{S_WS+1}, 0")
    A(f"s_mov_b32 s{d+2}, {size}"); A(f"s_mov_b32 s{d+3}, 0x20000")
def srd_ptr(A, d, p, size):
    A(f"s_mov_b32 s{d}, s{p}"); A(f"s_mov_b32 s{d+1}, s{p+1}")
    A(f"s_mov_b32 s{d+2}, {size}"); A(f"s_mov_b32 s{d+3}, 0x20000")
def halfsum(A, x, tmp):
    A(f"v_mov_b32 v{tmp}, v{x}"); A(f"v_permlane32_swap_b32 v{x}, v{tmp}"); A(f"v_add_f32 v{x}, v{x}, v{tmp}")
def off(x): return f" offset:{x}" if x else ""

def sched2(nst, nxs, nws, prew):
    out = []; nx = 0; nw = prew
    for j in range(-1, nst-1):
        ops = []; n = 0
        while nx < nst and nx - nxs + 1 <= j and (n < 2 or nx <= j + 1):
            ops.append(('X', nx)); nx += 1; n += 1
        n = 0
        while nw < nst and nw - nws + 1 <= j and (n < 1 or nw <= j + 1):
            ops.append(('W', nw)); nw += 1; n += 1
        assert nx > j + 1 and max(nw, prew) > j + 1
        out.append((ops, j + 1))
    return out
def emit_sched(A, sched, cx, cw, issue_x, issue_w, scnt, tag, loads=None, post=None):
    loads = loads or {}; post = post or {}
    q = []; items = []
    for n, (ops, tgt) in enumerate(sched):
        for kind, s_ in ops: q.append((kind, s_, cx if kind == 'X' else cw))
        if n in loads: q.append(('E', -1, loads[n][1]))
        idx = max(i for i, (k, st, c) in enumerate(q) if st == tgt)
        wait = sum(c for (k, st, c) in q[idx+1:])
        items.append((tuple(k for k, _ in ops), wait, n if (n in loads or n in post) else None))
    i = 0; k = 0; first = [True]; nb = [1]
    while i < len(items):
        j = i
        while j < len(items) and items[j] == items[i]: j += 1
        if EXP['nobar'] and i == 0: j = 1
        run = j - i; kinds, w, hook = items[i]
        assert w <= 63
        def body():
            if not EXP['nodma']:
                for kd in kinds: (issue_x if kd == 'X' else issue_w)(A)
            if hook in loads: loads[hook][0](A)
            if not EXP['nowait']: A(f"s_waitcnt vmcnt({w})")
            if hook in post: post[hook](A)
            if not (EXP['nobar'] and tag == "lw" and not first[0]): A("s_barrier")
            first[0] = False
            if asmlib.STAMP and tag == "lw" and nb[0] < 9:
                A(f"s_memtime s[{66+2*nb[0]}:{67+2*nb[0]}]"); nb[0] += 1
        if run >= 3 and not (asmlib.STAMP and tag == "lw"):
            L = f"L_{tag}_{k}"; k += 1
            A(f"s_mov_b32 s{scnt}, {run}"); A.label(L); body()
            A(f"s_sub_u32 s{scnt}, s{scnt}, 1"); A(f"s_cmp_lg_u32 s{scnt}, 0"); A(f"s_cbranch_scc1 {L}")
        else:
            for _ in range(run): body()
        i = j

VP_OFF=10; VP_EXP=11; VP_OFF2=12; VP_EXP2=13; VP_D=14; VP_D2=15; VP_T=16; VP_MB=20
def notify(A):
    L = A.newlabel("fl")
    A(f"s_cmp_lg_u32 s{S_LW}, 0"); A(f"s_cbranch_scc1 {L}")
    A(f"v_mov_b32 v{VP_T}, s{S_NONCE}")
    A(f"buffer_store_dword v{VP_T}, v{VP_MB}, s[{S_FL}:{S_FL+3}], 0 offen sc0 sc1")
    A.label(L)
def mb_finish(A, idx, slot, nvalid_cmp, region, shift=7):
    A(f"v_lshlrev_b32 v{idx}, {shift}, v{idx}")
    A(f"v_lshl_add_u32 v{VP_MB}, v{slot}, 2, v{idx}")
    A(f"v_add_u32 v{VP_MB}, s{region}, v{VP_MB}")
    A(f"v_mov_b32 v{idx}, s{S_OOB}")
    A(f"v_cndmask_b32 v{VP_MB}, v{idx}, v{VP_MB}, vcc")
def region(A, dst, base, layer_add=0):
    A(f"s_add_u32 s{dst}, s{S_L}, {layer_add}") if layer_add else A(f"s_mov_b32 s{dst}, s{S_L}")
    A(f"s_mul_i32 s{dst}, s{dst}, {hex(MB_LAYER)}"); A(f"s_add_u32 s{dst}, s{dst}, {hex(base)}")
def poll(A, soff, two=False):
    L = A.newlabel("poll"); Dn = A.newlabel("polld")
    A(f"s_cmp_lg_u32 s{S_LW}, 0"); A(f"s_cbranch_scc1 {Dn}")
    A(f"s_mov_b32 s{S_PCNT}, 0x10000")
    A.label(L)
    A(f"buffer_load_dword v{VP_D}, v{VP_OFF}, s[{S_FL}:{S_FL+3}], s{soff} offen sc0 sc1")
    if two: A(f"buffer_load_dword v{VP_D2}, v{VP_OFF2}, s[{S_FL}:{S_FL+3}], s{soff} offen sc0 sc1")
    A("s_waitcnt vmcnt(0)")
    A(f"v_cmp_eq_u32 vcc, v{VP_D}, v{VP_EXP}")
    if two:
        A(f"v_cmp_eq_u32 s[92:93], v{VP_D2}, v{VP_EXP2}")
        A("s_and_b64 vcc, vcc, s[92:93]")
    A("s_cmp_eq_u64 vcc, exec")
    A(f"s_cbranch_scc1 {Dn}")
    A(f"s_sub_u32 s{S_PCNT}, s{S_PCNT}, 1"); A(f"s_cmp_lg_u32 s{S_PCNT}, 0"); A(f"s_cbranch_scc1 {L}")
    A.label(Dn)
def poll_slots(A, n_sreg_or_const):
    A(f"v_lshlrev_b32 v{VP_OFF}, 2, v{V_LANE}")
    A(f"v_cmp_gt_u32 vcc, {n_sreg_or_const}, v{V_LANE}")
    A(f"v_mov_b32 v{VP_T}, s{S_OOB}")
    A(f"v_mov_b32 v{VP_EXP}, s{S_NONCE}")
    A(f"v_cndmask_b32 v{VP_OFF}, v{VP_T}, v{VP_OFF}, vcc")
    A(f"v_cndmask_b32 v{VP_EXP}, 0, v{VP_EXP}, vcc")
def mb_from_prep(A, t):
    I=VP_T; S_=VP_T+1; X=VP_T+2
    A(f"""
    s_lshr_b32 s{t}, s{S_WG}, 4
    v_lshlrev_b32 v{I}, 4, v{V_LANE}
    v_add_u32 v{I}, s{t}, v{I}
    s_and_b32 s{t}, s{S_WG}, 15
    v_mov_b32 v{S_}, s{t}
    s_lshr_b32 s{t}, s{S_WG}, 3
    s_lshl_b32 s{t}, s{t}, 4
    s_sub_u32 s{t}, s{t}, 16
    v_add_u32 v{X}, s{t}, v{V_LANE}
    v_bfe_u32 v{X+1}, v{V_LANE}, 4, 2
    v_cmp_eq_u32 vcc, 1, v{X+1}
    s_and_b32 s{t}, s{S_WG}, 7
    s_add_u32 s{t}, s{t}, 16
    v_mov_b32 v{X+1}, s{t}
    v_cndmask_b32 v{I}, v{I}, v{X}, vcc
    v_cndmask_b32 v{S_}, v{S_}, v{X+1}, vcc
    s_cmp_lt_u32 s{S_WG}, 120
    s_cselect_b64 s[92:93], -1, 0
    s_and_b64 s[92:93], s[92:93], vcc
    v_cmp_gt_u32 vcc, 15, v{V_LANE}
    s_or_b64 vcc, vcc, s[92:93]
    s_mov_b32 s{t}, {MB_QKV}
    """)
    mb_finish(A, I, S_, None, t)
def mb_from_qkv(A, t0, t1, t2):
    I=VP_T; S_=VP_T+1; X=VP_T+2; Y=VP_T+3
    A(f"""
    s_mul_i32 s{t0}, s{W.CB}, 205
    s_lshr_b32 s{t0}, s{t0}, 10
    s_mul_i32 s{t1}, s{t0}, 5
    s_sub_u32 s{t1}, s{W.CB}, s{t1}
    s_lshl_b32 s{t2}, s{t1}, 7
    s_mul_i32 s{S_PCNT}, s{t2}, 3277
    s_lshr_b32 s{S_PCNT}, s{S_PCNT}, 16
    s_add_u32 s{t2}, s{t2}, 127
    s_mul_i32 s{t2}, s{t2}, 3277
    s_lshr_b32 s{t2}, s{t2}, 16
    """)
    LQ = A.newlabel("mbq"); LD = A.newlabel("mbd")
    A(f"s_cmp_eq_u32 s{t0}, 0"); A(f"s_cbranch_scc1 {LQ}")
    A(f"""
    v_lshrrev_b32 v{X}, 3, v{V_LANE}
    v_add_u32 v{X}, s{S_PCNT}, v{X}
    v_and_b32 v{I}, 7, v{V_LANE}
    v_lshl_add_u32 v{I}, v{I}, 5, v{X}
    v_mul_u32_u24 v{Y}, 20, v{X}
    v_lshrrev_b32 v{Y}, 7, v{Y}
    v_cmp_ne_u32 vcc, s{t1}, v{Y}
    s_sub_u32 s{t0}, s{t0}, 1
    s_lshl_b32 s{t0}, s{t0}, 5
    s_add_u32 s{t0}, s{t0}, s{W.TB}
    v_mov_b32 v{S_}, s{t0}
    v_add_u32 v{Y}, 16, v{S_}
    v_cndmask_b32 v{S_}, v{S_}, v{Y}, vcc
    v_cmp_ge_u32 vcc, s{t2}, v{X}
    s_branch {LD}
    """)
    A.label(LQ)
    A(f"""
    v_add_u32 v{X}, s{S_PCNT}, v{V_LANE}
    s_lshr_b32 s{t0}, s{W.TB}, 1
    s_lshl_b32 s{t0}, s{t0}, 5
    v_add_u32 v{I}, s{t0}, v{X}
    v_mul_u32_u24 v{Y}, 20, v{X}
    v_lshrrev_b32 v{Y}, 7, v{Y}
    v_cmp_ne_u32 vcc, s{t1}, v{Y}
    s_and_b32 s{t0}, s{W.TB}, 1
    s_add_u32 s{t0}, s{t0}, 64
    v_mov_b32 v{S_}, s{t0}
    v_add_u32 v{Y}, 2, v{S_}
    v_cndmask_b32 v{S_}, v{S_}, v{Y}, vcc
    v_cmp_ge_u32 vcc, s{t2}, v{X}
    v_cmp_gt_u32 s[92:93], 8, v{V_LANE}
    s_and_b64 vcc, vcc, s[92:93]
    """)
    A.label(LD)
    region(A, t0, MB_ATT)
    mb_finish(A, I, S_, None, t0, shift=9)
def mb_simple(A, t, idx_base_expr, lane_shift, slot_sreg, nvalid, base, layer_add=0):
    I=VP_T; S_=VP_T+1
    A(f"v_lshlrev_b32 v{I}, {lane_shift}, v{V_LANE}") if lane_shift else A(f"v_mov_b32 v{I}, v{V_LANE}")
    A(f"v_add_u32 v{I}, s{idx_base_expr}, v{I}")
    A(f"v_mov_b32 v{S_}, s{slot_sreg}")
    A(f"v_cmp_gt_u32 vcc, {nvalid}, v{V_LANE}")
    region(A, t, base, layer_add)
    mb_finish(A, I, S_, None, t)

def wide_coords(A, ffn, tb, cb, t0, t1, t2, idle_label):
    A(f"""
    s_and_b32 s{t0}, s{S_WG}, 7
    s_lshr_b32 s{t1}, s{S_WG}, 3
    s_and_b32 s{tb}, s{t0}, 3
    s_lshl_b32 s{tb}, s{tb}, 2
    s_and_b32 s{t2}, s{t1}, 3
    s_add_u32 s{tb}, s{tb}, s{t2}
    s_lshr_b32 s{t0}, s{t0}, 2
    s_lshr_b32 s{t1}, s{t1}, 2
    """)
    if ffn:
        A(f"s_mul_i32 s{cb}, s{t0}, 7"); A(f"s_add_u32 s{cb}, s{cb}, s{t1}")
        A(f"s_cmp_ge_u32 s{t1}, 7"); A(f"s_cbranch_scc1 {idle_label}")
    else:
        A(f"s_lshl_b32 s{cb}, s{t0}, 3"); A(f"s_add_u32 s{cb}, s{cb}, s{t1}")
        A(f"s_cmp_ge_u32 s{cb}, 15"); A(f"s_cbranch_scc1 {idle_label}")
def narrow_coords(A, tb, cb, t0, t1, t2):
    A(f"""
    s_and_b32 s{t0}, s{S_WG}, 7
    s_lshr_b32 s{t1}, s{S_WG}, 3
    s_and_b32 s{tb}, s{t0}, 3
    s_lshl_b32 s{tb}, s{tb}, 3
    s_and_b32 s{t2}, s{t1}, 7
    s_add_u32 s{tb}, s{tb}, s{t2}
    s_lshr_b32 s{t0}, s{t0}, 2
    s_lshl_b32 s{t0}, s{t0}, 2
    s_lshr_b32 s{t1}, s{t1}, 3
    s_add_u32 s{cb}, s{t0}, s{t1}
    """)

def c_prep(A):
    X=20; XF0=24; ST0=28; WO=32; W2=36; CS_S=40; CS_D=44; WOPD=48; W2PD=52; VF0=56; VF1=60
    TT=64; Q=65; T0=66; T1=67; T2=68; T3=69; LDW=76; CROW=77; TASK=78; STRIP=79; RQ=80; NOCS=81; K3=82; ADV=83; CO=84
    A(f"""
    s_load_dwordx4 s[8:11], s[0:1], {KA_X}
    s_load_dwordx2 s[12:13], s[0:1], {KA_WO}
    s_load_dwordx4 s[16:19], s[0:1], {KA_W1}
    s_lshr_b32 s{TT}, s{S_WG}, 2
    s_and_b32 s{Q}, s{S_WG}, 3
    s_lshl_b32 s{T0}, s{TT}, 5
    v_add_u32 v5, s{T0}, v{V_T}
    v_mul_u32_u24 v5, 1280, v5
    v_lshlrev_b32 v6, 4, v{V_H}
    v_add_u32 v5, v5, v6
    s_mul_i32 s{T0}, s{Q}, 320
    s_lshl_b32 s{T1}, s{S_WAVE}, 5
    s_add_u32 s{T0}, s{T0}, s{T1}
    v_add_u32 v5, s{T0}, v5
    s_cmp_lt_u32 s{S_WAVE}, 2
    s_cselect_b32 s{K3}, 256, s{S_OOB}
    s_waitcnt lgkmcnt(0)
    """)
    srd_ptr(A, X, 8, XSZ)
    A(f"""
    buffer_load_dwordx4 v[8:11], v5, s[{X}:{X+3}], 0 offen
    buffer_load_dwordx4 v[12:15], v5, s[{X}:{X+3}], 0 offen offset:128
    buffer_load_dwordx4 v[16:19], v5, s[{X}:{X+3}], s{K3} offen
    """)
    CSW1 = "L_cp_csw1"; CSGO = "L_cp_csgo"
    A(f"s_cmp_ge_u32 s{S_WG}, 228"); A(f"s_cselect_b32 s{NOCS}, 1, 0")
    A(f"s_cmp_ge_u32 s{S_WG}, 120"); A(f"s_cbranch_scc1 {CSW1}")
    srd_ptr(A, CS_S, 10, 640*3840); srd_const(A, CS_D, CSQ, CSQSZ)
    A(f"s_mov_b32 s{LDW}, 3840"); A(f"s_mov_b32 s{CROW}, 7680"); A(f"s_mov_b32 s{TASK}, s{S_WG}"); A(f"s_branch {CSGO}")
    A.label(CSW1)
    srd_ptr(A, CS_S, 16, 640*3456); srd_const(A, CS_D, CS1, CS1SZ)
    A(f"s_mov_b32 s{LDW}, 3456"); A(f"s_mov_b32 s{CROW}, 6912"); A(f"s_sub_u32 s{TASK}, s{S_WG}, 120")
    A.label(CSGO)
    A(f"""
    s_lshr_b32 s{STRIP}, s{TASK}, 2
    s_and_b32 s{RQ}, s{TASK}, 3
    v_lshrrev_b32 v6, 3, v0
    s_mul_i32 s{T0}, s{RQ}, 160
    v_add_u32 v6, s{T0}, v6
    v_mul_lo_u32 v6, v6, s{LDW}
    v_and_b32 v7, 7, v0
    v_lshlrev_b32 v7, 4, v7
    v_add_u32 v6, v6, v7
    s_lshl_b32 s{T0}, s{STRIP}, 7
    v_add_u32 v6, s{T0}, v6
    s_lshl_b32 s{ADV}, s{LDW}, 5
    s_cmp_eq_u32 s{NOCS}, 1
    s_cselect_b32 s{CO}, s{S_OOB}, 0
    """)
    for i in range(5):
        A(f"buffer_load_dwordx4 v[{20+4*i}:{23+4*i}], v6, s[{CS_S}:{CS_S+3}], s{CO} offen")
        if i < 4: A(f"s_add_u32 s{CO}, s{CO}, s{ADV}")
    srd_ptr(A, WO, 12, 640*1280); srd_ptr(A, W2, 18, F*1280)
    A(f"""
    s_lshl_b32 s{T0}, s{S_WG}, 12
    v_lshlrev_b32 v7, 4, v0
    v_add_u32 v7, s{T0}, v7
    s_mov_b32 s{T1}, 0x100000
    s_mov_b32 s{T2}, 0x200000
    buffer_load_dwordx4 v[40:43], v7, s[{WO}:{WO+3}], 0 offen
    buffer_load_dwordx4 v[44:47], v7, s[{W2}:{W2+3}], 0 offen
    buffer_load_dwordx4 v[48:51], v7, s[{W2}:{W2+3}], s{T1} offen
    buffer_load_dwordx4 v[52:55], v7, s[{W2}:{W2+3}], s{T2} offen
    """)
    srd_const(A, XF0, XF[0], XSZ); srd_const(A, ST0, ST[0], STSZ)
    srd_const(A, WOPD, WOP, WOPSZ); srd_const(A, W2PD, W2P, W2PSZ)
    srd_const(A, VF0, VF, VSZ); srd_const(A, VF1, VF + LSTRIDE, VSZ)
    def packaddr(dst, add, kq640):
        A(f"""
        v_lshrrev_b32 v72, 4, v7
        v_add_u32 v72, {add}, v72
        s_mov_b32 s{T3}, 0xcccccccd
        v_mul_hi_u32 v73, v72, s{T3}
        v_lshrrev_b32 v73, 6, v73
        v_mul_u32_u24 v74, 80, v73
        v_sub_u32 v74, v72, v74
        v_mul_u32_u24 v75, 6554, v74
        v_lshrrev_b32 v75, 16, v75
        v_mul_u32_u24 v76, 10, v75
        v_sub_u32 v76, v74, v76
        s_mov_b32 s{T3}, {kq640}
        v_mul_lo_u32 v{dst}, v75, s{T3}
        v_lshrrev_b32 v77, 2, v73
        v_mul_u32_u24 v77, 640, v77
        v_add_u32 v{dst}, v{dst}, v77
        v_and_b32 v73, 3, v73
        v_lshrrev_b32 v77, 2, v76
        v_lshlrev_b32 v77, 8, v77
        v_lshlrev_b32 v78, 6, v73
        v_add_u32 v77, v77, v78
        v_and_b32 v78, 3, v76
        v_lshlrev_b32 v78, 4, v78
        v_add_u32 v77, v77, v78
        v_lshlrev_b32 v78, 5, v73
        v_and_b32 v79, 1, v76
        v_lshlrev_b32 v79, 4, v79
        v_add_u32 v78, v78, v79
        v_add_u32 v78, 512, v78
        v_cmp_gt_u32 vcc, 8, v76
        v_cndmask_b32 v77, v78, v77, vcc
        v_add_u32 v{dst}, v{dst}, v77
        v_cmp_gt_u32 vcc, {kq640*8//16}, v72
        v_mov_b32 v78, s{S_OOB}
        v_cndmask_b32 v{dst}, v78, v{dst}, vcc
        """)
    packaddr(80, 0, 160*640); packaddr(81, 0, 432*640); packaddr(82, 65536, 432*640); packaddr(83, 131072, 432*640)
    A(f"""
    v_lshrrev_b32 v95, 1, v{V_LANE}
    s_lshl_b32 s{T0}, s{S_WG}, 5
    v_add_u32 v95, s{T0}, v95
    v_mul_u32_u24 v95, 352, v95
    v_and_b32 v94, 1, v{V_LANE}
    v_lshlrev_b32 v96, 4, v94
    v_add_u32 v95, v95, v96
    v_add_u32 v95, 320, v95
    v_mov_b32 v96, 0x3f803f80
    v_cmp_eq_u32 vcc, 0, v94
    v_cndmask_b32 v96, 0, v96, vcc
    v_mov_b32 v97, v96
    v_mov_b32 v98, v96
    v_mov_b32 v99, v96
    v_cmp_gt_u32 vcc, 64, v0
    v_mov_b32 v94, s{S_OOB}
    v_cndmask_b32 v95, v94, v95, vcc
    buffer_store_dwordx4 v[96:99], v95, s[{VF0}:{VF0+3}], 0 offen{SC}
    buffer_store_dwordx4 v[96:99], v95, s[{VF1}:{VF1+3}], 0 offen{SC}
    """)
    A("s_waitcnt vmcnt(11)")
    A("v_mov_b32 v56, 0\nv_mov_b32 v57, 0")
    for r in range(8, 20):
        A(f"""
        v_lshlrev_b32 v58, 16, v{r}
        v_and_b32 v59, 0xffff0000, v{r}
        v_add_f32 v56, v56, v58
        v_fmac_f32 v57, v58, v58
        v_add_f32 v56, v56, v59
        v_fmac_f32 v57, v59, v59
        """)
    for b in (8, 12, 16):
        A(f"v_permlane32_swap_b32 v{b}, v{b+2}"); A(f"v_permlane32_swap_b32 v{b+1}, v{b+3}")
    A(f"""
    s_mul_i32 s{T0}, s{TT}, 40
    s_mul_i32 s{T1}, s{Q}, 10
    s_add_u32 s{T0}, s{T0}, s{T1}
    s_add_u32 s{T0}, s{T0}, s{S_WAVE}
    s_lshl_b32 s{T0}, s{T0}, 10
    v_lshlrev_b32 v60, 4, v{V_LANE}
    v_add_u32 v60, s{T0}, v60
    s_cmp_lt_u32 s{S_WAVE}, 2
    s_cselect_b32 s{K3}, 8192, s{S_OOB}
    s_mov_b32 s{T1}, 4096
    buffer_store_dwordx4 v[8:11], v60, s[{XF0}:{XF0+3}], 0 offen{SC}
    buffer_store_dwordx4 v[12:15], v60, s[{XF0}:{XF0+3}], s{T1} offen{SC}
    buffer_store_dwordx4 v[16:19], v60, s[{XF0}:{XF0+3}], s{K3} offen{SC}
    """)
    halfsum(A, 56, 58); halfsum(A, 57, 59)
    A(f"""
    s_lshl_b32 s{T0}, s{TT}, 12
    s_lshl_b32 s{T1}, s{Q}, 2
    s_add_u32 s{T1}, s{T1}, s{S_WAVE}
    s_lshr_b32 s{T2}, s{T1}, 1
    s_lshl_b32 s{T2}, s{T2}, 9
    s_add_u32 s{T0}, s{T0}, s{T2}
    s_and_b32 s{T1}, s{T1}, 1
    s_lshl_b32 s{T1}, s{T1}, 3
    s_add_u32 s{T0}, s{T0}, s{T1}
    v_lshlrev_b32 v60, 4, v{V_T}
    v_add_u32 v60, s{T0}, v60
    buffer_store_dwordx2 v[56:57], v60, s[{ST0}:{ST0+3}], 0 offen{SC}
    s_waitcnt vmcnt(6)
    buffer_store_dwordx4 v[40:43], v80, s[{WOPD}:{WOPD+3}], 0 offen{SC}
    buffer_store_dwordx4 v[44:47], v81, s[{W2PD}:{W2PD+3}], 0 offen{SC}
    buffer_store_dwordx4 v[48:51], v82, s[{W2PD}:{W2PD+3}], 0 offen{SC}
    buffer_store_dwordx4 v[52:55], v83, s[{W2PD}:{W2PD+3}], 0 offen{SC}
    """)
    for j in range(8): A(f"v_mov_b32 v{64+j}, 0")
    for i in range(5):
        for rr in range(4):
            r = 20 + 4*i + rr
            A(f"""
            v_lshlrev_b32 v58, 16, v{r}
            v_and_b32 v59, 0xffff0000, v{r}
            v_add_f32 v{64+2*rr}, v{64+2*rr}, v58
            v_add_f32 v{65+2*rr}, v{65+2*rr}, v59
            """)
    A(f"""
    v_lshlrev_b32 v58, 5, v0
    v_add_u32 v58, {P_SCR}, v58
    ds_write_b128 v58, v[64:67]
    ds_write_b128 v58, v[68:71] offset:16
    s_waitcnt lgkmcnt(0)
    s_barrier
    v_lshlrev_b32 v58, 2, v{V_LANE}
    s_lshl_b32 s{T0}, s{S_WAVE}, 11
    s_add_u32 s{T0}, s{T0}, {P_SCR}
    v_add_u32 v58, s{T0}, v58
    """)
    for k in range(8): A(f"ds_read_b32 v{64+k}, v58 offset:{256*k}")
    A(f"""
    s_waitcnt lgkmcnt(0)
    v_add_f32 v64, v64, v65
    v_add_f32 v66, v66, v67
    v_add_f32 v68, v68, v69
    v_add_f32 v70, v70, v71
    v_add_f32 v64, v64, v66
    v_add_f32 v68, v68, v70
    v_add_f32 v64, v64, v68
    v_lshlrev_b32 v58, 2, v0
    v_add_u32 v58, {P_SCR}, v58
    s_barrier
    ds_write_b32 v58, v64
    s_waitcnt lgkmcnt(0)
    s_barrier
    v_lshlrev_b32 v59, 2, v{V_LANE}
    v_add_u32 v58, {P_SCR}, v59
    ds_read_b32 v64, v58
    ds_read_b32 v65, v58 offset:256
    ds_read_b32 v66, v58 offset:512
    ds_read_b32 v67, v58 offset:768
    s_waitcnt lgkmcnt(0)
    v_add_f32 v64, v64, v65
    v_add_f32 v66, v66, v67
    v_add_f32 v64, v64, v66
    s_mul_i32 s{T0}, s{RQ}, s{CROW}
    s_lshl_b32 s{T1}, s{STRIP}, 8
    s_add_u32 s{T0}, s{T0}, s{T1}
    s_cmp_lg_u32 s{S_WAVE}, 0
    s_cselect_b32 s{T0}, s{S_OOB}, s{T0}
    s_cmp_eq_u32 s{NOCS}, 1
    s_cselect_b32 s{T0}, s{S_OOB}, s{T0}
    v_add_u32 v59, s{T0}, v59
    buffer_store_dword v64, v59, s[{CS_D}:{CS_D+3}], 0 offen{SC}
    s_waitcnt vmcnt(0)
    s_barrier
    """)

class W:
    X=8; Wd=12; ST=16; CS=20; OUT=24
    TB=29; CB=30; MODE=31; XOFF=32; WOFF=33; M0=34; WADV=35; FREE=36; CNT=37; LDW=38; N0=39; CSROW=40
    T0=41; T1=42; T2=43; WN=44; WT=45; XB=46; T3=47; FREEX=48; WSZ=49; CURX=54; CURW=55; QS=56; ISF=58; SO0=50
    V_XD=4; V_WD=5; V_WRH=5; V_XR=9; V_WR=10; V_TMP=11; V_AA=20; V_NB=24; V_A2=28; V_FR=32; V_ACC=96; V_E=160
    NST=10
def ring_adv(A, cur, tmp, slot, n, vregs):
    A(f"s_add_u32 s{cur}, s{cur}, 1"); A(f"s_cmp_eq_u32 s{cur}, {n}")
    A(f"s_cselect_b32 s{tmp}, {hex(-slot*(n-1) & 0xffffffff)}, s{S_K16 if slot == 16384 else (S_K8 if slot == 8192 else S_K10)}")
    A(f"s_cselect_b32 s{cur}, 0, s{cur}")
    for r in vregs: A(f"v_add_u32 v{r}, s{tmp}, v{r}")
def w_fr(setn, kind, i): return W.V_FR + 16*setn + (0 if kind == 'W' else 8) + 4*i
def w_acc(i, ip): return W.V_ACC + 16*(2*i + ip)
def w_reads(setn, step, stage):
    if EXP['noread']: return []
    xs = (stage % WX_N)*W_SLOT; ws = stage % WW_N
    wreg = W.V_WR if ws < 4 else W.V_WRH; wo = (ws % 4)*W_SLOT
    L = []
    for i in range(2):
        for jj in range(2):
            L.append(f"ds_read_b64_tr_b16 {v(w_fr(setn,'W',i)+2*jj,2)}, v{wreg} offset:{wo + step*4096 + jj*2048 + i*256}")
        L.append(f"ds_read_b128 {v(w_fr(setn,'X',i),4)}, v{W.V_XR} offset:{xs + i*4096 + step*1024}")
    return L
def w_mfmas(setn, trans):
    L = []
    for (i, ip) in ((0,0),(0,1),(1,0),(1,1)):
        w = v(w_fr(setn,'W',i),4); x = v(w_fr(setn,'X',ip),4); d = v(w_acc(i,ip),16)
        L.append(f"v_mfma_f32_32x32x16_bf16 {d}, {w}, {x}, {d}" if trans else f"v_mfma_f32_32x32x16_bf16 {d}, {x}, {w}, {d}")
    return L
def w_stage(A, trans, st, fill=None):
    fill = list(fill or [])
    per = -(-len(fill) // 14) if fill else 0
    def F():
        for _ in range(per):
            if fill: A(fill.pop(0))
    last = st == W.NST - 1
    for step in range(4):
        M = w_mfmas(step, trans)
        if EXP['nomfma']: M = ["s_nop 0"]*4
        if step == 0 or step == 1: A("s_waitcnt lgkmcnt(6)")
        if step == 2:
            A("s_waitcnt lgkmcnt(0)")
            A(M[0]); F(); A(M[1])
            if not EXP['nobar']: A("s_barrier")
            R = [] if last else w_reads(0, 0, st + 1)
            for r in R[:3]: A(r)
            F(); A(M[2])
            for r in R[3:]: A(r)
            F(); A(M[3]); F()
            continue
        if step < 2: R = w_reads(step + 2, step + 2, st)
        else: R = [] if last else w_reads(1, 1, st + 1)
        A(M[0])
        k = 0
        for m in M[1:]:
            for _ in range(2):
                if k < len(R): A(R[k]); k += 1
            F()
            A(m)
        F()
    while fill: A(fill.pop(0))
def w_mainloop(A, trans, tag, fill_ld, fill0, fill_last):
    for st in range(W.NST):
        w_stage(A, trans, st, fill={5: fill_ld, 7: fill0, W.NST-1: fill_last}.get(st))

def w_params(A, ffn):
    if ffn:
        A(f"s_mov_b32 s{W.MODE}, 3"); A(f"s_mov_b32 s{W.LDW}, 3456"); A(f"s_mov_b32 s{W.CSROW}, 6912")
    else:
        A(f"""
        s_cmp_ge_u32 s{W.CB}, 5
        s_cselect_b32 s{W.MODE}, 1, 0
        s_cmp_ge_u32 s{W.CB}, 10
        s_cselect_b32 s{W.MODE}, 2, s{W.MODE}
        s_mov_b32 s{W.LDW}, 3840
        s_mov_b32 s{W.CSROW}, 7680
        """)
    A(f"s_lshl_b32 s{W.N0}, s{W.CB}, 7")

def c_wide(A, L_TO_FB, L_TO_ATT):
    V_TMP=W.V_TMP; V_E=W.V_E; V_FR=W.V_FR; V_AA=W.V_AA; V_NB=W.V_NB; V_A2=W.V_A2; V_ACC=W.V_ACC
    T0=W.T0; T1=W.T1; T2=W.T2; T3=W.T3; MODE=W.MODE
    VA=V_E+32
    A(f"""
    s_and_b32 s{W.WN}, s{S_WAVE}, 1
    s_lshr_b32 s{W.WT}, s{S_WAVE}, 1
    s_cmp_eq_u32 s{MODE}, 3
    s_cselect_b32 s{T0}, 1, 0
    s_lshl_b32 s{T1}, s{S_L}, 1
    s_add_u32 s{T0}, s{T0}, s{T1}
    s_lshl_b32 s{T0}, s{T0}, 18
    s_add_u32 s{T0}, s{T0}, {hex(ST[0])}
    """)
    srd_reg(A, W.ST, T0, STSZ)
    A(f"""
    s_mov_b32 s{T0}, {hex(CSQ)}
    s_mov_b32 s{T1}, {CSQSZ}
    s_cmp_eq_u32 s{MODE}, 3
    s_cselect_b32 s{T0}, {hex(CS1)}, s{T0}
    s_cselect_b32 s{T1}, {CS1SZ}, s{T1}
    """)
    srd_reg(A, W.CS, T0, f"s{T1}")
    A(f"""
    s_mov_b32 s{T0}, {hex(QP)}
    s_mov_b32 s{T1}, {XSZ}
    s_cmp_eq_u32 s{MODE}, 1
    s_cselect_b32 s{T0}, {hex(KP)}, s{T0}
    s_cmp_eq_u32 s{MODE}, 2
    s_cselect_b32 s{T0}, {hex(VF)}, s{T0}
    s_cselect_b32 s{T1}, {VSZ}, s{T1}
    s_cmp_eq_u32 s{MODE}, 3
    s_cselect_b32 s{T0}, {hex(HF)}, s{T0}
    s_cselect_b32 s{T1}, {HSZ}, s{T1}
    s_mul_i32 s{T2}, s{S_L}, {hex(LSTRIDE)}
    s_add_u32 s{T0}, s{T0}, s{T2}
    """)
    srd_reg(A, W.OUT, T0, f"s{T1}")
    A(f"""
    v_lshlrev_b32 v{W.V_XD}, 4, v{V_LANE}
    s_lshl_b32 s{T0}, s{W.WT}, 13
    s_add_u32 s{T0}, s{T0}, {WX_BASE}
    v_add_u32 v{W.V_XR}, s{T0}, v{W.V_XD}
    s_mov_b32 s{W.CURX}, 0
    s_mov_b32 s{W.CURW}, 0
    s_mov_b32 s{S_K16}, 16384
    v_lshlrev_b32 v{W.V_WR}, 10, v{V_H}
    v_bfe_u32 v{V_TMP}, v{V_LANE}, 2, 2
    v_lshlrev_b32 v{V_TMP}, 6, v{V_TMP}
    v_add_u32 v{W.V_WR}, v{W.V_WR}, v{V_TMP}
    v_bfe_u32 v{V_TMP}, v{V_LANE}, 4, 1
    v_lshlrev_b32 v{V_TMP}, 5, v{V_TMP}
    v_add_u32 v{W.V_WR}, v{W.V_WR}, v{V_TMP}
    v_and_b32 v{V_TMP}, 3, v{V_LANE}
    v_lshlrev_b32 v{V_TMP}, 3, v{V_TMP}
    v_add_u32 v{W.V_WR}, v{W.V_WR}, v{V_TMP}
    s_lshl_b32 s{T0}, s{W.WN}, 9
    v_add_u32 v{W.V_WR}, s{T0}, v{W.V_WR}
    v_add_u32 v{W.V_WRH}, 0x10000, v{W.V_WR}
    """)
    for r in list(range(VA, VA+4)) + [V_E+68, V_E+69]: A(f"v_mov_b32 v{r}, 0")
    LA1 = "L_cw_addr_v"; LA2 = "L_cw_addr_done"
    A(f"s_cmp_eq_u32 s{MODE}, 3"); A(f"s_cbranch_scc1 {LA2}")
    A(f"s_cmp_eq_u32 s{MODE}, 2"); A(f"s_cbranch_scc1 {LA1}")
    A(f"""
    s_mul_i32 s{T0}, s{MODE}, 640
    s_sub_u32 s{T0}, s{W.N0}, s{T0}
    s_lshl_b32 s{T1}, s{W.WN}, 6
    s_add_u32 s{T0}, s{T0}, s{T1}
    s_lshr_b32 s{T0}, s{T0}, 3
    v_add_u32 v{V_TMP}, s{T0}, v{V_H}
    v_lshlrev_b32 v{V_TMP+5}, 4, v{V_T}
    """)
    for i in range(2):
        for gp in range(2):
            r = VA + 2*i + gp
            A(f"""
            v_add_u32 v{V_TMP+1}, {4*i+2*gp}, v{V_TMP}
            v_mul_u32_u24 v{V_TMP+2}, 205, v{V_TMP+1}
            v_lshrrev_b32 v{V_TMP+2}, 10, v{V_TMP+2}
            v_mul_u32_u24 v{V_TMP+3}, 5, v{V_TMP+2}
            v_sub_u32 v{V_TMP+3}, v{V_TMP+1}, v{V_TMP+3}
            v_mul_u32_u24 v{r}, {64*PTS}, v{V_TMP+2}
            v_lshl_add_u32 v{r}, v{V_TMP+3}, 9, v{r}
            v_add_u32 v{r}, v{r}, v{V_TMP+5}
            """)
    A(f"s_branch {LA2}")
    A.label(LA1)
    A(f"""
    s_lshl_b32 s{T0}, s{W.WN}, 6
    v_add_u32 v{V_TMP}, s{T0}, v{V_T}
    s_sub_u32 s{T0}, s{W.N0}, 1280
    v_add_u32 v{V_TMP}, s{T0}, v{V_TMP}
    s_movk_i32 s{T1}, 3277
    """)
    for i in range(2):
        r = V_E + 68 + i
        A(f"""
        v_add_u32 v{V_TMP+1}, {32*i}, v{V_TMP}
        v_mul_u32_u24 v{V_TMP+2}, s{T1}, v{V_TMP+1}
        v_lshrrev_b32 v{V_TMP+2}, 16, v{V_TMP+2}
        v_mul_u32_u24 v{V_TMP+3}, 20, v{V_TMP+2}
        v_sub_u32 v{V_TMP+3}, v{V_TMP+1}, v{V_TMP+3}
        v_mul_u32_u24 v{r}, {64*VTS}, v{V_TMP+2}
        v_mul_u32_u24 v{V_TMP+4}, 22, v{V_H}
        v_add_u32 v{V_TMP+4}, v{V_TMP+4}, v{V_TMP+3}
        v_lshl_add_u32 v{r}, v{V_TMP+4}, 4, v{r}
        """)
    A.label(LA2)
    for r in range(64): A(f"v_mov_b32 v{V_ACC+r}, 0")
    A(f"""
    s_lshl_b32 s{T0}, s{W.TB}, 2
    s_lshl_b32 s{T1}, s{W.WT}, 1
    s_add_u32 s{T0}, s{T0}, s{T1}
    s_lshl_b32 s{T0}, s{T0}, 12
    s_add_u32 s{T1}, s{T0}, 4096
    v_lshlrev_b32 v{V_TMP}, 4, v{V_T}
    v_lshl_add_u32 v{V_TMP}, v{V_H}, 11, v{V_TMP}
    v_and_b32 v{V_TMP+2}, 127, v0
    v_add_u32 v{V_TMP+2}, s{W.N0}, v{V_TMP+2}
    v_lshlrev_b32 v{V_TMP+2}, 2, v{V_TMP+2}
    s_lshl_b32 s{T2}, s{W.CSROW}, 1
    s_add_u32 s{T3}, s{T2}, s{W.CSROW}
    """)
    stamp(A, 1)
    A("s_barrier")
    stamp(A, 2)
    A(f"""
    s_cmp_eq_u32 s{MODE}, 0
    s_cselect_b32 s{W.QS}, {hex(f2u(QSCALE))}, 1.0
    s_cmp_eq_u32 s{MODE}, 3
    s_cselect_b64 s[{W.ISF}:{W.ISF+1}], -1, 0
    s_lshl_b32 s{T2}, s{W.WT}, 8
    s_add_u32 s{T2}, s{T2}, {W_SCR + 512}
    v_lshlrev_b32 v{V_TMP+6}, 2, v{V_T}
    v_add_u32 v{V_TMP+6}, s{T2}, v{V_TMP+6}
    """)
    FLD = None; F0 = None
    VS = V_E + 36
    FTOK = []
    for ip in range(2):
        FTOK += [f"ds_read_b32 v{VS+4*ip}, v{V_TMP+6} offset:{128*ip}", f"ds_read_b32 v{V_NB+2*ip}, v{V_TMP+6} offset:{1024+128*ip}",
                 f"ds_read_b32 v{VS+4*ip+1}, v{V_TMP+6} offset:{1536+128*ip}"]
    FPOST = []
    for ip in range(2):
        FPOST += [f"v_mov_b32 v{V_NB+2*ip+1}, v{V_NB+2*ip}",
                  f"v_mul_f32 v{V_A2+2*ip}, {hex(f2u(-1.4426950408889634))}, v{VS+4*ip}", f"v_mul_f32 v{V_AA+2*ip}, s{W.QS}, v{VS+4*ip}",
                  f"v_mov_b32 v{V_A2+2*ip+1}, v{V_A2+2*ip}",
                  f"v_cndmask_b32 v{V_AA+2*ip}, v{V_AA+2*ip}, v{VS+4*ip+1}, s[{W.ISF}:{W.ISF+1}]", f"v_mov_b32 v{V_AA+2*ip+1}, v{V_AA+2*ip}"]
    A("s_barrier")
    stamp(A, 3)
    for r in w_reads(0, 0, 0) + w_reads(1, 1, 0): A(r)
    LV = "L_cw_vmode"; LF = "L_cw_ffn"; FIN = "L_cw_fin"
    A(f"s_cmp_eq_u32 s{MODE}, 2"); A(f"s_cbranch_scc1 {LV}")
    FL = [f"s_lshl_b32 s{T0}, s{W.WN}, 8", f"s_add_u32 s{T0}, s{T0}, {W_SCR}", f"v_lshlrev_b32 v{V_TMP}, 4, v{V_H}", f"v_add_u32 v{V_TMP}, s{T0}, v{V_TMP}"]
    for i in range(2):
        for g in range(4):
            FL.append(f"ds_read_b128 {v(V_E+16*i+4*g,4)}, v{V_TMP} offset:{128*i + 32*g}")
    w_mainloop(A, True, "t", FLD, F0, FTOK + FL)
    stamp(A, 4)
    A("s_waitcnt lgkmcnt(0)")
    for x in FPOST: A(x)
    PK = V_FR
    A(f"s_cmp_eq_u32 s{MODE}, 3"); A(f"s_cbranch_scc1 {LF}")
    A(f"""
    s_lshl_b32 s{T0}, s{W.TB}, 2
    s_lshl_b32 s{T1}, s{W.WT}, 1
    s_add_u32 s{T0}, s{T0}, s{T1}
    s_mul_i32 s{T0}, s{T0}, {PTS}
    s_add_u32 s{T1}, s{T0}, {PTS}
    """)
    for i in range(2):
        for ip in range(2):
            c = w_acc(i, ip)
            for p in range(8): A(f"v_pk_fma_f32 {v(c+2*p,2)}, {v(V_E+16*i+2*p,2)}, {v(V_NB+2*ip,2)}, {v(c+2*p,2)}")
            for p in range(8): A(f"v_pk_mul_f32 {v(c+2*p,2)}, {v(c+2*p,2)}, {v(V_AA+2*ip,2)}")
            pk = PK + 8*(2*i+ip)
            for p in range(8): A(f"v_cvt_pk_bf16_f32 v{pk+p}, v{c+2*p}, v{c+2*p+1}")
            for gp in range(2):
                A(f"v_permlane32_swap_b32 v{pk+4*gp}, v{pk+4*gp+2}")
                A(f"v_permlane32_swap_b32 v{pk+4*gp+1}, v{pk+4*gp+3}")
            for gp in range(2):
                A(f"buffer_store_dwordx4 {v(pk+4*gp,4)}, v{VA+2*i+gp}, s[{W.OUT}:{W.OUT+3}], s{T0+ip} offen{SC}")
    A(f"s_branch {FIN}")
    A.label(LF)
    A(f"""
    s_lshl_b32 s{T0}, s{W.WN}, 6
    s_add_u32 s{T0}, s{T0}, s{W.N0}
    s_cmp_ge_u32 s{T0}, {F}
    s_cbranch_scc1 {FIN}
    s_lshr_b32 s{T0}, s{T0}, 4
    s_lshl_b32 s{T1}, s{W.TB}, 2
    s_lshl_b32 s{T2}, s{W.WT}, 1
    s_add_u32 s{T1}, s{T1}, s{T2}
    s_mul_i32 s{T1}, s{T1}, 108
    s_add_u32 s{T0}, s{T0}, s{T1}
    s_lshl_b32 s{T0}, s{T0}, 10
    s_add_u32 s{T1}, s{T0}, {108*1024}
    """)
    VZ = V_E + 36
    for ip in range(2):
        for i in range(2):
            c = w_acc(i, ip)
            for p in range(8): A(f"v_pk_fma_f32 {v(c+2*p,2)}, {v(V_E+16*i+2*p,2)}, {v(V_NB+2*ip,2)}, {v(c+2*p,2)}")
            for p in range(8): A(f"v_pk_mul_f32 {v(VZ+2*p,2)}, {v(c+2*p,2)}, {v(V_A2+2*ip,2)}")
            for r in range(16): A(f"v_exp_f32 v{VZ+r}, v{VZ+r}")
            for p in range(8): A(f"v_pk_fma_f32 {v(VZ+2*p,2)}, {v(VZ+2*p,2)}, {v(V_AA+2*ip,2)}, {v(V_AA+2*ip,2)}")
            for r in range(16): A(f"v_rcp_f32 v{VZ+r}, v{VZ+r}")
            for p in range(8): A(f"v_pk_mul_f32 {v(c+2*p,2)}, {v(c+2*p,2)}, {v(VZ+2*p,2)}")
            pk = PK + 8*(2*ip+i)
            for p in range(8): A(f"v_cvt_pk_bf16_f32 v{pk+p}, v{c+2*p}, v{c+2*p+1}")
            so = T0 if ip == 0 else T1
            A(f"buffer_store_dwordx4 {v(pk,4)}, v{W.V_XD}, s[{W.OUT}:{W.OUT+3}], s{so} offen{off(2048*i)}{SC}")
            A(f"buffer_store_dwordx4 {v(pk+4,4)}, v{W.V_XD}, s[{W.OUT}:{W.OUT+3}], s{so} offen{off(2048*i+1024)}{SC}")
    A(f"s_branch {FIN}")
    A.label(LV)
    FL = [f"s_lshl_b32 s{T0}, s{W.WN}, 6", f"v_add_u32 v{V_TMP}, s{T0}, v{V_T}", f"v_lshlrev_b32 v{V_TMP+1}, 2, v{V_TMP}",
          f"v_add_u32 v{V_TMP+1}, {W_SCR}, v{V_TMP+1}", f"ds_read_b32 v{V_E+64}, v{V_TMP+1}", f"ds_read_b32 v{V_E+66}, v{V_TMP+1} offset:128",
          f"s_lshl_b32 s{T1}, s{W.WT}, 8", f"s_add_u32 s{T1}, s{T1}, {W_SCR+512}", f"v_lshlrev_b32 v{V_TMP}, 4, v{V_H}", f"v_add_u32 v{V_TMP}, s{T1}, v{V_TMP}"]
    for ip in range(2):
        for g in range(4):
            FL.append(f"ds_read_b128 {v(V_E+32*ip+4*g,4)}, v{V_TMP} offset:{128*ip + 32*g}")
            FL.append(f"ds_read_b128 {v(V_E+32*ip+16+4*g,4)}, v{V_TMP} offset:{512 + 128*ip + 32*g}")
    w_mainloop(A, False, "v", FLD, F0, FL)
    stamp(A, 4)
    VAv = V_E + 68
    A(f"""
    s_lshl_b32 s{T0}, s{W.TB}, 2
    s_lshl_b32 s{T1}, s{W.WT}, 1
    s_add_u32 s{T0}, s{T0}, s{T1}
    s_mul_i32 s{T0}, s{T0}, {VTS}
    s_waitcnt lgkmcnt(0)
    v_sub_f32 v{V_E+64}, 0, v{V_E+64}
    v_sub_f32 v{V_E+66}, 0, v{V_E+66}
    v_mov_b32 v{V_E+65}, v{V_E+64}
    v_mov_b32 v{V_E+67}, v{V_E+66}
    """)
    for ip in range(2):
        for i in range(2):
            c = w_acc(i, ip)
            for p in range(8): A(f"v_pk_mul_f32 {v(c+2*p,2)}, {v(c+2*p,2)}, {v(V_E+32*ip+2*p,2)}")
            for p in range(8): A(f"v_pk_fma_f32 {v(c+2*p,2)}, {v(V_E+32*ip+16+2*p,2)}, {v(V_E+64+2*i,2)}, {v(c+2*p,2)}")
            pk = PK + 8*(2*ip+i)
            for p in range(8): A(f"v_cvt_pk_bf16_f32 v{pk+p}, v{c+2*p}, v{c+2*p+1}")
            A(f"buffer_store_dwordx4 {v(pk,4)}, v{VAv+i}, s[{W.OUT}:{W.OUT+3}], s{T0} offen{off(VTS*ip)}{SC}")
            A(f"buffer_store_dwordx4 {v(pk+4,4)}, v{VAv+i}, s[{W.OUT}:{W.OUT+3}], s{T0} offen{off(VTS*ip+704)}{SC}")
    A.label(FIN)
    stamp(A, 5)
    A("s_waitcnt vmcnt(0)")
    A("s_barrier")
    stamp(A, 6)
    stamp_phase(A)
    A(f"s_cmp_eq_u32 s{MODE}, 3"); A(f"s_cbranch_scc1 {L_TO_FB}")
    A(f"s_branch {L_TO_ATT}")

def lw_setup_w(A, kaoff_reg_pair):
    V_TMP=W.V_TMP; T0=W.T0
    A(f"""
    v_lshlrev_b32 v{W.V_XD}, 4, v{V_LANE}
    v_lshrrev_b32 v{V_TMP}, 4, v{V_LANE}
    v_lshlrev_b32 v{W.V_WD}, 6, v{V_TMP}
    v_and_b32 v{V_TMP+1}, 3, v{V_LANE}
    v_lshlrev_b32 v{V_TMP+1}, 4, v{V_TMP+1}
    v_add_u32 v{W.V_WD}, v{W.V_WD}, v{V_TMP+1}
    v_bfe_u32 v{V_TMP+1}, v{V_LANE}, 2, 2
    v_mul_lo_u32 v{V_TMP+1}, v{V_TMP+1}, s{W.LDW}
    v_add_u32 v{W.V_WD}, v{W.V_WD}, v{V_TMP+1}
    s_cmp_eq_u32 s{W.MODE}, 3
    s_cselect_b32 s{T0}, s{W.CB}, 0
    s_cmp_eq_u32 s{T0}, 13
    s_cselect_b32 s{T0}, s{S_OOB}, 0
    v_cmp_le_u32 vcc, 2, v{V_TMP}
    v_mov_b32 v{V_TMP+1}, s{T0}
    s_lshl_b32 s{T0}, s{W.LDW}, 2
    s_sub_u32 s{T0}, s{T0}, 1024
    v_cndmask_b32 v{V_TMP+1}, 0, v{V_TMP+1}, vcc
    v_add_u32 v{W.V_WD}, v{W.V_WD}, v{V_TMP+1}
    v_add_u32 v{W.V_WD+1}, s{T0}, v{W.V_WD}
    v_add_u32 v{W.V_WD+2}, s{T0}, v{W.V_WD+1}
    v_add_u32 v{W.V_WD+3}, s{T0}, v{W.V_WD+2}
    s_lshl_b32 s{W.WADV}, s{W.LDW}, 6
    s_lshl_b32 s{T0}, s{W.LDW}, 4
    s_mul_i32 s{T0}, s{T0}, s{S_LW}
    s_lshl_b32 s{W.WOFF}, s{W.N0}, 1
    s_add_u32 s{W.WOFF}, s{W.WOFF}, s{T0}
    s_lshl_b32 s{W.M0}, s{S_LW}, 12
    s_mul_i32 s{W.WSZ}, s{W.LDW}, 640
    s_mov_b32 s{W.Wd}, s{kaoff_reg_pair}
    s_mov_b32 s{W.Wd+1}, s{kaoff_reg_pair+1}
    s_mov_b32 s{W.Wd+2}, s{W.WSZ}
    s_mov_b32 s{W.Wd+3}, 0x20000
    s_mov_b32 s{W.FREE}, 0
    s_mov_b32 s{W.FREEX}, 0
    """)
def lw_dma_x(k): return f"buffer_load_dwordx4 v{W.V_XD}, s[{W.X}:{W.X+3}], s{W.XOFF} offen{off(k*1024)} lds"
def lw_dma_w(k): return f"buffer_load_dwordx4 v{W.V_WD+k}, s[{W.Wd}:{W.Wd+3}], s{W.WOFF} offen{off(k*1024)} lds"
def slot_wrap(A, reg, slot, n):
    A(f"s_add_u32 s{reg}, s{reg}, {slot}"); A(f"s_cmp_eq_u32 s{reg}, {slot*n}"); A(f"s_cselect_b32 s{reg}, 0, s{reg}")
def lw_issue_w(A):
    A(f"s_add_u32 m0, s{W.FREE}, s{W.M0}")
    slot_wrap(A, W.FREE, W_SLOT, WW_N)
    for k in range(4): A(lw_dma_w(k))
    A(f"s_add_u32 s{W.WOFF}, s{W.WOFF}, s{W.WADV}")
def lw_issue_x(A):
    A(f"s_add_u32 s{W.T0}, s{W.FREEX}, s{W.M0}"); A(f"s_add_u32 m0, s{W.T0}, {WX_BASE}")
    slot_wrap(A, W.FREEX, W_SLOT, WX_N)
    for k in range(4): A(lw_dma_x(k))
    A(f"s_add_u32 s{W.XOFF}, s{W.XOFF}, 4096")
LS=24
def lw_stats_setup(A):
    T0=W.T0; T1=W.T1; T2=W.T2
    A(f"""
    s_cmp_eq_u32 s{W.MODE}, 3
    s_cselect_b32 s{T0}, 1, 0
    s_lshl_b32 s{T1}, s{S_L}, 1
    s_add_u32 s{T0}, s{T0}, s{T1}
    s_lshl_b32 s{T0}, s{T0}, 18
    s_add_u32 s{T0}, s{T0}, {hex(ST[0])}
    """)
    srd_reg(A, W.ST, T0, STSZ)
    A(f"""
    s_mov_b32 s{T0}, {hex(CSQ)}
    s_mov_b32 s{T1}, {CSQSZ}
    s_cmp_eq_u32 s{W.MODE}, 3
    s_cselect_b32 s{T0}, {hex(CS1)}, s{T0}
    s_cselect_b32 s{T1}, {CS1SZ}, s{T1}
    """)
    srd_reg(A, W.CS, T0, f"s{T1}")
    A(f"""
    s_lshl_b32 s52, s{W.TB}, 2
    s_add_u32 s52, s52, s{S_LW}
    s_lshl_b32 s52, s52, 12
    s_lshl_b32 s53, s{W.CSROW}, 1
    s_add_u32 s54, s53, s{W.CSROW}
    v_lshlrev_b32 v{LS+20}, 4, v{V_T}
    v_lshl_add_u32 v{LS+20}, v{V_H}, 11, v{LS+20}
    v_and_b32 v{LS+21}, 127, v0
    v_add_u32 v{LS+21}, s{W.N0}, v{LS+21}
    v_lshlrev_b32 v{LS+21}, 2, v{LS+21}
    """)
def lw_stats_load(A):
    for k in range(4): A(f"buffer_load_dwordx4 {v(LS+4*k,4)}, v{LS+20}, s[{W.ST}:{W.ST+3}], s52 offen{off(512*k)}")
    A(f"buffer_load_dword v{LS+16}, v{LS+21}, s[{W.CS}:{W.CS+3}], 0 offen")
    A(f"buffer_load_dword v{LS+17}, v{LS+21}, s[{W.CS}:{W.CS+3}], s{W.CSROW} offen")
    A(f"buffer_load_dword v{LS+18}, v{LS+21}, s[{W.CS}:{W.CS+3}], s53 offen")
    A(f"buffer_load_dword v{LS+19}, v{LS+21}, s[{W.CS}:{W.CS+3}], s54 offen")
def lw_stats_post(A):
    b = LS; t = LS + 22
    A(f"""
    v_pk_add_f32 {v(b,2)}, {v(b,2)}, {v(b+2,2)}
    v_pk_add_f32 {v(b+4,2)}, {v(b+4,2)}, {v(b+6,2)}
    v_pk_add_f32 {v(b+8,2)}, {v(b+8,2)}, {v(b+10,2)}
    v_pk_add_f32 {v(b+12,2)}, {v(b+12,2)}, {v(b+14,2)}
    v_pk_add_f32 {v(b,2)}, {v(b,2)}, {v(b+4,2)}
    v_pk_add_f32 {v(b+8,2)}, {v(b+8,2)}, {v(b+12,2)}
    v_add_f32 v{b+16}, v{b+16}, v{b+17}
    v_add_f32 v{b+18}, v{b+18}, v{b+19}
    v_pk_add_f32 {v(b,2)}, {v(b,2)}, {v(b+8,2)}
    v_add_f32 v{b+16}, v{b+16}, v{b+18}
    """)
    halfsum(A, b, t); halfsum(A, b+1, t+1)
    A(f"""
    v_mul_f32 v{b}, {hex(f2u(1.0/640))}, v{b}
    v_mul_f32 v{b+1}, {hex(f2u(1.0/640))}, v{b+1}
    v_fma_f32 v{b+1}, -v{b}, v{b}, v{b+1}
    v_max_f32 v{b+1}, 0, v{b+1}
    v_add_f32 v{b+3}, {hex(f2u(1e-5))}, v{b+1}
    v_rsq_f32 v{b+1}, v{b+3}
    v_sub_f32 v{b+4}, 0, v{b}
    s_lshl_b32 s{W.T0}, s{S_LW}, 7
    s_add_u32 s{W.T0}, s{W.T0}, {W_SCR + 512}
    v_lshlrev_b32 v{t}, 2, v{V_T}
    v_add_u32 v{t}, s{W.T0}, v{t}
    v_mul_f32 v{b+3}, v{b+3}, v{b+1}
    v_mul_f32 v{b+2}, v{b}, v{b+1}
    v_and_b32 v{t+1}, 127, v0
    v_lshlrev_b32 v{t+1}, 2, v{t+1}
    v_add_u32 v{t+1}, {W_SCR}, v{t+1}
    ds_write_b32 v{t}, v{b+1}
    ds_write_b32 v{t}, v{b+2} offset:512
    ds_write_b32 v{t}, v{b+4} offset:1024
    ds_write_b32 v{t}, v{b+3} offset:1536
    ds_write_b32 v{t+1}, v{b+16}
    s_waitcnt lgkmcnt(0)
    """)
def lw_prefetch_w(A, n=WW_N):
    for s_ in range(n): lw_issue_w(A)

class T:
    Q=8; K=12; V=16; O=20
    HEAD=24; QB=25; QG=27; KH=28; KO=29; VO=30; CNT=31; T0=32; T1=33; T2=34; FLAG=35; K0=36; V0=38; TT0=37; LO=42; CC=44
    V_AK0=4; V_AK1=5; V_AV=6; V_AO=7; V_TMP=10
    V_Q=16; V_O=48; V_S=112; V_P=144; V_K=152; V_V=168; V_M=184; V_X=188; V_J=200
def tQ0(q): return T.V_Q + 8*q
def tQ1(q): return T.V_Q + 8*q + 4
def tO(q): return T.V_O + 16*q
def tS(b): return T.V_S + 16*b
def tK0(p): return T.V_K + 8*p
def tK1(p): return T.V_K + 8*p + 4
def tV0(p): return T.V_V + 8*p
def tV1(p): return T.V_V + 8*p + 4
def mf(d, a_, b_, c):
    cs = v(c,16) if c is not None else "0"
    return f"v_mfma_f32_32x32x16_bf16 {v(d,16)}, {v(a_,4)}, {v(b_,4)}, {cs}"
def t_load_k(A, p, o):
    A(f"buffer_load_dwordx4 {v(tK0(p),4)}, v{T.V_AK0}, s[{T.K}:{T.K+3}], s{T.KO} offen{off(o)}")
    A(f"buffer_load_dwordx2 {v(tK1(p),2)}, v{T.V_AK1}, s[{T.K}:{T.K+3}], s{T.KO} offen{off(o)}")
def t_load_v(A, p, o):
    A(f"buffer_load_dwordx4 {v(tV0(p),4)}, v{T.V_AV}, s[{T.V}:{T.V+3}], s{T.VO} offen{off(o)}")
    A(f"buffer_load_dwordx4 {v(tV1(p),4)}, v{T.V_AV}, s[{T.V}:{T.V+3}], s{T.VO} offen{off(o+704)}")
def t_period(A, p, q):
    b = q & 1
    s_ = tS(b); sn = tS(b ^ 1)
    qn = (q + 1) & 3; kp = p if q < 3 else p ^ 1
    qp = (q - 1) & 3; vp = p if q > 0 else p ^ 1
    e = lambda r: A(f"v_exp_f32 v{s_+r}, v{s_+r}")
    c = lambda k: A(f"v_cvt_pk_bf16_f32 v{T.V_P+k}, v{s_+2*k}, v{s_+2*k+1}")
    if q == 3: A("s_waitcnt vmcnt(2)")
    A(mf(sn, tK0(kp), tQ0(qn), None))
    e(0); e(1); e(2); e(3); c(0)
    A(mf(sn, tK1(kp), tQ1(qn), sn))
    e(4); e(5); c(1)
    if q == 3 and not EXP.get('anoload'): t_load_k(A, p, p*PTS)
    if q == 1 and not EXP.get('anoload'): t_load_v(A, p ^ 1, p*VTS)
    e(6); e(7); c(2)
    A(mf(tO(qp), tV1(vp), T.V_P+4, tO(qp)))
    e(8); e(9); c(3); e(10); e(11); c(4)
    if q == 0: A("s_waitcnt vmcnt(2)")
    A(mf(tO(q), tV0(p), T.V_P, tO(q)))
    e(12); e(13); c(5); e(14); e(15); c(6); c(7)
def t_rowmax(A, dst, src, tmp):
    A(f"v_max3_f32 v{dst}, v{src}, v{src+1}, v{src+2}")
    for r in range(3, 15, 2): A(f"v_max3_f32 v{dst}, v{dst}, v{src+r}, v{src+r+1}")
    A(f"v_max_f32 v{dst}, v{dst}, v{src+15}")
    A(f"v_mov_b32 v{tmp}, v{dst}"); A(f"v_permlane32_swap_b32 v{dst}, v{tmp}"); A(f"v_max_f32 v{dst}, v{dst}, v{tmp}")
def t_set_shift(A):
    V_TMP = T.V_TMP
    A(f"s_mov_b64 exec, s[{T.LO}:{T.LO+1}]")
    for q in range(4):
        A(f"""
        v_xor_b32 v{V_TMP}, 0x80000000, v{T.V_M+q}
        v_and_b32 v{V_TMP+1}, 0xffff0000, v{V_TMP}
        v_sub_f32 v{V_TMP}, v{V_TMP}, v{V_TMP+1}
        v_and_b32 v{V_TMP+2}, 0xffff0000, v{V_TMP}
        v_sub_f32 v{V_TMP}, v{V_TMP}, v{V_TMP+2}
        v_lshrrev_b32 v{V_TMP+1}, 16, v{V_TMP+1}
        v_or_b32 v{tQ1(q)+2}, v{V_TMP+1}, v{V_TMP+2}
        v_lshrrev_b32 v{tQ1(q)+3}, 16, v{V_TMP}
        """)
    A("s_mov_b64 exec, -1")
def t_first_loads(A):
    A(f"s_mov_b32 s{T.KO}, s{T.K0}"); A(f"s_mov_b32 s{T.VO}, s{T.V0}")
    t_load_k(A, 0, 0); t_load_v(A, 0, 0); t_load_k(A, 1, PTS)
    A(f"s_add_u32 s{T.KO}, s{T.K0}, {2*PTS}"); A(f"s_add_u32 s{T.VO}, s{T.V0}, {VTS}")

def c_att(A, L_NEXT):
    V_TMP=T.V_TMP; T0=T.T0; T1=T.T1; T2=T.T2; V_X=T.V_X; V_M=T.V_M; V_P=T.V_P
    A(f"""
    s_and_b32 s{T.HEAD}, s{S_WG}, 31
    s_lshr_b32 s{T.QB}, s{S_WG}, 5
    s_and_b32 s{T.QG}, s{S_WAVE}, 1
    s_lshr_b32 s{T.KH}, s{S_WAVE}, 1
    s_and_b32 s{T2}, s{T.HEAD}, 1
    s_mul_i32 s{T0}, s{T2}, 1536
    v_lshlrev_b32 v{T.V_AK0}, 4, v{V_LANE}
    v_add_u32 v{T.V_AK0}, s{T0}, v{T.V_AK0}
    s_lshl_b32 s{T0}, s{T2}, 3
    s_add_u32 s{T0}, s{T0}, 1024
    v_lshlrev_b32 v{T.V_AK1}, 4, v{V_T}
    v_add_u32 v{T.V_AK1}, s{T0}, v{T.V_AK1}
    v_min_u32 v{V_TMP+1}, 20, v{V_T}
    v_cmp_lt_u32 vcc, 20, v{V_T}
    v_mul_u32_u24 v{T.V_AV}, 22, v{V_H}
    v_addc_co_u32 v{V_TMP+1}, vcc, 0, v{V_TMP+1}, vcc
    v_add_u32 v{T.V_AV}, v{T.V_AV}, v{V_TMP+1}
    v_lshlrev_b32 v{T.V_AV}, 4, v{T.V_AV}
    s_lshl_b32 s{T0}, s{T.KH}, 5
    s_mul_i32 s{T.K0}, s{T0}, {PTS}
    s_mul_i32 s{T.V0}, s{T0}, {VTS}
    s_lshl_b32 s{T.TT0}, s{T.QB}, 3
    s_lshl_b32 s{T2}, s{T.QG}, 2
    s_add_u32 s{T.TT0}, s{T.TT0}, s{T2}
    s_mov_b32 s{T.LO}, -1
    s_mov_b32 s{T.LO+1}, 0
    s_mov_b32 s{T.FLAG}, 0
    s_mul_i32 s{T2}, s{S_L}, {hex(LSTRIDE)}
    s_lshr_b32 s{T0}, s{T.HEAD}, 1
    s_mul_i32 s{T0}, s{T0}, {64*PTS}
    s_add_u32 s{T0}, s{T0}, s{T2}
    s_add_u32 s{T1}, s{T0}, {hex(KP)}
    """)
    srd_reg(A, T.K, T1, 64*PTS)
    A(f"s_add_u32 s{T1}, s{T0}, {hex(QP)}")
    srd_reg(A, T.Q, T1, 64*PTS)
    A(f"s_mul_i32 s{T0}, s{T.HEAD}, {64*VTS}"); A(f"s_add_u32 s{T0}, s{T0}, s{T2}"); A(f"s_add_u32 s{T1}, s{T0}, {hex(VF)}")
    srd_reg(A, T.V, T1, 64*VTS)
    A(f"s_add_u32 s{T1}, s{T2}, {hex(OF)}")
    srd_reg(A, T.O, T1, XSZ)
    for q in range(4):
        for r in range(4): A(f"v_mov_b32 v{tQ1(q)+r}, 0")
    for p in range(2):
        A(f"v_mov_b32 v{tK1(p)+2}, 0x3f803f80"); A(f"v_mov_b32 v{tK1(p)+3}, 0x00003f80")
    for r in range(8): A(f"v_mov_b32 v{V_P+r}, 0")
    for r in range(4): A(f"v_mov_b32 v{tV1(1)+r}, 0")
    A(f"s_mul_i32 s{T0}, s{T.TT0}, {PTS}")
    A(f"s_add_u32 s{T1}, s{T0}, {2*PTS}")
    A(f"s_mov_b32 s{T.KO}, s{T.K0}"); A(f"s_mov_b32 s{T.VO}, s{T.V0}")
    A("s_barrier")
    stamp(A, 2)
    t_load_k(A, 0, 0)
    for q in range(4):
        so = T0 if q < 2 else T1
        A(f"buffer_load_dwordx4 {v(tQ0(q),4)}, v{T.V_AK0}, s[{T.Q}:{T.Q+3}], s{so} offen{off(PTS*(q&1))}")
    A(f"s_mov_b64 exec, s[{T.LO}:{T.LO+1}]")
    for q in range(4):
        so = T0 if q < 2 else T1
        A(f"buffer_load_dwordx2 {v(tQ1(q),2)}, v{T.V_AK1}, s[{T.Q}:{T.Q+3}], s{so} offen{off(PTS*(q&1))}")
    A("s_mov_b64 exec, -1")
    t_load_v(A, 0, 0); t_load_k(A, 1, PTS)
    A(f"s_add_u32 s{T.KO}, s{T.K0}, {2*PTS}"); A(f"s_add_u32 s{T.VO}, s{T.V0}, {VTS}")
    A("s_waitcnt vmcnt(4)")
    stamp(A, 3)
    for q in range(4):
        A(mf(tO(q), tK0(0), tQ0(q), None)); A(mf(tO(q), tK1(0), tQ1(q), tO(q)))
    for q in range(4): t_rowmax(A, V_M+q, tO(q), V_X+q)
    t_set_shift(A)
    for r in range(64): A(f"v_mov_b32 v{T.V_O+r}, 0")
    SETUP = "L_ca_setup"; LOOP = "L_ca_loop"; COMBINE = "L_ca_combine"
    A.label(SETUP)
    A(mf(tS(0), tK0(0), tQ0(0), None)); A(mf(tS(0), tK1(0), tQ1(0), tS(0)))
    A(f"s_mov_b32 s{T.CNT}, 16")
    stamp(A, 1)
    if EXP.get('prio'): A("s_setprio 3")
    A("s_nop 7")
    A(".p2align 6"); A.label(LOOP)
    for p in range(2):
        for q in range(4): t_period(A, p, q)
    A(f"s_add_u32 s{T.KO}, s{T.KO}, {2*PTS}"); A(f"s_add_u32 s{T.VO}, s{T.VO}, {2*VTS}")
    A(f"s_sub_u32 s{T.CNT}, s{T.CNT}, 1"); A(f"s_cmp_lg_u32 s{T.CNT}, 0"); A(f"s_cbranch_scc1 {LOOP}")
    stamp(A, 4)
    if EXP.get('prio'): A("s_setprio 0")
    A(mf(tO(3), tV1(1), V_P+4, tO(3)))
    A("s_waitcnt vmcnt(0)")
    for q in range(4):
        A(f"v_mov_b32 v{tO(q)+12}, v{tO(q)+8}"); A(f"v_mov_b32 v{tO(q)+13}, v{tO(q)+8}")
    for q in range(4): A(f"v_permlane32_swap_b32 v{tO(q)+13}, v{tO(q)+12}")
    A(f"s_cmp_lg_u32 s{T.FLAG}, 0"); A(f"s_cbranch_scc1 {COMBINE}")
    A(f"v_mov_b32 v{V_TMP}, 0")
    for q in range(4):
        for r in range(0, 12, 2): A(f"v_max3_f32 v{V_TMP}, v{V_TMP}, |v{tO(q)+r}|, |v{tO(q)+r+1}|")
    A(f"""
    v_add_f32 v{V_TMP+2}, v{tO(0)+12}, v{tO(1)+12}
    v_add_f32 v{V_TMP+3}, v{tO(2)+12}, v{tO(3)+12}
    v_add_f32 v{V_TMP+2}, v{V_TMP+2}, v{V_TMP+3}
    s_mov_b32 s{T0}, {hex(f2u(2.0**40))}
    s_mov_b32 s{T1}, {hex(f2u(2.0**120))}
    v_cmp_gt_f32 vcc, s{T0}, v{V_TMP+2}
    v_cmp_gt_f32 s[{T.CC}:{T.CC+1}], s{T1}, v{V_TMP}
    s_and_b64 vcc, vcc, s[{T.CC}:{T.CC+1}]
    s_cmp_eq_u64 vcc, exec
    s_cbranch_scc1 {COMBINE}
    """)
    A(f"s_mov_b32 s{T.FLAG}, 1")
    A(f"s_mov_b64 exec, s[{T.LO}:{T.LO+1}]")
    for q in range(4): A(f"v_mov_b32 v{tQ1(q)+2}, 0"); A(f"v_mov_b32 v{tQ1(q)+3}, 0")
    A("s_mov_b64 exec, -1")
    for q in range(4): A(f"v_mov_b32 v{V_X+4+q}, 0xff800000")
    A(f"s_mov_b32 s{T.KO}, s{T.K0}"); A(f"s_mov_b32 s{T.CNT}, 32")
    TL = "L_ca_tm_loop"
    A.label(TL)
    t_load_k(A, 0, 0)
    A(f"s_add_u32 s{T.KO}, s{T.KO}, {PTS}")
    A("s_waitcnt vmcnt(0)")
    for q in range(4):
        A(mf(tO(q), tK0(0), tQ0(q), None)); A(mf(tO(q), tK1(0), tQ1(q), tO(q)))
    for q in range(4):
        t_rowmax(A, V_M+q, tO(q), V_X+q); A(f"v_max_f32 v{V_X+4+q}, v{V_X+4+q}, v{V_M+q}")
    A(f"s_sub_u32 s{T.CNT}, s{T.CNT}, 1"); A(f"s_cmp_lg_u32 s{T.CNT}, 0"); A(f"s_cbranch_scc1 {TL}")
    for q in range(4): A(f"v_mov_b32 v{V_M+q}, v{V_X+4+q}")
    t_first_loads(A)
    t_set_shift(A)
    for r in range(64): A(f"v_mov_b32 v{T.V_O+r}, 0")
    for r in range(8): A(f"v_mov_b32 v{V_P+r}, 0")
    for r in range(4): A(f"v_mov_b32 v{tV1(1)+r}, 0")
    A("s_waitcnt vmcnt(4)")
    A(f"s_branch {SETUP}")
    A.label(COMBINE)
    for q in range(4): A(f"v_mov_b32 v{tO(q)+13}, v{V_M+q}")
    A(f"""
    s_lshl_b32 s{T0}, s{S_WAVE}, 13
    s_add_u32 s{T0}, s{T0}, {A_CMB}
    v_lshlrev_b32 v{V_TMP}, 4, v{V_LANE}
    v_add_u32 v{V_TMP+1}, s{T0}, v{V_TMP}
    s_xor_b32 s{T1}, s{S_WAVE}, 2
    s_lshl_b32 s{T1}, s{T1}, 13
    s_add_u32 s{T1}, s{T1}, {A_CMB}
    v_add_u32 v{V_TMP+2}, s{T1}, v{V_TMP}
    s_cmp_eq_u32 s{T.KH}, 0
    """)
    C1 = "L_ca_c1"; FIN = "L_ca_fin"
    A(f"s_cbranch_scc0 {C1}")
    for kh in range(2):
        if kh == 1: A.label(C1)
        send = (2, 3) if kh == 0 else (0, 1); keep = (0, 1) if kh == 0 else (2, 3)
        for j, q in enumerate(send):
            for g in range(4): A(f"ds_write_b128 v{V_TMP+1}, {v(tO(q)+4*g,4)} offset:{4096*j + 1024*g}")
        A(f"s_mul_i32 s{T0}, s{T.HEAD}, 5"); A(f"v_add_u32 v{V_TMP+5}, s{T0}, v{V_H}"); A(f"v_lshlrev_b32 v{V_X+8}, 4, v{V_T}")
        for a_ in range(3):
            A(f"""
            v_add_u32 v{V_TMP+3}, {2*a_}, v{V_TMP+5}
            v_lshrrev_b32 v{V_TMP+4}, 2, v{V_TMP+3}
            v_lshl_add_u32 v{T.V_AO+a_}, v{V_TMP+4}, 10, v{V_X+8}
            v_and_b32 v{V_TMP+4}, 1, v{V_TMP+3}
            v_lshl_add_u32 v{T.V_AO+a_}, v{V_TMP+4}, 9, v{T.V_AO+a_}
            v_bfe_u32 v{V_TMP+4}, v{V_TMP+3}, 1, 1
            v_lshl_add_u32 v{T.V_AO+a_}, v{V_TMP+4}, 3, v{T.V_AO+a_}
            """)
        A("s_waitcnt lgkmcnt(0)"); A("s_barrier")
        for j in range(2):
            for g in range(4): A(f"ds_read_b128 {v(T.V_S+16*j+4*g,4)}, v{V_TMP+2} offset:{4096*j + 1024*g}")
        for j, q in enumerate(keep):
            o = tO(q); r_ = T.V_S + 16*j
            A(f"s_waitcnt lgkmcnt({4 if j == 0 else 0})")
            A(f"""
            v_max_f32 v{V_X}, v{o+13}, v{r_+13}
            v_sub_f32 v{V_X+1}, v{o+13}, v{V_X}
            v_sub_f32 v{V_X+2}, v{r_+13}, v{V_X}
            v_exp_f32 v{V_X+1}, v{V_X+1}
            v_exp_f32 v{V_X+2}, v{V_X+2}
            s_nop 0
            v_mul_f32 v{V_X+3}, v{V_X+1}, v{o+12}
            v_fmac_f32 v{V_X+3}, v{V_X+2}, v{r_+12}
            v_rcp_f32 v{V_X+3}, v{V_X+3}
            s_nop 0
            v_mul_f32 v{V_X+4}, v{V_X+1}, v{V_X+3}
            v_mul_f32 v{V_X+6}, v{V_X+2}, v{V_X+3}
            v_mov_b32 v{V_X+5}, v{V_X+4}
            v_mov_b32 v{V_X+7}, v{V_X+6}
            """)
            for pr in range(6): A(f"v_pk_mul_f32 {v(o+2*pr,2)}, {v(o+2*pr,2)}, {v(V_X+4,2)}")
            for pr in range(6): A(f"v_pk_fma_f32 {v(o+2*pr,2)}, {v(r_+2*pr,2)}, {v(V_X+6,2)}, {v(o+2*pr,2)}")
            pk = V_P if j == 0 else T.V_K
            for pr in range(6): A(f"v_cvt_pk_bf16_f32 v{pk+pr}, v{o+2*pr}, v{o+2*pr+1}")
            A(f"""
            s_add_u32 s{T1}, s{T.TT0}, {q}
            s_mul_i32 s{T1}, s{T1}, 40960
            buffer_store_dwordx2 {v(pk,2)}, v{T.V_AO}, s[{T.O}:{T.O+3}], s{T1} offen{SC}
            buffer_store_dwordx2 {v(pk+2,2)}, v{T.V_AO+1}, s[{T.O}:{T.O+3}], s{T1} offen{SC}
            s_mov_b64 exec, s[{T.LO}:{T.LO+1}]
            buffer_store_dwordx2 {v(pk+4,2)}, v{T.V_AO+2}, s[{T.O}:{T.O+3}], s{T1} offen{SC}
            s_mov_b64 exec, -1
            """)
        A(f"s_branch {FIN}")
    A.label(FIN)
    stamp(A, 5)
    A("s_waitcnt vmcnt(0)")
    A("s_barrier")
    stamp(A, 6)
    stamp_phase(A)
    A(f"s_branch {L_NEXT}")

class N:
    X=8; Wd=12; R=16; OUT=20; ST=24
    TB=29; CB=30; FINAL=31; XOFF=32; WOFF=33; FREE=34; CUR=35; CNT=36; T0=37; T1=38; T2=39; WT=40; WK=41
    XM0=43; WM0=44; NK=45; CURW=48; NST=55; FREEX=56; T3=57
    V_XD=4; V_WR2=5; V_XR=8; V_WR=9; V_TMP=10; V_FR=40; V_ACC=104; V_E=152
def n_frW(par, j, b): return N.V_FR + 32*par + 16*j + 4*b
def n_frX(par, j): return N.V_FR + 32*par + 16*j + 12
def n_acc(b): return N.V_ACC + 16*b
def n_reads(par):
    L = []
    for j in range(2):
        L.append(f"ds_read_b128 {v(n_frX(par,j),4)}, v{N.V_XR} offset:{j*2048}")
        for b in range(3):
            for jj in range(2):
                if b < 2: L.append(f"ds_read_b64_tr_b16 {v(n_frW(par,j,b)+2*jj,2)}, v{N.V_WR} offset:{j*5120 + jj*1280 + b*256}")
                else:     L.append(f"ds_read_b64_tr_b16 {v(n_frW(par,j,b)+2*jj,2)}, v{N.V_WR2} offset:{j*5120 + jj*1280}")
    return L
def n_mfmas(par):
    return [f"v_mfma_f32_32x32x16_bf16 {v(n_acc(b),16)}, {v(n_frW(par,j,b),4)}, {v(n_frX(par,j),4)}, {v(n_acc(b),16)}" for j in range(2) for b in range(3)]
def n_stage(A, par, last=False):
    M = n_mfmas(par)
    A("s_waitcnt lgkmcnt(0)")
    if last:
        for m in M: A(m)
        return
    ring_adv(A, N.CUR, N.T1, NX_SLOT, NX_N, [N.V_XR]); ring_adv(A, N.CURW, N.T2, NW_SLOT, NW_N, [N.V_WR, N.V_WR2])
    A(M[0]); A("s_barrier")
    R = n_reads(par ^ 1); k = 0
    for m in M[1:]:
        for _ in range(3):
            if k < len(R): A(R[k]); k += 1
        A(m)
    while k < len(R): A(R[k]); k += 1

def n_params(A, ffb):
    narrow_coords(A, N.TB, N.CB, N.T0, N.T1, N.T2)
    A(f"s_mov_b32 s{N.NST}, {27 if ffb else 10}"); A(f"s_mov_b32 s{N.NK}, {108 if ffb else 40}")

def c_narrow(A, L_TO_FA, L_TO_QKV, L_END):
    V_TMP=N.V_TMP; V_E=N.V_E; T0=N.T0; T1=N.T1; T2=N.T2; T3=N.T3
    A(f"""
    s_load_dwordx2 s[46:47], s[0:1], {KA_OUT}
    s_and_b32 s{N.WT}, s{S_WAVE}, 1
    s_lshr_b32 s{N.WK}, s{S_WAVE}, 1
    s_mov_b32 s{S_K8}, 8192
    s_mov_b32 s{S_K10}, 10240
    s_mov_b32 s{N.CUR}, 0
    s_mov_b32 s{N.CURW}, 0
    s_cmp_eq_u32 s{N.NST}, 27
    s_cselect_b32 s{T0}, 2, 1
    s_cselect_b32 s{T2}, s{S_L}, 0
    s_mov_b32 s{N.FINAL}, s{T2}
    s_lshl_b32 s{T1}, s{S_L}, 1
    s_add_u32 s{T0}, s{T0}, s{T1}
    s_lshl_b32 s{T3}, s{T0}, 18
    s_add_u32 s{T3}, s{T3}, {hex(ST[0])}
    s_mul_i32 s{T0}, s{T0}, {XSZ}
    """)
    srd_reg(A, N.ST, T3, STSZ)
    A(f"""
    s_waitcnt lgkmcnt(0)
    s_cmp_eq_u32 s{N.FINAL}, 1
    s_cselect_b32 s{N.OUT}, s46, s{S_WS}
    s_cselect_b32 s{N.OUT+1}, s47, s{S_WS+1}
    s_cselect_b32 s{T0}, 0, s{T0}
    s_add_u32 s{N.OUT}, s{N.OUT}, s{T0}
    s_addc_u32 s{N.OUT+1}, s{N.OUT+1}, 0
    s_mov_b32 s{N.OUT+2}, {XSZ}
    s_mov_b32 s{N.OUT+3}, 0x20000
    v_lshlrev_b32 v{N.V_XD}, 4, v{V_LANE}
    s_lshl_b32 s{T0}, s{N.WT}, 12
    s_lshl_b32 s{T1}, s{N.WK}, 10
    s_add_u32 s{T0}, s{T0}, s{T1}
    v_add_u32 v{N.V_XR}, s{T0}, v{N.V_XD}
    s_lshl_b32 s{T0}, s{N.WK}, 2
    v_add_u32 v{V_TMP}, s{T0}, v{V_H}
    v_mul_u32_u24 v{N.V_WR}, 640, v{V_TMP}
    v_add_u32 v{N.V_WR}, {NW_BASE}, v{N.V_WR}
    v_and_b32 v{V_TMP}, 3, v{V_LANE}
    v_lshlrev_b32 v{V_TMP}, 3, v{V_TMP}
    v_add_u32 v{N.V_WR}, v{N.V_WR}, v{V_TMP}
    v_bfe_u32 v{V_TMP}, v{V_LANE}, 2, 2
    v_lshlrev_b32 v{V_TMP+1}, 5, v{V_TMP}
    v_add_u32 v{N.V_WR2}, v{N.V_WR}, v{V_TMP+1}
    v_add_u32 v{N.V_WR2}, 512, v{N.V_WR2}
    v_lshlrev_b32 v{V_TMP}, 6, v{V_TMP}
    v_add_u32 v{N.V_WR}, v{N.V_WR}, v{V_TMP}
    v_bfe_u32 v{V_TMP}, v{V_LANE}, 4, 1
    v_lshlrev_b32 v{V_TMP}, 5, v{V_TMP}
    v_add_u32 v{N.V_WR}, v{N.V_WR}, v{V_TMP}
    """)
    for r in range(48): A(f"v_mov_b32 v{N.V_ACC+r}, 0")
    A(f"""
    s_lshl_b32 s{T0}, s{N.TB}, 1
    s_add_u32 s{T0}, s{T0}, s{N.WT}
    s_mul_i32 s{T0}, s{T0}, 40
    s_mul_i32 s{T1}, s{N.CB}, 5
    s_add_u32 s{T0}, s{T0}, s{T1}
    s_mul_i32 s{T1}, s{N.WK}, 3
    s_add_u32 s{T0}, s{T0}, s{T1}
    s_lshl_b32 s{T3}, s{T0}, 10
    s_sub_u32 s{N.CNT}, s{N.NST}, 1
    """)
    stamp(A, 1)
    A("s_barrier")
    stamp(A, 2)
    NR = "L_cn_nores"
    A(f"s_cmp_eq_u32 s{N.NST}, 10"); A(f"s_cselect_b32 s{T0}, s{S_L}, 1"); A(f"s_cmp_lg_u32 s{T0}, 0"); A(f"s_cbranch_scc1 {NR}")
    srd_const(A, N.R, XF[0], XSZ)
    for k in range(3):
        A(f"buffer_load_dwordx4 {v(V_RESP+4*k,4)}, v{N.V_XD}, s[{N.R}:{N.R+3}], s{T3} offen{off(1024*k)}")
    A.label(NR)
    A("s_barrier")
    stamp(A, 3)
    for r in n_reads(0): A(r)
    L = "L_cn_loop"; LODD = "L_cn_odd"; LDONE = "L_cn_loopdone"
    A(f"s_lshr_b32 s{N.CNT}, s{N.CNT}, 1")
    A(".p2align 4"); A.label(L)
    n_stage(A, 0); n_stage(A, 1)
    A(f"s_sub_u32 s{N.CNT}, s{N.CNT}, 1"); A(f"s_cmp_lg_u32 s{N.CNT}, 0"); A(f"s_cbranch_scc1 {L}")
    A(f"s_cmp_eq_u32 s{N.NST}, 27"); A(f"s_cbranch_scc1 {LODD}")
    n_stage(A, 0); n_stage(A, 1, last=True)
    A(f"s_branch {LDONE}")
    A.label(LODD)
    n_stage(A, 0, last=True)
    A.label(LDONE)
    stamp(A, 4)
    A(f"""
    s_mul_i32 s{T0}, s{N.WT}, 4096
    s_mul_i32 s{T1}, s{N.WT}, 6144
    s_add_u32 s{T0}, s{T0}, {N_XCH}
    s_add_u32 s{T1}, s{T1}, {N_XCH + 8192}
    s_cmp_eq_u32 s{N.WK}, 0
    s_cselect_b32 s{T2}, s{T0}, s{T1}
    s_cselect_b32 s{T1}, s{T1}, s{T0}
    v_add_u32 v{V_TMP}, s{T2}, v{N.V_XD}
    v_add_u32 v{V_TMP+1}, s{T1}, v{N.V_XD}
    s_lshl_b32 s{T0}, s{N.TB}, 1
    s_add_u32 s{T0}, s{T0}, s{N.WT}
    """)
    def areg(k): return n_acc(k >> 1) + 8*(k & 1)
    W1 = "L_cn_wk1"; FIN = "L_cn_fin"
    A(f"s_cmp_eq_u32 s{N.WK}, 0"); A(f"s_cbranch_scc0 {W1}")
    for wk in range(2):
        if wk == 1: A.label(W1)
        keep = (0, 1, 2) if wk == 0 else (3, 4)
        send = (3, 4) if wk == 0 else (0, 1, 2)
        for j, k in enumerate(send):
            A(f"ds_write_b128 v{V_TMP}, {v(areg(k),4)} offset:{2048*j}")
            A(f"ds_write_b128 v{V_TMP}, {v(areg(k)+4,4)} offset:{2048*j+1024}")
        A("s_waitcnt lgkmcnt(0)"); A("s_barrier")
        for j, k in enumerate(keep):
            A(f"ds_read_b128 {v(V_E+8*j,4)}, v{V_TMP+1} offset:{2048*j}")
            A(f"ds_read_b128 {v(V_E+8*j+4,4)}, v{V_TMP+1} offset:{2048*j+1024}")
        A(f"v_mov_b32 v{V_TMP+2}, 0"); A(f"v_mov_b32 v{V_TMP+3}, 0")
        A("s_waitcnt vmcnt(0) lgkmcnt(0)")
        for j, k in enumerate(keep):
            a_ = areg(k); p_ = V_E + 8*j; r_ = V_RESP + 4*j
            for pr in range(4): A(f"v_pk_add_f32 {v(a_+2*pr,2)}, {v(a_+2*pr,2)}, {v(p_+2*pr,2)}")
            for pr in range(4):
                A(f"v_lshlrev_b32 v{p_+2*pr}, 16, v{r_+pr}"); A(f"v_and_b32 v{p_+2*pr+1}, 0xffff0000, v{r_+pr}")
            for pr in range(4): A(f"v_pk_add_f32 {v(a_+2*pr,2)}, {v(a_+2*pr,2)}, {v(p_+2*pr,2)}")
            for pr in range(4): A(f"v_cvt_pk_bf16_f32 v{r_+pr}, v{a_+2*pr}, v{a_+2*pr+1}")
        OUTF = f"L_cn_rowmajor_{wk}"
        A(f"s_cmp_eq_u32 s{N.FINAL}, 1"); A(f"s_cbranch_scc1 {OUTF}")
        for j, k in enumerate(keep):
            A(f"buffer_store_dwordx4 {v(V_RESP+4*j,4)}, v{N.V_XD}, s[{N.OUT}:{N.OUT+3}], s{T3} offen{off(1024*j)}{SC}")
        for j, k in enumerate(keep):
            a_ = areg(k)
            for x in range(8):
                A(f"v_add_f32 v{V_TMP+2}, v{V_TMP+2}, v{a_+x}"); A(f"v_fmac_f32 v{V_TMP+3}, v{a_+x}, v{a_+x}")
        halfsum(A, V_TMP+2, V_TMP+4); halfsum(A, V_TMP+3, V_TMP+5)
        A(f"""
        s_lshl_b32 s{T0}, s{T0}, 12
        s_lshl_b32 s{T2}, s{N.CB}, 9
        s_add_u32 s{T0}, s{T0}, s{T2}
        s_add_u32 s{T0}, s{T0}, {8*wk}
        v_lshlrev_b32 v{V_TMP+4}, 4, v{V_T}
        buffer_store_dwordx2 {v(V_TMP+2,2)}, v{V_TMP+4}, s[{N.ST}:{N.ST+3}], s{T0} offen{SC}
        s_branch {FIN}
        """)
        A.label(OUTF)
        A(f"""
        s_lshl_b32 s{T0}, s{T0}, 5
        v_add_u32 v{V_TMP+4}, s{T0}, v{V_T}
        v_mul_u32_u24 v{V_TMP+4}, 1280, v{V_TMP+4}
        v_lshlrev_b32 v{V_TMP+5}, 4, v{V_H}
        v_add_u32 v{V_TMP+4}, v{V_TMP+4}, v{V_TMP+5}
        s_mul_i32 s{T2}, s{N.CB}, 160
        """)
        for j, k in enumerate(keep):
            r_ = V_RESP + 4*j
            A(f"v_permlane32_swap_b32 v{r_}, v{r_+2}"); A(f"v_permlane32_swap_b32 v{r_+1}, v{r_+3}")
        for j, k in enumerate(keep):
            A(f"buffer_store_dwordx4 {v(V_RESP+4*j,4)}, v{V_TMP+4}, s[{N.OUT}:{N.OUT+3}], s{T2} offen{off(32*k)}")
        stamp(A, 5); stamp(A, 6); stamp_phase(A)
        A(f"s_branch {L_END}")
    A.label(FIN)
    stamp(A, 5)
    A("s_waitcnt vmcnt(0)")
    A("s_barrier")
    stamp(A, 6)
    stamp_phase(A)
    A(f"s_cmp_eq_u32 s{N.NST}, 10"); A(f"s_cbranch_scc1 {L_TO_FA}")
    A(f"s_add_u32 s{S_L}, s{S_L}, 1")
    A(f"s_branch {L_TO_QKV}")

def ln_setup_w(A):
    T0=N.T0; T1=N.T1; T2=N.T2
    A(f"""
    v_lshlrev_b32 v{N.V_XD}, 4, v{V_LANE}
    s_mov_b32 s{T0}, {hex(WOP)}
    s_mov_b32 s{T1}, {WOPSZ}
    s_cmp_eq_u32 s{N.NST}, 27
    s_cselect_b32 s{T0}, {hex(W2P)}, s{T0}
    s_cselect_b32 s{T1}, {W2PSZ}, s{T1}
    """)
    srd_reg(A, N.Wd, T0, f"s{T1}")
    A(f"""
    s_mul_i32 s{T0}, s{S_LW}, 3072
    s_cmp_eq_u32 s{S_LW}, 3
    s_cselect_b32 s{T0}, 8192, s{T0}
    s_add_u32 s{N.WM0}, s{T0}, {NW_BASE}
    s_lshl_b32 s{T1}, s{N.NK}, 2
    s_mul_i32 s{T1}, s{T1}, 640
    s_mul_i32 s{T1}, s{T1}, s{N.CB}
    s_add_u32 s{N.WOFF}, s{T1}, s{T0}
    s_mov_b32 s{N.FREE}, 0
    s_mov_b32 s{N.FREEX}, 0
    s_and_b32 s{N.WT}, s{S_LW}, 1
    s_lshr_b32 s{N.WK}, s{S_LW}, 1
    s_lshl_b32 s{N.XM0}, s{N.WT}, 12
    s_lshl_b32 s{T1}, s{N.WK}, 11
    s_add_u32 s{N.XM0}, s{N.XM0}, s{T1}
    """)
def ln_setup_x(A):
    T0=N.T0; T1=N.T1; T2=N.T2
    A(f"""
    s_mov_b32 s{T0}, {hex(OF)}
    s_mov_b32 s{T1}, {XSZ}
    s_cmp_eq_u32 s{N.NST}, 27
    s_cselect_b32 s{T0}, {hex(HF)}, s{T0}
    s_cselect_b32 s{T1}, {HSZ}, s{T1}
    s_mul_i32 s{T2}, s{S_L}, {hex(LSTRIDE)}
    s_add_u32 s{T0}, s{T0}, s{T2}
    """)
    srd_reg(A, N.X, T0, f"s{T1}")
    A(f"""
    s_lshl_b32 s{T0}, s{N.TB}, 1
    s_add_u32 s{T0}, s{T0}, s{N.WT}
    s_mul_i32 s{T0}, s{T0}, s{N.NK}
    s_lshl_b32 s{T1}, s{N.WK}, 1
    s_add_u32 s{T0}, s{T0}, s{T1}
    s_lshl_b32 s{N.XOFF}, s{T0}, 10
    """)
def ln_issue_x(A):
    A(f"s_add_u32 m0, s{N.FREEX}, s{N.XM0}")
    slot_wrap(A, N.FREEX, NX_SLOT, NX_N)
    for k in range(2): A(f"buffer_load_dwordx4 v{N.V_XD}, s[{N.X}:{N.X+3}], s{N.XOFF} offen{off(1024*k)} lds")
    A(f"s_add_u32 s{N.XOFF}, s{N.XOFF}, 4096")
def ln_make_issue_w(nw):
    def f(A):
        A(f"s_add_u32 m0, s{N.FREE}, s{N.WM0}")
        slot_wrap(A, N.FREE, NW_SLOT, NW_N)
        for k in range(nw): A(f"buffer_load_dwordx4 v{N.V_XD}, s[{N.Wd}:{N.Wd+3}], s{N.WOFF} offen{off(1024*k)} lds")
        A(f"s_add_u32 s{N.WOFF}, s{N.WOFF}, 10240")
    return f
def ln_prefetch_w(A, tag, nstage):
    for nw, cond in ((3, 0), (2, 1)):
        L = f"L_lnpf_{tag}_{nw}"; SK = f"L_lnpfs_{tag}_{nw}"
        A(f"s_cmp_lt_u32 s{S_LW}, 2"); A(f"s_cbranch_scc{cond} {SK}")
        A(f"s_mov_b32 s{N.CNT}, {nstage}")
        A.label(L)
        ln_make_issue_w(nw)(A)
        A(f"s_sub_u32 s{N.CNT}, s{N.CNT}, 1"); A(f"s_cmp_lg_u32 s{N.CNT}, 0"); A(f"s_cbranch_scc1 {L}")
        A.label(SK)

def stamp(A, i):
    if asmlib.STAMP: A(f"s_memtime s[{66+2*i}:{67+2*i}]")
def stamp_phase(A):
    if not asmlib.STAMP: return
    A("s_memrealtime s[80:81]")
    A("s_waitcnt lgkmcnt(0)")
    A(f"s_add_u32 s84, s{S_WS}, 0x4000000"); A(f"s_addc_u32 s85, s{S_WS+1}, 0"); A("s_mov_b32 s86, 0x400000"); A("s_mov_b32 s87, 0x20000")
    A(f"s_lshl_b32 s90, s91, 17"); A(f"v_mov_b32 v250, s{S_WG}"); A("v_lshlrev_b32 v250, 9, v250")
    A(f"v_mov_b32 v251, s{S_WAVE}"); A("v_lshlrev_b32 v251, 6, v251"); A("v_add_u32 v250, v250, v251")
    for i in range(7):
        A(f"v_mov_b32 v251, s{66+2*i}"); A(f"buffer_store_dword v251, v250, s[84:87], s90 offen offset:{4*i}")
    A("v_mov_b32 v251, s80"); A("buffer_store_dword v251, v250, s[84:87], s90 offen offset:28")
    A("v_mov_b32 v251, s88"); A("buffer_store_dword v251, v250, s[84:87], s90 offen offset:32")
    A("v_mov_b32 v251, s92"); A("buffer_store_dword v251, v250, s[84:87], s90 offen offset:36")
    A("s_add_u32 s91, s91, 1")

def gen_mega(name):
    A = Asm()
    END = "L_end"
    A(f".globl {name}"); A(".p2align 8"); A(f".type {name},@function"); A.label(name)
    A(f"""
    s_load_dwordx2 s[{S_WS}:{S_WS+1}], s[0:1], {KA_WS}
    {'s_memrealtime s[88:89]' if asmlib.STAMP else ''}
    s_cmp_ge_u32 s{S_WG}, 256
    s_cbranch_scc1 {END}
    v_lshrrev_b32 v4, 6, v0
    v_and_b32 v{V_LANE}, 63, v0
    v_readfirstlane_b32 s{S_WAVE}, v4
    v_lshrrev_b32 v{V_H}, 5, v{V_LANE}
    v_and_b32 v{V_T}, 31, v{V_LANE}
    s_mov_b32 s{S_L}, 0
    s_mov_b32 s{S_OOB}, {hex(OOB)}
    s_mov_b32 s91, 0
    s_and_b32 s{S_LW}, s{S_WAVE}, 3
    s_waitcnt lgkmcnt(0)
    """)
    srd_const(A, S_FL, FLAGS, FLAGSZ)
    A(f"s_cmp_ge_u32 s{S_WAVE}, 4"); A("s_cbranch_scc1 L_loader")
    c_prep(A)
    if asmlib.STAMP: A("s_memrealtime s[92:93]")
    A.label("C_QKV")
    stamp(A, 0)
    wide_coords(A, False, W.TB, W.CB, W.T0, W.T1, W.T2, "C_ATT")
    w_params(A, False)
    A("s_branch C_WIDE")
    A.label("C_FA")
    stamp(A, 0)
    wide_coords(A, True, W.TB, W.CB, W.T0, W.T1, W.T2, "C_FB")
    w_params(A, True)
    A.label("C_WIDE")
    c_wide(A, "C_FB", "C_ATT")
    A.label("C_ATT")
    stamp(A, 0)
    c_att(A, "C_O")
    A.label("C_O")
    stamp(A, 0)
    n_params(A, False)
    A("s_branch C_NARROW")
    A.label("C_FB")
    stamp(A, 0)
    n_params(A, True)
    A.label("C_NARROW")
    c_narrow(A, "C_FA", "C_QKV", END)
    A(".p2align 6")
    A.label("L_loader")
    A(f"s_load_dwordx2 s[50:51], s[0:1], {KA_WQKV}"); A(f"s_load_dwordx2 s[52:53], s[0:1], {KA_DBG}")
    A("s_waitcnt lgkmcnt(0)")
    srd_ptr(A, W.Wd, 50, 640*3840); srd_const(A, W.X, XF[0], XSZ)
    for r in range(4, 9): A(f"v_mov_b32 v{r}, 0")
    A(f"s_or_b32 s92, s{S_WG}, s{S_LW}"); A("s_cmp_lg_u32 s92, 0"); A("s_cbranch_scc1 L_nonce_made")
    A("s_waitcnt lgkmcnt(0)")
    srd_ptr(A, 56, 52, 256)
    A(f"""
    v_mov_b32 v{VP_T}, {NONCE-FLAGS}
    buffer_load_dword v{VP_D}, v{VP_T}, s[{S_FL}:{S_FL+3}], 0 offen sc0 sc1
    v_lshlrev_b32 v{VP_T+1}, 7, v{V_LANE}
    s_waitcnt vmcnt(0)
    v_add_u32 v{VP_D}, 1, v{VP_D}
    v_mov_b32 v{VP_D2}, 1
    s_mov_b64 exec, 3
    buffer_store_dwordx2 v[{VP_D}:{VP_D2}], v{VP_T+1}, s[56:59], 0 offen sc0 sc1
    s_mov_b64 exec, 1
    buffer_store_dword v{VP_D}, v{VP_T}, s[{S_FL}:{S_FL+3}], 0 offen sc0 sc1
    s_mov_b64 exec, -1
    """)
    A.label("L_nonce_made")
    A(f"s_mov_b32 s{W.MODE}, 4")
    wide_coords(A, False, W.TB, W.CB, W.T0, W.T1, W.T2, "L_prep_nonce")
    w_params(A, False)
    A("s_waitcnt lgkmcnt(0)")
    lw_setup_w(A, 50)
    lw_prefetch_w(A)
    A.label("L_prep_nonce")
    A("s_waitcnt lgkmcnt(0)")
    srd_ptr(A, 56, 52, 256)
    A(f"s_cmp_lg_u32 s{S_LW}, 0"); A("s_cbranch_scc1 L_nonce_done")
    A.label("L_nonce_wait")
    A(f"s_mov_b32 s{S_PCNT}, 0x10000")
    A(f"s_and_b32 s92, s{S_WG}, 1"); A("s_lshl_b32 s92, s92, 7"); A(f"v_mov_b32 v{VP_T+1}, s92")
    A.label("L_nonce_poll")
    A(f"""
    buffer_load_dwordx2 v[{VP_D}:{VP_D2}], v{VP_T+1}, s[56:59], 0 offen sc0 sc1
    s_waitcnt vmcnt(0)
    v_readfirstlane_b32 s{S_NONCE}, v{VP_D}
    v_readfirstlane_b32 s92, v{VP_D2}
    s_cmp_eq_u32 s92, 1
    s_cbranch_scc1 L_nonce_done
    s_sleep 4
    s_sub_u32 s{S_PCNT}, s{S_PCNT}, 1
    s_cmp_lg_u32 s{S_PCNT}, 0
    s_cbranch_scc1 L_nonce_poll
    """)
    A.label("L_nonce_done")
    mb_from_prep(A, 60)
    for _ in range(4): A("s_barrier")
    notify(A)
    A(f"s_cmp_eq_u32 s{W.MODE}, 4"); A("s_cbranch_scc1 L_ATT_POLL")
    A.label("L_WIDE_POLL")
    A(f"""
    s_cmp_eq_u32 s{W.MODE}, 3
    s_cselect_b32 s{W.T0}, 1, 0
    s_lshl_b32 s{W.T1}, s{S_L}, 1
    s_add_u32 s{W.T0}, s{W.T0}, s{W.T1}
    s_mul_i32 s{W.T0}, s{W.T0}, {XSZ}
    """)
    srd_reg(A, W.X, W.T0, XSZ)
    A(f"""
    s_lshl_b32 s{W.T0}, s{W.TB}, 2
    s_add_u32 s{W.T0}, s{W.T0}, s{S_LW}
    s_mul_i32 s{W.XOFF}, s{W.T0}, 40960
    """)
    A(f"""
    s_lshl_b32 s{W.T0}, s{W.CB}, 4
    s_add_u32 s{W.T0}, s{W.T0}, s{W.TB}
    s_lshl_b32 s{W.T1}, s{W.TB}, 4
    s_add_u32 s{W.T1}, s{W.T1}, s{W.CB}
    s_cmp_eq_u32 s{W.MODE}, 3
    s_cselect_b32 s{W.T0}, s{W.T1}, s{W.T0}
    s_cselect_b32 s{W.T2}, {hex(MB_FA)}, {MB_QKV}
    s_lshl_b32 s{W.T0}, s{W.T0}, 7
    s_add_u32 s{W.T0}, s{W.T0}, s{W.T2}
    s_mul_i32 s{W.T3}, s{S_L}, {hex(MB_LAYER)}
    s_add_u32 s{W.T3}, s{W.T3}, s{W.T0}
    s_cmp_eq_u32 s{W.MODE}, 3
    s_cselect_b32 s{W.T1}, 1, s{S_L}
    s_cmp_eq_u32 s{W.T1}, 0
    s_cselect_b32 s{W.T1}, 24, 16
    """)
    poll_slots(A, f"s{W.T1}")
    lw_stats_setup(A)
    poll(A, W.T3)
    A("s_barrier")
    if asmlib.STAMP: A("s_memtime s[66:67]")
    emit_sched(A, sched2(W.NST, WX_N, WW_N, WW_N), 4, 4, lw_issue_x, lw_issue_w, W.CNT, "lw", loads={6: (lw_stats_load, 8)}, post={8: lw_stats_post})
    if not EXP['nobar']: A("s_barrier")
    if asmlib.STAMP:
        A("s_waitcnt lgkmcnt(0)")
        A(f"s_add_u32 s84, s{S_WS}, 0x4400000"); A(f"s_addc_u32 s85, s{S_WS+1}, 0")
        A("s_mov_b32 s64, s84"); A("s_mov_b32 s65, s85")
        A("s_mov_b32 s88, s64"); A("s_mov_b32 s89, s65"); A("s_mov_b32 s90, 0x400000"); A("s_mov_b32 s91, 0x20000")
        A(f"s_cmp_eq_u32 s{W.MODE}, 3"); A("s_cselect_b32 s92, 1, 0"); A(f"s_lshl_b32 s93, s{S_L}, 1"); A("s_add_u32 s92, s92, s93"); A("s_lshl_b32 s92, s92, 17")
        A(f"v_mov_b32 v30, s{S_WG}"); A("v_lshlrev_b32 v30, 9, v30"); A(f"v_mov_b32 v31, s{S_WAVE}"); A("v_lshlrev_b32 v31, 6, v31"); A("v_add_u32 v30, v30, v31")
        for i in range(9):
            A(f"v_mov_b32 v31, s{66+2*i}"); A(f"buffer_store_dword v31, v30, s[88:91], s92 offen offset:{4*i}")
        A("v_mov_b32 v31, s84")
    A(f"s_cmp_eq_u32 s{W.MODE}, 3"); A("s_cbranch_scc1 L_wide_fa_end")
    mb_from_qkv(A, W.T0, W.T1, W.T2)
    A("s_barrier")
    notify(A)
    A("s_branch L_ATT_POLL")
    A.label("L_wide_fa_end")
    A(f"s_lshl_b32 s{W.T0}, s{W.TB}, 4")
    mb_simple(A, W.T1, W.T0, 0, W.CB, 16, MB_FB)
    n_params(A, True); ln_setup_w(A); ln_prefetch_w(A, "fb", 3)
    A("s_barrier")
    notify(A)
    ln_prefetch_w(A, "fbb", NW_N - 3)
    A("s_branch L_NARROW_POLL")
    A.label("L_ATT_POLL")
    HEAD=40; QB=41; CA=42; CB_=43; T0=44; T1=45; SO=46
    A(f"""
    s_and_b32 s{HEAD}, s{S_WG}, 31
    s_lshr_b32 s{QB}, s{S_WG}, 5
    s_mul_i32 s{T0}, s{HEAD}, 20
    s_lshr_b32 s{CA}, s{T0}, 7
    s_add_u32 s{T0}, s{T0}, 19
    s_lshr_b32 s{CB_}, s{T0}, 7
    s_cmp_lg_u32 s{CA}, s{CB_}
    s_cselect_b64 s[92:93], -1, 0
    v_lshlrev_b32 v{VP_OFF}, 2, v{V_LANE}
    v_bfe_u32 v{VP_T}, v{V_LANE}, 4, 1
    v_cmp_eq_u32 vcc, 0, v{VP_T}
    s_or_b64 vcc, vcc, s[92:93]
    v_mov_b32 v{VP_T}, s{S_OOB}
    v_mov_b32 v{VP_EXP}, s{S_NONCE}
    v_cndmask_b32 v{VP_OFF}, v{VP_T}, v{VP_OFF}, vcc
    v_cndmask_b32 v{VP_EXP}, 0, v{VP_EXP}, vcc
    v_lshlrev_b32 v{VP_OFF2}, 2, v{V_LANE}
    v_add_u32 v{VP_OFF2}, 256, v{VP_OFF2}
    v_cmp_gt_u32 vcc, 2, v{V_LANE}
    v_cmp_gt_u32 s[88:89], 4, v{V_LANE}
    s_and_b64 s[88:89], s[88:89], s[92:93]
    s_or_b64 vcc, vcc, s[88:89]
    v_mov_b32 v{VP_EXP2}, s{S_NONCE}
    v_cndmask_b32 v{VP_OFF2}, v{VP_T}, v{VP_OFF2}, vcc
    v_cndmask_b32 v{VP_EXP2}, 0, v{VP_EXP2}, vcc
    """)
    region(A, SO, MB_ATT)
    A(f"s_lshl_b32 s{T0}, s{S_WG}, 9"); A(f"s_add_u32 s{SO}, s{SO}, s{T0}")
    poll(A, SO, two=True)
    A("s_barrier")
    A(f"s_lshl_b32 s{T0}, s{QB}, 5")
    mb_simple(A, T1, T0, 0, HEAD, 32, MB_O)
    n_params(A, False); ln_setup_w(A)
    A("s_barrier")
    ln_prefetch_w(A, "o", 3)
    A("s_barrier")
    notify(A)
    ln_prefetch_w(A, "ob", 7)
    A.label("L_NARROW_POLL")
    ln_setup_x(A)
    A(f"""
    s_lshl_b32 s{N.T0}, s{N.TB}, 3
    s_add_u32 s{N.T0}, s{N.T0}, s{N.CB}
    s_lshl_b32 s{N.T0}, s{N.T0}, 7
    s_cmp_eq_u32 s{N.NST}, 27
    s_cselect_b32 s{N.T1}, {hex(MB_FB)}, {hex(MB_O) if False else 0}
    s_cselect_b32 s{N.T2}, 14, 32
    s_cbranch_scc1 L_np_fb
    s_mov_b32 s{N.T1}, {hex(MB_O)}
    """)
    A.label("L_np_fb")
    A(f"s_add_u32 s{N.T0}, s{N.T0}, s{N.T1}"); A(f"s_mul_i32 s{N.T3}, s{S_L}, {hex(MB_LAYER)}"); A(f"s_add_u32 s{N.T3}, s{N.T3}, s{N.T0}")
    poll_slots(A, f"s{N.T2}")
    poll(A, N.T3)
    A("s_barrier")
    for nw in (3, 2):
        for nst in (10, 27):
            nxt = f"L_ln_next_{nw}_{nst}"
            A(f"s_cmp_lt_u32 s{S_LW}, 2"); A(f"s_cbranch_scc{0 if nw == 3 else 1} {nxt}")
            A(f"s_cmp_eq_u32 s{N.NST}, {nst}"); A(f"s_cbranch_scc0 {nxt}")
            emit_sched(A, sched2(nst, NX_N, NW_N, min(nst, NW_N)), 2, nw, ln_issue_x, ln_make_issue_w(nw), N.CNT, f"ln{nw}_{nst}")
            A("s_branch L_ln_done")
            A.label(nxt)
    A.label("L_ln_done")
    A("s_barrier")
    A(f"s_and_b32 s60, s{N.TB}, 1"); A(f"s_lshl_b32 s60, s60, 3"); A(f"s_add_u32 s60, s60, s{N.CB}"); A(f"s_lshr_b32 s61, s{N.TB}, 1")
    A(f"s_cmp_eq_u32 s{N.NST}, 27"); A("s_cbranch_scc1 L_after_fb")
    A(f"s_lshl_b32 s61, s61, 4")
    mb_simple(A, 62, 61, 0, 60, 14, MB_FA)
    wide_coords(A, True, W.TB, W.CB, W.T0, W.T1, W.T2, "L_o_fa_idle")
    w_params(A, True)
    A(f"s_load_dwordx2 s[50:51], s[0:1], {KA_W1}"); A("s_waitcnt lgkmcnt(0)")
    lw_setup_w(A, 50); lw_prefetch_w(A, 2)
    A("s_barrier"); notify(A)
    lw_prefetch_w(A, WW_N - 2)
    A("s_branch L_WIDE_POLL")
    A.label("L_o_fa_idle")
    A("s_barrier"); notify(A)
    n_params(A, True); ln_setup_w(A); ln_prefetch_w(A, "fb2", NW_N)
    A("s_branch L_NARROW_POLL")
    A.label("L_after_fb")
    A(f"s_cmp_eq_u32 s{S_L}, 1"); A(f"s_cbranch_scc1 {END}")
    mb_simple(A, 62, 61, 4, 60, 15, MB_QKV, layer_add=1)
    A(f"s_mov_b32 s{S_L}, 1")
    wide_coords(A, False, W.TB, W.CB, W.T0, W.T1, W.T2, "L_fb_qkv_idle")
    w_params(A, False)
    A(f"s_load_dwordx2 s[50:51], s[0:1], {KA_WQKV}"); A("s_waitcnt lgkmcnt(0)")
    lw_setup_w(A, 50); lw_prefetch_w(A, 2)
    A("s_barrier"); notify(A)
    lw_prefetch_w(A, WW_N - 2)
    A("s_branch L_WIDE_POLL")
    A.label("L_fb_qkv_idle")
    A("s_barrier"); notify(A)
    A("s_branch L_ATT_POLL")
    A.label(END)
    A("s_endpgm")
    desc = f""".section .rodata,"a"
.p2align 6
.amdhsa_kernel {name}
  .amdhsa_next_free_vgpr 256
  .amdhsa_next_free_sgpr 102
  .amdhsa_accum_offset 256
  .amdhsa_group_segment_fixed_size 0
  .amdhsa_kernarg_size 72
  .amdhsa_user_sgpr_count 2
  .amdhsa_user_sgpr_kernarg_segment_ptr 1
  .amdhsa_system_sgpr_workgroup_id_x 1
  .amdhsa_float_denorm_mode_32 3
.end_amdhsa_kernel
.text
"""
    return A, desc

def build(path, name="interleave_layers__mha_block__dense_activation_silu__prompt_kernel"):
    hdr = open('interleave_layers__mha_block__dense_activation_silu__prompt.s.ref').read().split("; Override launch")[0]
    A, desc = gen_mega(name)
    lines, n = hazard_pass(A.lines)
    A.lines = lines
    out = hdr + f"; @launch grid=(256,1,1) block=(512,1,1) lds={LDS_BYTES}\n" + '.amdgcn_target "amdgcn-amd-amdhsa--gfx950"\n.text\n' + A.text() + desc
    open(path, 'w').write(out)
    print(path, 'nops', n, 'lines', len(out.splitlines()), 'bytes', len(out))
if __name__ == "__main__":
    build('mega.s')
    asmlib.STAMP = True
    build('mega_stamp.s')
```

```python
from asmlib import *
from mlayout import *
import asmlib, struct
def f2u(x): return struct.unpack("<I", struct.pack("<f", x))[0]
QSCALE = (DH ** -0.5) * 1.4426950408889634
SC = " sc0 sc1"
OOB = 0x7f000000
CODE_PF = True
PF0 = 0
EXP = dict(nowait=False, nomfma=False, nodma=False, nobar=False, noread=False)

S_WG=2; S_WAVE=3; S_WS=4; S_NONCE=6; S_L=7
S_K16=63; S_K8=62; S_K10=61; S_FOFF=94; S_PCNT=95; S_FL=96; S_LW=100; S_OOB=101
V_LANE=1; V_H=2; V_T=3
V_RESP=232
WW_BASE=0; WW_N=6; WX_BASE=98304; WX_N=3; W_SLOT=16384; W_SCR=147456
NX_BASE=0; NX_N=6; NX_SLOT=8192; NW_BASE=49152; NW_N=10; NW_SLOT=10240; N_XCH=120832
A_CMB=0
P_SCR=126976
LDS_BYTES=163840

def srd_const(A, d, off, size):
    A(f"s_add_u32 s{d}, s{S_WS}, {hex(off)}"); A(f"s_addc_u32 s{d+1}, s{S_WS+1}, 0")
    A(f"s_mov_b32 s{d+2}, {size}"); A(f"s_mov_b32 s{d+3}, 0x20000")
def srd_reg(A, d, soff, size):
    A(f"s_add_u32 s{d}, s{S_WS}, s{soff}"); A(f"s_addc_u32 s{d+1}, s{S_WS+1}, 0")
    A(f"s_mov_b32 s{d+2}, {size}"); A(f"s_mov_b32 s{d+3}, 0x20000")
def srd_ptr(A, d, p, size):
    A(f"s_mov_b32 s{d}, s{p}"); A(f"s_mov_b32 s{d+1}, s{p+1}")
    A(f"s_mov_b32 s{d+2}, {size}"); A(f"s_mov_b32 s{d+3}, 0x20000")
def halfsum(A, x, tmp):
    A(f"v_mov_b32 v{tmp}, v{x}"); A(f"v_permlane32_swap_b32 v{x}, v{tmp}"); A(f"v_add_f32 v{x}, v{x}, v{tmp}")
def off(x): return f" offset:{x}" if x else ""

def sched2(nst, nxs, nws, prew):
    out = []; nx = 0; nw = prew
    for j in range(-1, nst-1):
        ops = []; n = 0
        while nx < nst and nx - nxs + 1 <= j and (n < 2 or nx <= j + 1):
            ops.append(('X', nx)); nx += 1; n += 1
        n = 0
        while nw < nst and nw - nws + 1 <= j and (n < 1 or nw <= j + 1):
            ops.append(('W', nw)); nw += 1; n += 1
        assert nx > j + 1 and max(nw, prew) > j + 1
        out.append((ops, j + 1))
    return out
def emit_sched(A, sched, cx, cw, issue_x, issue_w, scnt, tag, loads=None, post=None):
    loads = loads or {}; post = post or {}
    q = []; items = []
    for n, (ops, tgt) in enumerate(sched):
        for kind, s_ in ops: q.append((kind, s_, cx if kind == 'X' else cw))
        if n in loads: q.append(('E', -1, loads[n][1]))
        idx = max(i for i, (k, st, c) in enumerate(q) if st == tgt)
        wait = sum(c for (k, st, c) in q[idx+1:])
        items.append((tuple(k for k, _ in ops), wait, n if (n in loads or n in post) else None))
    i = 0; k = 0; first = [True]; nb = [1]
    while i < len(items):
        j = i
        while j < len(items) and items[j] == items[i]: j += 1
        if EXP['nobar'] and i == 0: j = 1
        run = j - i; kinds, w, hook = items[i]
        assert w <= 63
        def body():
            if not EXP['nodma']:
                for kd in kinds: (issue_x if kd == 'X' else issue_w)(A)
            if hook in loads: loads[hook][0](A)
            if not EXP['nowait']: A(f"s_waitcnt vmcnt({w})")
            if hook in post: post[hook](A)
            if not (EXP['nobar'] and tag == "lw" and not first[0]): A("s_barrier")
            first[0] = False
            if asmlib.STAMP and tag == "lw" and nb[0] < 9:
                A(f"s_memtime s[{66+2*nb[0]}:{67+2*nb[0]}]"); nb[0] += 1
        if run >= 3 and not (asmlib.STAMP and tag == "lw"):
            L = f"L_{tag}_{k}"; k += 1
            A(f"s_mov_b32 s{scnt}, {run}"); A.label(L); body()
            A(f"s_sub_u32 s{scnt}, s{scnt}, 1"); A(f"s_cmp_lg_u32 s{scnt}, 0"); A(f"s_cbranch_scc1 {L}")
        else:
            for _ in range(run): body()
        i = j

VP_OFF=10; VP_EXP=11; VP_OFF2=12; VP_EXP2=13; VP_D=14; VP_D2=15; VP_T=16; VP_MB=20
def notify(A):
    L = A.newlabel("fl")
    A(f"s_cmp_lg_u32 s{S_LW}, 0"); A(f"s_cbranch_scc1 {L}")
    A(f"v_mov_b32 v{VP_T}, s{S_NONCE}")
    A(f"buffer_store_dword v{VP_T}, v{VP_MB}, s[{S_FL}:{S_FL+3}], 0 offen sc0 sc1")
    A.label(L)
def mb_finish(A, idx, slot, nvalid_cmp, region, shift=7):
    A(f"v_lshlrev_b32 v{idx}, {shift}, v{idx}")
    A(f"v_lshl_add_u32 v{VP_MB}, v{slot}, 2, v{idx}")
    A(f"v_add_u32 v{VP_MB}, s{region}, v{VP_MB}")
    A(f"v_mov_b32 v{idx}, s{S_OOB}")
    A(f"v_cndmask_b32 v{VP_MB}, v{idx}, v{VP_MB}, vcc")
def region(A, dst, base, layer_add=0):
    A(f"s_add_u32 s{dst}, s{S_L}, {layer_add}") if layer_add else A(f"s_mov_b32 s{dst}, s{S_L}")
    A(f"s_mul_i32 s{dst}, s{dst}, {hex(MB_LAYER)}"); A(f"s_add_u32 s{dst}, s{dst}, {hex(base)}")
def poll(A, soff, two=False):
    L = A.newlabel("poll"); Dn = A.newlabel("polld")
    A(f"s_cmp_lg_u32 s{S_LW}, 0"); A(f"s_cbranch_scc1 {Dn}")
    A(f"s_mov_b32 s{S_PCNT}, 0x10000")
    A.label(L)
    A(f"buffer_load_dword v{VP_D}, v{VP_OFF}, s[{S_FL}:{S_FL+3}], s{soff} offen sc0 sc1")
    if two: A(f"buffer_load_dword v{VP_D2}, v{VP_OFF2}, s[{S_FL}:{S_FL+3}], s{soff} offen sc0 sc1")
    A("s_waitcnt vmcnt(0)")
    A(f"v_cmp_eq_u32 vcc, v{VP_D}, v{VP_EXP}")
    if two:
        A(f"v_cmp_eq_u32 s[92:93], v{VP_D2}, v{VP_EXP2}")
        A("s_and_b64 vcc, vcc, s[92:93]")
    A("s_cmp_eq_u64 vcc, exec")
    A(f"s_cbranch_scc1 {Dn}")
    A(f"s_sub_u32 s{S_PCNT}, s{S_PCNT}, 1"); A(f"s_cmp_lg_u32 s{S_PCNT}, 0"); A(f"s_cbranch_scc1 {L}")
    A.label(Dn)
def poll_slots(A, n_sreg_or_const):
    A(f"v_lshlrev_b32 v{VP_OFF}, 2, v{V_LANE}")
    A(f"v_cmp_gt_u32 vcc, {n_sreg_or_const}, v{V_LANE}")
    A(f"v_mov_b32 v{VP_T}, s{S_OOB}")
    A(f"v_mov_b32 v{VP_EXP}, s{S_NONCE}")
    A(f"v_cndmask_b32 v{VP_OFF}, v{VP_T}, v{VP_OFF}, vcc")
    A(f"v_cndmask_b32 v{VP_EXP}, 0, v{VP_EXP}, vcc")
def mb_from_prep(A, t):
    I=VP_T; S_=VP_T+1; X=VP_T+2
    A(f"""
    s_lshr_b32 s{t}, s{S_WG}, 4
    v_lshlrev_b32 v{I}, 4, v{V_LANE}
    v_add_u32 v{I}, s{t}, v{I}
    s_and_b32 s{t}, s{S_WG}, 15
    v_mov_b32 v{S_}, s{t}
    s_lshr_b32 s{t}, s{S_WG}, 3
    s_lshl_b32 s{t}, s{t}, 4
    s_sub_u32 s{t}, s{t}, 16
    v_add_u32 v{X}, s{t}, v{V_LANE}
    v_bfe_u32 v{X+1}, v{V_LANE}, 4, 2
    v_cmp_eq_u32 vcc, 1, v{X+1}
    s_and_b32 s{t}, s{S_WG}, 7
    s_add_u32 s{t}, s{t}, 16
    v_mov_b32 v{X+1}, s{t}
    v_cndmask_b32 v{I}, v{I}, v{X}, vcc
    v_cndmask_b32 v{S_}, v{S_}, v{X+1}, vcc
    s_cmp_lt_u32 s{S_WG}, 120
    s_cselect_b64 s[92:93], -1, 0
    s_and_b64 s[92:93], s[92:93], vcc
    v_cmp_gt_u32 vcc, 15, v{V_LANE}
    s_or_b64 vcc, vcc, s[92:93]
    s_mov_b32 s{t}, {MB_QKV}
    """)
    mb_finish(A, I, S_, None, t)
def mb_from_qkv(A, t0, t1, t2):
    I=VP_T; S_=VP_T+1; X=VP_T+2; Y=VP_T+3
    A(f"""
    s_mul_i32 s{t0}, s{W.CB}, 205
    s_lshr_b32 s{t0}, s{t0}, 10
    s_mul_i32 s{t1}, s{t0}, 5
    s_sub_u32 s{t1}, s{W.CB}, s{t1}
    s_lshl_b32 s{t2}, s{t1}, 7
    s_mul_i32 s{S_PCNT}, s{t2}, 3277
    s_lshr_b32 s{S_PCNT}, s{S_PCNT}, 16
    s_add_u32 s{t2}, s{t2}, 127
    s_mul_i32 s{t2}, s{t2}, 3277
    s_lshr_b32 s{t2}, s{t2}, 16
    """)
    LQ = A.newlabel("mbq"); LD = A.newlabel("mbd")
    A(f"s_cmp_eq_u32 s{t0}, 0"); A(f"s_cbranch_scc1 {LQ}")
    A(f"""
    v_lshrrev_b32 v{X}, 3, v{V_LANE}
    v_add_u32 v{X}, s{S_PCNT}, v{X}
    v_and_b32 v{I}, 7, v{V_LANE}
    v_lshl_add_u32 v{I}, v{I}, 5, v{X}
    v_mul_u32_u24 v{Y}, 20, v{X}
    v_lshrrev_b32 v{Y}, 7, v{Y}
    v_cmp_ne_u32 vcc, s{t1}, v{Y}
    s_sub_u32 s{t0}, s{t0}, 1
    s_lshl_b32 s{t0}, s{t0}, 5
    s_add_u32 s{t0}, s{t0}, s{W.TB}
    v_mov_b32 v{S_}, s{t0}
    v_add_u32 v{Y}, 16, v{S_}
    v_cndmask_b32 v{S_}, v{S_}, v{Y}, vcc
    v_cmp_ge_u32 vcc, s{t2}, v{X}
    s_branch {LD}
    """)
    A.label(LQ)
    A(f"""
    v_add_u32 v{X}, s{S_PCNT}, v{V_LANE}
    s_lshr_b32 s{t0}, s{W.TB}, 1
    s_lshl_b32 s{t0}, s{t0}, 5
    v_add_u32 v{I}, s{t0}, v{X}
    v_mul_u32_u24 v{Y}, 20, v{X}
    v_lshrrev_b32 v{Y}, 7, v{Y}
    v_cmp_ne_u32 vcc, s{t1}, v{Y}
    s_and_b32 s{t0}, s{W.TB}, 1
    s_add_u32 s{t0}, s{t0}, 64
    v_mov_b32 v{S_}, s{t0}
    v_add_u32 v{Y}, 2, v{S_}
    v_cndmask_b32 v{S_}, v{S_}, v{Y}, vcc
    v_cmp_ge_u32 vcc, s{t2}, v{X}
    v_cmp_gt_u32 s[92:93], 8, v{V_LANE}
    s_and_b64 vcc, vcc, s[92:93]
    """)
    A.label(LD)
    region(A, t0, MB_ATT)
    mb_finish(A, I, S_, None, t0, shift=9)
def mb_simple(A, t, idx_base_expr, lane_shift, slot_sreg, nvalid, base, layer_add=0):
    I=VP_T; S_=VP_T+1
    A(f"v_lshlrev_b32 v{I}, {lane_shift}, v{V_LANE}") if lane_shift else A(f"v_mov_b32 v{I}, v{V_LANE}")
    A(f"v_add_u32 v{I}, s{idx_base_expr}, v{I}")
    A(f"v_mov_b32 v{S_}, s{slot_sreg}")
    A(f"v_cmp_gt_u32 vcc, {nvalid}, v{V_LANE}")
    region(A, t, base, layer_add)
    mb_finish(A, I, S_, None, t)

def wide_coords(A, ffn, tb, cb, t0, t1, t2, idle_label):
    A(f"""
    s_and_b32 s{t0}, s{S_WG}, 7
    s_lshr_b32 s{t1}, s{S_WG}, 3
    s_and_b32 s{tb}, s{t0}, 3
    s_lshl_b32 s{tb}, s{tb}, 2
    s_and_b32 s{t2}, s{t1}, 3
    s_add_u32 s{tb}, s{tb}, s{t2}
    s_lshr_b32 s{t0}, s{t0}, 2
    s_lshr_b32 s{t1}, s{t1}, 2
    """)
    if ffn:
        A(f"s_mul_i32 s{cb}, s{t0}, 7"); A(f"s_add_u32 s{cb}, s{cb}, s{t1}")
        A(f"s_cmp_ge_u32 s{t1}, 7"); A(f"s_cbranch_scc1 {idle_label}")
    else:
        A(f"s_lshl_b32 s{cb}, s{t0}, 3"); A(f"s_add_u32 s{cb}, s{cb}, s{t1}")
        A(f"s_cmp_ge_u32 s{cb}, 15"); A(f"s_cbranch_scc1 {idle_label}")
def narrow_coords(A, tb, cb, t0, t1, t2):
    A(f"""
    s_and_b32 s{t0}, s{S_WG}, 7
    s_lshr_b32 s{t1}, s{S_WG}, 3
    s_and_b32 s{tb}, s{t0}, 3
    s_lshl_b32 s{tb}, s{tb}, 3
    s_and_b32 s{t2}, s{t1}, 7
    s_add_u32 s{tb}, s{tb}, s{t2}
    s_lshr_b32 s{t0}, s{t0}, 2
    s_lshl_b32 s{t0}, s{t0}, 2
    s_lshr_b32 s{t1}, s{t1}, 3
    s_add_u32 s{cb}, s{t0}, s{t1}
    """)

def c_prep(A):
    X=20; XF0=24; ST0=28; WO=32; W2=36; CS_S=40; CS_D=44; WOPD=48; W2PD=52; VF0=56; VF1=60
    TT=64; Q=65; T0=66; T1=67; T2=68; T3=69; LDW=76; CROW=77; TASK=78; STRIP=79; RQ=80; NOCS=81; K3=82; ADV=83; CO=84
    A(f"""
    s_load_dwordx4 s[8:11], s[0:1], {KA_X}
    s_load_dwordx2 s[12:13], s[0:1], {KA_WO}
    s_load_dwordx4 s[16:19], s[0:1], {KA_W1}
    s_lshr_b32 s{TT}, s{S_WG}, 2
    s_and_b32 s{Q}, s{S_WG}, 3
    s_lshl_b32 s{T0}, s{TT}, 5
    v_add_u32 v5, s{T0}, v{V_T}
    v_mul_u32_u24 v5, 1280, v5
    v_lshlrev_b32 v6, 4, v{V_H}
    v_add_u32 v5, v5, v6
    s_mul_i32 s{T0}, s{Q}, 320
    s_lshl_b32 s{T1}, s{S_WAVE}, 5
    s_add_u32 s{T0}, s{T0}, s{T1}
    v_add_u32 v5, s{T0}, v5
    s_cmp_lt_u32 s{S_WAVE}, 2
    s_cselect_b32 s{K3}, 256, s{S_OOB}
    s_waitcnt lgkmcnt(0)
    """)
    srd_ptr(A, X, 8, XSZ)
    A(f"""
    buffer_load_dwordx4 v[8:11], v5, s[{X}:{X+3}], 0 offen
    buffer_load_dwordx4 v[12:15], v5, s[{X}:{X+3}], 0 offen offset:128
    buffer_load_dwordx4 v[16:19], v5, s[{X}:{X+3}], s{K3} offen
    """)
    CSW1 = "L_cp_csw1"; CSGO = "L_cp_csgo"
    A(f"s_cmp_ge_u32 s{S_WG}, 228"); A(f"s_cselect_b32 s{NOCS}, 1, 0")
    A(f"s_cmp_ge_u32 s{S_WG}, 120"); A(f"s_cbranch_scc1 {CSW1}")
    srd_ptr(A, CS_S, 10, 640*3840); srd_const(A, CS_D, CSQ, CSQSZ)
    A(f"s_mov_b32 s{LDW}, 3840"); A(f"s_mov_b32 s{CROW}, 7680"); A(f"s_mov_b32 s{TASK}, s{S_WG}"); A(f"s_branch {CSGO}")
    A.label(CSW1)
    srd_ptr(A, CS_S, 16, 640*3456); srd_const(A, CS_D, CS1, CS1SZ)
    A(f"s_mov_b32 s{LDW}, 3456"); A(f"s_mov_b32 s{CROW}, 6912"); A(f"s_sub_u32 s{TASK}, s{S_WG}, 120")
    A.label(CSGO)
    A(f"""
    s_lshr_b32 s{STRIP}, s{TASK}, 2
    s_and_b32 s{RQ}, s{TASK}, 3
    v_lshrrev_b32 v6, 3, v0
    s_mul_i32 s{T0}, s{RQ}, 160
    v_add_u32 v6, s{T0}, v6
    v_mul_lo_u32 v6, v6, s{LDW}
    v_and_b32 v7, 7, v0
    v_lshlrev_b32 v7, 4, v7
    v_add_u32 v6, v6, v7
    s_lshl_b32 s{T0}, s{STRIP}, 7
    v_add_u32 v6, s{T0}, v6
    s_lshl_b32 s{ADV}, s{LDW}, 5
    s_cmp_eq_u32 s{NOCS}, 1
    s_cselect_b32 s{CO}, s{S_OOB}, 0
    """)
    for i in range(5):
        A(f"buffer_load_dwordx4 v[{20+4*i}:{23+4*i}], v6, s[{CS_S}:{CS_S+3}], s{CO} offen")
        if i < 4: A(f"s_add_u32 s{CO}, s{CO}, s{ADV}")
    srd_ptr(A, WO, 12, 640*1280); srd_ptr(A, W2, 18, F*1280)
    A(f"""
    s_lshl_b32 s{T0}, s{S_WG}, 12
    v_lshlrev_b32 v7, 4, v0
    v_add_u32 v7, s{T0}, v7
    s_mov_b32 s{T1}, 0x100000
    s_mov_b32 s{T2}, 0x200000
    buffer_load_dwordx4 v[40:43], v7, s[{WO}:{WO+3}], 0 offen
    buffer_load_dwordx4 v[44:47], v7, s[{W2}:{W2+3}], 0 offen
    buffer_load_dwordx4 v[48:51], v7, s[{W2}:{W2+3}], s{T1} offen
    buffer_load_dwordx4 v[52:55], v7, s[{W2}:{W2+3}], s{T2} offen
    """)
    srd_const(A, XF0, XF[0], XSZ); srd_const(A, ST0, ST[0], STSZ)
    srd_const(A, WOPD, WOP, WOPSZ); srd_const(A, W2PD, W2P, W2PSZ)
    srd_const(A, VF0, VF, VSZ); srd_const(A, VF1, VF + LSTRIDE, VSZ)
    def packaddr(dst, add, kq640):
        A(f"""
        v_lshrrev_b32 v72, 4, v7
        v_add_u32 v72, {add}, v72
        s_mov_b32 s{T3}, 0xcccccccd
        v_mul_hi_u32 v73, v72, s{T3}
        v_lshrrev_b32 v73, 6, v73
        v_mul_u32_u24 v74, 80, v73
        v_sub_u32 v74, v72, v74
        v_mul_u32_u24 v75, 6554, v74
        v_lshrrev_b32 v75, 16, v75
        v_mul_u32_u24 v76, 10, v75
        v_sub_u32 v76, v74, v76
        s_mov_b32 s{T3}, {kq640}
        v_mul_lo_u32 v{dst}, v75, s{T3}
        v_lshrrev_b32 v77, 2, v73
        v_mul_u32_u24 v77, 640, v77
        v_add_u32 v{dst}, v{dst}, v77
        v_and_b32 v73, 3, v73
        v_lshrrev_b32 v77, 2, v76
        v_lshlrev_b32 v77, 8, v77
        v_lshlrev_b32 v78, 6, v73
        v_add_u32 v77, v77, v78
        v_and_b32 v78, 3, v76
        v_lshlrev_b32 v78, 4, v78
        v_add_u32 v77, v77, v78
        v_lshlrev_b32 v78, 5, v73
        v_and_b32 v79, 1, v76
        v_lshlrev_b32 v79, 4, v79
        v_add_u32 v78, v78, v79
        v_add_u32 v78, 512, v78
        v_cmp_gt_u32 vcc, 8, v76
        v_cndmask_b32 v77, v78, v77, vcc
        v_add_u32 v{dst}, v{dst}, v77
        v_cmp_gt_u32 vcc, {kq640*8//16}, v72
        v_mov_b32 v78, s{S_OOB}
        v_cndmask_b32 v{dst}, v78, v{dst}, vcc
        """)
    packaddr(80, 0, 160*640); packaddr(81, 0, 432*640); packaddr(82, 65536, 432*640); packaddr(83, 131072, 432*640)
    A(f"""
    v_lshrrev_b32 v95, 1, v{V_LANE}
    s_lshl_b32 s{T0}, s{S_WG}, 5
    v_add_u32 v95, s{T0}, v95
    v_mul_u32_u24 v95, 352, v95
    v_and_b32 v94, 1, v{V_LANE}
    v_lshlrev_b32 v96, 4, v94
    v_add_u32 v95, v95, v96
    v_add_u32 v95, 320, v95
    v_mov_b32 v96, 0x3f803f80
    v_cmp_eq_u32 vcc, 0, v94
    v_cndmask_b32 v96, 0, v96, vcc
    v_mov_b32 v97, v96
    v_mov_b32 v98, v96
    v_mov_b32 v99, v96
    v_cmp_gt_u32 vcc, 64, v0
    v_mov_b32 v94, s{S_OOB}
    v_cndmask_b32 v95, v94, v95, vcc
    buffer_store_dwordx4 v[96:99], v95, s[{VF0}:{VF0+3}], 0 offen{SC}
    buffer_store_dwordx4 v[96:99], v95, s[{VF1}:{VF1+3}], 0 offen{SC}
    """)
    A("s_waitcnt vmcnt(11)")
    A("v_mov_b32 v56, 0\nv_mov_b32 v57, 0")
    for r in range(8, 20):
        A(f"""
        v_lshlrev_b32 v58, 16, v{r}
        v_and_b32 v59, 0xffff0000, v{r}
        v_add_f32 v56, v56, v58
        v_fmac_f32 v57, v58, v58
        v_add_f32 v56, v56, v59
        v_fmac_f32 v57, v59, v59
        """)
    for b in (8, 12, 16):
        A(f"v_permlane32_swap_b32 v{b}, v{b+2}"); A(f"v_permlane32_swap_b32 v{b+1}, v{b+3}")
    A(f"""
    s_mul_i32 s{T0}, s{TT}, 40
    s_mul_i32 s{T1}, s{Q}, 10
    s_add_u32 s{T0}, s{T0}, s{T1}
    s_add_u32 s{T0}, s{T0}, s{S_WAVE}
    s_lshl_b32 s{T0}, s{T0}, 10
    v_lshlrev_b32 v60, 4, v{V_LANE}
    v_add_u32 v60, s{T0}, v60
    s_cmp_lt_u32 s{S_WAVE}, 2
    s_cselect_b32 s{K3}, 8192, s{S_OOB}
    s_mov_b32 s{T1}, 4096
    buffer_store_dwordx4 v[8:11], v60, s[{XF0}:{XF0+3}], 0 offen{SC}
    buffer_store_dwordx4 v[12:15], v60, s[{XF0}:{XF0+3}], s{T1} offen{SC}
    buffer_store_dwordx4 v[16:19], v60, s[{XF0}:{XF0+3}], s{K3} offen{SC}
    """)
    halfsum(A, 56, 58); halfsum(A, 57, 59)
    A(f"""
    s_lshl_b32 s{T0}, s{TT}, 12
    s_lshl_b32 s{T1}, s{Q}, 2
    s_add_u32 s{T1}, s{T1}, s{S_WAVE}
    s_lshr_b32 s{T2}, s{T1}, 1
    s_lshl_b32 s{T2}, s{T2}, 9
    s_add_u32 s{T0}, s{T0}, s{T2}
    s_and_b32 s{T1}, s{T1}, 1
    s_lshl_b32 s{T1}, s{T1}, 3
    s_add_u32 s{T0}, s{T0}, s{T1}
    v_lshlrev_b32 v60, 4, v{V_T}
    v_add_u32 v60, s{T0}, v60
    buffer_store_dwordx2 v[56:57], v60, s[{ST0}:{ST0+3}], 0 offen{SC}
    s_waitcnt vmcnt(6)
    buffer_store_dwordx4 v[40:43], v80, s[{WOPD}:{WOPD+3}], 0 offen{SC}
    buffer_store_dwordx4 v[44:47], v81, s[{W2PD}:{W2PD+3}], 0 offen{SC}
    buffer_store_dwordx4 v[48:51], v82, s[{W2PD}:{W2PD+3}], 0 offen{SC}
    buffer_store_dwordx4 v[52:55], v83, s[{W2PD}:{W2PD+3}], 0 offen{SC}
    """)
    for j in range(8): A(f"v_mov_b32 v{64+j}, 0")
    for i in range(5):
        for rr in range(4):
            r = 20 + 4*i + rr
            A(f"""
            v_lshlrev_b32 v58, 16, v{r}
            v_and_b32 v59, 0xffff0000, v{r}
            v_add_f32 v{64+2*rr}, v{64+2*rr}, v58
            v_add_f32 v{65+2*rr}, v{65+2*rr}, v59
            """)
    A(f"""
    v_lshlrev_b32 v58, 5, v0
    v_add_u32 v58, {P_SCR}, v58
    ds_write_b128 v58, v[64:67]
    ds_write_b128 v58, v[68:71] offset:16
    s_waitcnt lgkmcnt(0)
    s_barrier
    v_lshlrev_b32 v58, 2, v{V_LANE}
    s_lshl_b32 s{T0}, s{S_WAVE}, 11
    s_add_u32 s{T0}, s{T0}, {P_SCR}
    v_add_u32 v58, s{T0}, v58
    """)
    for k in range(8): A(f"ds_read_b32 v{64+k}, v58 offset:{256*k}")
    A(f"""
    s_waitcnt lgkmcnt(0)
    v_add_f32 v64, v64, v65
    v_add_f32 v66, v66, v67
    v_add_f32 v68, v68, v69
    v_add_f32 v70, v70, v71
    v_add_f32 v64, v64, v66
    v_add_f32 v68, v68, v70
    v_add_f32 v64, v64, v68
    v_lshlrev_b32 v58, 2, v0
    v_add_u32 v58, {P_SCR}, v58
    s_barrier
    ds_write_b32 v58, v64
    s_waitcnt lgkmcnt(0)
    s_barrier
    v_lshlrev_b32 v59, 2, v{V_LANE}
    v_add_u32 v58, {P_SCR}, v59
    ds_read_b32 v64, v58
    ds_read_b32 v65, v58 offset:256
    ds_read_b32 v66, v58 offset:512
    ds_read_b32 v67, v58 offset:768
    s_waitcnt lgkmcnt(0)
    v_add_f32 v64, v64, v65
    v_add_f32 v66, v66, v67
    v_add_f32 v64, v64, v66
    s_mul_i32 s{T0}, s{RQ}, s{CROW}
    s_lshl_b32 s{T1}, s{STRIP}, 8
    s_add_u32 s{T0}, s{T0}, s{T1}
    s_cmp_lg_u32 s{S_WAVE}, 0
    s_cselect_b32 s{T0}, s{S_OOB}, s{T0}
    s_cmp_eq_u32 s{NOCS}, 1
    s_cselect_b32 s{T0}, s{S_OOB}, s{T0}
    v_add_u32 v59, s{T0}, v59
    buffer_store_dword v64, v59, s[{CS_D}:{CS_D+3}], 0 offen{SC}
    s_waitcnt vmcnt(0)
    s_barrier
    """)

class W:
    X=8; Wd=12; ST=16; CS=20; OUT=24
    TB=29; CB=30; MODE=31; XOFF=32; WOFF=33; M0=34; WADV=35; FREE=36; CNT=37; LDW=38; N0=39; CSROW=40
    T0=41; T1=42; T2=43; WN=44; WT=45; XB=46; T3=47; FREEX=48; WSZ=49; CURX=54; CURW=55; QS=56; ISF=58; SO0=50
    V_XD=4; V_WD=5; V_WRH=5; V_XR=9; V_WR=10; V_TMP=11; V_AA=20; V_NB=24; V_A2=28; V_FR=32; V_ACC=96; V_E=160
    NST=10
def ring_adv(A, cur, tmp, slot, n, vregs):
    A(f"s_add_u32 s{cur}, s{cur}, 1"); A(f"s_cmp_eq_u32 s{cur}, {n}")
    A(f"s_cselect_b32 s{tmp}, {hex(-slot*(n-1) & 0xffffffff)}, s{S_K16 if slot == 16384 else (S_K8 if slot == 8192 else S_K10)}")
    A(f"s_cselect_b32 s{cur}, 0, s{cur}")
    for r in vregs: A(f"v_add_u32 v{r}, s{tmp}, v{r}")
def w_fr(setn, kind, i): return W.V_FR + 16*setn + (0 if kind == 'W' else 8) + 4*i
def w_acc(i, ip): return W.V_ACC + 16*(2*i + ip)
def w_reads(setn, step, stage):
    if EXP['noread']: return []
    xs = (stage % WX_N)*W_SLOT; ws = stage % WW_N
    wreg = W.V_WR if ws < 4 else W.V_WRH; wo = (ws % 4)*W_SLOT
    L = []
    for i in range(2):
        for jj in range(2):
            L.append(f"ds_read_b64_tr_b16 {v(w_fr(setn,'W',i)+2*jj,2)}, v{wreg} offset:{wo + step*4096 + jj*2048 + i*256}")
        L.append(f"ds_read_b128 {v(w_fr(setn,'X',i),4)}, v{W.V_XR} offset:{xs + i*4096 + step*1024}")
    return L
def w_mfmas(setn, trans):
    L = []
    for (i, ip) in ((0,0),(0,1),(1,0),(1,1)):
        w = v(w_fr(setn,'W',i),4); x = v(w_fr(setn,'X',ip),4); d = v(w_acc(i,ip),16)
        L.append(f"v_mfma_f32_32x32x16_bf16 {d}, {w}, {x}, {d}" if trans else f"v_mfma_f32_32x32x16_bf16 {d}, {x}, {w}, {d}")
    return L
def w_stage(A, trans, st, fill=None):
    fill = list(fill or [])
    per = -(-len(fill) // 14) if fill else 0
    def F():
        for _ in range(per):
            if fill: A(fill.pop(0))
    last = st == W.NST - 1
    for step in range(4):
        M = w_mfmas(step, trans)
        if EXP['nomfma']: M = ["s_nop 0"]*4
        if step == 0 or step == 1: A("s_waitcnt lgkmcnt(6)")
        if step == 2:
            A("s_waitcnt lgkmcnt(0)")
            A(M[0]); F(); A(M[1])
            if not EXP['nobar']: A("s_barrier")
            R = [] if last else w_reads(0, 0, st + 1)
            for r in R[:3]: A(r)
            F(); A(M[2])
            for r in R[3:]: A(r)
            F(); A(M[3]); F()
            continue
        if step < 2: R = w_reads(step + 2, step + 2, st)
        else: R = [] if last else w_reads(1, 1, st + 1)
        A(M[0])
        k = 0
        for m in M[1:]:
            for _ in range(2):
                if k < len(R): A(R[k]); k += 1
            F()
            A(m)
        F()
    while fill: A(fill.pop(0))
def w_mainloop(A, trans, tag, fill_ld, fill0, fill_last):
    for st in range(W.NST):
        w_stage(A, trans, st, fill={5: fill_ld, 7: fill0, W.NST-1: fill_last}.get(st))

def w_params(A, ffn):
    if ffn:
        A(f"s_mov_b32 s{W.MODE}, 3"); A(f"s_mov_b32 s{W.LDW}, 3456"); A(f"s_mov_b32 s{W.CSROW}, 6912")
    else:
        A(f"""
        s_cmp_ge_u32 s{W.CB}, 5
        s_cselect_b32 s{W.MODE}, 1, 0
        s_cmp_ge_u32 s{W.CB}, 10
        s_cselect_b32 s{W.MODE}, 2, s{W.MODE}
        s_mov_b32 s{W.LDW}, 3840
        s_mov_b32 s{W.CSROW}, 7680
        """)
    A(f"s_lshl_b32 s{W.N0}, s{W.CB}, 7")

def c_wide(A, L_TO_FB, L_TO_ATT):
    V_TMP=W.V_TMP; V_E=W.V_E; V_FR=W.V_FR; V_AA=W.V_AA; V_NB=W.V_NB; V_A2=W.V_A2; V_ACC=W.V_ACC
    T0=W.T0; T1=W.T1; T2=W.T2; T3=W.T3; MODE=W.MODE
    VA=V_E+32
    A(f"""
    s_and_b32 s{W.WN}, s{S_WAVE}, 1
    s_lshr_b32 s{W.WT}, s{S_WAVE}, 1
    s_cmp_eq_u32 s{MODE}, 3
    s_cselect_b32 s{T0}, 1, 0
    s_lshl_b32 s{T1}, s{S_L}, 1
    s_add_u32 s{T0}, s{T0}, s{T1}
    s_lshl_b32 s{T0}, s{T0}, 18
    s_add_u32 s{T0}, s{T0}, {hex(ST[0])}
    """)
    srd_reg(A, W.ST, T0, STSZ)
    A(f"""
    s_mov_b32 s{T0}, {hex(CSQ)}
    s_mov_b32 s{T1}, {CSQSZ}
    s_cmp_eq_u32 s{MODE}, 3
    s_cselect_b32 s{T0}, {hex(CS1)}, s{T0}
    s_cselect_b32 s{T1}, {CS1SZ}, s{T1}
    """)
    srd_reg(A, W.CS, T0, f"s{T1}")
    A(f"""
    s_mov_b32 s{T0}, {hex(QP)}
    s_mov_b32 s{T1}, {XSZ}
    s_cmp_eq_u32 s{MODE}, 1
    s_cselect_b32 s{T0}, {hex(KP)}, s{T0}
    s_cmp_eq_u32 s{MODE}, 2
    s_cselect_b32 s{T0}, {hex(VF)}, s{T0}
    s_cselect_b32 s{T1}, {VSZ}, s{T1}
    s_cmp_eq_u32 s{MODE}, 3
    s_cselect_b32 s{T0}, {hex(HF)}, s{T0}
    s_cselect_b32 s{T1}, {HSZ}, s{T1}
    s_mul_i32 s{T2}, s{S_L}, {hex(LSTRIDE)}
    s_add_u32 s{T0}, s{T0}, s{T2}
    """)
    srd_reg(A, W.OUT, T0, f"s{T1}")
    A(f"""
    v_lshlrev_b32 v{W.V_XD}, 4, v{V_LANE}
    s_lshl_b32 s{T0}, s{W.WT}, 13
    s_add_u32 s{T0}, s{T0}, {WX_BASE}
    v_add_u32 v{W.V_XR}, s{T0}, v{W.V_XD}
    s_mov_b32 s{W.CURX}, 0
    s_mov_b32 s{W.CURW}, 0
    s_mov_b32 s{S_K16}, 16384
    v_lshlrev_b32 v{W.V_WR}, 10, v{V_H}
    v_bfe_u32 v{V_TMP}, v{V_LANE}, 2, 2
    v_lshlrev_b32 v{V_TMP}, 6, v{V_TMP}
    v_add_u32 v{W.V_WR}, v{W.V_WR}, v{V_TMP}
    v_bfe_u32 v{V_TMP}, v{V_LANE}, 4, 1
    v_lshlrev_b32 v{V_TMP}, 5, v{V_TMP}
    v_add_u32 v{W.V_WR}, v{W.V_WR}, v{V_TMP}
    v_and_b32 v{V_TMP}, 3, v{V_LANE}
    v_lshlrev_b32 v{V_TMP}, 3, v{V_TMP}
    v_add_u32 v{W.V_WR}, v{W.V_WR}, v{V_TMP}
    s_lshl_b32 s{T0}, s{W.WN}, 9
    v_add_u32 v{W.V_WR}, s{T0}, v{W.V_WR}
    v_add_u32 v{W.V_WRH}, 0x10000, v{W.V_WR}
    """)
    for r in list(range(VA, VA+4)) + [V_E+68, V_E+69]: A(f"v_mov_b32 v{r}, 0")
    LA1 = "L_cw_addr_v"; LA2 = "L_cw_addr_done"
    A(f"s_cmp_eq_u32 s{MODE}, 3"); A(f"s_cbranch_scc1 {LA2}")
    A(f"s_cmp_eq_u32 s{MODE}, 2"); A(f"s_cbranch_scc1 {LA1}")
    A(f"""
    s_mul_i32 s{T0}, s{MODE}, 640
    s_sub_u32 s{T0}, s{W.N0}, s{T0}
    s_lshl_b32 s{T1}, s{W.WN}, 6
    s_add_u32 s{T0}, s{T0}, s{T1}
    s_lshr_b32 s{T0}, s{T0}, 3
    v_add_u32 v{V_TMP}, s{T0}, v{V_H}
    v_lshlrev_b32 v{V_TMP+5}, 4, v{V_T}
    """)
    for i in range(2):
        for gp in range(2):
            r = VA + 2*i + gp
            A(f"""
            v_add_u32 v{V_TMP+1}, {4*i+2*gp}, v{V_TMP}
            v_mul_u32_u24 v{V_TMP+2}, 205, v{V_TMP+1}
            v_lshrrev_b32 v{V_TMP+2}, 10, v{V_TMP+2}
            v_mul_u32_u24 v{V_TMP+3}, 5, v{V_TMP+2}
            v_sub_u32 v{V_TMP+3}, v{V_TMP+1}, v{V_TMP+3}
            v_mul_u32_u24 v{r}, {64*PTS}, v{V_TMP+2}
            v_lshl_add_u32 v{r}, v{V_TMP+3}, 9, v{r}
            v_add_u32 v{r}, v{r}, v{V_TMP+5}
            """)
    A(f"s_branch {LA2}")
    A.label(LA1)
    A(f"""
    s_lshl_b32 s{T0}, s{W.WN}, 6
    v_add_u32 v{V_TMP}, s{T0}, v{V_T}
    s_sub_u32 s{T0}, s{W.N0}, 1280
    v_add_u32 v{V_TMP}, s{T0}, v{V_TMP}
    s_movk_i32 s{T1}, 3277
    """)
    for i in range(2):
        r = V_E + 68 + i
        A(f"""
        v_add_u32 v{V_TMP+1}, {32*i}, v{V_TMP}
        v_mul_u32_u24 v{V_TMP+2}, s{T1}, v{V_TMP+1}
        v_lshrrev_b32 v{V_TMP+2}, 16, v{V_TMP+2}
        v_mul_u32_u24 v{V_TMP+3}, 20, v{V_TMP+2}
        v_sub_u32 v{V_TMP+3}, v{V_TMP+1}, v{V_TMP+3}
        v_mul_u32_u24 v{r}, {64*VTS}, v{V_TMP+2}
        v_mul_u32_u24 v{V_TMP+4}, 22, v{V_H}
        v_add_u32 v{V_TMP+4}, v{V_TMP+4}, v{V_TMP+3}
        v_lshl_add_u32 v{r}, v{V_TMP+4}, 4, v{r}
        """)
    A.label(LA2)
    for r in range(64): A(f"v_mov_b32 v{V_ACC+r}, 0")
    A(f"""
    s_lshl_b32 s{T0}, s{W.TB}, 2
    s_lshl_b32 s{T1}, s{W.WT}, 1
    s_add_u32 s{T0}, s{T0}, s{T1}
    s_lshl_b32 s{T0}, s{T0}, 12
    s_add_u32 s{T1}, s{T0}, 4096
    v_lshlrev_b32 v{V_TMP}, 4, v{V_T}
    v_lshl_add_u32 v{V_TMP}, v{V_H}, 11, v{V_TMP}
    v_and_b32 v{V_TMP+2}, 127, v0
    v_add_u32 v{V_TMP+2}, s{W.N0}, v{V_TMP+2}
    v_lshlrev_b32 v{V_TMP+2}, 2, v{V_TMP+2}
    s_lshl_b32 s{T2}, s{W.CSROW}, 1
    s_add_u32 s{T3}, s{T2}, s{W.CSROW}
    """)
    stamp(A, 1)
    A("s_barrier")
    stamp(A, 2)
    A(f"""
    s_cmp_eq_u32 s{MODE}, 0
    s_cselect_b32 s{W.QS}, {hex(f2u(QSCALE))}, 1.0
    s_cmp_eq_u32 s{MODE}, 3
    s_cselect_b64 s[{W.ISF}:{W.ISF+1}], -1, 0
    s_lshl_b32 s{T2}, s{W.WT}, 8
    s_add_u32 s{T2}, s{T2}, {W_SCR + 512}
    v_lshlrev_b32 v{V_TMP+6}, 2, v{V_T}
    v_add_u32 v{V_TMP+6}, s{T2}, v{V_TMP+6}
    """)
    FLD = None; F0 = None
    VS = V_E + 36
    FTOK = []
    for ip in range(2):
        FTOK += [f"ds_read_b32 v{VS+4*ip}, v{V_TMP+6} offset:{128*ip}", f"ds_read_b32 v{V_NB+2*ip}, v{V_TMP+6} offset:{1024+128*ip}",
                 f"ds_read_b32 v{VS+4*ip+1}, v{V_TMP+6} offset:{1536+128*ip}"]
    FPOST = []
    for ip in range(2):
        FPOST += [f"v_mov_b32 v{V_NB+2*ip+1}, v{V_NB+2*ip}",
                  f"v_mul_f32 v{V_A2+2*ip}, {hex(f2u(-1.4426950408889634))}, v{VS+4*ip}", f"v_mul_f32 v{V_AA+2*ip}, s{W.QS}, v{VS+4*ip}",
                  f"v_mov_b32 v{V_A2+2*ip+1}, v{V_A2+2*ip}",
                  f"v_cndmask_b32 v{V_AA+2*ip}, v{V_AA+2*ip}, v{VS+4*ip+1}, s[{W.ISF}:{W.ISF+1}]", f"v_mov_b32 v{V_AA+2*ip+1}, v{V_AA+2*ip}"]
    A("s_barrier")
    stamp(A, 3)
    for r in w_reads(0, 0, 0) + w_reads(1, 1, 0): A(r)
    LV = "L_cw_vmode"; LF = "L_cw_ffn"; FIN = "L_cw_fin"
    A(f"s_cmp_eq_u32 s{MODE}, 2"); A(f"s_cbranch_scc1 {LV}")
    FL = [f"s_lshl_b32 s{T0}, s{W.WN}, 8", f"s_add_u32 s{T0}, s{T0}, {W_SCR}", f"v_lshlrev_b32 v{V_TMP}, 4, v{V_H}", f"v_add_u32 v{V_TMP}, s{T0}, v{V_TMP}"]
    for i in range(2):
        for g in range(4):
            FL.append(f"ds_read_b128 {v(V_E+16*i+4*g,4)}, v{V_TMP} offset:{128*i + 32*g}")
    w_mainloop(A, True, "t", FLD, F0, FTOK + FL)
    stamp(A, 4)
    A("s_waitcnt lgkmcnt(0)")
    for x in FPOST: A(x)
    PK = V_FR
    A(f"s_cmp_eq_u32 s{MODE}, 3"); A(f"s_cbranch_scc1 {LF}")
    A(f"""
    s_lshl_b32 s{T0}, s{W.TB}, 2
    s_lshl_b32 s{T1}, s{W.WT}, 1
    s_add_u32 s{T0}, s{T0}, s{T1}
    s_mul_i32 s{T0}, s{T0}, {PTS}
    s_add_u32 s{T1}, s{T0}, {PTS}
    """)
    for i in range(2):
        for ip in range(2):
            c = w_acc(i, ip)
            for p in range(8): A(f"v_pk_fma_f32 {v(c+2*p,2)}, {v(V_E+16*i+2*p,2)}, {v(V_NB+2*ip,2)}, {v(c+2*p,2)}")
            for p in range(8): A(f"v_pk_mul_f32 {v(c+2*p,2)}, {v(c+2*p,2)}, {v(V_AA+2*ip,2)}")
            pk = PK + 8*(2*i+ip)
            for p in range(8): A(f"v_cvt_pk_bf16_f32 v{pk+p}, v{c+2*p}, v{c+2*p+1}")
            for gp in range(2):
                A(f"v_permlane32_swap_b32 v{pk+4*gp}, v{pk+4*gp+2}")
                A(f"v_permlane32_swap_b32 v{pk+4*gp+1}, v{pk+4*gp+3}")
            for gp in range(2):
                A(f"buffer_store_dwordx4 {v(pk+4*gp,4)}, v{VA+2*i+gp}, s[{W.OUT}:{W.OUT+3}], s{T0+ip} offen{SC}")
    A(f"s_branch {FIN}")
    A.label(LF)
    A(f"""
    s_lshl_b32 s{T0}, s{W.WN}, 6
    s_add_u32 s{T0}, s{T0}, s{W.N0}
    s_cmp_ge_u32 s{T0}, {F}
    s_cbranch_scc1 {FIN}
    s_lshr_b32 s{T0}, s{T0}, 4
    s_lshl_b32 s{T1}, s{W.TB}, 2
    s_lshl_b32 s{T2}, s{W.WT}, 1
    s_add_u32 s{T1}, s{T1}, s{T2}
    s_mul_i32 s{T1}, s{T1}, 108
    s_add_u32 s{T0}, s{T0}, s{T1}
    s_lshl_b32 s{T0}, s{T0}, 10
    s_add_u32 s{T1}, s{T0}, {108*1024}
    """)
    VZ = V_E + 36
    for ip in range(2):
        for i in range(2):
            c = w_acc(i, ip)
            for p in range(8): A(f"v_pk_fma_f32 {v(c+2*p,2)}, {v(V_E+16*i+2*p,2)}, {v(V_NB+2*ip,2)}, {v(c+2*p,2)}")
            for p in range(8): A(f"v_pk_mul_f32 {v(VZ+2*p,2)}, {v(c+2*p,2)}, {v(V_A2+2*ip,2)}")
            for r in range(16): A(f"v_exp_f32 v{VZ+r}, v{VZ+r}")
            for p in range(8): A(f"v_pk_fma_f32 {v(VZ+2*p,2)}, {v(VZ+2*p,2)}, {v(V_AA+2*ip,2)}, {v(V_AA+2*ip,2)}")
            for r in range(16): A(f"v_rcp_f32 v{VZ+r}, v{VZ+r}")
            for p in range(8): A(f"v_pk_mul_f32 {v(c+2*p,2)}, {v(c+2*p,2)}, {v(VZ+2*p,2)}")
            pk = PK + 8*(2*ip+i)
            for p in range(8): A(f"v_cvt_pk_bf16_f32 v{pk+p}, v{c+2*p}, v{c+2*p+1}")
            so = T0 if ip == 0 else T1
            A(f"buffer_store_dwordx4 {v(pk,4)}, v{W.V_XD}, s[{W.OUT}:{W.OUT+3}], s{so} offen{off(2048*i)}{SC}")
            A(f"buffer_store_dwordx4 {v(pk+4,4)}, v{W.V_XD}, s[{W.OUT}:{W.OUT+3}], s{so} offen{off(2048*i+1024)}{SC}")
    A(f"s_branch {FIN}")
    A.label(LV)
    FL = [f"s_lshl_b32 s{T0}, s{W.WN}, 6", f"v_add_u32 v{V_TMP}, s{T0}, v{V_T}", f"v_lshlrev_b32 v{V_TMP+1}, 2, v{V_TMP}",
          f"v_add_u32 v{V_TMP+1}, {W_SCR}, v{V_TMP+1}", f"ds_read_b32 v{V_E+64}, v{V_TMP+1}", f"ds_read_b32 v{V_E+66}, v{V_TMP+1} offset:128",
          f"s_lshl_b32 s{T1}, s{W.WT}, 8", f"s_add_u32 s{T1}, s{T1}, {W_SCR+512}", f"v_lshlrev_b32 v{V_TMP}, 4, v{V_H}", f"v_add_u32 v{V_TMP}, s{T1}, v{V_TMP}"]
    for ip in range(2):
        for g in range(4):
            FL.append(f"ds_read_b128 {v(V_E+32*ip+4*g,4)}, v{V_TMP} offset:{128*ip + 32*g}")
            FL.append(f"ds_read_b128 {v(V_E+32*ip+16+4*g,4)}, v{V_TMP} offset:{512 + 128*ip + 32*g}")
    w_mainloop(A, False, "v", FLD, F0, FL)
    stamp(A, 4)
    VAv = V_E + 68
    A(f"""
    s_lshl_b32 s{T0}, s{W.TB}, 2
    s_lshl_b32 s{T1}, s{W.WT}, 1
    s_add_u32 s{T0}, s{T0}, s{T1}
    s_mul_i32 s{T0}, s{T0}, {VTS}
    s_waitcnt lgkmcnt(0)
    v_sub_f32 v{V_E+64}, 0, v{V_E+64}
    v_sub_f32 v{V_E+66}, 0, v{V_E+66}
    v_mov_b32 v{V_E+65}, v{V_E+64}
    v_mov_b32 v{V_E+67}, v{V_E+66}
    """)
    for ip in range(2):
        for i in range(2):
            c = w_acc(i, ip)
            for p in range(8): A(f"v_pk_mul_f32 {v(c+2*p,2)}, {v(c+2*p,2)}, {v(V_E+32*ip+2*p,2)}")
            for p in range(8): A(f"v_pk_fma_f32 {v(c+2*p,2)}, {v(V_E+32*ip+16+2*p,2)}, {v(V_E+64+2*i,2)}, {v(c+2*p,2)}")
            pk = PK + 8*(2*ip+i)
            for p in range(8): A(f"v_cvt_pk_bf16_f32 v{pk+p}, v{c+2*p}, v{c+2*p+1}")
            A(f"buffer_store_dwordx4 {v(pk,4)}, v{VAv+i}, s[{W.OUT}:{W.OUT+3}], s{T0} offen{off(VTS*ip)}{SC}")
            A(f"buffer_store_dwordx4 {v(pk+4,4)}, v{VAv+i}, s[{W.OUT}:{W.OUT+3}], s{T0} offen{off(VTS*ip+704)}{SC}")
    A.label(FIN)
    stamp(A, 5)
    A("s_waitcnt vmcnt(0)")
    A("s_barrier")
    stamp(A, 6)
    stamp_phase(A)
    A(f"s_cmp_eq_u32 s{MODE}, 3"); A(f"s_cbranch_scc1 {L_TO_FB}")
    A(f"s_branch {L_TO_ATT}")

def lw_setup_w(A, kaoff_reg_pair):
    V_TMP=W.V_TMP; T0=W.T0
    A(f"""
    v_lshlrev_b32 v{W.V_XD}, 4, v{V_LANE}
    v_lshrrev_b32 v{V_TMP}, 4, v{V_LANE}
    v_lshlrev_b32 v{W.V_WD}, 6, v{V_TMP}
    v_and_b32 v{V_TMP+1}, 3, v{V_LANE}
    v_lshlrev_b32 v{V_TMP+1}, 4, v{V_TMP+1}
    v_add_u32 v{W.V_WD}, v{W.V_WD}, v{V_TMP+1}
    v_bfe_u32 v{V_TMP+1}, v{V_LANE}, 2, 2
    v_mul_lo_u32 v{V_TMP+1}, v{V_TMP+1}, s{W.LDW}
    v_add_u32 v{W.V_WD}, v{W.V_WD}, v{V_TMP+1}
    s_cmp_eq_u32 s{W.MODE}, 3
    s_cselect_b32 s{T0}, s{W.CB}, 0
    s_cmp_eq_u32 s{T0}, 13
    s_cselect_b32 s{T0}, s{S_OOB}, 0
    v_cmp_le_u32 vcc, 2, v{V_TMP}
    v_mov_b32 v{V_TMP+1}, s{T0}
    s_lshl_b32 s{T0}, s{W.LDW}, 2
    s_sub_u32 s{T0}, s{T0}, 1024
    v_cndmask_b32 v{V_TMP+1}, 0, v{V_TMP+1}, vcc
    v_add_u32 v{W.V_WD}, v{W.V_WD}, v{V_TMP+1}
    v_add_u32 v{W.V_WD+1}, s{T0}, v{W.V_WD}
    v_add_u32 v{W.V_WD+2}, s{T0}, v{W.V_WD+1}
    v_add_u32 v{W.V_WD+3}, s{T0}, v{W.V_WD+2}
    s_lshl_b32 s{W.WADV}, s{W.LDW}, 6
    s_lshl_b32 s{T0}, s{W.LDW}, 4
    s_mul_i32 s{T0}, s{T0}, s{S_LW}
    s_lshl_b32 s{W.WOFF}, s{W.N0}, 1
    s_add_u32 s{W.WOFF}, s{W.WOFF}, s{T0}
    s_lshl_b32 s{W.M0}, s{S_LW}, 12
    s_mul_i32 s{W.WSZ}, s{W.LDW}, 640
    s_mov_b32 s{W.Wd}, s{kaoff_reg_pair}
    s_mov_b32 s{W.Wd+1}, s{kaoff_reg_pair+1}
    s_mov_b32 s{W.Wd+2}, s{W.WSZ}
    s_mov_b32 s{W.Wd+3}, 0x20000
    s_mov_b32 s{W.FREE}, 0
    s_mov_b32 s{W.FREEX}, 0
    """)
def lw_dma_x(k): return f"buffer_load_dwordx4 v{W.V_XD}, s[{W.X}:{W.X+3}], s{W.XOFF} offen{off(k*1024)} lds"
def lw_dma_w(k): return f"buffer_load_dwordx4 v{W.V_WD+k}, s[{W.Wd}:{W.Wd+3}], s{W.WOFF} offen{off(k*1024)} lds"
def slot_wrap(A, reg, slot, n):
    A(f"s_add_u32 s{reg}, s{reg}, {slot}"); A(f"s_cmp_eq_u32 s{reg}, {slot*n}"); A(f"s_cselect_b32 s{reg}, 0, s{reg}")
def lw_issue_w(A):
    A(f"s_add_u32 m0, s{W.FREE}, s{W.M0}")
    slot_wrap(A, W.FREE, W_SLOT, WW_N)
    for k in range(4): A(lw_dma_w(k))
    A(f"s_add_u32 s{W.WOFF}, s{W.WOFF}, s{W.WADV}")
def lw_issue_x(A):
    A(f"s_add_u32 s{W.T0}, s{W.FREEX}, s{W.M0}"); A(f"s_add_u32 m0, s{W.T0}, {WX_BASE}")
    slot_wrap(A, W.FREEX, W_SLOT, WX_N)
    for k in range(4): A(lw_dma_x(k))
    A(f"s_add_u32 s{W.XOFF}, s{W.XOFF}, 4096")
LS=24
def lw_stats_setup(A):
    T0=W.T0; T1=W.T1; T2=W.T2
    A(f"""
    s_cmp_eq_u32 s{W.MODE}, 3
    s_cselect_b32 s{T0}, 1, 0
    s_lshl_b32 s{T1}, s{S_L}, 1
    s_add_u32 s{T0}, s{T0}, s{T1}
    s_lshl_b32 s{T0}, s{T0}, 18
    s_add_u32 s{T0}, s{T0}, {hex(ST[0])}
    """)
    srd_reg(A, W.ST, T0, STSZ)
    A(f"""
    s_mov_b32 s{T0}, {hex(CSQ)}
    s_mov_b32 s{T1}, {CSQSZ}
    s_cmp_eq_u32 s{W.MODE}, 3
    s_cselect_b32 s{T0}, {hex(CS1)}, s{T0}
    s_cselect_b32 s{T1}, {CS1SZ}, s{T1}
    """)
    srd_reg(A, W.CS, T0, f"s{T1}")
    A(f"""
    s_lshl_b32 s52, s{W.TB}, 2
    s_add_u32 s52, s52, s{S_LW}
    s_lshl_b32 s52, s52, 12
    s_lshl_b32 s53, s{W.CSROW}, 1
    s_add_u32 s54, s53, s{W.CSROW}
    v_lshlrev_b32 v{LS+20}, 4, v{V_T}
    v_lshl_add_u32 v{LS+20}, v{V_H}, 11, v{LS+20}
    v_and_b32 v{LS+21}, 127, v0
    v_add_u32 v{LS+21}, s{W.N0}, v{LS+21}
    v_lshlrev_b32 v{LS+21}, 2, v{LS+21}
    """)
def lw_stats_load(A):
    for k in range(4): A(f"buffer_load_dwordx4 {v(LS+4*k,4)}, v{LS+20}, s[{W.ST}:{W.ST+3}], s52 offen{off(512*k)}")
    A(f"buffer_load_dword v{LS+16}, v{LS+21}, s[{W.CS}:{W.CS+3}], 0 offen")
    A(f"buffer_load_dword v{LS+17}, v{LS+21}, s[{W.CS}:{W.CS+3}], s{W.CSROW} offen")
    A(f"buffer_load_dword v{LS+18}, v{LS+21}, s[{W.CS}:{W.CS+3}], s53 offen")
    A(f"buffer_load_dword v{LS+19}, v{LS+21}, s[{W.CS}:{W.CS+3}], s54 offen")
def lw_stats_post(A):
    b = LS; t = LS + 22
    A(f"""
    v_pk_add_f32 {v(b,2)}, {v(b,2)}, {v(b+2,2)}
    v_pk_add_f32 {v(b+4,2)}, {v(b+4,2)}, {v(b+6,2)}
    v_pk_add_f32 {v(b+8,2)}, {v(b+8,2)}, {v(b+10,2)}
    v_pk_add_f32 {v(b+12,2)}, {v(b+12,2)}, {v(b+14,2)}
    v_pk_add_f32 {v(b,2)}, {v(b,2)}, {v(b+4,2)}
    v_pk_add_f32 {v(b+8,2)}, {v(b+8,2)}, {v(b+12,2)}
    v_add_f32 v{b+16}, v{b+16}, v{b+17}
    v_add_f32 v{b+18}, v{b+18}, v{b+19}
    v_pk_add_f32 {v(b,2)}, {v(b,2)}, {v(b+8,2)}
    v_add_f32 v{b+16}, v{b+16}, v{b+18}
    """)
    halfsum(A, b, t); halfsum(A, b+1, t+1)
    A(f"""
    v_mul_f32 v{b}, {hex(f2u(1.0/640))}, v{b}
    v_mul_f32 v{b+1}, {hex(f2u(1.0/640))}, v{b+1}
    v_fma_f32 v{b+1}, -v{b}, v{b}, v{b+1}
    v_max_f32 v{b+1}, 0, v{b+1}
    v_add_f32 v{b+3}, {hex(f2u(1e-5))}, v{b+1}
    v_rsq_f32 v{b+1}, v{b+3}
    v_sub_f32 v{b+4}, 0, v{b}
    s_lshl_b32 s{W.T0}, s{S_LW}, 7
    s_add_u32 s{W.T0}, s{W.T0}, {W_SCR + 512}
    v_lshlrev_b32 v{t}, 2, v{V_T}
    v_add_u32 v{t}, s{W.T0}, v{t}
    v_mul_f32 v{b+3}, v{b+3}, v{b+1}
    v_mul_f32 v{b+2}, v{b}, v{b+1}
    v_and_b32 v{t+1}, 127, v0
    v_lshlrev_b32 v{t+1}, 2, v{t+1}
    v_add_u32 v{t+1}, {W_SCR}, v{t+1}
    ds_write_b32 v{t}, v{b+1}
    ds_write_b32 v{t}, v{b+2} offset:512
    ds_write_b32 v{t}, v{b+4} offset:1024
    ds_write_b32 v{t}, v{b+3} offset:1536
    ds_write_b32 v{t+1}, v{b+16}
    s_waitcnt lgkmcnt(0)
    """)
def lw_prefetch_w(A, n=WW_N):
    for s_ in range(n): lw_issue_w(A)

class T:
    Q=8; K=12; V=16; O=20
    HEAD=24; QB=25; QG=27; KH=28; KO=29; VO=30; CNT=31; T0=32; T1=33; T2=34; FLAG=35; K0=36; V0=38; TT0=37; LO=42; CC=44
    V_AK0=4; V_AK1=5; V_AV=6; V_AO=7; V_TMP=10
    V_Q=16; V_O=48; V_S=112; V_P=144; V_K=152; V_V=168; V_M=184; V_X=188; V_J=200
def tQ0(q): return T.V_Q + 8*q
def tQ1(q): return T.V_Q + 8*q + 4
def tO(q): return T.V_O + 16*q
def tS(b): return T.V_S + 16*b
def tK0(p): return T.V_K + 8*p
def tK1(p): return T.V_K + 8*p + 4
def tV0(p): return T.V_V + 8*p
def tV1(p): return T.V_V + 8*p + 4
def mf(d, a_, b_, c):
    cs = v(c,16) if c is not None else "0"
    return f"v_mfma_f32_32x32x16_bf16 {v(d,16)}, {v(a_,4)}, {v(b_,4)}, {cs}"
def t_load_k(A, p, o):
    A(f"buffer_load_dwordx4 {v(tK0(p),4)}, v{T.V_AK0}, s[{T.K}:{T.K+3}], s{T.KO} offen{off(o)}")
    A(f"buffer_load_dwordx2 {v(tK1(p),2)}, v{T.V_AK1}, s[{T.K}:{T.K+3}], s{T.KO} offen{off(o)}")
def t_load_v(A, p, o):
    A(f"buffer_load_dwordx4 {v(tV0(p),4)}, v{T.V_AV}, s[{T.V}:{T.V+3}], s{T.VO} offen{off(o)}")
    A(f"buffer_load_dwordx4 {v(tV1(p),4)}, v{T.V_AV}, s[{T.V}:{T.V+3}], s{T.VO} offen{off(o+704)}")
def t_period(A, p, q):
    b = q & 1
    s_ = tS(b); sn = tS(b ^ 1)
    qn = (q + 1) & 3; kp = p if q < 3 else p ^ 1
    qp = (q - 1) & 3; vp = p if q > 0 else p ^ 1
    e = lambda r: A(f"v_exp_f32 v{s_+r}, v{s_+r}")
    c = lambda k: A(f"v_cvt_pk_bf16_f32 v{T.V_P+k}, v{s_+2*k}, v{s_+2*k+1}")
    if q == 3: A("s_waitcnt vmcnt(2)")
    A(mf(sn, tK0(kp), tQ0(qn), None))
    e(0); e(1); e(2); e(3); c(0)
    A(mf(sn, tK1(kp), tQ1(qn), sn))
    e(4); e(5); c(1)
    if q == 3 and not EXP.get('anoload'): t_load_k(A, p, p*PTS)
    if q == 1 and not EXP.get('anoload'): t_load_v(A, p ^ 1, p*VTS)
    e(6); e(7); c(2)
    A(mf(tO(qp), tV1(vp), T.V_P+4, tO(qp)))
    e(8); e(9); c(3); e(10); e(11); c(4)
    if q == 0: A("s_waitcnt vmcnt(2)")
    A(mf(tO(q), tV0(p), T.V_P, tO(q)))
    e(12); e(13); c(5); e(14); e(15); c(6); c(7)
def t_rowmax(A, dst, src, tmp):
    A(f"v_max3_f32 v{dst}, v{src}, v{src+1}, v{src+2}")
    for r in range(3, 15, 2): A(f"v_max3_f32 v{dst}, v{dst}, v{src+r}, v{src+r+1}")
    A(f"v_max_f32 v{dst}, v{dst}, v{src+15}")
    A(f"v_mov_b32 v{tmp}, v{dst}"); A(f"v_permlane32_swap_b32 v{dst}, v{tmp}"); A(f"v_max_f32 v{dst}, v{dst}, v{tmp}")
def t_set_shift(A):
    V_TMP = T.V_TMP
    A(f"s_mov_b64 exec, s[{T.LO}:{T.LO+1}]")
    for q in range(4):
        A(f"""
        v_xor_b32 v{V_TMP}, 0x80000000, v{T.V_M+q}
        v_and_b32 v{V_TMP+1}, 0xffff0000, v{V_TMP}
        v_sub_f32 v{V_TMP}, v{V_TMP}, v{V_TMP+1}
        v_and_b32 v{V_TMP+2}, 0xffff0000, v{V_TMP}
        v_sub_f32 v{V_TMP}, v{V_TMP}, v{V_TMP+2}
        v_lshrrev_b32 v{V_TMP+1}, 16, v{V_TMP+1}
        v_or_b32 v{tQ1(q)+2}, v{V_TMP+1}, v{V_TMP+2}
        v_lshrrev_b32 v{tQ1(q)+3}, 16, v{V_TMP}
        """)
    A("s_mov_b64 exec, -1")
def t_first_loads(A):
    A(f"s_mov_b32 s{T.KO}, s{T.K0}"); A(f"s_mov_b32 s{T.VO}, s{T.V0}")
    t_load_k(A, 0, 0); t_load_v(A, 0, 0); t_load_k(A, 1, PTS)
    A(f"s_add_u32 s{T.KO}, s{T.K0}, {2*PTS}"); A(f"s_add_u32 s{T.VO}, s{T.V0}, {VTS}")

def c_att(A, L_NEXT):
    V_TMP=T.V_TMP; T0=T.T0; T1=T.T1; T2=T.T2; V_X=T.V_X; V_M=T.V_M; V_P=T.V_P
    A(f"""
    s_and_b32 s{T.HEAD}, s{S_WG}, 31
    s_lshr_b32 s{T.QB}, s{S_WG}, 5
    s_and_b32 s{T.QG}, s{S_WAVE}, 1
    s_lshr_b32 s{T.KH}, s{S_WAVE}, 1
    s_and_b32 s{T2}, s{T.HEAD}, 1
    s_mul_i32 s{T0}, s{T2}, 1536
    v_lshlrev_b32 v{T.V_AK0}, 4, v{V_LANE}
    v_add_u32 v{T.V_AK0}, s{T0}, v{T.V_AK0}
    s_lshl_b32 s{T0}, s{T2}, 3
    s_add_u32 s{T0}, s{T0}, 1024
    v_lshlrev_b32 v{T.V_AK1}, 4, v{V_T}
    v_add_u32 v{T.V_AK1}, s{T0}, v{T.V_AK1}
    v_min_u32 v{V_TMP+1}, 20, v{V_T}
    v_cmp_lt_u32 vcc, 20, v{V_T}
    v_mul_u32_u24 v{T.V_AV}, 22, v{V_H}
    v_addc_co_u32 v{V_TMP+1}, vcc, 0, v{V_TMP+1}, vcc
    v_add_u32 v{T.V_AV}, v{T.V_AV}, v{V_TMP+1}
    v_lshlrev_b32 v{T.V_AV}, 4, v{T.V_AV}
    s_lshl_b32 s{T0}, s{T.KH}, 5
    s_mul_i32 s{T.K0}, s{T0}, {PTS}
    s_mul_i32 s{T.V0}, s{T0}, {VTS}
    s_lshl_b32 s{T.TT0}, s{T.QB}, 3
    s_lshl_b32 s{T2}, s{T.QG}, 2
    s_add_u32 s{T.TT0}, s{T.TT0}, s{T2}
    s_mov_b32 s{T.LO}, -1
    s_mov_b32 s{T.LO+1}, 0
    s_mov_b32 s{T.FLAG}, 0
    s_mul_i32 s{T2}, s{S_L}, {hex(LSTRIDE)}
    s_lshr_b32 s{T0}, s{T.HEAD}, 1
    s_mul_i32 s{T0}, s{T0}, {64*PTS}
    s_add_u32 s{T0}, s{T0}, s{T2}
    s_add_u32 s{T1}, s{T0}, {hex(KP)}
    """)
    srd_reg(A, T.K, T1, 64*PTS)
    A(f"s_add_u32 s{T1}, s{T0}, {hex(QP)}")
    srd_reg(A, T.Q, T1, 64*PTS)
    A(f"s_mul_i32 s{T0}, s{T.HEAD}, {64*VTS}"); A(f"s_add_u32 s{T0}, s{T0}, s{T2}"); A(f"s_add_u32 s{T1}, s{T0}, {hex(VF)}")
    srd_reg(A, T.V, T1, 64*VTS)
    A(f"s_add_u32 s{T1}, s{T2}, {hex(OF)}")
    srd_reg(A, T.O, T1, XSZ)
    for q in range(4):
        for r in range(4): A(f"v_mov_b32 v{tQ1(q)+r}, 0")
    for p in range(2):
        A(f"v_mov_b32 v{tK1(p)+2}, 0x3f803f80"); A(f"v_mov_b32 v{tK1(p)+3}, 0x00003f80")
    for r in range(8): A(f"v_mov_b32 v{V_P+r}, 0")
    for r in range(4): A(f"v_mov_b32 v{tV1(1)+r}, 0")
    A(f"s_mul_i32 s{T0}, s{T.TT0}, {PTS}")
    A(f"s_add_u32 s{T1}, s{T0}, {2*PTS}")
    A(f"s_mov_b32 s{T.KO}, s{T.K0}"); A(f"s_mov_b32 s{T.VO}, s{T.V0}")
    A("s_barrier")
    stamp(A, 2)
    t_load_k(A, 0, 0)
    for q in range(4):
        so = T0 if q < 2 else T1
        A(f"buffer_load_dwordx4 {v(tQ0(q),4)}, v{T.V_AK0}, s[{T.Q}:{T.Q+3}], s{so} offen{off(PTS*(q&1))}")
    A(f"s_mov_b64 exec, s[{T.LO}:{T.LO+1}]")
    for q in range(4):
        so = T0 if q < 2 else T1
        A(f"buffer_load_dwordx2 {v(tQ1(q),2)}, v{T.V_AK1}, s[{T.Q}:{T.Q+3}], s{so} offen{off(PTS*(q&1))}")
    A("s_mov_b64 exec, -1")
    t_load_v(A, 0, 0); t_load_k(A, 1, PTS)
    A(f"s_add_u32 s{T.KO}, s{T.K0}, {2*PTS}"); A(f"s_add_u32 s{T.VO}, s{T.V0}, {VTS}")
    A("s_waitcnt vmcnt(4)")
    stamp(A, 3)
    for q in range(4):
        A(mf(tO(q), tK0(0), tQ0(q), None)); A(mf(tO(q), tK1(0), tQ1(q), tO(q)))
    for q in range(4): t_rowmax(A, V_M+q, tO(q), V_X+q)
    t_set_shift(A)
    for r in range(64): A(f"v_mov_b32 v{T.V_O+r}, 0")
    SETUP = "L_ca_setup"; LOOP = "L_ca_loop"; COMBINE = "L_ca_combine"
    A.label(SETUP)
    A(mf(tS(0), tK0(0), tQ0(0), None)); A(mf(tS(0), tK1(0), tQ1(0), tS(0)))
    A(f"s_mov_b32 s{T.CNT}, 16")
    stamp(A, 1)
    if EXP.get('prio'): A("s_setprio 3")
    A("s_nop 7")
    A(".p2align 6"); A.label(LOOP)
    for p in range(2):
        for q in range(4): t_period(A, p, q)
    A(f"s_add_u32 s{T.KO}, s{T.KO}, {2*PTS}"); A(f"s_add_u32 s{T.VO}, s{T.VO}, {2*VTS}")
    A(f"s_sub_u32 s{T.CNT}, s{T.CNT}, 1"); A(f"s_cmp_lg_u32 s{T.CNT}, 0"); A(f"s_cbranch_scc1 {LOOP}")
    stamp(A, 4)
    if EXP.get('prio'): A("s_setprio 0")
    A(mf(tO(3), tV1(1), V_P+4, tO(3)))
    A("s_waitcnt vmcnt(0)")
    for q in range(4):
        A(f"v_mov_b32 v{tO(q)+12}, v{tO(q)+8}"); A(f"v_mov_b32 v{tO(q)+13}, v{tO(q)+8}")
    for q in range(4): A(f"v_permlane32_swap_b32 v{tO(q)+13}, v{tO(q)+12}")
    A(f"s_cmp_lg_u32 s{T.FLAG}, 0"); A(f"s_cbranch_scc1 {COMBINE}")
    A(f"v_mov_b32 v{V_TMP}, 0")
    for q in range(4):
        for r in range(0, 12, 2): A(f"v_max3_f32 v{V_TMP}, v{V_TMP}, |v{tO(q)+r}|, |v{tO(q)+r+1}|")
    A(f"""
    v_add_f32 v{V_TMP+2}, v{tO(0)+12}, v{tO(1)+12}
    v_add_f32 v{V_TMP+3}, v{tO(2)+12}, v{tO(3)+12}
    v_add_f32 v{V_TMP+2}, v{V_TMP+2}, v{V_TMP+3}
    s_mov_b32 s{T0}, {hex(f2u(2.0**40))}
    s_mov_b32 s{T1}, {hex(f2u(2.0**120))}
    v_cmp_gt_f32 vcc, s{T0}, v{V_TMP+2}
    v_cmp_gt_f32 s[{T.CC}:{T.CC+1}], s{T1}, v{V_TMP}
    s_and_b64 vcc, vcc, s[{T.CC}:{T.CC+1}]
    s_cmp_eq_u64 vcc, exec
    s_cbranch_scc1 {COMBINE}
    """)
    A(f"s_mov_b32 s{T.FLAG}, 1")
    A(f"s_mov_b64 exec, s[{T.LO}:{T.LO+1}]")
    for q in range(4): A(f"v_mov_b32 v{tQ1(q)+2}, 0"); A(f"v_mov_b32 v{tQ1(q)+3}, 0")
    A("s_mov_b64 exec, -1")
    for q in range(4): A(f"v_mov_b32 v{V_X+4+q}, 0xff800000")
    A(f"s_mov_b32 s{T.KO}, s{T.K0}"); A(f"s_mov_b32 s{T.CNT}, 32")
    TL = "L_ca_tm_loop"
    A.label(TL)
    t_load_k(A, 0, 0)
    A(f"s_add_u32 s{T.KO}, s{T.KO}, {PTS}")
    A("s_waitcnt vmcnt(0)")
    for q in range(4):
        A(mf(tO(q), tK0(0), tQ0(q), None)); A(mf(tO(q), tK1(0), tQ1(q), tO(q)))
    for q in range(4):
        t_rowmax(A, V_M+q, tO(q), V_X+q); A(f"v_max_f32 v{V_X+4+q}, v{V_X+4+q}, v{V_M+q}")
    A(f"s_sub_u32 s{T.CNT}, s{T.CNT}, 1"); A(f"s_cmp_lg_u32 s{T.CNT}, 0"); A(f"s_cbranch_scc1 {TL}")
    for q in range(4): A(f"v_mov_b32 v{V_M+q}, v{V_X+4+q}")
    t_first_loads(A)
    t_set_shift(A)
    for r in range(64): A(f"v_mov_b32 v{T.V_O+r}, 0")
    for r in range(8): A(f"v_mov_b32 v{V_P+r}, 0")
    for r in range(4): A(f"v_mov_b32 v{tV1(1)+r}, 0")
    A("s_waitcnt vmcnt(4)")
    A(f"s_branch {SETUP}")
    A.label(COMBINE)
    for q in range(4): A(f"v_mov_b32 v{tO(q)+13}, v{V_M+q}")
    A(f"""
    s_lshl_b32 s{T0}, s{S_WAVE}, 13
    s_add_u32 s{T0}, s{T0}, {A_CMB}
    v_lshlrev_b32 v{V_TMP}, 4, v{V_LANE}
    v_add_u32 v{V_TMP+1}, s{T0}, v{V_TMP}
    s_xor_b32 s{T1}, s{S_WAVE}, 2
    s_lshl_b32 s{T1}, s{T1}, 13
    s_add_u32 s{T1}, s{T1}, {A_CMB}
    v_add_u32 v{V_TMP+2}, s{T1}, v{V_TMP}
    s_cmp_eq_u32 s{T.KH}, 0
    """)
    C1 = "L_ca_c1"; FIN = "L_ca_fin"
    A(f"s_cbranch_scc0 {C1}")
    for kh in range(2):
        if kh == 1: A.label(C1)
        send = (2, 3) if kh == 0 else (0, 1); keep = (0, 1) if kh == 0 else (2, 3)
        for j, q in enumerate(send):
            for g in range(4): A(f"ds_write_b128 v{V_TMP+1}, {v(tO(q)+4*g,4)} offset:{4096*j + 1024*g}")
        A(f"s_mul_i32 s{T0}, s{T.HEAD}, 5"); A(f"v_add_u32 v{V_TMP+5}, s{T0}, v{V_H}"); A(f"v_lshlrev_b32 v{V_X+8}, 4, v{V_T}")
        for a_ in range(3):
            A(f"""
            v_add_u32 v{V_TMP+3}, {2*a_}, v{V_TMP+5}
            v_lshrrev_b32 v{V_TMP+4}, 2, v{V_TMP+3}
            v_lshl_add_u32 v{T.V_AO+a_}, v{V_TMP+4}, 10, v{V_X+8}
            v_and_b32 v{V_TMP+4}, 1, v{V_TMP+3}
            v_lshl_add_u32 v{T.V_AO+a_}, v{V_TMP+4}, 9, v{T.V_AO+a_}
            v_bfe_u32 v{V_TMP+4}, v{V_TMP+3}, 1, 1
            v_lshl_add_u32 v{T.V_AO+a_}, v{V_TMP+4}, 3, v{T.V_AO+a_}
            """)
        A("s_waitcnt lgkmcnt(0)"); A("s_barrier")
        for j in range(2):
            for g in range(4): A(f"ds_read_b128 {v(T.V_S+16*j+4*g,4)}, v{V_TMP+2} offset:{4096*j + 1024*g}")
        for j, q in enumerate(keep):
            o = tO(q); r_ = T.V_S + 16*j
            A(f"s_waitcnt lgkmcnt({4 if j == 0 else 0})")
            A(f"""
            v_max_f32 v{V_X}, v{o+13}, v{r_+13}
            v_sub_f32 v{V_X+1}, v{o+13}, v{V_X}
            v_sub_f32 v{V_X+2}, v{r_+13}, v{V_X}
            v_exp_f32 v{V_X+1}, v{V_X+1}
            v_exp_f32 v{V_X+2}, v{V_X+2}
            s_nop 0
            v_mul_f32 v{V_X+3}, v{V_X+1}, v{o+12}
            v_fmac_f32 v{V_X+3}, v{V_X+2}, v{r_+12}
            v_rcp_f32 v{V_X+3}, v{V_X+3}
            s_nop 0
            v_mul_f32 v{V_X+4}, v{V_X+1}, v{V_X+3}
            v_mul_f32 v{V_X+6}, v{V_X+2}, v{V_X+3}
            v_mov_b32 v{V_X+5}, v{V_X+4}
            v_mov_b32 v{V_X+7}, v{V_X+6}
            """)
            for pr in range(6): A(f"v_pk_mul_f32 {v(o+2*pr,2)}, {v(o+2*pr,2)}, {v(V_X+4,2)}")
            for pr in range(6): A(f"v_pk_fma_f32 {v(o+2*pr,2)}, {v(r_+2*pr,2)}, {v(V_X+6,2)}, {v(o+2*pr,2)}")
            pk = V_P if j == 0 else T.V_K
            for pr in range(6): A(f"v_cvt_pk_bf16_f32 v{pk+pr}, v{o+2*pr}, v{o+2*pr+1}")
            A(f"""
            s_add_u32 s{T1}, s{T.TT0}, {q}
            s_mul_i32 s{T1}, s{T1}, 40960
            buffer_store_dwordx2 {v(pk,2)}, v{T.V_AO}, s[{T.O}:{T.O+3}], s{T1} offen{SC}
            buffer_store_dwordx2 {v(pk+2,2)}, v{T.V_AO+1}, s[{T.O}:{T.O+3}], s{T1} offen{SC}
            s_mov_b64 exec, s[{T.LO}:{T.LO+1}]
            buffer_store_dwordx2 {v(pk+4,2)}, v{T.V_AO+2}, s[{T.O}:{T.O+3}], s{T1} offen{SC}
            s_mov_b64 exec, -1
            """)
        A(f"s_branch {FIN}")
    A.label(FIN)
    stamp(A, 5)
    A("s_waitcnt vmcnt(0)")
    A("s_barrier")
    stamp(A, 6)
    stamp_phase(A)
    A(f"s_branch {L_NEXT}")

class N:
    X=8; Wd=12; R=16; OUT=20; ST=24
    TB=29; CB=30; FINAL=31; XOFF=32; WOFF=33; FREE=34; CUR=35; CNT=36; T0=37; T1=38; T2=39; WT=40; WK=41
    XM0=43; WM0=44; NK=45; CURW=48; NST=55; FREEX=56; T3=57
    V_XD=4; V_WR2=5; V_XR=8; V_WR=9; V_TMP=10; V_FR=40; V_ACC=104; V_E=152
def n_frW(par, j, b): return N.V_FR + 32*par + 16*j + 4*b
def n_frX(par, j): return N.V_FR + 32*par + 16*j + 12
def n_acc(b): return N.V_ACC + 16*b
def n_reads(par):
    L = []
    for j in range(2):
        L.append(f"ds_read_b128 {v(n_frX(par,j),4)}, v{N.V_XR} offset:{j*2048}")
        for b in range(3):
            for jj in range(2):
                if b < 2: L.append(f"ds_read_b64_tr_b16 {v(n_frW(par,j,b)+2*jj,2)}, v{N.V_WR} offset:{j*5120 + jj*1280 + b*256}")
                else:     L.append(f"ds_read_b64_tr_b16 {v(n_frW(par,j,b)+2*jj,2)}, v{N.V_WR2} offset:{j*5120 + jj*1280}")
    return L
def n_mfmas(par):
    return [f"v_mfma_f32_32x32x16_bf16 {v(n_acc(b),16)}, {v(n_frW(par,j,b),4)}, {v(n_frX(par,j),4)}, {v(n_acc(b),16)}" for j in range(2) for b in range(3)]
def n_stage(A, par, last=False):
    M = n_mfmas(par)
    A("s_waitcnt lgkmcnt(0)")
    if last:
        for m in M: A(m)
        return
    ring_adv(A, N.CUR, N.T1, NX_SLOT, NX_N, [N.V_XR]); ring_adv(A, N.CURW, N.T2, NW_SLOT, NW_N, [N.V_WR, N.V_WR2])
    A(M[0]); A("s_barrier")
    R = n_reads(par ^ 1); k = 0
    for m in M[1:]:
        for _ in range(3):
            if k < len(R): A(R[k]); k += 1
        A(m)
    while k < len(R): A(R[k]); k += 1

def n_params(A, ffb):
    narrow_coords(A, N.TB, N.CB, N.T0, N.T1, N.T2)
    A(f"s_mov_b32 s{N.NST}, {27 if ffb else 10}"); A(f"s_mov_b32 s{N.NK}, {108 if ffb else 40}")

def c_narrow(A, L_TO_FA, L_TO_QKV, L_END):
    V_TMP=N.V_TMP; V_E=N.V_E; T0=N.T0; T1=N.T1; T2=N.T2; T3=N.T3
    A(f"""
    s_load_dwordx2 s[46:47], s[0:1], {KA_OUT}
    s_and_b32 s{N.WT}, s{S_WAVE}, 1
    s_lshr_b32 s{N.WK}, s{S_WAVE}, 1
    s_mov_b32 s{S_K8}, 8192
    s_mov_b32 s{S_K10}, 10240
    s_mov_b32 s{N.CUR}, 0
    s_mov_b32 s{N.CURW}, 0
    s_cmp_eq_u32 s{N.NST}, 27
    s_cselect_b32 s{T0}, 2, 1
    s_cselect_b32 s{T2}, s{S_L}, 0
    s_mov_b32 s{N.FINAL}, s{T2}
    s_lshl_b32 s{T1}, s{S_L}, 1
    s_add_u32 s{T0}, s{T0}, s{T1}
    s_lshl_b32 s{T3}, s{T0}, 18
    s_add_u32 s{T3}, s{T3}, {hex(ST[0])}
    s_mul_i32 s{T0}, s{T0}, {XSZ}
    """)
    srd_reg(A, N.ST, T3, STSZ)
    A(f"""
    s_waitcnt lgkmcnt(0)
    s_cmp_eq_u32 s{N.FINAL}, 1
    s_cselect_b32 s{N.OUT}, s46, s{S_WS}
    s_cselect_b32 s{N.OUT+1}, s47, s{S_WS+1}
    s_cselect_b32 s{T0}, 0, s{T0}
    s_add_u32 s{N.OUT}, s{N.OUT}, s{T0}
    s_addc_u32 s{N.OUT+1}, s{N.OUT+1}, 0
    s_mov_b32 s{N.OUT+2}, {XSZ}
    s_mov_b32 s{N.OUT+3}, 0x20000
    v_lshlrev_b32 v{N.V_XD}, 4, v{V_LANE}
    s_lshl_b32 s{T0}, s{N.WT}, 12
    s_lshl_b32 s{T1}, s{N.WK}, 10
    s_add_u32 s{T0}, s{T0}, s{T1}
    v_add_u32 v{N.V_XR}, s{T0}, v{N.V_XD}
    s_lshl_b32 s{T0}, s{N.WK}, 2
    v_add_u32 v{V_TMP}, s{T0}, v{V_H}
    v_mul_u32_u24 v{N.V_WR}, 640, v{V_TMP}
    v_add_u32 v{N.V_WR}, {NW_BASE}, v{N.V_WR}
    v_and_b32 v{V_TMP}, 3, v{V_LANE}
    v_lshlrev_b32 v{V_TMP}, 3, v{V_TMP}
    v_add_u32 v{N.V_WR}, v{N.V_WR}, v{V_TMP}
    v_bfe_u32 v{V_TMP}, v{V_LANE}, 2, 2
    v_lshlrev_b32 v{V_TMP+1}, 5, v{V_TMP}
    v_add_u32 v{N.V_WR2}, v{N.V_WR}, v{V_TMP+1}
    v_add_u32 v{N.V_WR2}, 512, v{N.V_WR2}
    v_lshlrev_b32 v{V_TMP}, 6, v{V_TMP}
    v_add_u32 v{N.V_WR}, v{N.V_WR}, v{V_TMP}
    v_bfe_u32 v{V_TMP}, v{V_LANE}, 4, 1
    v_lshlrev_b32 v{V_TMP}, 5, v{V_TMP}
    v_add_u32 v{N.V_WR}, v{N.V_WR}, v{V_TMP}
    """)
    for r in range(48): A(f"v_mov_b32 v{N.V_ACC+r}, 0")
    A(f"""
    s_lshl_b32 s{T0}, s{N.TB}, 1
    s_add_u32 s{T0}, s{T0}, s{N.WT}
    s_mul_i32 s{T0}, s{T0}, 40
    s_mul_i32 s{T1}, s{N.CB}, 5
    s_add_u32 s{T0}, s{T0}, s{T1}
    s_mul_i32 s{T1}, s{N.WK}, 3
    s_add_u32 s{T0}, s{T0}, s{T1}
    s_lshl_b32 s{T3}, s{T0}, 10
    s_sub_u32 s{N.CNT}, s{N.NST}, 1
    """)
    stamp(A, 1)
    A("s_barrier")
    stamp(A, 2)
    NR = "L_cn_nores"
    A(f"s_cmp_eq_u32 s{N.NST}, 10"); A(f"s_cselect_b32 s{T0}, s{S_L}, 1"); A(f"s_cmp_lg_u32 s{T0}, 0"); A(f"s_cbranch_scc1 {NR}")
    srd_const(A, N.R, XF[0], XSZ)
    for k in range(3):
        A(f"buffer_load_dwordx4 {v(V_RESP+4*k,4)}, v{N.V_XD}, s[{N.R}:{N.R+3}], s{T3} offen{off(1024*k)}")
    A.label(NR)
    A("s_barrier")
    stamp(A, 3)
    for r in n_reads(0): A(r)
    L = "L_cn_loop"; LODD = "L_cn_odd"; LDONE = "L_cn_loopdone"
    A(f"s_lshr_b32 s{N.CNT}, s{N.CNT}, 1")
    A(".p2align 4"); A.label(L)
    n_stage(A, 0); n_stage(A, 1)
    A(f"s_sub_u32 s{N.CNT}, s{N.CNT}, 1"); A(f"s_cmp_lg_u32 s{N.CNT}, 0"); A(f"s_cbranch_scc1 {L}")
    A(f"s_cmp_eq_u32 s{N.NST}, 27"); A(f"s_cbranch_scc1 {LODD}")
    n_stage(A, 0); n_stage(A, 1, last=True)
    A(f"s_branch {LDONE}")
    A.label(LODD)
    n_stage(A, 0, last=True)
    A.label(LDONE)
    stamp(A, 4)
    A(f"""
    s_mul_i32 s{T0}, s{N.WT}, 4096
    s_mul_i32 s{T1}, s{N.WT}, 6144
    s_add_u32 s{T0}, s{T0}, {N_XCH}
    s_add_u32 s{T1}, s{T1}, {N_XCH + 8192}
    s_cmp_eq_u32 s{N.WK}, 0
    s_cselect_b32 s{T2}, s{T0}, s{T1}
    s_cselect_b32 s{T1}, s{T1}, s{T0}
    v_add_u32 v{V_TMP}, s{T2}, v{N.V_XD}
    v_add_u32 v{V_TMP+1}, s{T1}, v{N.V_XD}
    s_lshl_b32 s{T0}, s{N.TB}, 1
    s_add_u32 s{T0}, s{T0}, s{N.WT}
    """)
    def areg(k): return n_acc(k >> 1) + 8*(k & 1)
    W1 = "L_cn_wk1"; FIN = "L_cn_fin"
    A(f"s_cmp_eq_u32 s{N.WK}, 0"); A(f"s_cbranch_scc0 {W1}")
    for wk in range(2):
        if wk == 1: A.label(W1)
        keep = (0, 1, 2) if wk == 0 else (3, 4)
        send = (3, 4) if wk == 0 else (0, 1, 2)
        for j, k in enumerate(send):
            A(f"ds_write_b128 v{V_TMP}, {v(areg(k),4)} offset:{2048*j}")
            A(f"ds_write_b128 v{V_TMP}, {v(areg(k)+4,4)} offset:{2048*j+1024}")
        A("s_waitcnt lgkmcnt(0)"); A("s_barrier")
        for j, k in enumerate(keep):
            A(f"ds_read_b128 {v(V_E+8*j,4)}, v{V_TMP+1} offset:{2048*j}")
            A(f"ds_read_b128 {v(V_E+8*j+4,4)}, v{V_TMP+1} offset:{2048*j+1024}")
        A(f"v_mov_b32 v{V_TMP+2}, 0"); A(f"v_mov_b32 v{V_TMP+3}, 0")
        A("s_waitcnt vmcnt(0) lgkmcnt(0)")
        for j, k in enumerate(keep):
            a_ = areg(k); p_ = V_E + 8*j; r_ = V_RESP + 4*j
            for pr in range(4): A(f"v_pk_add_f32 {v(a_+2*pr,2)}, {v(a_+2*pr,2)}, {v(p_+2*pr,2)}")
            for pr in range(4):
                A(f"v_lshlrev_b32 v{p_+2*pr}, 16, v{r_+pr}"); A(f"v_and_b32 v{p_+2*pr+1}, 0xffff0000, v{r_+pr}")
            for pr in range(4): A(f"v_pk_add_f32 {v(a_+2*pr,2)}, {v(a_+2*pr,2)}, {v(p_+2*pr,2)}")
            for pr in range(4): A(f"v_cvt_pk_bf16_f32 v{r_+pr}, v{a_+2*pr}, v{a_+2*pr+1}")
        OUTF = f"L_cn_rowmajor_{wk}"
        A(f"s_cmp_eq_u32 s{N.FINAL}, 1"); A(f"s_cbranch_scc1 {OUTF}")
        for j, k in enumerate(keep):
            A(f"buffer_store_dwordx4 {v(V_RESP+4*j,4)}, v{N.V_XD}, s[{N.OUT}:{N.OUT+3}], s{T3} offen{off(1024*j)}{SC}")
        for j, k in enumerate(keep):
            a_ = areg(k)
            for x in range(8):
                A(f"v_add_f32 v{V_TMP+2}, v{V_TMP+2}, v{a_+x}"); A(f"v_fmac_f32 v{V_TMP+3}, v{a_+x}, v{a_+x}")
        halfsum(A, V_TMP+2, V_TMP+4); halfsum(A, V_TMP+3, V_TMP+5)
        A(f"""
        s_lshl_b32 s{T0}, s{T0}, 12
        s_lshl_b32 s{T2}, s{N.CB}, 9
        s_add_u32 s{T0}, s{T0}, s{T2}
        s_add_u32 s{T0}, s{T0}, {8*wk}
        v_lshlrev_b32 v{V_TMP+4}, 4, v{V_T}
        buffer_store_dwordx2 {v(V_TMP+2,2)}, v{V_TMP+4}, s[{N.ST}:{N.ST+3}], s{T0} offen{SC}
        s_branch {FIN}
        """)
        A.label(OUTF)
        A(f"""
        s_lshl_b32 s{T0}, s{T0}, 5
        v_add_u32 v{V_TMP+4}, s{T0}, v{V_T}
        v_mul_u32_u24 v{V_TMP+4}, 1280, v{V_TMP+4}
        v_lshlrev_b32 v{V_TMP+5}, 4, v{V_H}
        v_add_u32 v{V_TMP+4}, v{V_TMP+4}, v{V_TMP+5}
        s_mul_i32 s{T2}, s{N.CB}, 160
        """)
        for j, k in enumerate(keep):
            r_ = V_RESP + 4*j
            A(f"v_permlane32_swap_b32 v{r_}, v{r_+2}"); A(f"v_permlane32_swap_b32 v{r_+1}, v{r_+3}")
        for j, k in enumerate(keep):
            A(f"buffer_store_dwordx4 {v(V_RESP+4*j,4)}, v{V_TMP+4}, s[{N.OUT}:{N.OUT+3}], s{T2} offen{off(32*k)}")
        stamp(A, 5); stamp(A, 6); stamp_phase(A)
        A(f"s_branch {L_END}")
    A.label(FIN)
    stamp(A, 5)
    A("s_waitcnt vmcnt(0)")
    A("s_barrier")
    stamp(A, 6)
    stamp_phase(A)
    A(f"s_cmp_eq_u32 s{N.NST}, 10"); A(f"s_cbranch_scc1 {L_TO_FA}")
    A(f"s_add_u32 s{S_L}, s{S_L}, 1")
    A(f"s_branch {L_TO_QKV}")

def ln_setup_w(A):
    T0=N.T0; T1=N.T1; T2=N.T2
    A(f"""
    v_lshlrev_b32 v{N.V_XD}, 4, v{V_LANE}
    s_mov_b32 s{T0}, {hex(WOP)}
    s_mov_b32 s{T1}, {WOPSZ}
    s_cmp_eq_u32 s{N.NST}, 27
    s_cselect_b32 s{T0}, {hex(W2P)}, s{T0}
    s_cselect_b32 s{T1}, {W2PSZ}, s{T1}
    """)
    srd_reg(A, N.Wd, T0, f"s{T1}")
    A(f"""
    s_mul_i32 s{T0}, s{S_LW}, 3072
    s_cmp_eq_u32 s{S_LW}, 3
    s_cselect_b32 s{T0}, 8192, s{T0}
    s_add_u32 s{N.WM0}, s{T0}, {NW_BASE}
    s_lshl_b32 s{T1}, s{N.NK}, 2
    s_mul_i32 s{T1}, s{T1}, 640
    s_mul_i32 s{T1}, s{T1}, s{N.CB}
    s_add_u32 s{N.WOFF}, s{T1}, s{T0}
    s_mov_b32 s{N.FREE}, 0
    s_mov_b32 s{N.FREEX}, 0
    s_and_b32 s{N.WT}, s{S_LW}, 1
    s_lshr_b32 s{N.WK}, s{S_LW}, 1
    s_lshl_b32 s{N.XM0}, s{N.WT}, 12
    s_lshl_b32 s{T1}, s{N.WK}, 11
    s_add_u32 s{N.XM0}, s{N.XM0}, s{T1}
    """)
def ln_setup_x(A):
    T0=N.T0; T1=N.T1; T2=N.T2
    A(f"""
    s_mov_b32 s{T0}, {hex(OF)}
    s_mov_b32 s{T1}, {XSZ}
    s_cmp_eq_u32 s{N.NST}, 27
    s_cselect_b32 s{T0}, {hex(HF)}, s{T0}
    s_cselect_b32 s{T1}, {HSZ}, s{T1}
    s_mul_i32 s{T2}, s{S_L}, {hex(LSTRIDE)}
    s_add_u32 s{T0}, s{T0}, s{T2}
    """)
    srd_reg(A, N.X, T0, f"s{T1}")
    A(f"""
    s_lshl_b32 s{T0}, s{N.TB}, 1
    s_add_u32 s{T0}, s{T0}, s{N.WT}
    s_mul_i32 s{T0}, s{T0}, s{N.NK}
    s_lshl_b32 s{T1}, s{N.WK}, 1
    s_add_u32 s{T0}, s{T0}, s{T1}
    s_lshl_b32 s{N.XOFF}, s{T0}, 10
    """)
def ln_issue_x(A):
    A(f"s_add_u32 m0, s{N.FREEX}, s{N.XM0}")
    slot_wrap(A, N.FREEX, NX_SLOT, NX_N)
    for k in range(2): A(f"buffer_load_dwordx4 v{N.V_XD}, s[{N.X}:{N.X+3}], s{N.XOFF} offen{off(1024*k)} lds")
    A(f"s_add_u32 s{N.XOFF}, s{N.XOFF}, 4096")
def ln_make_issue_w(nw):
    def f(A):
        A(f"s_add_u32 m0, s{N.FREE}, s{N.WM0}")
        slot_wrap(A, N.FREE, NW_SLOT, NW_N)
        for k in range(nw): A(f"buffer_load_dwordx4 v{N.V_XD}, s[{N.Wd}:{N.Wd+3}], s{N.WOFF} offen{off(1024*k)} lds")
        A(f"s_add_u32 s{N.WOFF}, s{N.WOFF}, 10240")
    return f
def ln_prefetch_w(A, tag, nstage):
    for nw, cond in ((3, 0), (2, 1)):
        L = f"L_lnpf_{tag}_{nw}"; SK = f"L_lnpfs_{tag}_{nw}"
        A(f"s_cmp_lt_u32 s{S_LW}, 2"); A(f"s_cbranch_scc{cond} {SK}")
        A(f"s_mov_b32 s{N.CNT}, {nstage}")
        A.label(L)
        ln_make_issue_w(nw)(A)
        A(f"s_sub_u32 s{N.CNT}, s{N.CNT}, 1"); A(f"s_cmp_lg_u32 s{N.CNT}, 0"); A(f"s_cbranch_scc1 {L}")
        A.label(SK)

def stamp(A, i):
    if asmlib.STAMP: A(f"s_memtime s[{66+2*i}:{67+2*i}]")
def stamp_phase(A):
    if not asmlib.STAMP: return
    A("s_memrealtime s[80:81]")
    A("s_waitcnt lgkmcnt(0)")
    A(f"s_add_u32 s84, s{S_WS}, 0x4000000"); A(f"s_addc_u32 s85, s{S_WS+1}, 0"); A("s_mov_b32 s86, 0x400000"); A("s_mov_b32 s87, 0x20000")
    A(f"s_lshl_b32 s90, s91, 17"); A(f"v_mov_b32 v250, s{S_WG}"); A("v_lshlrev_b32 v250, 9, v250")
    A(f"v_mov_b32 v251, s{S_WAVE}"); A("v_lshlrev_b32 v251, 6, v251"); A("v_add_u32 v250, v250, v251")
    for i in range(7):
        A(f"v_mov_b32 v251, s{66+2*i}"); A(f"buffer_store_dword v251, v250, s[84:87], s90 offen offset:{4*i}")
    A("v_mov_b32 v251, s80"); A("buffer_store_dword v251, v250, s[84:87], s90 offen offset:28")
    A("v_mov_b32 v251, s88"); A("buffer_store_dword v251, v250, s[84:87], s90 offen offset:32")
    A("v_mov_b32 v251, s92"); A("buffer_store_dword v251, v250, s[84:87], s90 offen offset:36")
    A("s_add_u32 s91, s91, 1")

def gen_mega(name):
    A = Asm()
    END = "L_end"
    A(f".globl {name}"); A(".p2align 8"); A(f".type {name},@function"); A.label(name)
    A(f"""
    s_load_dwordx2 s[{S_WS}:{S_WS+1}], s[0:1], {KA_WS}
    {'s_memrealtime s[88:89]' if asmlib.STAMP else ''}
    s_cmp_ge_u32 s{S_WG}, 256
    s_cbranch_scc1 {END}
    v_lshrrev_b32 v4, 6, v0
    v_and_b32 v{V_LANE}, 63, v0
    v_readfirstlane_b32 s{S_WAVE}, v4
    v_lshrrev_b32 v{V_H}, 5, v{V_LANE}
    v_and_b32 v{V_T}, 31, v{V_LANE}
    s_mov_b32 s{S_L}, 0
    s_mov_b32 s{S_OOB}, {hex(OOB)}
    s_mov_b32 s91, 0
    s_and_b32 s{S_LW}, s{S_WAVE}, 3
    s_waitcnt lgkmcnt(0)
    """)
    srd_const(A, S_FL, FLAGS, FLAGSZ)
    A(f"s_cmp_ge_u32 s{S_WAVE}, 4"); A("s_cbranch_scc1 L_loader")
    c_prep(A)
    if asmlib.STAMP: A("s_memrealtime s[92:93]")
    A.label("C_QKV")
    stamp(A, 0)
    wide_coords(A, False, W.TB, W.CB, W.T0, W.T1, W.T2, "C_ATT")
    w_params(A, False)
    A("s_branch C_WIDE")
    A.label("C_FA")
    stamp(A, 0)
    wide_coords(A, True, W.TB, W.CB, W.T0, W.T1, W.T2, "C_FB")
    w_params(A, True)
    A.label("C_WIDE")
    c_wide(A, "C_FB", "C_ATT")
    A.label("C_ATT")
    stamp(A, 0)
    c_att(A, "C_O")
    A.label("C_O")
    stamp(A, 0)
    n_params(A, False)
    A("s_branch C_NARROW")
    A.label("C_FB")
    stamp(A, 0)
    n_params(A, True)
    A.label("C_NARROW")
    c_narrow(A, "C_FA", "C_QKV", END)
    A(".p2align 6")
    A.label("L_loader")
    A(f"s_load_dwordx2 s[50:51], s[0:1], {KA_WQKV}"); A(f"s_load_dwordx2 s[52:53], s[0:1], {KA_DBG}")
    A("s_waitcnt lgkmcnt(0)")
    srd_ptr(A, W.Wd, 50, 640*3840); srd_const(A, W.X, XF[0], XSZ)
    for r in range(4, 9): A(f"v_mov_b32 v{r}, 0")
    if CODE_PF:
        LP = A.newlabel("cpf"); LS_ = A.newlabel("cpfs")
        A(f"s_cmp_eq_u32 s{S_LW}, 0"); A(f"s_cbranch_scc1 {LS_}")
        A("s_getpc_b64 s[60:61]")
        A.label(LP)
        A(f"s_sub_u32 s60, s60, {LP}-{name}"); A("s_subb_u32 s61, s61, 0")
        A(f"s_mov_b32 s62, L_code_end-{name}"); A("s_mov_b32 s63, 0x20000")
        A(f"s_lshr_b32 s92, s{S_WG}, 3"); A("s_mul_i32 s92, s92, 3"); A(f"s_add_u32 s92, s92, s{S_LW}"); A("s_sub_u32 s92, s92, 1"); A("s_lshl_b32 s92, s92, 10")
        A(f"v_lshlrev_b32 v24, 4, v{V_LANE}")
        A("buffer_load_dwordx4 v[28:31], v24, s[60:63], s92 offen")
        A.label(LS_)
    A(f"s_or_b32 s92, s{S_WG}, s{S_LW}"); A("s_cmp_lg_u32 s92, 0"); A("s_cbranch_scc1 L_nonce_made")
    A("s_waitcnt lgkmcnt(0)")
    srd_ptr(A, 56, 52, 256)
    A(f"""
    v_mov_b32 v{VP_T}, {NONCE-FLAGS}
    buffer_load_dword v{VP_D}, v{VP_T}, s[{S_FL}:{S_FL+3}], 0 offen sc0 sc1
    v_lshlrev_b32 v{VP_T+1}, 7, v{V_LANE}
    s_waitcnt vmcnt(0)
    v_add_u32 v{VP_D}, 1, v{VP_D}
    v_mov_b32 v{VP_D2}, 1
    s_mov_b64 exec, 3
    buffer_store_dwordx2 v[{VP_D}:{VP_D2}], v{VP_T+1}, s[56:59], 0 offen sc0 sc1
    s_mov_b64 exec, 1
    buffer_store_dword v{VP_D}, v{VP_T}, s[{S_FL}:{S_FL+3}], 0 offen sc0 sc1
    s_mov_b64 exec, -1
    """)
    A.label("L_nonce_made")
    A(f"s_mov_b32 s{W.MODE}, 4")
    wide_coords(A, False, W.TB, W.CB, W.T0, W.T1, W.T2, "L_prep_nonce")
    w_params(A, False)
    A("s_waitcnt lgkmcnt(0)")
    lw_setup_w(A, 50)
    lw_prefetch_w(A, PF0)
    A.label("L_prep_nonce")
    A("s_waitcnt lgkmcnt(0)")
    srd_ptr(A, 56, 52, 256)
    A(f"s_cmp_lg_u32 s{S_LW}, 0"); A("s_cbranch_scc1 L_nonce_done")
    A.label("L_nonce_wait")
    A(f"s_mov_b32 s{S_PCNT}, 0x10000")
    A(f"s_and_b32 s92, s{S_WG}, 1"); A("s_lshl_b32 s92, s92, 7"); A(f"v_mov_b32 v{VP_T+1}, s92")
    A.label("L_nonce_poll")
    A(f"""
    buffer_load_dwordx2 v[{VP_D}:{VP_D2}], v{VP_T+1}, s[56:59], 0 offen sc0 sc1
    s_waitcnt vmcnt(0)
    v_readfirstlane_b32 s{S_NONCE}, v{VP_D}
    v_readfirstlane_b32 s92, v{VP_D2}
    s_cmp_eq_u32 s92, 1
    s_cbranch_scc1 L_nonce_done
    s_sleep 4
    s_sub_u32 s{S_PCNT}, s{S_PCNT}, 1
    s_cmp_lg_u32 s{S_PCNT}, 0
    s_cbranch_scc1 L_nonce_poll
    """)
    A.label("L_nonce_done")
    mb_from_prep(A, 60)
    for _ in range(4): A("s_barrier")
    notify(A)
    A(f"s_cmp_eq_u32 s{W.MODE}, 4"); A("s_cbranch_scc1 L_ATT_POLL")
    lw_prefetch_w(A, WW_N - PF0)
    A.label("L_WIDE_POLL")
    A(f"""
    s_cmp_eq_u32 s{W.MODE}, 3
    s_cselect_b32 s{W.T0}, 1, 0
    s_lshl_b32 s{W.T1}, s{S_L}, 1
    s_add_u32 s{W.T0}, s{W.T0}, s{W.T1}
    s_mul_i32 s{W.T0}, s{W.T0}, {XSZ}
    """)
    srd_reg(A, W.X, W.T0, XSZ)
    A(f"""
    s_lshl_b32 s{W.T0}, s{W.TB}, 2
    s_add_u32 s{W.T0}, s{W.T0}, s{S_LW}
    s_mul_i32 s{W.XOFF}, s{W.T0}, 40960
    """)
    A(f"""
    s_lshl_b32 s{W.T0}, s{W.CB}, 4
    s_add_u32 s{W.T0}, s{W.T0}, s{W.TB}
    s_lshl_b32 s{W.T1}, s{W.TB}, 4
    s_add_u32 s{W.T1}, s{W.T1}, s{W.CB}
    s_cmp_eq_u32 s{W.MODE}, 3
    s_cselect_b32 s{W.T0}, s{W.T1}, s{W.T0}
    s_cselect_b32 s{W.T2}, {hex(MB_FA)}, {MB_QKV}
    s_lshl_b32 s{W.T0}, s{W.T0}, 7
    s_add_u32 s{W.T0}, s{W.T0}, s{W.T2}
    s_mul_i32 s{W.T3}, s{S_L}, {hex(MB_LAYER)}
    s_add_u32 s{W.T3}, s{W.T3}, s{W.T0}
    s_cmp_eq_u32 s{W.MODE}, 3
    s_cselect_b32 s{W.T1}, 1, s{S_L}
    s_cmp_eq_u32 s{W.T1}, 0
    s_cselect_b32 s{W.T1}, 24, 16
    """)
    poll_slots(A, f"s{W.T1}")
    lw_stats_setup(A)
    poll(A, W.T3)
    A("s_barrier")
    if asmlib.STAMP: A("s_memtime s[66:67]")
    emit_sched(A, sched2(W.NST, WX_N, WW_N, WW_N), 4, 4, lw_issue_x, lw_issue_w, W.CNT, "lw", loads={6: (lw_stats_load, 8)}, post={8: lw_stats_post})
    if not EXP['nobar']: A("s_barrier")
    if asmlib.STAMP:
        A("s_waitcnt lgkmcnt(0)")
        A(f"s_add_u32 s84, s{S_WS}, 0x4400000"); A(f"s_addc_u32 s85, s{S_WS+1}, 0")
        A("s_mov_b32 s64, s84"); A("s_mov_b32 s65, s85")
        A("s_mov_b32 s88, s64"); A("s_mov_b32 s89, s65"); A("s_mov_b32 s90, 0x400000"); A("s_mov_b32 s91, 0x20000")
        A(f"s_cmp_eq_u32 s{W.MODE}, 3"); A("s_cselect_b32 s92, 1, 0"); A(f"s_lshl_b32 s93, s{S_L}, 1"); A("s_add_u32 s92, s92, s93"); A("s_lshl_b32 s92, s92, 17")
        A(f"v_mov_b32 v30, s{S_WG}"); A("v_lshlrev_b32 v30, 9, v30"); A(f"v_mov_b32 v31, s{S_WAVE}"); A("v_lshlrev_b32 v31, 6, v31"); A("v_add_u32 v30, v30, v31")
        for i in range(9):
            A(f"v_mov_b32 v31, s{66+2*i}"); A(f"buffer_store_dword v31, v30, s[88:91], s92 offen offset:{4*i}")
        A("v_mov_b32 v31, s84")
    A(f"s_cmp_eq_u32 s{W.MODE}, 3"); A("s_cbranch_scc1 L_wide_fa_end")
    mb_from_qkv(A, W.T0, W.T1, W.T2)
    A("s_barrier")
    notify(A)
    A("s_branch L_ATT_POLL")
    A.label("L_wide_fa_end")
    A(f"s_lshl_b32 s{W.T0}, s{W.TB}, 4")
    mb_simple(A, W.T1, W.T0, 0, W.CB, 16, MB_FB)
    n_params(A, True); ln_setup_w(A); ln_prefetch_w(A, "fb", 3)
    A("s_barrier")
    notify(A)
    ln_prefetch_w(A, "fbb", NW_N - 3)
    A("s_branch L_NARROW_POLL")
    A.label("L_ATT_POLL")
    HEAD=40; QB=41; CA=42; CB_=43; T0=44; T1=45; SO=46
    A(f"""
    s_and_b32 s{HEAD}, s{S_WG}, 31
    s_lshr_b32 s{QB}, s{S_WG}, 5
    s_mul_i32 s{T0}, s{HEAD}, 20
    s_lshr_b32 s{CA}, s{T0}, 7
    s_add_u32 s{T0}, s{T0}, 19
    s_lshr_b32 s{CB_}, s{T0}, 7
    s_cmp_lg_u32 s{CA}, s{CB_}
    s_cselect_b64 s[92:93], -1, 0
    v_lshlrev_b32 v{VP_OFF}, 2, v{V_LANE}
    v_bfe_u32 v{VP_T}, v{V_LANE}, 4, 1
    v_cmp_eq_u32 vcc, 0, v{VP_T}
    s_or_b64 vcc, vcc, s[92:93]
    v_mov_b32 v{VP_T}, s{S_OOB}
    v_mov_b32 v{VP_EXP}, s{S_NONCE}
    v_cndmask_b32 v{VP_OFF}, v{VP_T}, v{VP_OFF}, vcc
    v_cndmask_b32 v{VP_EXP}, 0, v{VP_EXP}, vcc
    v_lshlrev_b32 v{VP_OFF2}, 2, v{V_LANE}
    v_add_u32 v{VP_OFF2}, 256, v{VP_OFF2}
    v_cmp_gt_u32 vcc, 2, v{V_LANE}
    v_cmp_gt_u32 s[88:89], 4, v{V_LANE}
    s_and_b64 s[88:89], s[88:89], s[92:93]
    s_or_b64 vcc, vcc, s[88:89]
    v_mov_b32 v{VP_EXP2}, s{S_NONCE}
    v_cndmask_b32 v{VP_OFF2}, v{VP_T}, v{VP_OFF2}, vcc
    v_cndmask_b32 v{VP_EXP2}, 0, v{VP_EXP2}, vcc
    """)
    region(A, SO, MB_ATT)
    A(f"s_lshl_b32 s{T0}, s{S_WG}, 9"); A(f"s_add_u32 s{SO}, s{SO}, s{T0}")
    poll(A, SO, two=True)
    A("s_barrier")
    A(f"s_lshl_b32 s{T0}, s{QB}, 5")
    mb_simple(A, T1, T0, 0, HEAD, 32, MB_O)
    n_params(A, False); ln_setup_w(A)
    A("s_barrier")
    ln_prefetch_w(A, "o", 3)
    A("s_barrier")
    notify(A)
    ln_prefetch_w(A, "ob", 7)
    A.label("L_NARROW_POLL")
    ln_setup_x(A)
    A(f"""
    s_lshl_b32 s{N.T0}, s{N.TB}, 3
    s_add_u32 s{N.T0}, s{N.T0}, s{N.CB}
    s_lshl_b32 s{N.T0}, s{N.T0}, 7
    s_cmp_eq_u32 s{N.NST}, 27
    s_cselect_b32 s{N.T1}, {hex(MB_FB)}, {hex(MB_O) if False else 0}
    s_cselect_b32 s{N.T2}, 14, 32
    s_cbranch_scc1 L_np_fb
    s_mov_b32 s{N.T1}, {hex(MB_O)}
    """)
    A.label("L_np_fb")
    A(f"s_add_u32 s{N.T0}, s{N.T0}, s{N.T1}"); A(f"s_mul_i32 s{N.T3}, s{S_L}, {hex(MB_LAYER)}"); A(f"s_add_u32 s{N.T3}, s{N.T3}, s{N.T0}")
    poll_slots(A, f"s{N.T2}")
    poll(A, N.T3)
    A("s_barrier")
    for nw in (3, 2):
        for nst in (10, 27):
            nxt = f"L_ln_next_{nw}_{nst}"
            A(f"s_cmp_lt_u32 s{S_LW}, 2"); A(f"s_cbranch_scc{0 if nw == 3 else 1} {nxt}")
            A(f"s_cmp_eq_u32 s{N.NST}, {nst}"); A(f"s_cbranch_scc0 {nxt}")
            emit_sched(A, sched2(nst, NX_N, NW_N, min(nst, NW_N)), 2, nw, ln_issue_x, ln_make_issue_w(nw), N.CNT, f"ln{nw}_{nst}")
            A("s_branch L_ln_done")
            A.label(nxt)
    A.label("L_ln_done")
    A("s_barrier")
    A(f"s_and_b32 s60, s{N.TB}, 1"); A(f"s_lshl_b32 s60, s60, 3"); A(f"s_add_u32 s60, s60, s{N.CB}"); A(f"s_lshr_b32 s61, s{N.TB}, 1")
    A(f"s_cmp_eq_u32 s{N.NST}, 27"); A("s_cbranch_scc1 L_after_fb")
    A(f"s_lshl_b32 s61, s61, 4")
    mb_simple(A, 62, 61, 0, 60, 14, MB_FA)
    wide_coords(A, True, W.TB, W.CB, W.T0, W.T1, W.T2, "L_o_fa_idle")
    w_params(A, True)
    A(f"s_load_dwordx2 s[50:51], s[0:1], {KA_W1}"); A("s_waitcnt lgkmcnt(0)")
    lw_setup_w(A, 50); lw_prefetch_w(A, 2)
    A("s_barrier"); notify(A)
    lw_prefetch_w(A, WW_N - 2)
    A("s_branch L_WIDE_POLL")
    A.label("L_o_fa_idle")
    A("s_barrier"); notify(A)
    n_params(A, True); ln_setup_w(A); ln_prefetch_w(A, "fb2", NW_N)
    A("s_branch L_NARROW_POLL")
    A.label("L_after_fb")
    A(f"s_cmp_eq_u32 s{S_L}, 1"); A(f"s_cbranch_scc1 {END}")
    mb_simple(A, 62, 61, 4, 60, 15, MB_QKV, layer_add=1)
    A(f"s_mov_b32 s{S_L}, 1")
    wide_coords(A, False, W.TB, W.CB, W.T0, W.T1, W.T2, "L_fb_qkv_idle")
    w_params(A, False)
    A(f"s_load_dwordx2 s[50:51], s[0:1], {KA_WQKV}"); A("s_waitcnt lgkmcnt(0)")
    lw_setup_w(A, 50); lw_prefetch_w(A, 2)
    A("s_barrier"); notify(A)
    lw_prefetch_w(A, WW_N - 2)
    A("s_branch L_WIDE_POLL")
    A.label("L_fb_qkv_idle")
    A("s_barrier"); notify(A)
    A("s_branch L_ATT_POLL")
    A.label(END)
    A("s_endpgm")
    A.label("L_code_end")
    desc = f""".section .rodata,"a"
.p2align 6
.amdhsa_kernel {name}
  .amdhsa_next_free_vgpr 256
  .amdhsa_next_free_sgpr 102
  .amdhsa_accum_offset 256
  .amdhsa_group_segment_fixed_size 0
  .amdhsa_kernarg_size 72
  .amdhsa_user_sgpr_count 2
  .amdhsa_user_sgpr_kernarg_segment_ptr 1
  .amdhsa_system_sgpr_workgroup_id_x 1
  .amdhsa_float_denorm_mode_32 3
.end_amdhsa_kernel
.text
"""
    return A, desc

def build(path, name="interleave_layers__mha_block__dense_activation_silu__prompt_kernel"):
    hdr = open('interleave_layers__mha_block__dense_activation_silu__prompt.s.ref').read().split("; Override launch")[0]
    A, desc = gen_mega(name)
    lines, n = hazard_pass(A.lines)
    A.lines = lines
    out = hdr + f"; @launch grid=(256,1,1) block=(512,1,1) lds={LDS_BYTES}\n" + '.amdgcn_target "amdgcn-amd-amdhsa--gfx950"\n.text\n' + A.text() + desc
    open(path, 'w').write(out)
    print(path, 'nops', n, 'lines', len(out.splitlines()), 'bytes', len(out))
if __name__ == "__main__":
    build('mega.s')
    asmlib.STAMP = True
    build('mega_stamp.s')
```

```python
from asmlib import *
from mlayout import *
import asmlib, struct
def f2u(x): return struct.unpack("<I", struct.pack("<f", x))[0]
QSCALE = (DH ** -0.5) * 1.4426950408889634
SC = " sc0 sc1"
OOB = 0x7f000000
CODE_PF = True
PF0 = 0
PFN = 3
PFW = 2
EXP = dict(nowait=False, nomfma=False, nodma=False, nobar=False, noread=False)

S_WG=2; S_WAVE=3; S_WS=4; S_NONCE=6; S_L=7
S_K16=63; S_K8=62; S_K10=61; S_FOFF=94; S_PCNT=95; S_FL=96; S_LW=100; S_OOB=101
V_LANE=1; V_H=2; V_T=3
V_RESP=232
WW_BASE=0; WW_N=6; WX_BASE=98304; WX_N=3; W_SLOT=16384; W_SCR=147456
NX_BASE=0; NX_N=6; NX_SLOT=8192; NW_BASE=49152; NW_N=10; NW_SLOT=10240; N_XCH=120832
A_CMB=0
P_SCR=126976
LDS_BYTES=163840

def srd_const(A, d, off, size):
    A(f"s_add_u32 s{d}, s{S_WS}, {hex(off)}"); A(f"s_addc_u32 s{d+1}, s{S_WS+1}, 0")
    A(f"s_mov_b32 s{d+2}, {size}"); A(f"s_mov_b32 s{d+3}, 0x20000")
def srd_reg(A, d, soff, size):
    A(f"s_add_u32 s{d}, s{S_WS}, s{soff}"); A(f"s_addc_u32 s{d+1}, s{S_WS+1}, 0")
    A(f"s_mov_b32 s{d+2}, {size}"); A(f"s_mov_b32 s{d+3}, 0x20000")
def srd_ptr(A, d, p, size):
    A(f"s_mov_b32 s{d}, s{p}"); A(f"s_mov_b32 s{d+1}, s{p+1}")
    A(f"s_mov_b32 s{d+2}, {size}"); A(f"s_mov_b32 s{d+3}, 0x20000")
def halfsum(A, x, tmp):
    A(f"v_mov_b32 v{tmp}, v{x}"); A(f"v_permlane32_swap_b32 v{x}, v{tmp}"); A(f"v_add_f32 v{x}, v{x}, v{tmp}")
def off(x): return f" offset:{x}" if x else ""

def sched2(nst, nxs, nws, prew):
    out = []; nx = 0; nw = prew
    for j in range(-1, nst-1):
        ops = []; n = 0
        while nx < nst and nx - nxs + 1 <= j and (n < 2 or nx <= j + 1):
            ops.append(('X', nx)); nx += 1; n += 1
        n = 0
        while nw < nst and nw - nws + 1 <= j and (n < 1 or nw <= j + 1):
            ops.append(('W', nw)); nw += 1; n += 1
        assert nx > j + 1 and max(nw, prew) > j + 1
        out.append((ops, j + 1))
    return out
def emit_sched(A, sched, cx, cw, issue_x, issue_w, scnt, tag, loads=None, post=None):
    loads = loads or {}; post = post or {}
    q = []; items = []
    for n, (ops, tgt) in enumerate(sched):
        for kind, s_ in ops: q.append((kind, s_, cx if kind == 'X' else cw))
        if n in loads: q.append(('E', -1, loads[n][1]))
        idx = max(i for i, (k, st, c) in enumerate(q) if st == tgt)
        wait = sum(c for (k, st, c) in q[idx+1:])
        items.append((tuple(k for k, _ in ops), wait, n if (n in loads or n in post) else None))
    i = 0; k = 0; first = [True]; nb = [1]
    while i < len(items):
        j = i
        while j < len(items) and items[j] == items[i]: j += 1
        if EXP['nobar'] and i == 0: j = 1
        run = j - i; kinds, w, hook = items[i]
        assert w <= 63
        def body():
            if not EXP['nodma']:
                for kd in kinds: (issue_x if kd == 'X' else issue_w)(A)
            if hook in loads: loads[hook][0](A)
            if not EXP['nowait']: A(f"s_waitcnt vmcnt({w})")
            if hook in post: post[hook](A)
            if not (EXP['nobar'] and tag == "lw" and not first[0]): A("s_barrier")
            first[0] = False
            if asmlib.STAMP and tag == "lw" and nb[0] < 9:
                A(f"s_memtime s[{66+2*nb[0]}:{67+2*nb[0]}]"); nb[0] += 1
        if run >= 3 and not (asmlib.STAMP and tag == "lw"):
            L = f"L_{tag}_{k}"; k += 1
            A(f"s_mov_b32 s{scnt}, {run}"); A.label(L); body()
            A(f"s_sub_u32 s{scnt}, s{scnt}, 1"); A(f"s_cmp_lg_u32 s{scnt}, 0"); A(f"s_cbranch_scc1 {L}")
        else:
            for _ in range(run): body()
        i = j

VP_OFF=244; VP_EXP=245; VP_OFF2=246; VP_EXP2=247; VP_D=248; VP_D2=249; VP_T=12; VP_MB=252
S_POFF=94
def notify(A):
    L = A.newlabel("fl")
    A(f"s_cmp_lg_u32 s{S_WAVE}, 0"); A(f"s_cbranch_scc1 {L}")
    A(f"v_mov_b32 v{VP_D}, s{S_NONCE}")
    A(f"buffer_store_dword v{VP_D}, v{VP_MB}, s[{S_FL}:{S_FL+3}], 0 offen sc0 sc1")
    A.label(L)
def only_w0(A):
    L = A.newlabel("w0"); A(f"s_cmp_lg_u32 s{S_WAVE}, 0"); A(f"s_cbranch_scc1 {L}"); return L
def mb_finish(A, idx, slot, nvalid_cmp, region, shift=7):
    A(f"v_lshlrev_b32 v{idx}, {shift}, v{idx}")
    A(f"v_lshl_add_u32 v{VP_MB}, v{slot}, 2, v{idx}")
    A(f"v_add_u32 v{VP_MB}, s{region}, v{VP_MB}")
    A(f"v_mov_b32 v{idx}, s{S_OOB}")
    A(f"v_cndmask_b32 v{VP_MB}, v{idx}, v{VP_MB}, vcc")
def region(A, dst, base, layer_add=0):
    A(f"s_add_u32 s{dst}, s{S_L}, {layer_add}") if layer_add else A(f"s_mov_b32 s{dst}, s{S_L}")
    A(f"s_mul_i32 s{dst}, s{dst}, {hex(MB_LAYER)}"); A(f"s_add_u32 s{dst}, s{dst}, {hex(base)}")
def poll(A, two=False):
    L = A.newlabel("poll"); Dn = A.newlabel("polld")
    A(f"s_cmp_lg_u32 s{S_WAVE}, 0"); A(f"s_cbranch_scc1 {Dn}")
    A(f"s_mov_b32 s{S_PCNT}, 0x10000")
    A.label(L)
    A(f"buffer_load_dword v{VP_D}, v{VP_OFF}, s[{S_FL}:{S_FL+3}], s{S_POFF} offen sc0 sc1")
    if two: A(f"buffer_load_dword v{VP_D2}, v{VP_OFF2}, s[{S_FL}:{S_FL+3}], s{S_POFF} offen sc0 sc1")
    A("s_waitcnt vmcnt(0)")
    A(f"v_cmp_eq_u32 vcc, v{VP_D}, v{VP_EXP}")
    if two:
        A(f"v_cmp_eq_u32 s[92:93], v{VP_D2}, v{VP_EXP2}")
        A("s_and_b64 vcc, vcc, s[92:93]")
    A("s_cmp_eq_u64 vcc, exec")
    A(f"s_cbranch_scc1 {Dn}")
    A(f"s_sub_u32 s{S_PCNT}, s{S_PCNT}, 1"); A(f"s_cmp_lg_u32 s{S_PCNT}, 0"); A(f"s_cbranch_scc1 {L}")
    A.label(Dn)
def poll_slots(A, n_sreg_or_const):
    A(f"v_lshlrev_b32 v{VP_OFF}, 2, v{V_LANE}")
    A(f"v_cmp_gt_u32 vcc, {n_sreg_or_const}, v{V_LANE}")
    A(f"v_mov_b32 v{VP_T}, s{S_OOB}")
    A(f"v_mov_b32 v{VP_EXP}, s{S_NONCE}")
    A(f"v_cndmask_b32 v{VP_OFF}, v{VP_T}, v{VP_OFF}, vcc")
    A(f"v_cndmask_b32 v{VP_EXP}, 0, v{VP_EXP}, vcc")
def mb_from_prep(A, t):
    I=VP_T; S_=VP_T+1; X=VP_T+2
    A(f"""
    s_lshr_b32 s{t}, s{S_WG}, 4
    v_lshlrev_b32 v{I}, 4, v{V_LANE}
    v_add_u32 v{I}, s{t}, v{I}
    s_and_b32 s{t}, s{S_WG}, 15
    v_mov_b32 v{S_}, s{t}
    s_lshr_b32 s{t}, s{S_WG}, 3
    s_lshl_b32 s{t}, s{t}, 4
    s_sub_u32 s{t}, s{t}, 16
    v_add_u32 v{X}, s{t}, v{V_LANE}
    v_bfe_u32 v{X+1}, v{V_LANE}, 4, 2
    v_cmp_eq_u32 vcc, 1, v{X+1}
    s_and_b32 s{t}, s{S_WG}, 7
    s_add_u32 s{t}, s{t}, 16
    v_mov_b32 v{X+1}, s{t}
    v_cndmask_b32 v{I}, v{I}, v{X}, vcc
    v_cndmask_b32 v{S_}, v{S_}, v{X+1}, vcc
    s_cmp_lt_u32 s{S_WG}, 120
    s_cselect_b64 s[92:93], -1, 0
    s_and_b64 s[92:93], s[92:93], vcc
    v_cmp_gt_u32 vcc, 15, v{V_LANE}
    s_or_b64 vcc, vcc, s[92:93]
    s_mov_b32 s{t}, {MB_QKV}
    """)
    mb_finish(A, I, S_, None, t)
def mb_from_qkv(A, t0, t1, t2):
    I=VP_T; S_=VP_T+1; X=VP_T+2; Y=VP_T+3
    A(f"""
    s_mul_i32 s{t0}, s{W.CB}, 205
    s_lshr_b32 s{t0}, s{t0}, 10
    s_mul_i32 s{t1}, s{t0}, 5
    s_sub_u32 s{t1}, s{W.CB}, s{t1}
    s_lshl_b32 s{t2}, s{t1}, 7
    s_mul_i32 s{S_PCNT}, s{t2}, 3277
    s_lshr_b32 s{S_PCNT}, s{S_PCNT}, 16
    s_add_u32 s{t2}, s{t2}, 127
    s_mul_i32 s{t2}, s{t2}, 3277
    s_lshr_b32 s{t2}, s{t2}, 16
    """)
    LQ = A.newlabel("mbq"); LD = A.newlabel("mbd")
    A(f"s_cmp_eq_u32 s{t0}, 0"); A(f"s_cbranch_scc1 {LQ}")
    A(f"""
    v_lshrrev_b32 v{X}, 3, v{V_LANE}
    v_add_u32 v{X}, s{S_PCNT}, v{X}
    v_and_b32 v{I}, 7, v{V_LANE}
    v_lshl_add_u32 v{I}, v{I}, 5, v{X}
    v_mul_u32_u24 v{Y}, 20, v{X}
    v_lshrrev_b32 v{Y}, 7, v{Y}
    v_cmp_ne_u32 vcc, s{t1}, v{Y}
    s_sub_u32 s{t0}, s{t0}, 1
    s_lshl_b32 s{t0}, s{t0}, 5
    s_add_u32 s{t0}, s{t0}, s{W.TB}
    v_mov_b32 v{S_}, s{t0}
    v_add_u32 v{Y}, 16, v{S_}
    v_cndmask_b32 v{S_}, v{S_}, v{Y}, vcc
    v_cmp_ge_u32 vcc, s{t2}, v{X}
    s_branch {LD}
    """)
    A.label(LQ)
    A(f"""
    v_add_u32 v{X}, s{S_PCNT}, v{V_LANE}
    s_lshr_b32 s{t0}, s{W.TB}, 1
    s_lshl_b32 s{t0}, s{t0}, 5
    v_add_u32 v{I}, s{t0}, v{X}
    v_mul_u32_u24 v{Y}, 20, v{X}
    v_lshrrev_b32 v{Y}, 7, v{Y}
    v_cmp_ne_u32 vcc, s{t1}, v{Y}
    s_and_b32 s{t0}, s{W.TB}, 1
    s_add_u32 s{t0}, s{t0}, 64
    v_mov_b32 v{S_}, s{t0}
    v_add_u32 v{Y}, 2, v{S_}
    v_cndmask_b32 v{S_}, v{S_}, v{Y}, vcc
    v_cmp_ge_u32 vcc, s{t2}, v{X}
    v_cmp_gt_u32 s[92:93], 8, v{V_LANE}
    s_and_b64 vcc, vcc, s[92:93]
    """)
    A.label(LD)
    region(A, t0, MB_ATT)
    mb_finish(A, I, S_, None, t0, shift=9)
def mb_simple(A, t, idx_base_expr, lane_shift, slot_sreg, nvalid, base, layer_add=0):
    I=VP_T; S_=VP_T+1
    A(f"v_lshlrev_b32 v{I}, {lane_shift}, v{V_LANE}") if lane_shift else A(f"v_mov_b32 v{I}, v{V_LANE}")
    A(f"v_add_u32 v{I}, s{idx_base_expr}, v{I}")
    A(f"v_mov_b32 v{S_}, s{slot_sreg}")
    A(f"v_cmp_gt_u32 vcc, {nvalid}, v{V_LANE}")
    region(A, t, base, layer_add)
    mb_finish(A, I, S_, None, t)

def sync_wide(A):
    L = only_w0(A)
    LF = A.newlabel("swf"); LD = A.newlabel("swd")
    A(f"s_cmp_eq_u32 s{W.MODE}, 3"); A(f"s_cbranch_scc1 {LF}")
    mb_from_qkv(A, W.T0, W.T1, W.T2)
    A(f"s_branch {LD}")
    A.label(LF)
    A(f"s_lshl_b32 s{W.T0}, s{W.TB}, 4")
    mb_simple(A, W.T1, W.T0, 0, W.CB, 16, MB_FB)
    A.label(LD)
    A(f"""
    s_lshl_b32 s{W.T0}, s{W.CB}, 4
    s_add_u32 s{W.T0}, s{W.T0}, s{W.TB}
    s_lshl_b32 s{W.T1}, s{W.TB}, 4
    s_add_u32 s{W.T1}, s{W.T1}, s{W.CB}
    s_cmp_eq_u32 s{W.MODE}, 3
    s_cselect_b32 s{W.T0}, s{W.T1}, s{W.T0}
    s_cselect_b32 s{W.T2}, {hex(MB_FA)}, {MB_QKV}
    s_lshl_b32 s{W.T0}, s{W.T0}, 7
    s_add_u32 s{W.T0}, s{W.T0}, s{W.T2}
    s_mul_i32 s{S_POFF}, s{S_L}, {hex(MB_LAYER)}
    s_add_u32 s{S_POFF}, s{S_POFF}, s{W.T0}
    s_cmp_eq_u32 s{W.MODE}, 3
    s_cselect_b32 s{W.T1}, 1, s{S_L}
    s_cmp_eq_u32 s{W.T1}, 0
    s_cselect_b32 s{W.T1}, 24, 16
    """)
    poll_slots(A, f"s{W.T1}")
    A.label(L)
def sync_att(A):
    L = only_w0(A)
    CA=40; CB_=41; T0=46; T1=47
    A(f"s_lshl_b32 s{T0}, s{T.QB}, 5")
    mb_simple(A, T1, T0, 0, T.HEAD, 32, MB_O)
    A(f"""
    s_mul_i32 s{T0}, s{T.HEAD}, 20
    s_lshr_b32 s{CA}, s{T0}, 7
    s_add_u32 s{T0}, s{T0}, 19
    s_lshr_b32 s{CB_}, s{T0}, 7
    s_cmp_lg_u32 s{CA}, s{CB_}
    s_cselect_b64 s[92:93], -1, 0
    v_lshlrev_b32 v{VP_OFF}, 2, v{V_LANE}
    v_bfe_u32 v{VP_T}, v{V_LANE}, 4, 1
    v_cmp_eq_u32 vcc, 0, v{VP_T}
    s_or_b64 vcc, vcc, s[92:93]
    v_mov_b32 v{VP_T}, s{S_OOB}
    v_mov_b32 v{VP_EXP}, s{S_NONCE}
    v_cndmask_b32 v{VP_OFF}, v{VP_T}, v{VP_OFF}, vcc
    v_cndmask_b32 v{VP_EXP}, 0, v{VP_EXP}, vcc
    v_lshlrev_b32 v{VP_OFF2}, 2, v{V_LANE}
    v_add_u32 v{VP_OFF2}, 256, v{VP_OFF2}
    v_cmp_gt_u32 vcc, 2, v{V_LANE}
    v_cmp_gt_u32 s[48:49], 4, v{V_LANE}
    s_and_b64 s[48:49], s[48:49], s[92:93]
    s_or_b64 vcc, vcc, s[48:49]
    v_mov_b32 v{VP_EXP2}, s{S_NONCE}
    v_cndmask_b32 v{VP_OFF2}, v{VP_T}, v{VP_OFF2}, vcc
    v_cndmask_b32 v{VP_EXP2}, 0, v{VP_EXP2}, vcc
    """)
    region(A, S_POFF, MB_ATT)
    A(f"s_lshl_b32 s{T0}, s{S_WG}, 9"); A(f"s_add_u32 s{S_POFF}, s{S_POFF}, s{T0}")
    A.label(L)
def sync_narrow(A):
    L = only_w0(A)
    LFB = A.newlabel("snf"); LD = A.newlabel("snd")
    A(f"s_and_b32 s60, s{N.TB}, 1"); A(f"s_lshl_b32 s60, s60, 3"); A(f"s_add_u32 s60, s60, s{N.CB}"); A(f"s_lshr_b32 s59, s{N.TB}, 1")
    A(f"s_cmp_eq_u32 s{N.NST}, 27"); A(f"s_cbranch_scc1 {LFB}")
    A(f"s_lshl_b32 s59, s59, 4")
    mb_simple(A, 58, 59, 0, 60, 14, MB_FA)
    A(f"s_branch {LD}")
    A.label(LFB)
    mb_simple(A, 58, 59, 4, 60, 15, MB_QKV, layer_add=1)
    A.label(LD)
    A(f"""
    s_lshl_b32 s{N.T0}, s{N.TB}, 3
    s_add_u32 s{N.T0}, s{N.T0}, s{N.CB}
    s_lshl_b32 s{N.T0}, s{N.T0}, 7
    s_mov_b32 s{N.T1}, {hex(MB_O)}
    s_cmp_eq_u32 s{N.NST}, 27
    s_cselect_b32 s{N.T1}, {hex(MB_FB)}, s{N.T1}
    s_cselect_b32 s{N.T2}, 14, 32
    s_add_u32 s{N.T0}, s{N.T0}, s{N.T1}
    s_mul_i32 s{S_POFF}, s{S_L}, {hex(MB_LAYER)}
    s_add_u32 s{S_POFF}, s{S_POFF}, s{N.T0}
    """)
    poll_slots(A, f"s{N.T2}")
    A.label(L)

def wide_coords(A, ffn, tb, cb, t0, t1, t2, idle_label):
    A(f"""
    s_and_b32 s{t0}, s{S_WG}, 7
    s_lshr_b32 s{t1}, s{S_WG}, 3
    s_and_b32 s{tb}, s{t0}, 3
    s_lshl_b32 s{tb}, s{tb}, 2
    s_and_b32 s{t2}, s{t1}, 3
    s_add_u32 s{tb}, s{tb}, s{t2}
    s_lshr_b32 s{t0}, s{t0}, 2
    s_lshr_b32 s{t1}, s{t1}, 2
    """)
    if ffn:
        A(f"s_mul_i32 s{cb}, s{t0}, 7"); A(f"s_add_u32 s{cb}, s{cb}, s{t1}")
        A(f"s_cmp_ge_u32 s{t1}, 7"); A(f"s_cbranch_scc1 {idle_label}")
    else:
        A(f"s_lshl_b32 s{cb}, s{t0}, 3"); A(f"s_add_u32 s{cb}, s{cb}, s{t1}")
        A(f"s_cmp_ge_u32 s{cb}, 15"); A(f"s_cbranch_scc1 {idle_label}")
def narrow_coords(A, tb, cb, t0, t1, t2):
    A(f"""
    s_and_b32 s{t0}, s{S_WG}, 7
    s_lshr_b32 s{t1}, s{S_WG}, 3
    s_and_b32 s{tb}, s{t0}, 3
    s_lshl_b32 s{tb}, s{tb}, 3
    s_and_b32 s{t2}, s{t1}, 7
    s_add_u32 s{tb}, s{tb}, s{t2}
    s_lshr_b32 s{t0}, s{t0}, 2
    s_lshl_b32 s{t0}, s{t0}, 2
    s_lshr_b32 s{t1}, s{t1}, 3
    s_add_u32 s{cb}, s{t0}, s{t1}
    """)

def c_prep(A):
    X=20; XF0=24; ST0=28; WO=32; W2=36; CS_S=40; CS_D=44; WOPD=48; W2PD=52; VF0=56; VF1=60
    TT=64; Q=65; T0=66; T1=67; T2=68; T3=69; LDW=76; CROW=77; TASK=78; STRIP=79; RQ=80; NOCS=81; K3=82; ADV=83; CO=84
    A(f"""
    s_load_dwordx4 s[8:11], s[0:1], {KA_X}
    s_load_dwordx2 s[12:13], s[0:1], {KA_WO}
    s_load_dwordx4 s[16:19], s[0:1], {KA_W1}
    s_lshr_b32 s{TT}, s{S_WG}, 2
    s_and_b32 s{Q}, s{S_WG}, 3
    s_lshl_b32 s{T0}, s{TT}, 5
    v_add_u32 v5, s{T0}, v{V_T}
    v_mul_u32_u24 v5, 1280, v5
    v_lshlrev_b32 v6, 4, v{V_H}
    v_add_u32 v5, v5, v6
    s_mul_i32 s{T0}, s{Q}, 320
    s_lshl_b32 s{T1}, s{S_WAVE}, 5
    s_add_u32 s{T0}, s{T0}, s{T1}
    v_add_u32 v5, s{T0}, v5
    s_cmp_lt_u32 s{S_WAVE}, 2
    s_cselect_b32 s{K3}, 256, s{S_OOB}
    s_waitcnt lgkmcnt(0)
    """)
    srd_ptr(A, X, 8, XSZ)
    A(f"""
    buffer_load_dwordx4 v[8:11], v5, s[{X}:{X+3}], 0 offen
    buffer_load_dwordx4 v[12:15], v5, s[{X}:{X+3}], 0 offen offset:128
    buffer_load_dwordx4 v[16:19], v5, s[{X}:{X+3}], s{K3} offen
    """)
    CSW1 = "L_cp_csw1"; CSGO = "L_cp_csgo"
    A(f"s_cmp_ge_u32 s{S_WG}, 228"); A(f"s_cselect_b32 s{NOCS}, 1, 0")
    A(f"s_cmp_ge_u32 s{S_WG}, 120"); A(f"s_cbranch_scc1 {CSW1}")
    srd_ptr(A, CS_S, 10, 640*3840); srd_const(A, CS_D, CSQ, CSQSZ)
    A(f"s_mov_b32 s{LDW}, 3840"); A(f"s_mov_b32 s{CROW}, 7680"); A(f"s_mov_b32 s{TASK}, s{S_WG}"); A(f"s_branch {CSGO}")
    A.label(CSW1)
    srd_ptr(A, CS_S, 16, 640*3456); srd_const(A, CS_D, CS1, CS1SZ)
    A(f"s_mov_b32 s{LDW}, 3456"); A(f"s_mov_b32 s{CROW}, 6912"); A(f"s_sub_u32 s{TASK}, s{S_WG}, 120")
    A.label(CSGO)
    A(f"""
    s_lshr_b32 s{STRIP}, s{TASK}, 2
    s_and_b32 s{RQ}, s{TASK}, 3
    v_lshrrev_b32 v6, 3, v0
    s_mul_i32 s{T0}, s{RQ}, 160
    v_add_u32 v6, s{T0}, v6
    v_mul_lo_u32 v6, v6, s{LDW}
    v_and_b32 v7, 7, v0
    v_lshlrev_b32 v7, 4, v7
    v_add_u32 v6, v6, v7
    s_lshl_b32 s{T0}, s{STRIP}, 7
    v_add_u32 v6, s{T0}, v6
    s_lshl_b32 s{ADV}, s{LDW}, 5
    s_cmp_eq_u32 s{NOCS}, 1
    s_cselect_b32 s{CO}, s{S_OOB}, 0
    """)
    for i in range(5):
        A(f"buffer_load_dwordx4 v[{20+4*i}:{23+4*i}], v6, s[{CS_S}:{CS_S+3}], s{CO} offen")
        if i < 4: A(f"s_add_u32 s{CO}, s{CO}, s{ADV}")
    srd_ptr(A, WO, 12, 640*1280); srd_ptr(A, W2, 18, F*1280)
    A(f"""
    s_lshl_b32 s{T0}, s{S_WG}, 12
    v_lshlrev_b32 v7, 4, v0
    v_add_u32 v7, s{T0}, v7
    s_mov_b32 s{T1}, 0x100000
    s_mov_b32 s{T2}, 0x200000
    buffer_load_dwordx4 v[40:43], v7, s[{WO}:{WO+3}], 0 offen
    buffer_load_dwordx4 v[44:47], v7, s[{W2}:{W2+3}], 0 offen
    buffer_load_dwordx4 v[48:51], v7, s[{W2}:{W2+3}], s{T1} offen
    buffer_load_dwordx4 v[52:55], v7, s[{W2}:{W2+3}], s{T2} offen
    """)
    srd_const(A, XF0, XF[0], XSZ); srd_const(A, ST0, ST[0], STSZ)
    srd_const(A, WOPD, WOP, WOPSZ); srd_const(A, W2PD, W2P, W2PSZ)
    srd_const(A, VF0, VF, VSZ); srd_const(A, VF1, VF + LSTRIDE, VSZ)
    def packaddr(dst, add, kq640):
        A(f"""
        v_lshrrev_b32 v72, 4, v7
        v_add_u32 v72, {add}, v72
        s_mov_b32 s{T3}, 0xcccccccd
        v_mul_hi_u32 v73, v72, s{T3}
        v_lshrrev_b32 v73, 6, v73
        v_mul_u32_u24 v74, 80, v73
        v_sub_u32 v74, v72, v74
        v_mul_u32_u24 v75, 6554, v74
        v_lshrrev_b32 v75, 16, v75
        v_mul_u32_u24 v76, 10, v75
        v_sub_u32 v76, v74, v76
        s_mov_b32 s{T3}, {kq640}
        v_mul_lo_u32 v{dst}, v75, s{T3}
        v_lshrrev_b32 v77, 2, v73
        v_mul_u32_u24 v77, 640, v77
        v_add_u32 v{dst}, v{dst}, v77
        v_and_b32 v73, 3, v73
        v_lshrrev_b32 v77, 2, v76
        v_lshlrev_b32 v77, 8, v77
        v_lshlrev_b32 v78, 6, v73
        v_add_u32 v77, v77, v78
        v_and_b32 v78, 3, v76
        v_lshlrev_b32 v78, 4, v78
        v_add_u32 v77, v77, v78
        v_lshlrev_b32 v78, 5, v73
        v_and_b32 v79, 1, v76
        v_lshlrev_b32 v79, 4, v79
        v_add_u32 v78, v78, v79
        v_add_u32 v78, 512, v78
        v_cmp_gt_u32 vcc, 8, v76
        v_cndmask_b32 v77, v78, v77, vcc
        v_add_u32 v{dst}, v{dst}, v77
        v_cmp_gt_u32 vcc, {kq640*8//16}, v72
        v_mov_b32 v78, s{S_OOB}
        v_cndmask_b32 v{dst}, v78, v{dst}, vcc
        """)
    packaddr(80, 0, 160*640); packaddr(81, 0, 432*640); packaddr(82, 65536, 432*640); packaddr(83, 131072, 432*640)
    A(f"""
    v_lshrrev_b32 v95, 1, v{V_LANE}
    s_lshl_b32 s{T0}, s{S_WG}, 5
    v_add_u32 v95, s{T0}, v95
    v_mul_u32_u24 v95, 352, v95
    v_and_b32 v94, 1, v{V_LANE}
    v_lshlrev_b32 v96, 4, v94
    v_add_u32 v95, v95, v96
    v_add_u32 v95, 320, v95
    v_mov_b32 v96, 0x3f803f80
    v_cmp_eq_u32 vcc, 0, v94
    v_cndmask_b32 v96, 0, v96, vcc
    v_mov_b32 v97, v96
    v_mov_b32 v98, v96
    v_mov_b32 v99, v96
    v_cmp_gt_u32 vcc, 64, v0
    v_mov_b32 v94, s{S_OOB}
    v_cndmask_b32 v95, v94, v95, vcc
    buffer_store_dwordx4 v[96:99], v95, s[{VF0}:{VF0+3}], 0 offen{SC}
    buffer_store_dwordx4 v[96:99], v95, s[{VF1}:{VF1+3}], 0 offen{SC}
    """)
    A("s_waitcnt vmcnt(11)")
    A("v_mov_b32 v56, 0\nv_mov_b32 v57, 0")
    for r in range(8, 20):
        A(f"""
        v_lshlrev_b32 v58, 16, v{r}
        v_and_b32 v59, 0xffff0000, v{r}
        v_add_f32 v56, v56, v58
        v_fmac_f32 v57, v58, v58
        v_add_f32 v56, v56, v59
        v_fmac_f32 v57, v59, v59
        """)
    for b in (8, 12, 16):
        A(f"v_permlane32_swap_b32 v{b}, v{b+2}"); A(f"v_permlane32_swap_b32 v{b+1}, v{b+3}")
    A(f"""
    s_mul_i32 s{T0}, s{TT}, 40
    s_mul_i32 s{T1}, s{Q}, 10
    s_add_u32 s{T0}, s{T0}, s{T1}
    s_add_u32 s{T0}, s{T0}, s{S_WAVE}
    s_lshl_b32 s{T0}, s{T0}, 10
    v_lshlrev_b32 v60, 4, v{V_LANE}
    v_add_u32 v60, s{T0}, v60
    s_cmp_lt_u32 s{S_WAVE}, 2
    s_cselect_b32 s{K3}, 8192, s{S_OOB}
    s_mov_b32 s{T1}, 4096
    buffer_store_dwordx4 v[8:11], v60, s[{XF0}:{XF0+3}], 0 offen{SC}
    buffer_store_dwordx4 v[12:15], v60, s[{XF0}:{XF0+3}], s{T1} offen{SC}
    buffer_store_dwordx4 v[16:19], v60, s[{XF0}:{XF0+3}], s{K3} offen{SC}
    """)
    halfsum(A, 56, 58); halfsum(A, 57, 59)
    A(f"""
    s_lshl_b32 s{T0}, s{TT}, 12
    s_lshl_b32 s{T1}, s{Q}, 2
    s_add_u32 s{T1}, s{T1}, s{S_WAVE}
    s_lshr_b32 s{T2}, s{T1}, 1
    s_lshl_b32 s{T2}, s{T2}, 9
    s_add_u32 s{T0}, s{T0}, s{T2}
    s_and_b32 s{T1}, s{T1}, 1
    s_lshl_b32 s{T1}, s{T1}, 3
    s_add_u32 s{T0}, s{T0}, s{T1}
    v_lshlrev_b32 v60, 4, v{V_T}
    v_add_u32 v60, s{T0}, v60
    buffer_store_dwordx2 v[56:57], v60, s[{ST0}:{ST0+3}], 0 offen{SC}
    s_waitcnt vmcnt(6)
    buffer_store_dwordx4 v[40:43], v80, s[{WOPD}:{WOPD+3}], 0 offen{SC}
    buffer_store_dwordx4 v[44:47], v81, s[{W2PD}:{W2PD+3}], 0 offen{SC}
    buffer_store_dwordx4 v[48:51], v82, s[{W2PD}:{W2PD+3}], 0 offen{SC}
    buffer_store_dwordx4 v[52:55], v83, s[{W2PD}:{W2PD+3}], 0 offen{SC}
    """)
    for j in range(8): A(f"v_mov_b32 v{64+j}, 0")
    for i in range(5):
        for rr in range(4):
            r = 20 + 4*i + rr
            A(f"""
            v_lshlrev_b32 v58, 16, v{r}
            v_and_b32 v59, 0xffff0000, v{r}
            v_add_f32 v{64+2*rr}, v{64+2*rr}, v58
            v_add_f32 v{65+2*rr}, v{65+2*rr}, v59
            """)
    A(f"""
    v_lshlrev_b32 v58, 5, v0
    v_add_u32 v58, {P_SCR}, v58
    ds_write_b128 v58, v[64:67]
    ds_write_b128 v58, v[68:71] offset:16
    s_waitcnt lgkmcnt(0)
    s_barrier
    v_lshlrev_b32 v58, 2, v{V_LANE}
    s_lshl_b32 s{T0}, s{S_WAVE}, 11
    s_add_u32 s{T0}, s{T0}, {P_SCR}
    v_add_u32 v58, s{T0}, v58
    """)
    for k in range(8): A(f"ds_read_b32 v{64+k}, v58 offset:{256*k}")
    A(f"""
    s_waitcnt lgkmcnt(0)
    v_add_f32 v64, v64, v65
    v_add_f32 v66, v66, v67
    v_add_f32 v68, v68, v69
    v_add_f32 v70, v70, v71
    v_add_f32 v64, v64, v66
    v_add_f32 v68, v68, v70
    v_add_f32 v64, v64, v68
    v_lshlrev_b32 v58, 2, v0
    v_add_u32 v58, {P_SCR}, v58
    s_barrier
    ds_write_b32 v58, v64
    s_waitcnt lgkmcnt(0)
    s_barrier
    v_lshlrev_b32 v59, 2, v{V_LANE}
    v_add_u32 v58, {P_SCR}, v59
    ds_read_b32 v64, v58
    ds_read_b32 v65, v58 offset:256
    ds_read_b32 v66, v58 offset:512
    ds_read_b32 v67, v58 offset:768
    s_waitcnt lgkmcnt(0)
    v_add_f32 v64, v64, v65
    v_add_f32 v66, v66, v67
    v_add_f32 v64, v64, v66
    s_mul_i32 s{T0}, s{RQ}, s{CROW}
    s_lshl_b32 s{T1}, s{STRIP}, 8
    s_add_u32 s{T0}, s{T0}, s{T1}
    s_cmp_lg_u32 s{S_WAVE}, 0
    s_cselect_b32 s{T0}, s{S_OOB}, s{T0}
    s_cmp_eq_u32 s{NOCS}, 1
    s_cselect_b32 s{T0}, s{S_OOB}, s{T0}
    v_add_u32 v59, s{T0}, v59
    buffer_store_dword v64, v59, s[{CS_D}:{CS_D+3}], 0 offen{SC}
    """)
    L0 = only_w0(A)
    mb_from_prep(A, T0)
    A(f"s_load_dwordx2 s[8:9], s[0:1], {KA_DBG}"); A("s_waitcnt lgkmcnt(0)")
    srd_ptr(A, 12, 8, 256)
    A(f"s_mov_b32 s{S_PCNT}, 0x10000")
    A(f"s_and_b32 s{T0}, s{S_WG}, 1"); A(f"s_lshl_b32 s{T0}, s{T0}, 7"); A(f"v_mov_b32 v{VP_OFF}, s{T0}")
    A.label("L_nonce_poll")
    A(f"""
    buffer_load_dwordx2 v[{VP_D}:{VP_D2}], v{VP_OFF}, s[12:15], 0 offen sc0 sc1
    s_waitcnt vmcnt(0)
    v_readfirstlane_b32 s{S_NONCE}, v{VP_D}
    v_readfirstlane_b32 s{T0}, v{VP_D2}
    s_cmp_eq_u32 s{T0}, 1
    s_cbranch_scc1 {L0}
    s_sub_u32 s{S_PCNT}, s{S_PCNT}, 1
    s_cmp_lg_u32 s{S_PCNT}, 0
    s_cbranch_scc1 L_nonce_poll
    """)
    A.label(L0)
    A("s_waitcnt vmcnt(0)")
    A("s_barrier")
    notify(A)

class W:
    X=8; Wd=12; ST=16; CS=20; OUT=24
    TB=29; CB=30; MODE=31; XOFF=32; WOFF=33; M0=34; WADV=35; FREE=36; CNT=37; LDW=38; N0=39; CSROW=40
    T0=41; T1=42; T2=43; WN=44; WT=45; XB=46; T3=47; FREEX=48; WSZ=49; CURX=54; CURW=55; QS=56; ISF=58; SO0=50
    V_XD=4; V_WD=5; V_WRH=5; V_XR=9; V_WR=10; V_TMP=11; V_AA=20; V_NB=24; V_A2=28; V_FR=32; V_ACC=96; V_E=160
    NST=10
def ring_adv(A, cur, tmp, slot, n, vregs):
    A(f"s_add_u32 s{cur}, s{cur}, 1"); A(f"s_cmp_eq_u32 s{cur}, {n}")
    A(f"s_cselect_b32 s{tmp}, {hex(-slot*(n-1) & 0xffffffff)}, s{S_K16 if slot == 16384 else (S_K8 if slot == 8192 else S_K10)}")
    A(f"s_cselect_b32 s{cur}, 0, s{cur}")
    for r in vregs: A(f"v_add_u32 v{r}, s{tmp}, v{r}")
def w_fr(setn, kind, i): return W.V_FR + 16*setn + (0 if kind == 'W' else 8) + 4*i
def w_acc(i, ip): return W.V_ACC + 16*(2*i + ip)
def w_reads(setn, step, stage):
    if EXP['noread']: return []
    xs = (stage % WX_N)*W_SLOT; ws = stage % WW_N
    wreg = W.V_WR if ws < 4 else W.V_WRH; wo = (ws % 4)*W_SLOT
    L = []
    for i in range(2):
        for jj in range(2):
            L.append(f"ds_read_b64_tr_b16 {v(w_fr(setn,'W',i)+2*jj,2)}, v{wreg} offset:{wo + step*4096 + jj*2048 + i*256}")
        L.append(f"ds_read_b128 {v(w_fr(setn,'X',i),4)}, v{W.V_XR} offset:{xs + i*4096 + step*1024}")
    return L
def w_mfmas(setn, trans):
    L = []
    for (i, ip) in ((0,0),(0,1),(1,0),(1,1)):
        w = v(w_fr(setn,'W',i),4); x = v(w_fr(setn,'X',ip),4); d = v(w_acc(i,ip),16)
        L.append(f"v_mfma_f32_32x32x16_bf16 {d}, {w}, {x}, {d}" if trans else f"v_mfma_f32_32x32x16_bf16 {d}, {x}, {w}, {d}")
    return L
def w_stage(A, trans, st, fill=None):
    fill = list(fill or [])
    per = -(-len(fill) // 14) if fill else 0
    def F():
        for _ in range(per):
            if fill: A(fill.pop(0))
    last = st == W.NST - 1
    for step in range(4):
        M = w_mfmas(step, trans)
        if EXP['nomfma']: M = ["s_nop 0"]*4
        if step == 0 or step == 1: A("s_waitcnt lgkmcnt(6)")
        if step == 2:
            A("s_waitcnt lgkmcnt(0)")
            A(M[0]); F(); A(M[1])
            if not EXP['nobar']: A("s_barrier")
            R = [] if last else w_reads(0, 0, st + 1)
            for r in R[:3]: A(r)
            F(); A(M[2])
            for r in R[3:]: A(r)
            F(); A(M[3]); F()
            continue
        if step < 2: R = w_reads(step + 2, step + 2, st)
        else: R = [] if last else w_reads(1, 1, st + 1)
        A(M[0])
        k = 0
        for m in M[1:]:
            for _ in range(2):
                if k < len(R): A(R[k]); k += 1
            F()
            A(m)
        F()
    while fill: A(fill.pop(0))
def w_mainloop(A, trans, tag, fill_ld, fill0, fill_last):
    for st in range(W.NST):
        w_stage(A, trans, st, fill={5: fill_ld, 7: fill0, W.NST-1: fill_last}.get(st))

def w_params(A, ffn):
    if ffn:
        A(f"s_mov_b32 s{W.MODE}, 3"); A(f"s_mov_b32 s{W.LDW}, 3456"); A(f"s_mov_b32 s{W.CSROW}, 6912")
    else:
        A(f"""
        s_cmp_ge_u32 s{W.CB}, 5
        s_cselect_b32 s{W.MODE}, 1, 0
        s_cmp_ge_u32 s{W.CB}, 10
        s_cselect_b32 s{W.MODE}, 2, s{W.MODE}
        s_mov_b32 s{W.LDW}, 3840
        s_mov_b32 s{W.CSROW}, 7680
        """)
    A(f"s_lshl_b32 s{W.N0}, s{W.CB}, 7")

def c_wide(A, L_TO_FB, L_TO_ATT):
    V_TMP=W.V_TMP; V_E=W.V_E; V_FR=W.V_FR; V_AA=W.V_AA; V_NB=W.V_NB; V_A2=W.V_A2; V_ACC=W.V_ACC
    T0=W.T0; T1=W.T1; T2=W.T2; T3=W.T3; MODE=W.MODE
    VA=V_E+32
    sync_wide(A)
    A(f"""
    s_and_b32 s{W.WN}, s{S_WAVE}, 1
    s_lshr_b32 s{W.WT}, s{S_WAVE}, 1
    s_cmp_eq_u32 s{MODE}, 3
    s_cselect_b32 s{T0}, 1, 0
    s_lshl_b32 s{T1}, s{S_L}, 1
    s_add_u32 s{T0}, s{T0}, s{T1}
    s_lshl_b32 s{T0}, s{T0}, 18
    s_add_u32 s{T0}, s{T0}, {hex(ST[0])}
    """)
    srd_reg(A, W.ST, T0, STSZ)
    A(f"""
    s_mov_b32 s{T0}, {hex(CSQ)}
    s_mov_b32 s{T1}, {CSQSZ}
    s_cmp_eq_u32 s{MODE}, 3
    s_cselect_b32 s{T0}, {hex(CS1)}, s{T0}
    s_cselect_b32 s{T1}, {CS1SZ}, s{T1}
    """)
    srd_reg(A, W.CS, T0, f"s{T1}")
    A(f"""
    s_mov_b32 s{T0}, {hex(QP)}
    s_mov_b32 s{T1}, {XSZ}
    s_cmp_eq_u32 s{MODE}, 1
    s_cselect_b32 s{T0}, {hex(KP)}, s{T0}
    s_cmp_eq_u32 s{MODE}, 2
    s_cselect_b32 s{T0}, {hex(VF)}, s{T0}
    s_cselect_b32 s{T1}, {VSZ}, s{T1}
    s_cmp_eq_u32 s{MODE}, 3
    s_cselect_b32 s{T0}, {hex(HF)}, s{T0}
    s_cselect_b32 s{T1}, {HSZ}, s{T1}
    s_mul_i32 s{T2}, s{S_L}, {hex(LSTRIDE)}
    s_add_u32 s{T0}, s{T0}, s{T2}
    """)
    srd_reg(A, W.OUT, T0, f"s{T1}")
    A(f"""
    v_lshlrev_b32 v{W.V_XD}, 4, v{V_LANE}
    s_lshl_b32 s{T0}, s{W.WT}, 13
    s_add_u32 s{T0}, s{T0}, {WX_BASE}
    v_add_u32 v{W.V_XR}, s{T0}, v{W.V_XD}
    s_mov_b32 s{W.CURX}, 0
    s_mov_b32 s{W.CURW}, 0
    s_mov_b32 s{S_K16}, 16384
    v_lshlrev_b32 v{W.V_WR}, 10, v{V_H}
    v_bfe_u32 v{V_TMP}, v{V_LANE}, 2, 2
    v_lshlrev_b32 v{V_TMP}, 6, v{V_TMP}
    v_add_u32 v{W.V_WR}, v{W.V_WR}, v{V_TMP}
    v_bfe_u32 v{V_TMP}, v{V_LANE}, 4, 1
    v_lshlrev_b32 v{V_TMP}, 5, v{V_TMP}
    v_add_u32 v{W.V_WR}, v{W.V_WR}, v{V_TMP}
    v_and_b32 v{V_TMP}, 3, v{V_LANE}
    v_lshlrev_b32 v{V_TMP}, 3, v{V_TMP}
    v_add_u32 v{W.V_WR}, v{W.V_WR}, v{V_TMP}
    s_lshl_b32 s{T0}, s{W.WN}, 9
    v_add_u32 v{W.V_WR}, s{T0}, v{W.V_WR}
    v_add_u32 v{W.V_WRH}, 0x10000, v{W.V_WR}
    """)
    for r in list(range(VA, VA+4)) + [V_E+68, V_E+69]: A(f"v_mov_b32 v{r}, 0")
    LA1 = "L_cw_addr_v"; LA2 = "L_cw_addr_done"
    A(f"s_cmp_eq_u32 s{MODE}, 3"); A(f"s_cbranch_scc1 {LA2}")
    A(f"s_cmp_eq_u32 s{MODE}, 2"); A(f"s_cbranch_scc1 {LA1}")
    A(f"""
    s_mul_i32 s{T0}, s{MODE}, 640
    s_sub_u32 s{T0}, s{W.N0}, s{T0}
    s_lshl_b32 s{T1}, s{W.WN}, 6
    s_add_u32 s{T0}, s{T0}, s{T1}
    s_lshr_b32 s{T0}, s{T0}, 3
    v_add_u32 v{V_TMP}, s{T0}, v{V_H}
    v_lshlrev_b32 v{V_TMP+5}, 4, v{V_T}
    """)
    for i in range(2):
        for gp in range(2):
            r = VA + 2*i + gp
            A(f"""
            v_add_u32 v{V_TMP+1}, {4*i+2*gp}, v{V_TMP}
            v_mul_u32_u24 v{V_TMP+2}, 205, v{V_TMP+1}
            v_lshrrev_b32 v{V_TMP+2}, 10, v{V_TMP+2}
            v_mul_u32_u24 v{V_TMP+3}, 5, v{V_TMP+2}
            v_sub_u32 v{V_TMP+3}, v{V_TMP+1}, v{V_TMP+3}
            v_mul_u32_u24 v{r}, {64*PTS}, v{V_TMP+2}
            v_lshl_add_u32 v{r}, v{V_TMP+3}, 9, v{r}
            v_add_u32 v{r}, v{r}, v{V_TMP+5}
            """)
    A(f"s_branch {LA2}")
    A.label(LA1)
    A(f"""
    s_lshl_b32 s{T0}, s{W.WN}, 6
    v_add_u32 v{V_TMP}, s{T0}, v{V_T}
    s_sub_u32 s{T0}, s{W.N0}, 1280
    v_add_u32 v{V_TMP}, s{T0}, v{V_TMP}
    s_movk_i32 s{T1}, 3277
    """)
    for i in range(2):
        r = V_E + 68 + i
        A(f"""
        v_add_u32 v{V_TMP+1}, {32*i}, v{V_TMP}
        v_mul_u32_u24 v{V_TMP+2}, s{T1}, v{V_TMP+1}
        v_lshrrev_b32 v{V_TMP+2}, 16, v{V_TMP+2}
        v_mul_u32_u24 v{V_TMP+3}, 20, v{V_TMP+2}
        v_sub_u32 v{V_TMP+3}, v{V_TMP+1}, v{V_TMP+3}
        v_mul_u32_u24 v{r}, {64*VTS}, v{V_TMP+2}
        v_mul_u32_u24 v{V_TMP+4}, 22, v{V_H}
        v_add_u32 v{V_TMP+4}, v{V_TMP+4}, v{V_TMP+3}
        v_lshl_add_u32 v{r}, v{V_TMP+4}, 4, v{r}
        """)
    A.label(LA2)
    for r in range(64): A(f"v_mov_b32 v{V_ACC+r}, 0")
    A(f"""
    s_lshl_b32 s{T0}, s{W.TB}, 2
    s_lshl_b32 s{T1}, s{W.WT}, 1
    s_add_u32 s{T0}, s{T0}, s{T1}
    s_lshl_b32 s{T0}, s{T0}, 12
    s_add_u32 s{T1}, s{T0}, 4096
    v_lshlrev_b32 v{V_TMP}, 4, v{V_T}
    v_lshl_add_u32 v{V_TMP}, v{V_H}, 11, v{V_TMP}
    v_and_b32 v{V_TMP+2}, 127, v0
    v_add_u32 v{V_TMP+2}, s{W.N0}, v{V_TMP+2}
    v_lshlrev_b32 v{V_TMP+2}, 2, v{V_TMP+2}
    s_lshl_b32 s{T2}, s{W.CSROW}, 1
    s_add_u32 s{T3}, s{T2}, s{W.CSROW}
    """)
    stamp(A, 1)
    poll(A)
    A("s_barrier")
    stamp(A, 2)
    A(f"""
    s_cmp_eq_u32 s{MODE}, 0
    s_cselect_b32 s{W.QS}, {hex(f2u(QSCALE))}, 1.0
    s_cmp_eq_u32 s{MODE}, 3
    s_cselect_b64 s[{W.ISF}:{W.ISF+1}], -1, 0
    s_lshl_b32 s{T2}, s{W.WT}, 8
    s_add_u32 s{T2}, s{T2}, {W_SCR + 512}
    v_lshlrev_b32 v{V_TMP+6}, 2, v{V_T}
    v_add_u32 v{V_TMP+6}, s{T2}, v{V_TMP+6}
    """)
    FLD = None; F0 = None
    VS = V_E + 36
    FTOK = []
    for ip in range(2):
        FTOK += [f"ds_read_b32 v{VS+4*ip}, v{V_TMP+6} offset:{128*ip}", f"ds_read_b32 v{V_NB+2*ip}, v{V_TMP+6} offset:{1024+128*ip}",
                 f"ds_read_b32 v{VS+4*ip+1}, v{V_TMP+6} offset:{1536+128*ip}"]
    FPOST = []
    for ip in range(2):
        FPOST += [f"v_mov_b32 v{V_NB+2*ip+1}, v{V_NB+2*ip}",
                  f"v_mul_f32 v{V_A2+2*ip}, {hex(f2u(-1.4426950408889634))}, v{VS+4*ip}", f"v_mul_f32 v{V_AA+2*ip}, s{W.QS}, v{VS+4*ip}",
                  f"v_mov_b32 v{V_A2+2*ip+1}, v{V_A2+2*ip}",
                  f"v_cndmask_b32 v{V_AA+2*ip}, v{V_AA+2*ip}, v{VS+4*ip+1}, s[{W.ISF}:{W.ISF+1}]", f"v_mov_b32 v{V_AA+2*ip+1}, v{V_AA+2*ip}"]
    A("s_barrier")
    stamp(A, 3)
    for r in w_reads(0, 0, 0) + w_reads(1, 1, 0): A(r)
    LV = "L_cw_vmode"; LF = "L_cw_ffn"; FIN = "L_cw_fin"
    A(f"s_cmp_eq_u32 s{MODE}, 2"); A(f"s_cbranch_scc1 {LV}")
    FL = [f"s_lshl_b32 s{T0}, s{W.WN}, 8", f"s_add_u32 s{T0}, s{T0}, {W_SCR}", f"v_lshlrev_b32 v{V_TMP}, 4, v{V_H}", f"v_add_u32 v{V_TMP}, s{T0}, v{V_TMP}"]
    for i in range(2):
        for g in range(4):
            FL.append(f"ds_read_b128 {v(V_E+16*i+4*g,4)}, v{V_TMP} offset:{128*i + 32*g}")
    w_mainloop(A, True, "t", FLD, F0, FTOK + FL)
    stamp(A, 4)
    A("s_waitcnt lgkmcnt(0)")
    for x in FPOST: A(x)
    PK = V_FR
    A(f"s_cmp_eq_u32 s{MODE}, 3"); A(f"s_cbranch_scc1 {LF}")
    A(f"""
    s_lshl_b32 s{T0}, s{W.TB}, 2
    s_lshl_b32 s{T1}, s{W.WT}, 1
    s_add_u32 s{T0}, s{T0}, s{T1}
    s_mul_i32 s{T0}, s{T0}, {PTS}
    s_add_u32 s{T1}, s{T0}, {PTS}
    """)
    for i in range(2):
        for ip in range(2):
            c = w_acc(i, ip)
            for p in range(8): A(f"v_pk_fma_f32 {v(c+2*p,2)}, {v(V_E+16*i+2*p,2)}, {v(V_NB+2*ip,2)}, {v(c+2*p,2)}")
            for p in range(8): A(f"v_pk_mul_f32 {v(c+2*p,2)}, {v(c+2*p,2)}, {v(V_AA+2*ip,2)}")
            pk = PK + 8*(2*i+ip)
            for p in range(8): A(f"v_cvt_pk_bf16_f32 v{pk+p}, v{c+2*p}, v{c+2*p+1}")
            for gp in range(2):
                A(f"v_permlane32_swap_b32 v{pk+4*gp}, v{pk+4*gp+2}")
                A(f"v_permlane32_swap_b32 v{pk+4*gp+1}, v{pk+4*gp+3}")
            for gp in range(2):
                A(f"buffer_store_dwordx4 {v(pk+4*gp,4)}, v{VA+2*i+gp}, s[{W.OUT}:{W.OUT+3}], s{T0+ip} offen{SC}")
    A(f"s_branch {FIN}")
    A.label(LF)
    A(f"""
    s_lshl_b32 s{T0}, s{W.WN}, 6
    s_add_u32 s{T0}, s{T0}, s{W.N0}
    s_cmp_ge_u32 s{T0}, {F}
    s_cbranch_scc1 {FIN}
    s_lshr_b32 s{T0}, s{T0}, 4
    s_lshl_b32 s{T1}, s{W.TB}, 2
    s_lshl_b32 s{T2}, s{W.WT}, 1
    s_add_u32 s{T1}, s{T1}, s{T2}
    s_mul_i32 s{T1}, s{T1}, 108
    s_add_u32 s{T0}, s{T0}, s{T1}
    s_lshl_b32 s{T0}, s{T0}, 10
    s_add_u32 s{T1}, s{T0}, {108*1024}
    """)
    VZ = V_E + 36
    for ip in range(2):
        for i in range(2):
            c = w_acc(i, ip)
            for p in range(8): A(f"v_pk_fma_f32 {v(c+2*p,2)}, {v(V_E+16*i+2*p,2)}, {v(V_NB+2*ip,2)}, {v(c+2*p,2)}")
            for p in range(8): A(f"v_pk_mul_f32 {v(VZ+2*p,2)}, {v(c+2*p,2)}, {v(V_A2+2*ip,2)}")
            for r in range(16): A(f"v_exp_f32 v{VZ+r}, v{VZ+r}")
            for p in range(8): A(f"v_pk_fma_f32 {v(VZ+2*p,2)}, {v(VZ+2*p,2)}, {v(V_AA+2*ip,2)}, {v(V_AA+2*ip,2)}")
            for r in range(16): A(f"v_rcp_f32 v{VZ+r}, v{VZ+r}")
            for p in range(8): A(f"v_pk_mul_f32 {v(c+2*p,2)}, {v(c+2*p,2)}, {v(VZ+2*p,2)}")
            pk = PK + 8*(2*ip+i)
            for p in range(8): A(f"v_cvt_pk_bf16_f32 v{pk+p}, v{c+2*p}, v{c+2*p+1}")
            so = T0 if ip == 0 else T1
            A(f"buffer_store_dwordx4 {v(pk,4)}, v{W.V_XD}, s[{W.OUT}:{W.OUT+3}], s{so} offen{off(2048*i)}{SC}")
            A(f"buffer_store_dwordx4 {v(pk+4,4)}, v{W.V_XD}, s[{W.OUT}:{W.OUT+3}], s{so} offen{off(2048*i+1024)}{SC}")
    A(f"s_branch {FIN}")
    A.label(LV)
    FL = [f"s_lshl_b32 s{T0}, s{W.WN}, 6", f"v_add_u32 v{V_TMP}, s{T0}, v{V_T}", f"v_lshlrev_b32 v{V_TMP+1}, 2, v{V_TMP}",
          f"v_add_u32 v{V_TMP+1}, {W_SCR}, v{V_TMP+1}", f"ds_read_b32 v{V_E+64}, v{V_TMP+1}", f"ds_read_b32 v{V_E+66}, v{V_TMP+1} offset:128",
          f"s_lshl_b32 s{T1}, s{W.WT}, 8", f"s_add_u32 s{T1}, s{T1}, {W_SCR+512}", f"v_lshlrev_b32 v{V_TMP}, 4, v{V_H}", f"v_add_u32 v{V_TMP}, s{T1}, v{V_TMP}"]
    for ip in range(2):
        for g in range(4):
            FL.append(f"ds_read_b128 {v(V_E+32*ip+4*g,4)}, v{V_TMP} offset:{128*ip + 32*g}")
            FL.append(f"ds_read_b128 {v(V_E+32*ip+16+4*g,4)}, v{V_TMP} offset:{512 + 128*ip + 32*g}")
    w_mainloop(A, False, "v", FLD, F0, FL)
    stamp(A, 4)
    VAv = V_E + 68
    A(f"""
    s_lshl_b32 s{T0}, s{W.TB}, 2
    s_lshl_b32 s{T1}, s{W.WT}, 1
    s_add_u32 s{T0}, s{T0}, s{T1}
    s_mul_i32 s{T0}, s{T0}, {VTS}
    s_waitcnt lgkmcnt(0)
    v_sub_f32 v{V_E+64}, 0, v{V_E+64}
    v_sub_f32 v{V_E+66}, 0, v{V_E+66}
    v_mov_b32 v{V_E+65}, v{V_E+64}
    v_mov_b32 v{V_E+67}, v{V_E+66}
    """)
    for ip in range(2):
        for i in range(2):
            c = w_acc(i, ip)
            for p in range(8): A(f"v_pk_mul_f32 {v(c+2*p,2)}, {v(c+2*p,2)}, {v(V_E+32*ip+2*p,2)}")
            for p in range(8): A(f"v_pk_fma_f32 {v(c+2*p,2)}, {v(V_E+32*ip+16+2*p,2)}, {v(V_E+64+2*i,2)}, {v(c+2*p,2)}")
            pk = PK + 8*(2*ip+i)
            for p in range(8): A(f"v_cvt_pk_bf16_f32 v{pk+p}, v{c+2*p}, v{c+2*p+1}")
            A(f"buffer_store_dwordx4 {v(pk,4)}, v{VAv+i}, s[{W.OUT}:{W.OUT+3}], s{T0} offen{off(VTS*ip)}{SC}")
            A(f"buffer_store_dwordx4 {v(pk+4,4)}, v{VAv+i}, s[{W.OUT}:{W.OUT+3}], s{T0} offen{off(VTS*ip+704)}{SC}")
    A.label(FIN)
    stamp(A, 5)
    A("s_waitcnt vmcnt(0)")
    A("s_barrier")
    notify(A)
    stamp(A, 6)
    stamp_phase(A)
    A(f"s_cmp_eq_u32 s{MODE}, 3"); A(f"s_cbranch_scc1 {L_TO_FB}")
    A(f"s_branch {L_TO_ATT}")

def lw_setup_w(A, kaoff_reg_pair):
    V_TMP=W.V_TMP; T0=W.T0
    A(f"""
    v_lshlrev_b32 v{W.V_XD}, 4, v{V_LANE}
    v_lshrrev_b32 v{V_TMP}, 4, v{V_LANE}
    v_lshlrev_b32 v{W.V_WD}, 6, v{V_TMP}
    v_and_b32 v{V_TMP+1}, 3, v{V_LANE}
    v_lshlrev_b32 v{V_TMP+1}, 4, v{V_TMP+1}
    v_add_u32 v{W.V_WD}, v{W.V_WD}, v{V_TMP+1}
    v_bfe_u32 v{V_TMP+1}, v{V_LANE}, 2, 2
    v_mul_lo_u32 v{V_TMP+1}, v{V_TMP+1}, s{W.LDW}
    v_add_u32 v{W.V_WD}, v{W.V_WD}, v{V_TMP+1}
    s_cmp_eq_u32 s{W.MODE}, 3
    s_cselect_b32 s{T0}, s{W.CB}, 0
    s_cmp_eq_u32 s{T0}, 13
    s_cselect_b32 s{T0}, s{S_OOB}, 0
    v_cmp_le_u32 vcc, 2, v{V_TMP}
    v_mov_b32 v{V_TMP+1}, s{T0}
    s_lshl_b32 s{T0}, s{W.LDW}, 2
    s_sub_u32 s{T0}, s{T0}, 1024
    v_cndmask_b32 v{V_TMP+1}, 0, v{V_TMP+1}, vcc
    v_add_u32 v{W.V_WD}, v{W.V_WD}, v{V_TMP+1}
    v_add_u32 v{W.V_WD+1}, s{T0}, v{W.V_WD}
    v_add_u32 v{W.V_WD+2}, s{T0}, v{W.V_WD+1}
    v_add_u32 v{W.V_WD+3}, s{T0}, v{W.V_WD+2}
    s_lshl_b32 s{W.WADV}, s{W.LDW}, 6
    s_lshl_b32 s{T0}, s{W.LDW}, 4
    s_mul_i32 s{T0}, s{T0}, s{S_LW}
    s_lshl_b32 s{W.WOFF}, s{W.N0}, 1
    s_add_u32 s{W.WOFF}, s{W.WOFF}, s{T0}
    s_lshl_b32 s{W.M0}, s{S_LW}, 12
    s_mul_i32 s{W.WSZ}, s{W.LDW}, 640
    s_mov_b32 s{W.Wd}, s{kaoff_reg_pair}
    s_mov_b32 s{W.Wd+1}, s{kaoff_reg_pair+1}
    s_mov_b32 s{W.Wd+2}, s{W.WSZ}
    s_mov_b32 s{W.Wd+3}, 0x20000
    s_mov_b32 s{W.FREE}, 0
    s_mov_b32 s{W.FREEX}, 0
    """)
def lw_dma_x(k): return f"buffer_load_dwordx4 v{W.V_XD}, s[{W.X}:{W.X+3}], s{W.XOFF} offen{off(k*1024)} lds"
def lw_dma_w(k): return f"buffer_load_dwordx4 v{W.V_WD+k}, s[{W.Wd}:{W.Wd+3}], s{W.WOFF} offen{off(k*1024)} lds"
def slot_wrap(A, reg, slot, n):
    A(f"s_add_u32 s{reg}, s{reg}, {slot}"); A(f"s_cmp_eq_u32 s{reg}, {slot*n}"); A(f"s_cselect_b32 s{reg}, 0, s{reg}")
def lw_issue_w(A):
    A(f"s_add_u32 m0, s{W.FREE}, s{W.M0}")
    slot_wrap(A, W.FREE, W_SLOT, WW_N)
    for k in range(4): A(lw_dma_w(k))
    A(f"s_add_u32 s{W.WOFF}, s{W.WOFF}, s{W.WADV}")
def lw_issue_x(A):
    A(f"s_add_u32 s{W.T0}, s{W.FREEX}, s{W.M0}"); A(f"s_add_u32 m0, s{W.T0}, {WX_BASE}")
    slot_wrap(A, W.FREEX, W_SLOT, WX_N)
    for k in range(4): A(lw_dma_x(k))
    A(f"s_add_u32 s{W.XOFF}, s{W.XOFF}, 4096")
LS=24
def lw_stats_setup(A):
    T0=W.T0; T1=W.T1; T2=W.T2
    A(f"""
    s_cmp_eq_u32 s{W.MODE}, 3
    s_cselect_b32 s{T0}, 1, 0
    s_lshl_b32 s{T1}, s{S_L}, 1
    s_add_u32 s{T0}, s{T0}, s{T1}
    s_lshl_b32 s{T0}, s{T0}, 18
    s_add_u32 s{T0}, s{T0}, {hex(ST[0])}
    """)
    srd_reg(A, W.ST, T0, STSZ)
    A(f"""
    s_mov_b32 s{T0}, {hex(CSQ)}
    s_mov_b32 s{T1}, {CSQSZ}
    s_cmp_eq_u32 s{W.MODE}, 3
    s_cselect_b32 s{T0}, {hex(CS1)}, s{T0}
    s_cselect_b32 s{T1}, {CS1SZ}, s{T1}
    """)
    srd_reg(A, W.CS, T0, f"s{T1}")
    A(f"""
    s_lshl_b32 s52, s{W.TB}, 2
    s_add_u32 s52, s52, s{S_LW}
    s_lshl_b32 s52, s52, 12
    s_lshl_b32 s53, s{W.CSROW}, 1
    s_add_u32 s54, s53, s{W.CSROW}
    v_lshlrev_b32 v{LS+20}, 4, v{V_T}
    v_lshl_add_u32 v{LS+20}, v{V_H}, 11, v{LS+20}
    v_and_b32 v{LS+21}, 127, v0
    v_add_u32 v{LS+21}, s{W.N0}, v{LS+21}
    v_lshlrev_b32 v{LS+21}, 2, v{LS+21}
    """)
def lw_stats_load(A):
    for k in range(4): A(f"buffer_load_dwordx4 {v(LS+4*k,4)}, v{LS+20}, s[{W.ST}:{W.ST+3}], s52 offen{off(512*k)}")
    A(f"buffer_load_dword v{LS+16}, v{LS+21}, s[{W.CS}:{W.CS+3}], 0 offen")
    A(f"buffer_load_dword v{LS+17}, v{LS+21}, s[{W.CS}:{W.CS+3}], s{W.CSROW} offen")
    A(f"buffer_load_dword v{LS+18}, v{LS+21}, s[{W.CS}:{W.CS+3}], s53 offen")
    A(f"buffer_load_dword v{LS+19}, v{LS+21}, s[{W.CS}:{W.CS+3}], s54 offen")
def lw_stats_post(A):
    b = LS; t = LS + 22
    A(f"""
    v_pk_add_f32 {v(b,2)}, {v(b,2)}, {v(b+2,2)}
    v_pk_add_f32 {v(b+4,2)}, {v(b+4,2)}, {v(b+6,2)}
    v_pk_add_f32 {v(b+8,2)}, {v(b+8,2)}, {v(b+10,2)}
    v_pk_add_f32 {v(b+12,2)}, {v(b+12,2)}, {v(b+14,2)}
    v_pk_add_f32 {v(b,2)}, {v(b,2)}, {v(b+4,2)}
    v_pk_add_f32 {v(b+8,2)}, {v(b+8,2)}, {v(b+12,2)}
    v_add_f32 v{b+16}, v{b+16}, v{b+17}
    v_add_f32 v{b+18}, v{b+18}, v{b+19}
    v_pk_add_f32 {v(b,2)}, {v(b,2)}, {v(b+8,2)}
    v_add_f32 v{b+16}, v{b+16}, v{b+18}
    """)
    halfsum(A, b, t); halfsum(A, b+1, t+1)
    A(f"""
    v_mul_f32 v{b}, {hex(f2u(1.0/640))}, v{b}
    v_mul_f32 v{b+1}, {hex(f2u(1.0/640))}, v{b+1}
    v_fma_f32 v{b+1}, -v{b}, v{b}, v{b+1}
    v_max_f32 v{b+1}, 0, v{b+1}
    v_add_f32 v{b+3}, {hex(f2u(1e-5))}, v{b+1}
    v_rsq_f32 v{b+1}, v{b+3}
    v_sub_f32 v{b+4}, 0, v{b}
    s_lshl_b32 s{W.T0}, s{S_LW}, 7
    s_add_u32 s{W.T0}, s{W.T0}, {W_SCR + 512}
    v_lshlrev_b32 v{t}, 2, v{V_T}
    v_add_u32 v{t}, s{W.T0}, v{t}
    v_mul_f32 v{b+3}, v{b+3}, v{b+1}
    v_mul_f32 v{b+2}, v{b}, v{b+1}
    v_and_b32 v{t+1}, 127, v0
    v_lshlrev_b32 v{t+1}, 2, v{t+1}
    v_add_u32 v{t+1}, {W_SCR}, v{t+1}
    ds_write_b32 v{t}, v{b+1}
    ds_write_b32 v{t}, v{b+2} offset:512
    ds_write_b32 v{t}, v{b+4} offset:1024
    ds_write_b32 v{t}, v{b+3} offset:1536
    ds_write_b32 v{t+1}, v{b+16}
    s_waitcnt lgkmcnt(0)
    """)
def lw_prefetch_w(A, n=WW_N):
    for s_ in range(n): lw_issue_w(A)

class T:
    Q=8; K=12; V=16; O=20
    HEAD=24; QB=25; QG=27; KH=28; KO=29; VO=30; CNT=31; T0=32; T1=33; T2=34; FLAG=35; K0=36; V0=38; TT0=37; LO=42; CC=44
    V_AK0=4; V_AK1=5; V_AV=6; V_AO=7; V_TMP=10
    V_Q=16; V_O=48; V_S=112; V_P=144; V_K=152; V_V=168; V_M=184; V_X=188; V_J=200; V_AOP=228
def tQ0(q): return T.V_Q + 8*q
def tQ1(q): return T.V_Q + 8*q + 4
def tO(q): return T.V_O + 16*q
def tS(b): return T.V_S + 16*b
def tK0(p): return T.V_K + 8*p
def tK1(p): return T.V_K + 8*p + 4
def tV0(p): return T.V_V + 8*p
def tV1(p): return T.V_V + 8*p + 4
def mf(d, a_, b_, c):
    cs = v(c,16) if c is not None else "0"
    return f"v_mfma_f32_32x32x16_bf16 {v(d,16)}, {v(a_,4)}, {v(b_,4)}, {cs}"
def t_load_k(A, p, o):
    A(f"buffer_load_dwordx4 {v(tK0(p),4)}, v{T.V_AK0}, s[{T.K}:{T.K+3}], s{T.KO} offen{off(o)}")
    A(f"buffer_load_dwordx2 {v(tK1(p),2)}, v{T.V_AK1}, s[{T.K}:{T.K+3}], s{T.KO} offen{off(o)}")
def t_load_v(A, p, o):
    A(f"buffer_load_dwordx4 {v(tV0(p),4)}, v{T.V_AV}, s[{T.V}:{T.V+3}], s{T.VO} offen{off(o)}")
    A(f"buffer_load_dwordx4 {v(tV1(p),4)}, v{T.V_AV}, s[{T.V}:{T.V+3}], s{T.VO} offen{off(o+704)}")
def t_period(A, p, q):
    b = q & 1
    s_ = tS(b); sn = tS(b ^ 1)
    qn = (q + 1) & 3; kp = p if q < 3 else p ^ 1
    qp = (q - 1) & 3; vp = p if q > 0 else p ^ 1
    e = lambda r: A(f"v_exp_f32 v{s_+r}, v{s_+r}")
    c = lambda k: A(f"v_cvt_pk_bf16_f32 v{T.V_P+k}, v{s_+2*k}, v{s_+2*k+1}")
    if q == 3: A("s_waitcnt vmcnt(2)")
    A(mf(sn, tK0(kp), tQ0(qn), None))
    e(0); e(1); e(2); e(3); c(0)
    A(mf(sn, tK1(kp), tQ1(qn), sn))
    e(4); e(5); c(1)
    if q == 3 and not EXP.get('anoload'): t_load_k(A, p, p*PTS)
    if q == 1 and not EXP.get('anoload'): t_load_v(A, p ^ 1, p*VTS)
    e(6); e(7); c(2)
    A(mf(tO(qp), tV1(vp), T.V_P+4, tO(qp)))
    e(8); e(9); c(3); e(10); e(11); c(4)
    if q == 0: A("s_waitcnt vmcnt(2)")
    A(mf(tO(q), tV0(p), T.V_P, tO(q)))
    e(12); e(13); c(5); e(14); e(15); c(6); c(7)
def t_rowmax(A, dst, src, tmp):
    A(f"v_max3_f32 v{dst}, v{src}, v{src+1}, v{src+2}")
    for r in range(3, 15, 2): A(f"v_max3_f32 v{dst}, v{dst}, v{src+r}, v{src+r+1}")
    A(f"v_max_f32 v{dst}, v{dst}, v{src+15}")
    A(f"v_mov_b32 v{tmp}, v{dst}"); A(f"v_permlane32_swap_b32 v{dst}, v{tmp}"); A(f"v_max_f32 v{dst}, v{dst}, v{tmp}")
def t_set_shift(A):
    V_TMP = T.V_TMP
    A(f"s_mov_b64 exec, s[{T.LO}:{T.LO+1}]")
    for q in range(4):
        A(f"""
        v_xor_b32 v{V_TMP}, 0x80000000, v{T.V_M+q}
        v_and_b32 v{V_TMP+1}, 0xffff0000, v{V_TMP}
        v_sub_f32 v{V_TMP}, v{V_TMP}, v{V_TMP+1}
        v_and_b32 v{V_TMP+2}, 0xffff0000, v{V_TMP}
        v_sub_f32 v{V_TMP}, v{V_TMP}, v{V_TMP+2}
        v_lshrrev_b32 v{V_TMP+1}, 16, v{V_TMP+1}
        v_or_b32 v{tQ1(q)+2}, v{V_TMP+1}, v{V_TMP+2}
        v_lshrrev_b32 v{tQ1(q)+3}, 16, v{V_TMP}
        """)
    A("s_mov_b64 exec, -1")
def t_first_loads(A):
    A(f"s_mov_b32 s{T.KO}, s{T.K0}"); A(f"s_mov_b32 s{T.VO}, s{T.V0}")
    t_load_k(A, 0, 0); t_load_v(A, 0, 0); t_load_k(A, 1, PTS)
    A(f"s_add_u32 s{T.KO}, s{T.K0}, {2*PTS}"); A(f"s_add_u32 s{T.VO}, s{T.V0}, {VTS}")

def c_att(A, L_NEXT):
    V_TMP=T.V_TMP; T0=T.T0; T1=T.T1; T2=T.T2; V_X=T.V_X; V_M=T.V_M; V_P=T.V_P
    A(f"""
    s_and_b32 s{T.HEAD}, s{S_WG}, 31
    s_lshr_b32 s{T.QB}, s{S_WG}, 5
    """)
    sync_att(A)
    A(f"""
    s_and_b32 s{T.QG}, s{S_WAVE}, 1
    s_lshr_b32 s{T.KH}, s{S_WAVE}, 1
    s_and_b32 s{T2}, s{T.HEAD}, 1
    s_mul_i32 s{T0}, s{T2}, 1536
    v_lshlrev_b32 v{T.V_AK0}, 4, v{V_LANE}
    v_add_u32 v{T.V_AK0}, s{T0}, v{T.V_AK0}
    s_lshl_b32 s{T0}, s{T2}, 3
    s_add_u32 s{T0}, s{T0}, 1024
    v_lshlrev_b32 v{T.V_AK1}, 4, v{V_T}
    v_add_u32 v{T.V_AK1}, s{T0}, v{T.V_AK1}
    v_min_u32 v{V_TMP+1}, 20, v{V_T}
    v_cmp_lt_u32 vcc, 20, v{V_T}
    v_mul_u32_u24 v{T.V_AV}, 22, v{V_H}
    v_addc_co_u32 v{V_TMP+1}, vcc, 0, v{V_TMP+1}, vcc
    v_add_u32 v{T.V_AV}, v{T.V_AV}, v{V_TMP+1}
    v_lshlrev_b32 v{T.V_AV}, 4, v{T.V_AV}
    s_lshl_b32 s{T0}, s{T.KH}, 5
    s_mul_i32 s{T.K0}, s{T0}, {PTS}
    s_mul_i32 s{T.V0}, s{T0}, {VTS}
    s_lshl_b32 s{T.TT0}, s{T.QB}, 3
    s_lshl_b32 s{T2}, s{T.QG}, 2
    s_add_u32 s{T.TT0}, s{T.TT0}, s{T2}
    s_mov_b32 s{T.LO}, -1
    s_mov_b32 s{T.LO+1}, 0
    s_mov_b32 s{T.FLAG}, 0
    s_mul_i32 s{T2}, s{S_L}, {hex(LSTRIDE)}
    s_lshr_b32 s{T0}, s{T.HEAD}, 1
    s_mul_i32 s{T0}, s{T0}, {64*PTS}
    s_add_u32 s{T0}, s{T0}, s{T2}
    s_add_u32 s{T1}, s{T0}, {hex(KP)}
    """)
    srd_reg(A, T.K, T1, 64*PTS)
    A(f"s_add_u32 s{T1}, s{T0}, {hex(QP)}")
    srd_reg(A, T.Q, T1, 64*PTS)
    A(f"s_mul_i32 s{T0}, s{T.HEAD}, {64*VTS}"); A(f"s_add_u32 s{T0}, s{T0}, s{T2}"); A(f"s_add_u32 s{T1}, s{T0}, {hex(VF)}")
    srd_reg(A, T.V, T1, 64*VTS)
    A(f"s_add_u32 s{T1}, s{T2}, {hex(OF)}")
    srd_reg(A, T.O, T1, XSZ)
    for q in range(4):
        for r in range(4): A(f"v_mov_b32 v{tQ1(q)+r}, 0")
    for p in range(2):
        A(f"v_mov_b32 v{tK1(p)+2}, 0x3f803f80"); A(f"v_mov_b32 v{tK1(p)+3}, 0x00003f80")
    for r in range(8): A(f"v_mov_b32 v{V_P+r}, 0")
    for r in range(4): A(f"v_mov_b32 v{tV1(1)+r}, 0")
    for r in range(64): A(f"v_mov_b32 v{T.V_O+r}, 0")
    A(f"s_mul_i32 s{T0}, s{T.HEAD}, 5"); A(f"v_add_u32 v{V_TMP+5}, s{T0}, v{V_H}"); A(f"v_lshlrev_b32 v{V_TMP+2}, 4, v{V_T}")
    for a_ in range(3):
        A(f"""
        v_add_u32 v{V_TMP+3}, {2*a_}, v{V_TMP+5}
        v_lshrrev_b32 v{V_TMP+4}, 2, v{V_TMP+3}
        v_lshl_add_u32 v{T.V_AO+a_}, v{V_TMP+4}, 10, v{V_TMP+2}
        v_and_b32 v{V_TMP+4}, 1, v{V_TMP+3}
        v_lshl_add_u32 v{T.V_AO+a_}, v{V_TMP+4}, 9, v{T.V_AO+a_}
        v_bfe_u32 v{V_TMP+4}, v{V_TMP+3}, 1, 1
        v_lshl_add_u32 v{T.V_AO+a_}, v{V_TMP+4}, 3, v{T.V_AO+a_}
        """)
    A(f"s_mul_i32 s{T0}, s{T.TT0}, {PTS}")
    A(f"s_add_u32 s{T1}, s{T0}, {2*PTS}")
    A(f"s_mov_b32 s{T.KO}, s{T.K0}"); A(f"s_mov_b32 s{T.VO}, s{T.V0}")
    poll(A, two=True)
    A("s_barrier")
    stamp(A, 2)
    t_load_k(A, 0, 0)
    for q in range(4):
        so = T0 if q < 2 else T1
        A(f"buffer_load_dwordx4 {v(tQ0(q),4)}, v{T.V_AK0}, s[{T.Q}:{T.Q+3}], s{so} offen{off(PTS*(q&1))}")
    A(f"s_mov_b64 exec, s[{T.LO}:{T.LO+1}]")
    for q in range(4):
        so = T0 if q < 2 else T1
        A(f"buffer_load_dwordx2 {v(tQ1(q),2)}, v{T.V_AK1}, s[{T.Q}:{T.Q+3}], s{so} offen{off(PTS*(q&1))}")
    A("s_mov_b64 exec, -1")
    t_load_v(A, 0, 0); t_load_k(A, 1, PTS)
    A(f"s_add_u32 s{T.KO}, s{T.K0}, {2*PTS}"); A(f"s_add_u32 s{T.VO}, s{T.V0}, {VTS}")
    A("s_waitcnt vmcnt(4)")
    stamp(A, 3)
    FT = [tS(0), tS(1), T.V_J, T.V_J + 16]
    for q in range(4):
        A(mf(FT[q], tK0(0), tQ0(q), None)); A(mf(FT[q], tK1(0), tQ1(q), FT[q]))
    for q in range(4): t_rowmax(A, V_M+q, FT[q], V_X+q)
    t_set_shift(A)
    SETUP = "L_ca_setup"; LOOP = "L_ca_loop"; COMBINE = "L_ca_combine"
    A.label(SETUP)
    A(mf(tS(0), tK0(0), tQ0(0), None)); A(mf(tS(0), tK1(0), tQ1(0), tS(0)))
    A(f"s_mov_b32 s{T.CNT}, 16")
    stamp(A, 1)
    if EXP.get('prio'): A("s_setprio 3")
    A("s_nop 7")
    A(".p2align 6"); A.label(LOOP)
    for p in range(2):
        for q in range(4): t_period(A, p, q)
    A(f"s_add_u32 s{T.KO}, s{T.KO}, {2*PTS}"); A(f"s_add_u32 s{T.VO}, s{T.VO}, {2*VTS}")
    A(f"s_sub_u32 s{T.CNT}, s{T.CNT}, 1"); A(f"s_cmp_lg_u32 s{T.CNT}, 0"); A(f"s_cbranch_scc1 {LOOP}")
    stamp(A, 4)
    if EXP.get('prio'): A("s_setprio 0")
    A(mf(tO(3), tV1(1), V_P+4, tO(3)))
    A("s_waitcnt vmcnt(0)")
    for q in range(4):
        A(f"v_mov_b32 v{tO(q)+12}, v{tO(q)+8}"); A(f"v_mov_b32 v{tO(q)+13}, v{tO(q)+8}")
    for q in range(4): A(f"v_permlane32_swap_b32 v{tO(q)+13}, v{tO(q)+12}")
    A(f"s_cmp_lg_u32 s{T.FLAG}, 0"); A(f"s_cbranch_scc1 {COMBINE}")
    A(f"v_mov_b32 v{V_TMP}, 0")
    for q in range(4):
        for r in range(0, 12, 2): A(f"v_max3_f32 v{V_TMP}, v{V_TMP}, |v{tO(q)+r}|, |v{tO(q)+r+1}|")
    A(f"""
    v_add_f32 v{V_TMP+2}, v{tO(0)+12}, v{tO(1)+12}
    v_add_f32 v{V_TMP+3}, v{tO(2)+12}, v{tO(3)+12}
    v_add_f32 v{V_TMP+2}, v{V_TMP+2}, v{V_TMP+3}
    s_mov_b32 s{T0}, {hex(f2u(2.0**40))}
    s_mov_b32 s{T1}, {hex(f2u(2.0**120))}
    v_cmp_gt_f32 vcc, s{T0}, v{V_TMP+2}
    v_cmp_gt_f32 s[{T.CC}:{T.CC+1}], s{T1}, v{V_TMP}
    s_and_b64 vcc, vcc, s[{T.CC}:{T.CC+1}]
    s_cmp_eq_u64 vcc, exec
    s_cbranch_scc1 {COMBINE}
    """)
    A(f"s_mov_b32 s{T.FLAG}, 1")
    A(f"s_mov_b64 exec, s[{T.LO}:{T.LO+1}]")
    for q in range(4): A(f"v_mov_b32 v{tQ1(q)+2}, 0"); A(f"v_mov_b32 v{tQ1(q)+3}, 0")
    A("s_mov_b64 exec, -1")
    for q in range(4): A(f"v_mov_b32 v{V_X+4+q}, 0xff800000")
    A(f"s_mov_b32 s{T.KO}, s{T.K0}"); A(f"s_mov_b32 s{T.CNT}, 32")
    TL = "L_ca_tm_loop"
    A.label(TL)
    t_load_k(A, 0, 0)
    A(f"s_add_u32 s{T.KO}, s{T.KO}, {PTS}")
    A("s_waitcnt vmcnt(0)")
    for q in range(4):
        A(mf(tO(q), tK0(0), tQ0(q), None)); A(mf(tO(q), tK1(0), tQ1(q), tO(q)))
    for q in range(4):
        t_rowmax(A, V_M+q, tO(q), V_X+q); A(f"v_max_f32 v{V_X+4+q}, v{V_X+4+q}, v{V_M+q}")
    A(f"s_sub_u32 s{T.CNT}, s{T.CNT}, 1"); A(f"s_cmp_lg_u32 s{T.CNT}, 0"); A(f"s_cbranch_scc1 {TL}")
    for q in range(4): A(f"v_mov_b32 v{V_M+q}, v{V_X+4+q}")
    t_first_loads(A)
    t_set_shift(A)
    for r in range(64): A(f"v_mov_b32 v{T.V_O+r}, 0")
    for r in range(8): A(f"v_mov_b32 v{V_P+r}, 0")
    for r in range(4): A(f"v_mov_b32 v{tV1(1)+r}, 0")
    for r in range(64): A(f"v_mov_b32 v{T.V_O+r}, 0")
    A(f"s_mul_i32 s{T0}, s{T.HEAD}, 5"); A(f"v_add_u32 v{V_TMP+5}, s{T0}, v{V_H}"); A(f"v_lshlrev_b32 v{V_TMP+2}, 4, v{V_T}")
    for a_ in range(3):
        A(f"""
        v_add_u32 v{V_TMP+3}, {2*a_}, v{V_TMP+5}
        v_lshrrev_b32 v{V_TMP+4}, 2, v{V_TMP+3}
        v_lshl_add_u32 v{T.V_AO+a_}, v{V_TMP+4}, 10, v{V_TMP+2}
        v_and_b32 v{V_TMP+4}, 1, v{V_TMP+3}
        v_lshl_add_u32 v{T.V_AO+a_}, v{V_TMP+4}, 9, v{T.V_AO+a_}
        v_bfe_u32 v{V_TMP+4}, v{V_TMP+3}, 1, 1
        v_lshl_add_u32 v{T.V_AO+a_}, v{V_TMP+4}, 3, v{T.V_AO+a_}
        """)
    A("s_waitcnt vmcnt(4)")
    A(f"s_branch {SETUP}")
    A.label(COMBINE)
    for q in range(4): A(f"v_mov_b32 v{tO(q)+13}, v{V_M+q}")
    A(f"""
    s_lshl_b32 s{T0}, s{S_WAVE}, 13
    s_add_u32 s{T0}, s{T0}, {A_CMB}
    v_lshlrev_b32 v{V_TMP}, 4, v{V_LANE}
    v_add_u32 v{V_TMP+1}, s{T0}, v{V_TMP}
    s_xor_b32 s{T1}, s{S_WAVE}, 2
    s_lshl_b32 s{T1}, s{T1}, 13
    s_add_u32 s{T1}, s{T1}, {A_CMB}
    v_add_u32 v{V_TMP+2}, s{T1}, v{V_TMP}
    s_cmp_eq_u32 s{T.KH}, 0
    """)
    C1 = "L_ca_c1"; FIN = "L_ca_fin"
    A(f"s_cbranch_scc0 {C1}")
    for kh in range(2):
        if kh == 1: A.label(C1)
        send = (2, 3) if kh == 0 else (0, 1); keep = (0, 1) if kh == 0 else (2, 3)
        for j, q in enumerate(send):
            for g in range(4): A(f"ds_write_b128 v{V_TMP+1}, {v(tO(q)+4*g,4)} offset:{4096*j + 1024*g}")
        A("s_waitcnt lgkmcnt(0)"); A("s_barrier")
        for j in range(2):
            for g in range(4): A(f"ds_read_b128 {v(T.V_S+16*j+4*g,4)}, v{V_TMP+2} offset:{4096*j + 1024*g}")
        for j, q in enumerate(keep):
            o = tO(q); r_ = T.V_S + 16*j
            A(f"s_waitcnt lgkmcnt({4 if j == 0 else 0})")
            A(f"""
            v_max_f32 v{V_X}, v{o+13}, v{r_+13}
            v_sub_f32 v{V_X+1}, v{o+13}, v{V_X}
            v_sub_f32 v{V_X+2}, v{r_+13}, v{V_X}
            v_exp_f32 v{V_X+1}, v{V_X+1}
            v_exp_f32 v{V_X+2}, v{V_X+2}
            s_nop 0
            v_mul_f32 v{V_X+3}, v{V_X+1}, v{o+12}
            v_fmac_f32 v{V_X+3}, v{V_X+2}, v{r_+12}
            v_rcp_f32 v{V_X+3}, v{V_X+3}
            s_nop 0
            v_mul_f32 v{V_X+4}, v{V_X+1}, v{V_X+3}
            v_mul_f32 v{V_X+6}, v{V_X+2}, v{V_X+3}
            v_mov_b32 v{V_X+5}, v{V_X+4}
            v_mov_b32 v{V_X+7}, v{V_X+6}
            """)
            for pr in range(6): A(f"v_pk_mul_f32 {v(o+2*pr,2)}, {v(o+2*pr,2)}, {v(V_X+4,2)}")
            for pr in range(6): A(f"v_pk_fma_f32 {v(o+2*pr,2)}, {v(r_+2*pr,2)}, {v(V_X+6,2)}, {v(o+2*pr,2)}")
            pk = V_P if j == 0 else T.V_K
            for pr in range(6): A(f"v_cvt_pk_bf16_f32 v{pk+pr}, v{o+2*pr}, v{o+2*pr+1}")
            A(f"""
            s_add_u32 s{T1}, s{T.TT0}, {q}
            s_mul_i32 s{T1}, s{T1}, 40960
            buffer_store_dwordx2 {v(pk,2)}, v{T.V_AO}, s[{T.O}:{T.O+3}], s{T1} offen{SC}
            buffer_store_dwordx2 {v(pk+2,2)}, v{T.V_AO+1}, s[{T.O}:{T.O+3}], s{T1} offen{SC}
            s_mov_b64 exec, s[{T.LO}:{T.LO+1}]
            buffer_store_dwordx2 {v(pk+4,2)}, v{T.V_AO+2}, s[{T.O}:{T.O+3}], s{T1} offen{SC}
            s_mov_b64 exec, -1
            """)
        A(f"s_branch {FIN}")
    A.label(FIN)
    stamp(A, 5)
    A("s_waitcnt vmcnt(0)")
    A("s_barrier")
    notify(A)
    stamp(A, 6)
    stamp_phase(A)
    A(f"s_branch {L_NEXT}")

class N:
    X=8; Wd=12; R=16; OUT=20; ST=24
    TB=29; CB=30; FINAL=31; XOFF=32; WOFF=33; FREE=34; CUR=35; CNT=36; T0=37; T1=38; T2=39; WT=40; WK=41
    XM0=43; WM0=44; NK=45; CURW=48; NST=55; FREEX=56; T3=57
    V_XD=4; V_WR2=5; V_XR=8; V_WR=9; V_TMP=10; V_FR=40; V_ACC=104; V_E=152
def n_frW(par, j, b): return N.V_FR + 32*par + 16*j + 4*b
def n_frX(par, j): return N.V_FR + 32*par + 16*j + 12
def n_acc(b): return N.V_ACC + 16*b
def n_reads(par):
    L = []
    for j in range(2):
        L.append(f"ds_read_b128 {v(n_frX(par,j),4)}, v{N.V_XR} offset:{j*2048}")
        for b in range(3):
            for jj in range(2):
                if b < 2: L.append(f"ds_read_b64_tr_b16 {v(n_frW(par,j,b)+2*jj,2)}, v{N.V_WR} offset:{j*5120 + jj*1280 + b*256}")
                else:     L.append(f"ds_read_b64_tr_b16 {v(n_frW(par,j,b)+2*jj,2)}, v{N.V_WR2} offset:{j*5120 + jj*1280}")
    return L
def n_mfmas(par):
    return [f"v_mfma_f32_32x32x16_bf16 {v(n_acc(b),16)}, {v(n_frW(par,j,b),4)}, {v(n_frX(par,j),4)}, {v(n_acc(b),16)}" for j in range(2) for b in range(3)]
def n_stage(A, par, last=False):
    M = n_mfmas(par)
    A("s_waitcnt lgkmcnt(0)")
    if last:
        for m in M: A(m)
        return
    ring_adv(A, N.CUR, N.T1, NX_SLOT, NX_N, [N.V_XR]); ring_adv(A, N.CURW, N.T2, NW_SLOT, NW_N, [N.V_WR, N.V_WR2])
    A(M[0]); A("s_barrier")
    R = n_reads(par ^ 1); k = 0
    for m in M[1:]:
        for _ in range(3):
            if k < len(R): A(R[k]); k += 1
        A(m)
    while k < len(R): A(R[k]); k += 1

def n_params(A, ffb):
    narrow_coords(A, N.TB, N.CB, N.T0, N.T1, N.T2)
    A(f"s_mov_b32 s{N.NST}, {27 if ffb else 10}"); A(f"s_mov_b32 s{N.NK}, {108 if ffb else 40}")

def c_narrow(A, L_TO_FA, L_TO_QKV, L_END):
    V_TMP=N.V_TMP; V_E=N.V_E; T0=N.T0; T1=N.T1; T2=N.T2; T3=N.T3
    sync_narrow(A)
    A(f"""
    s_load_dwordx2 s[46:47], s[0:1], {KA_OUT}
    s_and_b32 s{N.WT}, s{S_WAVE}, 1
    s_lshr_b32 s{N.WK}, s{S_WAVE}, 1
    s_mov_b32 s{S_K8}, 8192
    s_mov_b32 s{S_K10}, 10240
    s_mov_b32 s{N.CUR}, 0
    s_mov_b32 s{N.CURW}, 0
    s_cmp_eq_u32 s{N.NST}, 27
    s_cselect_b32 s{T0}, 2, 1
    s_cselect_b32 s{T2}, s{S_L}, 0
    s_mov_b32 s{N.FINAL}, s{T2}
    s_lshl_b32 s{T1}, s{S_L}, 1
    s_add_u32 s{T0}, s{T0}, s{T1}
    s_lshl_b32 s{T3}, s{T0}, 18
    s_add_u32 s{T3}, s{T3}, {hex(ST[0])}
    s_mul_i32 s{T0}, s{T0}, {XSZ}
    """)
    srd_reg(A, N.ST, T3, STSZ)
    A(f"""
    s_waitcnt lgkmcnt(0)
    s_cmp_eq_u32 s{N.FINAL}, 1
    s_cselect_b32 s{N.OUT}, s46, s{S_WS}
    s_cselect_b32 s{N.OUT+1}, s47, s{S_WS+1}
    s_cselect_b32 s{T0}, 0, s{T0}
    s_add_u32 s{N.OUT}, s{N.OUT}, s{T0}
    s_addc_u32 s{N.OUT+1}, s{N.OUT+1}, 0
    s_mov_b32 s{N.OUT+2}, {XSZ}
    s_mov_b32 s{N.OUT+3}, 0x20000
    v_lshlrev_b32 v{N.V_XD}, 4, v{V_LANE}
    s_lshl_b32 s{T0}, s{N.WT}, 12
    s_lshl_b32 s{T1}, s{N.WK}, 10
    s_add_u32 s{T0}, s{T0}, s{T1}
    v_add_u32 v{N.V_XR}, s{T0}, v{N.V_XD}
    s_lshl_b32 s{T0}, s{N.WK}, 2
    v_add_u32 v{V_TMP}, s{T0}, v{V_H}
    v_mul_u32_u24 v{N.V_WR}, 640, v{V_TMP}
    v_add_u32 v{N.V_WR}, {NW_BASE}, v{N.V_WR}
    v_and_b32 v{V_TMP}, 3, v{V_LANE}
    v_lshlrev_b32 v{V_TMP}, 3, v{V_TMP}
    v_add_u32 v{N.V_WR}, v{N.V_WR}, v{V_TMP}
    v_bfe_u32 v{V_TMP}, v{V_LANE}, 2, 2
    v_lshlrev_b32 v{V_TMP+1}, 5, v{V_TMP}
    v_add_u32 v{N.V_WR2}, v{N.V_WR}, v{V_TMP+1}
    v_add_u32 v{N.V_WR2}, 512, v{N.V_WR2}
    v_lshlrev_b32 v{V_TMP}, 6, v{V_TMP}
    v_add_u32 v{N.V_WR}, v{N.V_WR}, v{V_TMP}
    v_bfe_u32 v{V_TMP}, v{V_LANE}, 4, 1
    v_lshlrev_b32 v{V_TMP}, 5, v{V_TMP}
    v_add_u32 v{N.V_WR}, v{N.V_WR}, v{V_TMP}
    """)
    for r in range(48): A(f"v_mov_b32 v{N.V_ACC+r}, 0")
    A(f"""
    s_lshl_b32 s{T0}, s{N.TB}, 1
    s_add_u32 s{T0}, s{T0}, s{N.WT}
    s_mul_i32 s{T0}, s{T0}, 40
    s_mul_i32 s{T1}, s{N.CB}, 5
    s_add_u32 s{T0}, s{T0}, s{T1}
    s_mul_i32 s{T1}, s{N.WK}, 3
    s_add_u32 s{T0}, s{T0}, s{T1}
    s_lshl_b32 s{T3}, s{T0}, 10
    s_sub_u32 s{N.CNT}, s{N.NST}, 1
    """)
    stamp(A, 1)
    poll(A)
    A("s_barrier")
    stamp(A, 2)
    NR = "L_cn_nores"
    A(f"s_cmp_eq_u32 s{N.NST}, 10"); A(f"s_cselect_b32 s{T0}, s{S_L}, 1"); A(f"s_cmp_lg_u32 s{T0}, 0"); A(f"s_cbranch_scc1 {NR}")
    srd_const(A, N.R, XF[0], XSZ)
    for k in range(3):
        A(f"buffer_load_dwordx4 {v(V_RESP+4*k,4)}, v{N.V_XD}, s[{N.R}:{N.R+3}], s{T3} offen{off(1024*k)}")
    A.label(NR)
    A("s_barrier")
    stamp(A, 3)
    for r in n_reads(0): A(r)
    L = "L_cn_loop"; LODD = "L_cn_odd"; LDONE = "L_cn_loopdone"
    A(f"s_lshr_b32 s{N.CNT}, s{N.CNT}, 1")
    A(".p2align 4"); A.label(L)
    n_stage(A, 0); n_stage(A, 1)
    A(f"s_sub_u32 s{N.CNT}, s{N.CNT}, 1"); A(f"s_cmp_lg_u32 s{N.CNT}, 0"); A(f"s_cbranch_scc1 {L}")
    A(f"s_cmp_eq_u32 s{N.NST}, 27"); A(f"s_cbranch_scc1 {LODD}")
    n_stage(A, 0); n_stage(A, 1, last=True)
    A(f"s_branch {LDONE}")
    A.label(LODD)
    n_stage(A, 0, last=True)
    A.label(LDONE)
    stamp(A, 4)
    A(f"""
    s_mul_i32 s{T0}, s{N.WT}, 4096
    s_mul_i32 s{T1}, s{N.WT}, 6144
    s_add_u32 s{T0}, s{T0}, {N_XCH}
    s_add_u32 s{T1}, s{T1}, {N_XCH + 8192}
    s_cmp_eq_u32 s{N.WK}, 0
    s_cselect_b32 s{T2}, s{T0}, s{T1}
    s_cselect_b32 s{T1}, s{T1}, s{T0}
    v_add_u32 v{V_TMP}, s{T2}, v{N.V_XD}
    v_add_u32 v{V_TMP+1}, s{T1}, v{N.V_XD}
    s_lshl_b32 s{T0}, s{N.TB}, 1
    s_add_u32 s{T0}, s{T0}, s{N.WT}
    """)
    def areg(k): return n_acc(k >> 1) + 8*(k & 1)
    W1 = "L_cn_wk1"; FIN = "L_cn_fin"
    A(f"s_cmp_eq_u32 s{N.WK}, 0"); A(f"s_cbranch_scc0 {W1}")
    for wk in range(2):
        if wk == 1: A.label(W1)
        keep = (0, 1, 2) if wk == 0 else (3, 4)
        send = (3, 4) if wk == 0 else (0, 1, 2)
        for j, k in enumerate(send):
            A(f"ds_write_b128 v{V_TMP}, {v(areg(k),4)} offset:{2048*j}")
            A(f"ds_write_b128 v{V_TMP}, {v(areg(k)+4,4)} offset:{2048*j+1024}")
        A("s_waitcnt lgkmcnt(0)"); A("s_barrier")
        for j, k in enumerate(keep):
            A(f"ds_read_b128 {v(V_E+8*j,4)}, v{V_TMP+1} offset:{2048*j}")
            A(f"ds_read_b128 {v(V_E+8*j+4,4)}, v{V_TMP+1} offset:{2048*j+1024}")
        A(f"v_mov_b32 v{V_TMP+2}, 0"); A(f"v_mov_b32 v{V_TMP+3}, 0")
        A("s_waitcnt vmcnt(0) lgkmcnt(0)")
        for j, k in enumerate(keep):
            a_ = areg(k); p_ = V_E + 8*j; r_ = V_RESP + 4*j
            for pr in range(4): A(f"v_pk_add_f32 {v(a_+2*pr,2)}, {v(a_+2*pr,2)}, {v(p_+2*pr,2)}")
            for pr in range(4):
                A(f"v_lshlrev_b32 v{p_+2*pr}, 16, v{r_+pr}"); A(f"v_and_b32 v{p_+2*pr+1}, 0xffff0000, v{r_+pr}")
            for pr in range(4): A(f"v_pk_add_f32 {v(a_+2*pr,2)}, {v(a_+2*pr,2)}, {v(p_+2*pr,2)}")
            for pr in range(4): A(f"v_cvt_pk_bf16_f32 v{r_+pr}, v{a_+2*pr}, v{a_+2*pr+1}")
        OUTF = f"L_cn_rowmajor_{wk}"
        A(f"s_cmp_eq_u32 s{N.FINAL}, 1"); A(f"s_cbranch_scc1 {OUTF}")
        for j, k in enumerate(keep):
            A(f"buffer_store_dwordx4 {v(V_RESP+4*j,4)}, v{N.V_XD}, s[{N.OUT}:{N.OUT+3}], s{T3} offen{off(1024*j)}{SC}")
        for j, k in enumerate(keep):
            a_ = areg(k)
            for x in range(8):
                A(f"v_add_f32 v{V_TMP+2}, v{V_TMP+2}, v{a_+x}"); A(f"v_fmac_f32 v{V_TMP+3}, v{a_+x}, v{a_+x}")
        halfsum(A, V_TMP+2, V_TMP+4); halfsum(A, V_TMP+3, V_TMP+5)
        A(f"""
        s_lshl_b32 s{T0}, s{T0}, 12
        s_lshl_b32 s{T2}, s{N.CB}, 9
        s_add_u32 s{T0}, s{T0}, s{T2}
        s_add_u32 s{T0}, s{T0}, {8*wk}
        v_lshlrev_b32 v{V_TMP+4}, 4, v{V_T}
        buffer_store_dwordx2 {v(V_TMP+2,2)}, v{V_TMP+4}, s[{N.ST}:{N.ST+3}], s{T0} offen{SC}
        s_branch {FIN}
        """)
        A.label(OUTF)
        A(f"""
        s_lshl_b32 s{T0}, s{T0}, 5
        v_add_u32 v{V_TMP+4}, s{T0}, v{V_T}
        v_mul_u32_u24 v{V_TMP+4}, 1280, v{V_TMP+4}
        v_lshlrev_b32 v{V_TMP+5}, 4, v{V_H}
        v_add_u32 v{V_TMP+4}, v{V_TMP+4}, v{V_TMP+5}
        s_mul_i32 s{T2}, s{N.CB}, 160
        """)
        for j, k in enumerate(keep):
            r_ = V_RESP + 4*j
            A(f"v_permlane32_swap_b32 v{r_}, v{r_+2}"); A(f"v_permlane32_swap_b32 v{r_+1}, v{r_+3}")
        for j, k in enumerate(keep):
            A(f"buffer_store_dwordx4 {v(V_RESP+4*j,4)}, v{V_TMP+4}, s[{N.OUT}:{N.OUT+3}], s{T2} offen{off(32*k)}")
        stamp(A, 5); stamp(A, 6); stamp_phase(A)
        A(f"s_branch {L_END}")
    A.label(FIN)
    stamp(A, 5)
    A("s_waitcnt vmcnt(0)")
    A("s_barrier")
    notify(A)
    stamp(A, 6)
    stamp_phase(A)
    A(f"s_cmp_eq_u32 s{N.NST}, 10"); A(f"s_cbranch_scc1 {L_TO_FA}")
    A(f"s_add_u32 s{S_L}, s{S_L}, 1")
    A(f"s_branch {L_TO_QKV}")

def ln_setup_w(A):
    T0=N.T0; T1=N.T1; T2=N.T2
    A(f"""
    v_lshlrev_b32 v{N.V_XD}, 4, v{V_LANE}
    s_mov_b32 s{T0}, {hex(WOP)}
    s_mov_b32 s{T1}, {WOPSZ}
    s_cmp_eq_u32 s{N.NST}, 27
    s_cselect_b32 s{T0}, {hex(W2P)}, s{T0}
    s_cselect_b32 s{T1}, {W2PSZ}, s{T1}
    """)
    srd_reg(A, N.Wd, T0, f"s{T1}")
    A(f"""
    s_mul_i32 s{T0}, s{S_LW}, 3072
    s_cmp_eq_u32 s{S_LW}, 3
    s_cselect_b32 s{T0}, 8192, s{T0}
    s_add_u32 s{N.WM0}, s{T0}, {NW_BASE}
    s_lshl_b32 s{T1}, s{N.NK}, 2
    s_mul_i32 s{T1}, s{T1}, 640
    s_mul_i32 s{T1}, s{T1}, s{N.CB}
    s_add_u32 s{N.WOFF}, s{T1}, s{T0}
    s_mov_b32 s{N.FREE}, 0
    s_mov_b32 s{N.FREEX}, 0
    s_and_b32 s{N.WT}, s{S_LW}, 1
    s_lshr_b32 s{N.WK}, s{S_LW}, 1
    s_lshl_b32 s{N.XM0}, s{N.WT}, 12
    s_lshl_b32 s{T1}, s{N.WK}, 11
    s_add_u32 s{N.XM0}, s{N.XM0}, s{T1}
    """)
def ln_setup_x(A):
    T0=N.T0; T1=N.T1; T2=N.T2
    A(f"""
    s_mov_b32 s{T0}, {hex(OF)}
    s_mov_b32 s{T1}, {XSZ}
    s_cmp_eq_u32 s{N.NST}, 27
    s_cselect_b32 s{T0}, {hex(HF)}, s{T0}
    s_cselect_b32 s{T1}, {HSZ}, s{T1}
    s_mul_i32 s{T2}, s{S_L}, {hex(LSTRIDE)}
    s_add_u32 s{T0}, s{T0}, s{T2}
    """)
    srd_reg(A, N.X, T0, f"s{T1}")
    A(f"""
    s_lshl_b32 s{T0}, s{N.TB}, 1
    s_add_u32 s{T0}, s{T0}, s{N.WT}
    s_mul_i32 s{T0}, s{T0}, s{N.NK}
    s_lshl_b32 s{T1}, s{N.WK}, 1
    s_add_u32 s{T0}, s{T0}, s{T1}
    s_lshl_b32 s{N.XOFF}, s{T0}, 10
    """)
def ln_issue_x(A):
    A(f"s_add_u32 m0, s{N.FREEX}, s{N.XM0}")
    slot_wrap(A, N.FREEX, NX_SLOT, NX_N)
    for k in range(2): A(f"buffer_load_dwordx4 v{N.V_XD}, s[{N.X}:{N.X+3}], s{N.XOFF} offen{off(1024*k)} lds")
    A(f"s_add_u32 s{N.XOFF}, s{N.XOFF}, 4096")
def ln_make_issue_w(nw):
    def f(A):
        A(f"s_add_u32 m0, s{N.FREE}, s{N.WM0}")
        slot_wrap(A, N.FREE, NW_SLOT, NW_N)
        for k in range(nw): A(f"buffer_load_dwordx4 v{N.V_XD}, s[{N.Wd}:{N.Wd+3}], s{N.WOFF} offen{off(1024*k)} lds")
        A(f"s_add_u32 s{N.WOFF}, s{N.WOFF}, 10240")
    return f
def ln_prefetch_w(A, tag, nstage):
    for nw, cond in ((3, 0), (2, 1)):
        L = f"L_lnpf_{tag}_{nw}"; SK = f"L_lnpfs_{tag}_{nw}"
        A(f"s_cmp_lt_u32 s{S_LW}, 2"); A(f"s_cbranch_scc{cond} {SK}")
        if nstage == 0:
            A.label(SK); continue
        A(f"s_mov_b32 s{N.CNT}, {nstage}")
        A.label(L)
        ln_make_issue_w(nw)(A)
        A(f"s_sub_u32 s{N.CNT}, s{N.CNT}, 1"); A(f"s_cmp_lg_u32 s{N.CNT}, 0"); A(f"s_cbranch_scc1 {L}")
        A.label(SK)

def stamp(A, i):
    if asmlib.STAMP: A(f"s_memtime s[{66+2*i}:{67+2*i}]")
def stamp_phase(A):
    if not asmlib.STAMP: return
    A("s_memrealtime s[80:81]")
    A("s_waitcnt lgkmcnt(0)")
    A(f"s_add_u32 s84, s{S_WS}, 0x4000000"); A(f"s_addc_u32 s85, s{S_WS+1}, 0"); A("s_mov_b32 s86, 0x400000"); A("s_mov_b32 s87, 0x20000")
    A(f"s_lshl_b32 s90, s91, 17"); A(f"v_mov_b32 v250, s{S_WG}"); A("v_lshlrev_b32 v250, 9, v250")
    A(f"v_mov_b32 v251, s{S_WAVE}"); A("v_lshlrev_b32 v251, 6, v251"); A("v_add_u32 v250, v250, v251")
    for i in range(7):
        A(f"v_mov_b32 v251, s{66+2*i}"); A(f"buffer_store_dword v251, v250, s[84:87], s90 offen offset:{4*i}")
    A("v_mov_b32 v251, s80"); A("buffer_store_dword v251, v250, s[84:87], s90 offen offset:28")
    A("v_mov_b32 v251, s88"); A("buffer_store_dword v251, v250, s[84:87], s90 offen offset:32")
    A("v_mov_b32 v251, s64"); A("buffer_store_dword v251, v250, s[84:87], s90 offen offset:36")
    A("s_add_u32 s91, s91, 1")

def gen_mega(name):
    A = Asm()
    END = "L_end"
    A(f".globl {name}"); A(".p2align 8"); A(f".type {name},@function"); A.label(name)
    A(f"""
    s_load_dwordx2 s[{S_WS}:{S_WS+1}], s[0:1], {KA_WS}
    {'s_memrealtime s[88:89]' if asmlib.STAMP else ''}
    s_cmp_ge_u32 s{S_WG}, 256
    s_cbranch_scc1 {END}
    v_lshrrev_b32 v4, 6, v0
    v_and_b32 v{V_LANE}, 63, v0
    v_readfirstlane_b32 s{S_WAVE}, v4
    v_lshrrev_b32 v{V_H}, 5, v{V_LANE}
    v_and_b32 v{V_T}, 31, v{V_LANE}
    s_mov_b32 s{S_L}, 0
    s_mov_b32 s{S_OOB}, {hex(OOB)}
    s_mov_b32 s91, 0
    s_and_b32 s{S_LW}, s{S_WAVE}, 3
    s_waitcnt lgkmcnt(0)
    """)
    srd_const(A, S_FL, FLAGS, FLAGSZ)
    for r in (VP_OFF, VP_EXP, VP_OFF2, VP_EXP2, VP_MB): A(f"v_mov_b32 v{r}, s{S_OOB}")
    A(f"s_mov_b32 s{S_POFF}, 0"); A(f"s_mov_b32 s{S_NONCE}, 0")
    A(f"s_cmp_ge_u32 s{S_WAVE}, 4"); A("s_cbranch_scc1 L_loader")
    c_prep(A)
    if asmlib.STAMP: A("s_memrealtime s[64:65]")
    A.label("C_QKV")
    stamp(A, 0)
    wide_coords(A, False, W.TB, W.CB, W.T0, W.T1, W.T2, "C_ATT")
    w_params(A, False)
    A("s_branch C_WIDE")
    A.label("C_FA")
    stamp(A, 0)
    wide_coords(A, True, W.TB, W.CB, W.T0, W.T1, W.T2, "C_FB")
    w_params(A, True)
    A.label("C_WIDE")
    c_wide(A, "C_FB", "C_ATT")
    A.label("C_ATT")
    stamp(A, 0)
    c_att(A, "C_O")
    A.label("C_O")
    stamp(A, 0)
    n_params(A, False)
    A("s_branch C_NARROW")
    A.label("C_FB")
    stamp(A, 0)
    n_params(A, True)
    A.label("C_NARROW")
    c_narrow(A, "C_FA", "C_QKV", END)
    A(".p2align 6")
    A.label("L_loader")
    A(f"s_load_dwordx2 s[50:51], s[0:1], {KA_WQKV}"); A(f"s_load_dwordx2 s[52:53], s[0:1], {KA_DBG}")
    A("s_waitcnt lgkmcnt(0)")
    srd_ptr(A, W.Wd, 50, 640*3840); srd_const(A, W.X, XF[0], XSZ)
    for r in range(4, 9): A(f"v_mov_b32 v{r}, 0")
    A(f"s_or_b32 s92, s{S_WG}, s{S_LW}"); A("s_cmp_lg_u32 s92, 0"); A("s_cbranch_scc1 L_nonce_made")
    srd_ptr(A, 56, 52, 256)
    A(f"""
    v_mov_b32 v16, {NONCE-FLAGS}
    buffer_load_dword v14, v16, s[{S_FL}:{S_FL+3}], 0 offen sc0 sc1
    v_lshlrev_b32 v17, 7, v{V_LANE}
    s_waitcnt vmcnt(0)
    v_add_u32 v14, 1, v14
    v_mov_b32 v15, 1
    s_mov_b64 exec, 3
    buffer_store_dwordx2 v[14:15], v17, s[56:59], 0 offen sc0 sc1
    s_mov_b64 exec, 1
    buffer_store_dword v14, v16, s[{S_FL}:{S_FL+3}], 0 offen sc0 sc1
    s_mov_b64 exec, -1
    """)
    A.label("L_nonce_made")
    if CODE_PF:
        LP = A.newlabel("cpf"); LS_ = A.newlabel("cpfs")
        A(f"s_cmp_eq_u32 s{S_LW}, 0"); A(f"s_cbranch_scc1 {LS_}")
        A("s_getpc_b64 s[60:61]")
        A.label(LP)
        A(f"s_sub_u32 s60, s60, {LP}-{name}"); A("s_subb_u32 s61, s61, 0")
        A(f"s_mov_b32 s62, L_code_end-{name}"); A("s_mov_b32 s63, 0x20000")
        A(f"s_lshr_b32 s92, s{S_WG}, 3"); A("s_mul_i32 s92, s92, 3"); A(f"s_add_u32 s92, s92, s{S_LW}"); A("s_sub_u32 s92, s92, 1"); A("s_lshl_b32 s92, s92, 10")
        A(f"v_lshlrev_b32 v24, 4, v{V_LANE}")
        A("buffer_load_dwordx4 v[28:31], v24, s[60:63], s92 offen")
        A.label(LS_)
    A(f"s_mov_b32 s{W.MODE}, 4")
    wide_coords(A, False, W.TB, W.CB, W.T0, W.T1, W.T2, "L_prep_bars")
    w_params(A, False)
    lw_setup_w(A, 50)
    lw_prefetch_w(A, PF0)
    A.label("L_prep_bars")
    for _ in range(4): A("s_barrier")
    A(f"s_cmp_eq_u32 s{W.MODE}, 4"); A("s_cbranch_scc1 L_ATT")
    lw_prefetch_w(A, WW_N - PF0)
    A.label("L_WIDE")
    A(f"""
    s_cmp_eq_u32 s{W.MODE}, 3
    s_cselect_b32 s{W.T0}, 1, 0
    s_lshl_b32 s{W.T1}, s{S_L}, 1
    s_add_u32 s{W.T0}, s{W.T0}, s{W.T1}
    s_mul_i32 s{W.T0}, s{W.T0}, {XSZ}
    """)
    srd_reg(A, W.X, W.T0, XSZ)
    A(f"""
    s_lshl_b32 s{W.T0}, s{W.TB}, 2
    s_add_u32 s{W.T0}, s{W.T0}, s{S_LW}
    s_mul_i32 s{W.XOFF}, s{W.T0}, 40960
    """)
    lw_stats_setup(A)
    A("s_barrier")
    if asmlib.STAMP: A("s_memtime s[66:67]")
    emit_sched(A, sched2(W.NST, WX_N, WW_N, WW_N), 4, 4, lw_issue_x, lw_issue_w, W.CNT, "lw", loads={6: (lw_stats_load, 8)}, post={8: lw_stats_post})
    if not EXP['nobar']: A("s_barrier")
    if asmlib.STAMP:
        A("s_waitcnt lgkmcnt(0)")
        A(f"s_add_u32 s88, s{S_WS}, 0x4400000"); A(f"s_addc_u32 s89, s{S_WS+1}, 0"); A("s_mov_b32 s90, 0x400000"); A("s_mov_b32 s91, 0x20000")
        A(f"s_cmp_eq_u32 s{W.MODE}, 3"); A("s_cselect_b32 s92, 1, 0"); A(f"s_lshl_b32 s93, s{S_L}, 1"); A("s_add_u32 s92, s92, s93"); A("s_lshl_b32 s92, s92, 17")
        A(f"v_mov_b32 v30, s{S_WG}"); A("v_lshlrev_b32 v30, 9, v30"); A(f"v_mov_b32 v31, s{S_WAVE}"); A("v_lshlrev_b32 v31, 6, v31"); A("v_add_u32 v30, v30, v31")
        for i in range(9):
            A(f"v_mov_b32 v31, s{66+2*i}"); A(f"buffer_store_dword v31, v30, s[88:91], s92 offen offset:{4*i}")
    A(f"s_cmp_eq_u32 s{W.MODE}, 3"); A("s_cbranch_scc1 L_wide_fa_end")
    A("s_barrier")
    A("s_branch L_ATT")
    A.label("L_wide_fa_end")
    n_params(A, True); ln_setup_w(A); ln_prefetch_w(A, "fb", PFN)
    A("s_barrier")
    ln_prefetch_w(A, "fbb", NW_N - PFN)
    A("s_branch L_NARROW")
    A.label("L_ATT")
    A("s_barrier")
    n_params(A, False); ln_setup_w(A)
    A("s_barrier")
    ln_prefetch_w(A, "o", PFN)
    A("s_barrier")
    ln_prefetch_w(A, "ob", 10 - PFN)
    A.label("L_NARROW")
    ln_setup_x(A)
    A("s_barrier")
    for nw in (3, 2):
        for nst in (10, 27):
            nxt = f"L_ln_next_{nw}_{nst}"
            A(f"s_cmp_lt_u32 s{S_LW}, 2"); A(f"s_cbranch_scc{0 if nw == 3 else 1} {nxt}")
            A(f"s_cmp_eq_u32 s{N.NST}, {nst}"); A(f"s_cbranch_scc0 {nxt}")
            emit_sched(A, sched2(nst, NX_N, NW_N, min(nst, NW_N)), 2, nw, ln_issue_x, ln_make_issue_w(nw), N.CNT, f"ln{nw}_{nst}")
            A("s_branch L_ln_done")
            A.label(nxt)
    A.label("L_ln_done")
    A("s_barrier")
    A(f"s_cmp_eq_u32 s{N.NST}, 27"); A("s_cbranch_scc1 L_after_fb")
    wide_coords(A, True, W.TB, W.CB, W.T0, W.T1, W.T2, "L_o_fa_idle")
    w_params(A, True)
    A(f"s_load_dwordx2 s[50:51], s[0:1], {KA_W1}"); A("s_waitcnt lgkmcnt(0)")
    lw_setup_w(A, 50); lw_prefetch_w(A, PFW)
    A("s_barrier")
    lw_prefetch_w(A, WW_N - PFW)
    A("s_branch L_WIDE")
    A.label("L_o_fa_idle")
    A("s_barrier")
    n_params(A, True); ln_setup_w(A); ln_prefetch_w(A, "fb2", NW_N)
    A("s_branch L_NARROW")
    A.label("L_after_fb")
    A(f"s_cmp_eq_u32 s{S_L}, 1"); A(f"s_cbranch_scc1 {END}")
    A(f"s_mov_b32 s{S_L}, 1")
    wide_coords(A, False, W.TB, W.CB, W.T0, W.T1, W.T2, "L_fb_qkv_idle")
    w_params(A, False)
    A(f"s_load_dwordx2 s[50:51], s[0:1], {KA_WQKV}"); A("s_waitcnt lgkmcnt(0)")
    lw_setup_w(A, 50); lw_prefetch_w(A, PFW)
    A("s_barrier")
    lw_prefetch_w(A, WW_N - PFW)
    A("s_branch L_WIDE")
    A.label("L_fb_qkv_idle")
    A("s_barrier")
    A("s_branch L_ATT")
    A.label(END)
    A("s_endpgm")
    A.label("L_code_end")
    desc = f""".section .rodata,"a"
.p2align 6
.amdhsa_kernel {name}
  .amdhsa_next_free_vgpr 256
  .amdhsa_next_free_sgpr 102
  .amdhsa_accum_offset 256
  .amdhsa_group_segment_fixed_size 0
  .amdhsa_kernarg_size 72
  .amdhsa_user_sgpr_count 2
  .amdhsa_user_sgpr_kernarg_segment_ptr 1
  .amdhsa_system_sgpr_workgroup_id_x 1
  .amdhsa_float_denorm_mode_32 3
.end_amdhsa_kernel
.text
"""
    return A, desc

def build(path, name="interleave_layers__mha_block__dense_activation_silu__prompt_kernel"):
    hdr = open('interleave_layers__mha_block__dense_activation_silu__prompt.s.ref').read().split("; Override launch")[0]
    A, desc = gen_mega(name)
    lines, n = hazard_pass(A.lines)
    A.lines = lines
    out = hdr + f"; @launch grid=(256,1,1) block=(512,1,1) lds={LDS_BYTES}\n" + '.amdgcn_target "amdgcn-amd-amdhsa--gfx950"\n.text\n' + A.text() + desc
    open(path, 'w').write(out)
    print(path, 'nops', n, 'lines', len(out.splitlines()), 'bytes', len(out))
if __name__ == "__main__":
    build('mega.s')
    asmlib.STAMP = True
    build('mega_stamp.s')
```

```python
from asmlib import *
from mlayout import *
import asmlib, struct
def f2u(x): return struct.unpack("<I", struct.pack("<f", x))[0]
QSCALE = (DH ** -0.5) * 1.4426950408889634
SC = " sc0 sc1"
OOB = 0x7f000000
CODE_PF = True
PF0 = 0
PFN = 3
PFW = 2
EXP = dict(nowait=False, nomfma=False, nodma=False, nobar=False, noread=False)

S_WG=2; S_WAVE=3; S_WS=4; S_NONCE=6; S_L=7
S_K16=63; S_K8=62; S_K10=61; S_FOFF=94; S_PCNT=95; S_FL=96; S_LW=100; S_OOB=101
V_LANE=1; V_H=2; V_T=3
V_RESP=232
WW_BASE=0; WW_N=6; WX_BASE=98304; WX_N=3; W_SLOT=16384; W_SCR=147456
NX_BASE=0; NX_N=6; NX_SLOT=8192; NW_BASE=49152; NW_N=10; NW_SLOT=10240; N_XCH=120832
A_CMB=0
P_SCR=126976
LDS_BYTES=163840

def srd_const(A, d, off, size):
    A(f"s_add_u32 s{d}, s{S_WS}, {hex(off)}"); A(f"s_addc_u32 s{d+1}, s{S_WS+1}, 0")
    A(f"s_mov_b32 s{d+2}, {size}"); A(f"s_mov_b32 s{d+3}, 0x20000")
def srd_reg(A, d, soff, size):
    A(f"s_add_u32 s{d}, s{S_WS}, s{soff}"); A(f"s_addc_u32 s{d+1}, s{S_WS+1}, 0")
    A(f"s_mov_b32 s{d+2}, {size}"); A(f"s_mov_b32 s{d+3}, 0x20000")
def srd_ptr(A, d, p, size):
    A(f"s_mov_b32 s{d}, s{p}"); A(f"s_mov_b32 s{d+1}, s{p+1}")
    A(f"s_mov_b32 s{d+2}, {size}"); A(f"s_mov_b32 s{d+3}, 0x20000")
def halfsum(A, x, tmp):
    A(f"v_mov_b32 v{tmp}, v{x}"); A(f"v_permlane32_swap_b32 v{x}, v{tmp}"); A(f"v_add_f32 v{x}, v{x}, v{tmp}")
def off(x): return f" offset:{x}" if x else ""

def sched2(nst, nxs, nws, prew):
    out = []; nx = 0; nw = prew
    for j in range(-1, nst-1):
        ops = []; n = 0
        while nx < nst and nx - nxs + 1 <= j and (n < 2 or nx <= j + 1):
            ops.append(('X', nx)); nx += 1; n += 1
        n = 0
        while nw < nst and nw - nws + 1 <= j and (n < 1 or nw <= j + 1):
            ops.append(('W', nw)); nw += 1; n += 1
        assert nx > j + 1 and max(nw, prew) > j + 1
        out.append((ops, j + 1))
    return out
def emit_sched(A, sched, cx, cw, issue_x, issue_w, scnt, tag, loads=None, post=None):
    loads = loads or {}; post = post or {}
    q = []; items = []
    for n, (ops, tgt) in enumerate(sched):
        for kind, s_ in ops: q.append((kind, s_, cx if kind == 'X' else cw))
        if n in loads: q.append(('E', -1, loads[n][1]))
        idx = max(i for i, (k, st, c) in enumerate(q) if st == tgt)
        wait = sum(c for (k, st, c) in q[idx+1:])
        items.append((tuple(k for k, _ in ops), wait, n if (n in loads or n in post) else None))
    i = 0; k = 0; first = [True]; nb = [1]
    while i < len(items):
        j = i
        while j < len(items) and items[j] == items[i]: j += 1
        if EXP['nobar'] and i == 0: j = 1
        run = j - i; kinds, w, hook = items[i]
        assert w <= 63
        def body():
            if not EXP['nodma']:
                for kd in kinds: (issue_x if kd == 'X' else issue_w)(A)
            if hook in loads: loads[hook][0](A)
            if not EXP['nowait']: A(f"s_waitcnt vmcnt({w})")
            if hook in post: post[hook](A)
            if not (EXP['nobar'] and tag == "lw" and not first[0]): A("s_barrier")
            first[0] = False
            if asmlib.STAMP and tag == "lw" and nb[0] < 9:
                A(f"s_memtime s[{66+2*nb[0]}:{67+2*nb[0]}]"); nb[0] += 1
        if run >= 3 and not (asmlib.STAMP and tag == "lw"):
            L = f"L_{tag}_{k}"; k += 1
            A(f"s_mov_b32 s{scnt}, {run}"); A.label(L); body()
            A(f"s_sub_u32 s{scnt}, s{scnt}, 1"); A(f"s_cmp_lg_u32 s{scnt}, 0"); A(f"s_cbranch_scc1 {L}")
        else:
            for _ in range(run): body()
        i = j

VP_OFF=244; VP_EXP=245; VP_OFF2=246; VP_EXP2=247; VP_D=248; VP_D2=249; VP_T=12; VP_MB=252
S_POFF=94
def notify(A):
    L = A.newlabel("fl")
    A(f"s_cmp_lg_u32 s{S_WAVE}, 0"); A(f"s_cbranch_scc1 {L}")
    A(f"v_mov_b32 v{VP_D}, s{S_NONCE}")
    A(f"buffer_store_dword v{VP_D}, v{VP_MB}, s[{S_FL}:{S_FL+3}], 0 offen sc0 sc1")
    A.label(L)
def only_w0(A):
    L = A.newlabel("w0"); A(f"s_cmp_lg_u32 s{S_WAVE}, 0"); A(f"s_cbranch_scc1 {L}"); return L
def mb_finish(A, idx, slot, nvalid_cmp, region, shift=7):
    A(f"v_lshlrev_b32 v{idx}, {shift}, v{idx}")
    A(f"v_lshl_add_u32 v{VP_MB}, v{slot}, 2, v{idx}")
    A(f"v_add_u32 v{VP_MB}, s{region}, v{VP_MB}")
    A(f"v_mov_b32 v{idx}, s{S_OOB}")
    A(f"v_cndmask_b32 v{VP_MB}, v{idx}, v{VP_MB}, vcc")
def region(A, dst, base, layer_add=0):
    A(f"s_add_u32 s{dst}, s{S_L}, {layer_add}") if layer_add else A(f"s_mov_b32 s{dst}, s{S_L}")
    A(f"s_mul_i32 s{dst}, s{dst}, {hex(MB_LAYER)}"); A(f"s_add_u32 s{dst}, s{dst}, {hex(base)}")
def poll(A, two=False):
    L = A.newlabel("poll"); Dn = A.newlabel("polld")
    A(f"s_cmp_lg_u32 s{S_WAVE}, 0"); A(f"s_cbranch_scc1 {Dn}")
    A(f"s_mov_b32 s{S_PCNT}, 0x10000")
    A.label(L)
    A(f"buffer_load_dword v{VP_D}, v{VP_OFF}, s[{S_FL}:{S_FL+3}], s{S_POFF} offen sc0 sc1")
    if two: A(f"buffer_load_dword v{VP_D2}, v{VP_OFF2}, s[{S_FL}:{S_FL+3}], s{S_POFF} offen sc0 sc1")
    A("s_waitcnt vmcnt(0)")
    A(f"v_cmp_eq_u32 vcc, v{VP_D}, v{VP_EXP}")
    if two:
        A(f"v_cmp_eq_u32 s[92:93], v{VP_D2}, v{VP_EXP2}")
        A("s_and_b64 vcc, vcc, s[92:93]")
    A("s_cmp_eq_u64 vcc, exec")
    A(f"s_cbranch_scc1 {Dn}")
    A(f"s_sub_u32 s{S_PCNT}, s{S_PCNT}, 1"); A(f"s_cmp_lg_u32 s{S_PCNT}, 0"); A(f"s_cbranch_scc1 {L}")
    A.label(Dn)
def poll_slots(A, n_sreg_or_const):
    A(f"v_lshlrev_b32 v{VP_OFF}, 2, v{V_LANE}")
    A(f"v_cmp_gt_u32 vcc, {n_sreg_or_const}, v{V_LANE}")
    A(f"v_mov_b32 v{VP_T}, s{S_OOB}")
    A(f"v_mov_b32 v{VP_EXP}, s{S_NONCE}")
    A(f"v_cndmask_b32 v{VP_OFF}, v{VP_T}, v{VP_OFF}, vcc")
    A(f"v_cndmask_b32 v{VP_EXP}, 0, v{VP_EXP}, vcc")
def mb_from_prep(A, t):
    I=VP_T; S_=VP_T+1; X=VP_T+2
    A(f"""
    s_lshr_b32 s{t}, s{S_WG}, 4
    v_lshlrev_b32 v{I}, 4, v{V_LANE}
    v_add_u32 v{I}, s{t}, v{I}
    s_and_b32 s{t}, s{S_WG}, 15
    v_mov_b32 v{S_}, s{t}
    s_lshr_b32 s{t}, s{S_WG}, 3
    s_lshl_b32 s{t}, s{t}, 4
    s_sub_u32 s{t}, s{t}, 16
    v_add_u32 v{X}, s{t}, v{V_LANE}
    v_bfe_u32 v{X+1}, v{V_LANE}, 4, 2
    v_cmp_eq_u32 vcc, 1, v{X+1}
    s_and_b32 s{t}, s{S_WG}, 7
    s_add_u32 s{t}, s{t}, 16
    v_mov_b32 v{X+1}, s{t}
    v_cndmask_b32 v{I}, v{I}, v{X}, vcc
    v_cndmask_b32 v{S_}, v{S_}, v{X+1}, vcc
    s_cmp_lt_u32 s{S_WG}, 120
    s_cselect_b64 s[92:93], -1, 0
    s_and_b64 s[92:93], s[92:93], vcc
    v_cmp_gt_u32 vcc, 15, v{V_LANE}
    s_or_b64 vcc, vcc, s[92:93]
    s_mov_b32 s{t}, {MB_QKV}
    """)
    mb_finish(A, I, S_, None, t)
def mb_from_qkv(A, t0, t1, t2):
    I=VP_T; S_=VP_T+1; X=VP_T+2; Y=VP_T+3
    A(f"""
    s_mul_i32 s{t0}, s{W.CB}, 205
    s_lshr_b32 s{t0}, s{t0}, 10
    s_mul_i32 s{t1}, s{t0}, 5
    s_sub_u32 s{t1}, s{W.CB}, s{t1}
    s_lshl_b32 s{t2}, s{t1}, 7
    s_mul_i32 s{S_PCNT}, s{t2}, 3277
    s_lshr_b32 s{S_PCNT}, s{S_PCNT}, 16
    s_add_u32 s{t2}, s{t2}, 127
    s_mul_i32 s{t2}, s{t2}, 3277
    s_lshr_b32 s{t2}, s{t2}, 16
    """)
    LQ = A.newlabel("mbq"); LD = A.newlabel("mbd")
    A(f"s_cmp_eq_u32 s{t0}, 0"); A(f"s_cbranch_scc1 {LQ}")
    A(f"""
    v_lshrrev_b32 v{X}, 3, v{V_LANE}
    v_add_u32 v{X}, s{S_PCNT}, v{X}
    v_and_b32 v{I}, 7, v{V_LANE}
    v_lshl_add_u32 v{I}, v{I}, 5, v{X}
    v_mul_u32_u24 v{Y}, 20, v{X}
    v_lshrrev_b32 v{Y}, 7, v{Y}
    v_cmp_ne_u32 vcc, s{t1}, v{Y}
    s_sub_u32 s{t0}, s{t0}, 1
    s_lshl_b32 s{t0}, s{t0}, 5
    s_add_u32 s{t0}, s{t0}, s{W.TB}
    v_mov_b32 v{S_}, s{t0}
    v_add_u32 v{Y}, 16, v{S_}
    v_cndmask_b32 v{S_}, v{S_}, v{Y}, vcc
    v_cmp_ge_u32 vcc, s{t2}, v{X}
    s_branch {LD}
    """)
    A.label(LQ)
    A(f"""
    v_add_u32 v{X}, s{S_PCNT}, v{V_LANE}
    s_lshr_b32 s{t0}, s{W.TB}, 1
    s_lshl_b32 s{t0}, s{t0}, 5
    v_add_u32 v{I}, s{t0}, v{X}
    v_mul_u32_u24 v{Y}, 20, v{X}
    v_lshrrev_b32 v{Y}, 7, v{Y}
    v_cmp_ne_u32 vcc, s{t1}, v{Y}
    s_and_b32 s{t0}, s{W.TB}, 1
    s_add_u32 s{t0}, s{t0}, 64
    v_mov_b32 v{S_}, s{t0}
    v_add_u32 v{Y}, 2, v{S_}
    v_cndmask_b32 v{S_}, v{S_}, v{Y}, vcc
    v_cmp_ge_u32 vcc, s{t2}, v{X}
    v_cmp_gt_u32 s[92:93], 8, v{V_LANE}
    s_and_b64 vcc, vcc, s[92:93]
    """)
    A.label(LD)
    region(A, t0, MB_ATT)
    mb_finish(A, I, S_, None, t0, shift=9)
def mb_simple(A, t, idx_base_expr, lane_shift, slot_sreg, nvalid, base, layer_add=0):
    I=VP_T; S_=VP_T+1
    A(f"v_lshlrev_b32 v{I}, {lane_shift}, v{V_LANE}") if lane_shift else A(f"v_mov_b32 v{I}, v{V_LANE}")
    A(f"v_add_u32 v{I}, s{idx_base_expr}, v{I}")
    A(f"v_mov_b32 v{S_}, s{slot_sreg}")
    A(f"v_cmp_gt_u32 vcc, {nvalid}, v{V_LANE}")
    region(A, t, base, layer_add)
    mb_finish(A, I, S_, None, t)

def sync_wide(A):
    L = only_w0(A)
    LF = A.newlabel("swf"); LD = A.newlabel("swd")
    A(f"s_cmp_eq_u32 s{W.MODE}, 3"); A(f"s_cbranch_scc1 {LF}")
    mb_from_qkv(A, W.T0, W.T1, W.T2)
    A(f"s_branch {LD}")
    A.label(LF)
    A(f"s_lshl_b32 s{W.T0}, s{W.TB}, 4")
    mb_simple(A, W.T1, W.T0, 0, W.CB, 16, MB_FB)
    A.label(LD)
    A(f"""
    s_lshl_b32 s{W.T0}, s{W.CB}, 4
    s_add_u32 s{W.T0}, s{W.T0}, s{W.TB}
    s_lshl_b32 s{W.T1}, s{W.TB}, 4
    s_add_u32 s{W.T1}, s{W.T1}, s{W.CB}
    s_cmp_eq_u32 s{W.MODE}, 3
    s_cselect_b32 s{W.T0}, s{W.T1}, s{W.T0}
    s_cselect_b32 s{W.T2}, {hex(MB_FA)}, {MB_QKV}
    s_lshl_b32 s{W.T0}, s{W.T0}, 7
    s_add_u32 s{W.T0}, s{W.T0}, s{W.T2}
    s_mul_i32 s{S_POFF}, s{S_L}, {hex(MB_LAYER)}
    s_add_u32 s{S_POFF}, s{S_POFF}, s{W.T0}
    s_cmp_eq_u32 s{W.MODE}, 3
    s_cselect_b32 s{W.T1}, 1, s{S_L}
    s_cmp_eq_u32 s{W.T1}, 0
    s_cselect_b32 s{W.T1}, 24, 16
    """)
    poll_slots(A, f"s{W.T1}")
    A.label(L)
def sync_att(A):
    L = only_w0(A)
    CA=40; CB_=41; T0=46; T1=47
    A(f"s_lshl_b32 s{T0}, s{T.QB}, 5")
    mb_simple(A, T1, T0, 0, T.HEAD, 32, MB_O)
    A(f"""
    s_mul_i32 s{T0}, s{T.HEAD}, 20
    s_lshr_b32 s{CA}, s{T0}, 7
    s_add_u32 s{T0}, s{T0}, 19
    s_lshr_b32 s{CB_}, s{T0}, 7
    s_cmp_lg_u32 s{CA}, s{CB_}
    s_cselect_b64 s[92:93], -1, 0
    v_lshlrev_b32 v{VP_OFF}, 2, v{V_LANE}
    v_bfe_u32 v{VP_T}, v{V_LANE}, 4, 1
    v_cmp_eq_u32 vcc, 0, v{VP_T}
    s_or_b64 vcc, vcc, s[92:93]
    v_mov_b32 v{VP_T}, s{S_OOB}
    v_mov_b32 v{VP_EXP}, s{S_NONCE}
    v_cndmask_b32 v{VP_OFF}, v{VP_T}, v{VP_OFF}, vcc
    v_cndmask_b32 v{VP_EXP}, 0, v{VP_EXP}, vcc
    v_lshlrev_b32 v{VP_OFF2}, 2, v{V_LANE}
    v_add_u32 v{VP_OFF2}, 256, v{VP_OFF2}
    v_cmp_gt_u32 vcc, 2, v{V_LANE}
    v_cmp_gt_u32 s[48:49], 4, v{V_LANE}
    s_and_b64 s[48:49], s[48:49], s[92:93]
    s_or_b64 vcc, vcc, s[48:49]
    v_mov_b32 v{VP_EXP2}, s{S_NONCE}
    v_cndmask_b32 v{VP_OFF2}, v{VP_T}, v{VP_OFF2}, vcc
    v_cndmask_b32 v{VP_EXP2}, 0, v{VP_EXP2}, vcc
    """)
    region(A, S_POFF, MB_ATT)
    A(f"s_lshl_b32 s{T0}, s{S_WG}, 9"); A(f"s_add_u32 s{S_POFF}, s{S_POFF}, s{T0}")
    A.label(L)
def sync_narrow(A):
    L = only_w0(A)
    LFB = A.newlabel("snf"); LD = A.newlabel("snd")
    A(f"s_and_b32 s60, s{N.TB}, 1"); A(f"s_lshl_b32 s60, s60, 3"); A(f"s_add_u32 s60, s60, s{N.CB}"); A(f"s_lshr_b32 s59, s{N.TB}, 1")
    A(f"s_cmp_eq_u32 s{N.NST}, 27"); A(f"s_cbranch_scc1 {LFB}")
    A(f"s_lshl_b32 s59, s59, 4")
    mb_simple(A, 58, 59, 0, 60, 14, MB_FA)
    A(f"s_branch {LD}")
    A.label(LFB)
    mb_simple(A, 58, 59, 4, 60, 15, MB_QKV, layer_add=1)
    A.label(LD)
    A(f"""
    s_lshl_b32 s{N.T0}, s{N.TB}, 3
    s_add_u32 s{N.T0}, s{N.T0}, s{N.CB}
    s_lshl_b32 s{N.T0}, s{N.T0}, 7
    s_mov_b32 s{N.T1}, {hex(MB_O)}
    s_cmp_eq_u32 s{N.NST}, 27
    s_cselect_b32 s{N.T1}, {hex(MB_FB)}, s{N.T1}
    s_cselect_b32 s{N.T2}, 14, 32
    s_add_u32 s{N.T0}, s{N.T0}, s{N.T1}
    s_mul_i32 s{S_POFF}, s{S_L}, {hex(MB_LAYER)}
    s_add_u32 s{S_POFF}, s{S_POFF}, s{N.T0}
    """)
    poll_slots(A, f"s{N.T2}")
    A.label(L)

def wide_coords(A, ffn, tb, cb, t0, t1, t2, idle_label):
    A(f"""
    s_and_b32 s{t0}, s{S_WG}, 7
    s_lshr_b32 s{t1}, s{S_WG}, 3
    s_and_b32 s{tb}, s{t0}, 3
    s_lshl_b32 s{tb}, s{tb}, 2
    s_and_b32 s{t2}, s{t1}, 3
    s_add_u32 s{tb}, s{tb}, s{t2}
    s_lshr_b32 s{t0}, s{t0}, 2
    s_lshr_b32 s{t1}, s{t1}, 2
    """)
    if ffn:
        A(f"s_mul_i32 s{cb}, s{t0}, 7"); A(f"s_add_u32 s{cb}, s{cb}, s{t1}")
        A(f"s_cmp_ge_u32 s{t1}, 7"); A(f"s_cbranch_scc1 {idle_label}")
    else:
        A(f"s_lshl_b32 s{cb}, s{t0}, 3"); A(f"s_add_u32 s{cb}, s{cb}, s{t1}")
        A(f"s_cmp_ge_u32 s{cb}, 15"); A(f"s_cbranch_scc1 {idle_label}")
def narrow_coords(A, tb, cb, t0, t1, t2):
    A(f"""
    s_and_b32 s{t0}, s{S_WG}, 7
    s_lshr_b32 s{t1}, s{S_WG}, 3
    s_and_b32 s{tb}, s{t0}, 3
    s_lshl_b32 s{tb}, s{tb}, 3
    s_and_b32 s{t2}, s{t1}, 7
    s_add_u32 s{tb}, s{tb}, s{t2}
    s_lshr_b32 s{t0}, s{t0}, 2
    s_lshl_b32 s{t0}, s{t0}, 2
    s_lshr_b32 s{t1}, s{t1}, 3
    s_add_u32 s{cb}, s{t0}, s{t1}
    """)

def packaddr(A, dst, vsrc, add, kq640, stmp):
    A(f"""
    v_lshrrev_b32 v72, 4, v{vsrc}
    v_add_u32 v72, {add}, v72
    s_mov_b32 s{stmp}, 0xcccccccd
    v_mul_hi_u32 v73, v72, s{stmp}
    v_lshrrev_b32 v73, 6, v73
    v_mul_u32_u24 v74, 80, v73
    v_sub_u32 v74, v72, v74
    v_mul_u32_u24 v75, 6554, v74
    v_lshrrev_b32 v75, 16, v75
    v_mul_u32_u24 v76, 10, v75
    v_sub_u32 v76, v74, v76
    s_mov_b32 s{stmp}, {kq640}
    v_mul_lo_u32 v{dst}, v75, s{stmp}
    v_lshrrev_b32 v77, 2, v73
    v_mul_u32_u24 v77, 640, v77
    v_add_u32 v{dst}, v{dst}, v77
    v_and_b32 v73, 3, v73
    v_lshrrev_b32 v77, 2, v76
    v_lshlrev_b32 v77, 8, v77
    v_lshlrev_b32 v78, 6, v73
    v_add_u32 v77, v77, v78
    v_and_b32 v78, 3, v76
    v_lshlrev_b32 v78, 4, v78
    v_add_u32 v77, v77, v78
    v_lshlrev_b32 v78, 5, v73
    v_and_b32 v79, 1, v76
    v_lshlrev_b32 v79, 4, v79
    v_add_u32 v78, v78, v79
    v_add_u32 v78, 512, v78
    v_cmp_gt_u32 vcc, 8, v76
    v_cndmask_b32 v77, v78, v77, vcc
    v_add_u32 v{dst}, v{dst}, v77
    v_cmp_gt_u32 vcc, {kq640*8//16}, v72
    v_mov_b32 v78, s{S_OOB}
    v_cndmask_b32 v{dst}, v78, v{dst}, vcc
    """)

def c_prep(A):
    X=20; XF0=24; ST0=28; WO=32; W2=36; WOPD=48; W2PD=52
    TT=64; Q=65; T0=66; T1=67; T2=68; T3=69; K3=82
    A(f"""
    s_load_dwordx2 s[8:9], s[0:1], {KA_X}
    s_load_dwordx2 s[12:13], s[0:1], {KA_WO}
    s_load_dwordx2 s[18:19], s[0:1], {KA_W2}
    s_load_dwordx2 s[10:11], s[0:1], {KA_DBG}
    s_lshr_b32 s{TT}, s{S_WG}, 2
    s_and_b32 s{Q}, s{S_WG}, 3
    s_lshl_b32 s{T0}, s{TT}, 5
    v_add_u32 v5, s{T0}, v{V_T}
    v_mul_u32_u24 v5, 1280, v5
    v_lshlrev_b32 v6, 4, v{V_H}
    v_add_u32 v5, v5, v6
    s_mul_i32 s{T0}, s{Q}, 320
    s_lshl_b32 s{T1}, s{S_WAVE}, 5
    s_add_u32 s{T0}, s{T0}, s{T1}
    v_add_u32 v5, s{T0}, v5
    s_cmp_lt_u32 s{S_WAVE}, 2
    s_cselect_b32 s{K3}, 256, s{S_OOB}
    s_lshl_b32 s{T0}, s{S_WG}, 12
    v_lshlrev_b32 v7, 4, v0
    v_add_u32 v7, s{T0}, v7
    s_waitcnt lgkmcnt(0)
    """)
    srd_ptr(A, X, 8, XSZ)
    A(f"""
    buffer_load_dwordx4 v[8:11], v5, s[{X}:{X+3}], 0 offen
    buffer_load_dwordx4 v[12:15], v5, s[{X}:{X+3}], 0 offen offset:128
    buffer_load_dwordx4 v[16:19], v5, s[{X}:{X+3}], s{K3} offen
    """)
    srd_ptr(A, WO, 12, 640*1280); srd_ptr(A, W2, 18, F*1280)
    A(f"""
    buffer_load_dwordx4 v[40:43], v7, s[{WO}:{WO+3}], 0 offen
    buffer_load_dwordx4 v[44:47], v7, s[{W2}:{W2+3}], 0 offen
    """)
    srd_const(A, XF0, XF[0], XSZ); srd_const(A, ST0, ST[0], STSZ)
    srd_const(A, WOPD, WOP, WOPSZ); srd_const(A, W2PD, W2P, W2PSZ)
    packaddr(A, 80, 7, 0, 160*640, T3); packaddr(A, 81, 7, 0, 432*640, T3)
    A("s_waitcnt vmcnt(2)")
    A("v_mov_b32 v56, 0\nv_mov_b32 v57, 0")
    for r in range(8, 20):
        A(f"""
        v_lshlrev_b32 v58, 16, v{r}
        v_and_b32 v59, 0xffff0000, v{r}
        v_add_f32 v56, v56, v58
        v_fmac_f32 v57, v58, v58
        v_add_f32 v56, v56, v59
        v_fmac_f32 v57, v59, v59
        """)
    for b in (8, 12, 16):
        A(f"v_permlane32_swap_b32 v{b}, v{b+2}"); A(f"v_permlane32_swap_b32 v{b+1}, v{b+3}")
    A(f"""
    s_mul_i32 s{T0}, s{TT}, 40
    s_mul_i32 s{T1}, s{Q}, 10
    s_add_u32 s{T0}, s{T0}, s{T1}
    s_add_u32 s{T0}, s{T0}, s{S_WAVE}
    s_lshl_b32 s{T0}, s{T0}, 10
    v_lshlrev_b32 v60, 4, v{V_LANE}
    v_add_u32 v60, s{T0}, v60
    s_cmp_lt_u32 s{S_WAVE}, 2
    s_cselect_b32 s{K3}, 8192, s{S_OOB}
    s_mov_b32 s{T1}, 4096
    buffer_store_dwordx4 v[8:11], v60, s[{XF0}:{XF0+3}], 0 offen{SC}
    buffer_store_dwordx4 v[12:15], v60, s[{XF0}:{XF0+3}], s{T1} offen{SC}
    buffer_store_dwordx4 v[16:19], v60, s[{XF0}:{XF0+3}], s{K3} offen{SC}
    """)
    halfsum(A, 56, 58); halfsum(A, 57, 59)
    A(f"""
    s_lshl_b32 s{T0}, s{TT}, 12
    s_lshl_b32 s{T1}, s{Q}, 2
    s_add_u32 s{T1}, s{T1}, s{S_WAVE}
    s_lshr_b32 s{T2}, s{T1}, 1
    s_lshl_b32 s{T2}, s{T2}, 9
    s_add_u32 s{T0}, s{T0}, s{T2}
    s_and_b32 s{T1}, s{T1}, 1
    s_lshl_b32 s{T1}, s{T1}, 3
    s_add_u32 s{T0}, s{T0}, s{T1}
    v_lshlrev_b32 v60, 4, v{V_T}
    v_add_u32 v60, s{T0}, v60
    buffer_store_dwordx2 v[56:57], v60, s[{ST0}:{ST0+3}], 0 offen{SC}
    s_waitcnt vmcnt(4)
    buffer_store_dwordx4 v[40:43], v80, s[{WOPD}:{WOPD+3}], 0 offen{SC}
    buffer_store_dwordx4 v[44:47], v81, s[{W2PD}:{W2PD+3}], 0 offen{SC}
    """)
    A("s_waitcnt vmcnt(0)")
    for _ in range(3): A("s_barrier")
    L0 = only_w0(A)
    mb_from_prep(A, T0)
    srd_ptr(A, 12, 10, 256)
    A(f"s_mov_b32 s{S_PCNT}, 0x10000")
    A(f"s_and_b32 s{T0}, s{S_WG}, 1"); A(f"s_lshl_b32 s{T0}, s{T0}, 7"); A(f"v_mov_b32 v{VP_OFF}, s{T0}")
    A.label("L_nonce_poll")
    A(f"""
    buffer_load_dwordx2 v[{VP_D}:{VP_D2}], v{VP_OFF}, s[12:15], 0 offen sc0 sc1
    s_waitcnt vmcnt(0)
    v_readfirstlane_b32 s{S_NONCE}, v{VP_D}
    v_readfirstlane_b32 s{T0}, v{VP_D2}
    s_cmp_eq_u32 s{T0}, 1
    s_cbranch_scc1 {L0}
    s_sub_u32 s{S_PCNT}, s{S_PCNT}, 1
    s_cmp_lg_u32 s{S_PCNT}, 0
    s_cbranch_scc1 L_nonce_poll
    """)
    A.label(L0)
    A("s_barrier")
    notify(A)

def l_prep(A):
    W2=36; CS_S=40; CS_D=44; W2PD=64; VF0=68; VF1=72
    T0=76; T1=77; T2=78; T3=79; LDW=80; CROW=81; TASK=82; STRIP=83; RQ=84; NOCS=85; ADV=86; CO=87
    TID=9
    A(f"""
    s_load_dwordx2 s[20:21], s[0:1], {KA_W1}
    s_load_dwordx2 s[22:23], s[0:1], {KA_W2}
    v_and_b32 v{TID}, 255, v0
    s_cmp_ge_u32 s{S_WG}, 228
    s_cselect_b32 s{NOCS}, 1, 0
    s_waitcnt lgkmcnt(0)
    """)
    CSW1 = "L_lp_csw1"; CSGO = "L_lp_csgo"
    A(f"s_cmp_ge_u32 s{S_WG}, 120"); A(f"s_cbranch_scc1 {CSW1}")
    srd_ptr(A, CS_S, 50, 640*3840); srd_const(A, CS_D, CSQ, CSQSZ)
    A(f"s_mov_b32 s{LDW}, 3840"); A(f"s_mov_b32 s{CROW}, 7680"); A(f"s_mov_b32 s{TASK}, s{S_WG}"); A(f"s_branch {CSGO}")
    A.label(CSW1)
    srd_ptr(A, CS_S, 20, 640*3456); srd_const(A, CS_D, CS1, CS1SZ)
    A(f"s_mov_b32 s{LDW}, 3456"); A(f"s_mov_b32 s{CROW}, 6912"); A(f"s_sub_u32 s{TASK}, s{S_WG}, 120")
    A.label(CSGO)
    A(f"""
    s_lshr_b32 s{STRIP}, s{TASK}, 2
    s_and_b32 s{RQ}, s{TASK}, 3
    v_lshrrev_b32 v6, 3, v{TID}
    s_mul_i32 s{T0}, s{RQ}, 160
    v_add_u32 v6, s{T0}, v6
    v_mul_lo_u32 v6, v6, s{LDW}
    v_and_b32 v7, 7, v{TID}
    v_lshlrev_b32 v7, 4, v7
    v_add_u32 v6, v6, v7
    s_lshl_b32 s{T0}, s{STRIP}, 7
    v_add_u32 v6, s{T0}, v6
    s_lshl_b32 s{ADV}, s{LDW}, 5
    s_cmp_eq_u32 s{NOCS}, 1
    s_cselect_b32 s{CO}, s{S_OOB}, 0
    """)
    for i in range(5):
        A(f"buffer_load_dwordx4 v[{20+4*i}:{23+4*i}], v6, s[{CS_S}:{CS_S+3}], s{CO} offen")
        if i < 4: A(f"s_add_u32 s{CO}, s{CO}, s{ADV}")
    srd_ptr(A, W2, 22, F*1280)
    A(f"""
    s_lshl_b32 s{T0}, s{S_WG}, 12
    v_lshlrev_b32 v7, 4, v{TID}
    v_add_u32 v7, s{T0}, v7
    s_mov_b32 s{T1}, 0x100000
    s_mov_b32 s{T2}, 0x200000
    buffer_load_dwordx4 v[48:51], v7, s[{W2}:{W2+3}], s{T1} offen
    buffer_load_dwordx4 v[52:55], v7, s[{W2}:{W2+3}], s{T2} offen
    """)
    srd_const(A, W2PD, W2P, W2PSZ); srd_const(A, VF0, VF, VSZ); srd_const(A, VF1, VF + LSTRIDE, VSZ)
    A(f"""
    v_lshrrev_b32 v95, 1, v{V_LANE}
    s_lshl_b32 s{T0}, s{S_WG}, 5
    v_add_u32 v95, s{T0}, v95
    v_mul_u32_u24 v95, 352, v95
    v_and_b32 v94, 1, v{V_LANE}
    v_lshlrev_b32 v96, 4, v94
    v_add_u32 v95, v95, v96
    v_add_u32 v95, 320, v95
    v_mov_b32 v96, 0x3f803f80
    v_cmp_eq_u32 vcc, 0, v94
    v_cndmask_b32 v96, 0, v96, vcc
    v_mov_b32 v97, v96
    v_mov_b32 v98, v96
    v_mov_b32 v99, v96
    v_cmp_gt_u32 vcc, 64, v{TID}
    v_mov_b32 v94, s{S_OOB}
    v_cndmask_b32 v95, v94, v95, vcc
    buffer_store_dwordx4 v[96:99], v95, s[{VF0}:{VF0+3}], 0 offen{SC}
    buffer_store_dwordx4 v[96:99], v95, s[{VF1}:{VF1+3}], 0 offen{SC}
    """)
    packaddr(A, 82, 7, 65536, 432*640, T3); packaddr(A, 83, 7, 131072, 432*640, T3)
    A("s_waitcnt vmcnt(4)")
    for j in range(8): A(f"v_mov_b32 v{64+j}, 0")
    for i in range(5):
        for rr in range(4):
            r = 20 + 4*i + rr
            A(f"""
            v_lshlrev_b32 v58, 16, v{r}
            v_and_b32 v59, 0xffff0000, v{r}
            v_add_f32 v{64+2*rr}, v{64+2*rr}, v58
            v_add_f32 v{65+2*rr}, v{65+2*rr}, v59
            """)
    A(f"""
    v_lshlrev_b32 v58, 5, v{TID}
    v_add_u32 v58, {P_SCR}, v58
    ds_write_b128 v58, v[64:67]
    ds_write_b128 v58, v[68:71] offset:16
    s_waitcnt vmcnt(2)
    buffer_store_dwordx4 v[48:51], v82, s[{W2PD}:{W2PD+3}], 0 offen{SC}
    buffer_store_dwordx4 v[52:55], v83, s[{W2PD}:{W2PD+3}], 0 offen{SC}
    s_waitcnt lgkmcnt(0)
    s_barrier
    v_lshlrev_b32 v58, 2, v{V_LANE}
    s_lshl_b32 s{T0}, s{S_LW}, 11
    s_add_u32 s{T0}, s{T0}, {P_SCR}
    v_add_u32 v58, s{T0}, v58
    """)
    for k in range(8): A(f"ds_read_b32 v{64+k}, v58 offset:{256*k}")
    A(f"""
    s_waitcnt lgkmcnt(0)
    v_add_f32 v64, v64, v65
    v_add_f32 v66, v66, v67
    v_add_f32 v68, v68, v69
    v_add_f32 v70, v70, v71
    v_add_f32 v64, v64, v66
    v_add_f32 v68, v68, v70
    v_add_f32 v64, v64, v68
    v_lshlrev_b32 v58, 2, v{TID}
    v_add_u32 v58, {P_SCR}, v58
    s_barrier
    ds_write_b32 v58, v64
    s_waitcnt lgkmcnt(0)
    s_barrier
    v_lshlrev_b32 v59, 2, v{V_LANE}
    v_add_u32 v58, {P_SCR}, v59
    ds_read_b32 v64, v58
    ds_read_b32 v65, v58 offset:256
    ds_read_b32 v66, v58 offset:512
    ds_read_b32 v67, v58 offset:768
    s_waitcnt lgkmcnt(0)
    v_add_f32 v64, v64, v65
    v_add_f32 v66, v66, v67
    v_add_f32 v64, v64, v66
    s_mul_i32 s{T0}, s{RQ}, s{CROW}
    s_lshl_b32 s{T1}, s{STRIP}, 8
    s_add_u32 s{T0}, s{T0}, s{T1}
    s_cmp_lg_u32 s{S_LW}, 0
    s_cselect_b32 s{T0}, s{S_OOB}, s{T0}
    s_cmp_eq_u32 s{NOCS}, 1
    s_cselect_b32 s{T0}, s{S_OOB}, s{T0}
    v_add_u32 v59, s{T0}, v59
    buffer_store_dword v64, v59, s[{CS_D}:{CS_D+3}], 0 offen{SC}
    s_waitcnt vmcnt(0)
    s_barrier
    """)

class W:
    X=8; Wd=12; ST=16; CS=20; OUT=24
    TB=29; CB=30; MODE=31; XOFF=32; WOFF=33; M0=34; WADV=35; FREE=36; CNT=37; LDW=38; N0=39; CSROW=40
    T0=41; T1=42; T2=43; WN=44; WT=45; XB=46; T3=47; FREEX=48; WSZ=49; CURX=54; CURW=55; QS=56; ISF=58; SO0=50
    V_XD=4; V_WD=5; V_WRH=5; V_XR=9; V_WR=10; V_TMP=11; V_AA=20; V_NB=24; V_A2=28; V_FR=32; V_ACC=96; V_E=160
    NST=10
def ring_adv(A, cur, tmp, slot, n, vregs):
    A(f"s_add_u32 s{cur}, s{cur}, 1"); A(f"s_cmp_eq_u32 s{cur}, {n}")
    A(f"s_cselect_b32 s{tmp}, {hex(-slot*(n-1) & 0xffffffff)}, s{S_K16 if slot == 16384 else (S_K8 if slot == 8192 else S_K10)}")
    A(f"s_cselect_b32 s{cur}, 0, s{cur}")
    for r in vregs: A(f"v_add_u32 v{r}, s{tmp}, v{r}")
def w_fr(setn, kind, i): return W.V_FR + 16*setn + (0 if kind == 'W' else 8) + 4*i
def w_acc(i, ip): return W.V_ACC + 16*(2*i + ip)
def w_reads(setn, step, stage):
    if EXP['noread']: return []
    xs = (stage % WX_N)*W_SLOT; ws = stage % WW_N
    wreg = W.V_WR if ws < 4 else W.V_WRH; wo = (ws % 4)*W_SLOT
    L = []
    for i in range(2):
        for jj in range(2):
            L.append(f"ds_read_b64_tr_b16 {v(w_fr(setn,'W',i)+2*jj,2)}, v{wreg} offset:{wo + step*4096 + jj*2048 + i*256}")
        L.append(f"ds_read_b128 {v(w_fr(setn,'X',i),4)}, v{W.V_XR} offset:{xs + i*4096 + step*1024}")
    return L
def w_mfmas(setn, trans):
    L = []
    for (i, ip) in ((0,0),(0,1),(1,0),(1,1)):
        w = v(w_fr(setn,'W',i),4); x = v(w_fr(setn,'X',ip),4); d = v(w_acc(i,ip),16)
        L.append(f"v_mfma_f32_32x32x16_bf16 {d}, {w}, {x}, {d}" if trans else f"v_mfma_f32_32x32x16_bf16 {d}, {x}, {w}, {d}")
    return L
def w_stage(A, trans, st, fill=None):
    fill = list(fill or [])
    per = -(-len(fill) // 14) if fill else 0
    def F():
        for _ in range(per):
            if fill: A(fill.pop(0))
    last = st == W.NST - 1
    for step in range(4):
        M = w_mfmas(step, trans)
        if EXP['nomfma']: M = ["s_nop 0"]*4
        if step == 0 or step == 1: A("s_waitcnt lgkmcnt(6)")
        if step == 2:
            A("s_waitcnt lgkmcnt(0)")
            A(M[0]); F(); A(M[1])
            if not EXP['nobar']: A("s_barrier")
            R = [] if last else w_reads(0, 0, st + 1)
            for r in R[:3]: A(r)
            F(); A(M[2])
            for r in R[3:]: A(r)
            F(); A(M[3]); F()
            continue
        if step < 2: R = w_reads(step + 2, step + 2, st)
        else: R = [] if last else w_reads(1, 1, st + 1)
        A(M[0])
        k = 0
        for m in M[1:]:
            for _ in range(2):
                if k < len(R): A(R[k]); k += 1
            F()
            A(m)
        F()
    while fill: A(fill.pop(0))
def w_mainloop(A, trans, tag, fill_ld, fill0, fill_last):
    for st in range(W.NST):
        w_stage(A, trans, st, fill={5: fill_ld, 7: fill0, W.NST-1: fill_last}.get(st))

def w_params(A, ffn):
    if ffn:
        A(f"s_mov_b32 s{W.MODE}, 3"); A(f"s_mov_b32 s{W.LDW}, 3456"); A(f"s_mov_b32 s{W.CSROW}, 6912")
    else:
        A(f"""
        s_cmp_ge_u32 s{W.CB}, 5
        s_cselect_b32 s{W.MODE}, 1, 0
        s_cmp_ge_u32 s{W.CB}, 10
        s_cselect_b32 s{W.MODE}, 2, s{W.MODE}
        s_mov_b32 s{W.LDW}, 3840
        s_mov_b32 s{W.CSROW}, 7680
        """)
    A(f"s_lshl_b32 s{W.N0}, s{W.CB}, 7")

def c_wide(A, L_TO_FB, L_TO_ATT):
    V_TMP=W.V_TMP; V_E=W.V_E; V_FR=W.V_FR; V_AA=W.V_AA; V_NB=W.V_NB; V_A2=W.V_A2; V_ACC=W.V_ACC
    T0=W.T0; T1=W.T1; T2=W.T2; T3=W.T3; MODE=W.MODE
    VA=V_E+32
    sync_wide(A)
    A(f"""
    s_and_b32 s{W.WN}, s{S_WAVE}, 1
    s_lshr_b32 s{W.WT}, s{S_WAVE}, 1
    s_cmp_eq_u32 s{MODE}, 3
    s_cselect_b32 s{T0}, 1, 0
    s_lshl_b32 s{T1}, s{S_L}, 1
    s_add_u32 s{T0}, s{T0}, s{T1}
    s_lshl_b32 s{T0}, s{T0}, 18
    s_add_u32 s{T0}, s{T0}, {hex(ST[0])}
    """)
    srd_reg(A, W.ST, T0, STSZ)
    A(f"""
    s_mov_b32 s{T0}, {hex(CSQ)}
    s_mov_b32 s{T1}, {CSQSZ}
    s_cmp_eq_u32 s{MODE}, 3
    s_cselect_b32 s{T0}, {hex(CS1)}, s{T0}
    s_cselect_b32 s{T1}, {CS1SZ}, s{T1}
    """)
    srd_reg(A, W.CS, T0, f"s{T1}")
    A(f"""
    s_mov_b32 s{T0}, {hex(QP)}
    s_mov_b32 s{T1}, {XSZ}
    s_cmp_eq_u32 s{MODE}, 1
    s_cselect_b32 s{T0}, {hex(KP)}, s{T0}
    s_cmp_eq_u32 s{MODE}, 2
    s_cselect_b32 s{T0}, {hex(VF)}, s{T0}
    s_cselect_b32 s{T1}, {VSZ}, s{T1}
    s_cmp_eq_u32 s{MODE}, 3
    s_cselect_b32 s{T0}, {hex(HF)}, s{T0}
    s_cselect_b32 s{T1}, {HSZ}, s{T1}
    s_mul_i32 s{T2}, s{S_L}, {hex(LSTRIDE)}
    s_add_u32 s{T0}, s{T0}, s{T2}
    """)
    srd_reg(A, W.OUT, T0, f"s{T1}")
    A(f"""
    v_lshlrev_b32 v{W.V_XD}, 4, v{V_LANE}
    s_lshl_b32 s{T0}, s{W.WT}, 13
    s_add_u32 s{T0}, s{T0}, {WX_BASE}
    v_add_u32 v{W.V_XR}, s{T0}, v{W.V_XD}
    s_mov_b32 s{W.CURX}, 0
    s_mov_b32 s{W.CURW}, 0
    s_mov_b32 s{S_K16}, 16384
    v_lshlrev_b32 v{W.V_WR}, 10, v{V_H}
    v_bfe_u32 v{V_TMP}, v{V_LANE}, 2, 2
    v_lshlrev_b32 v{V_TMP}, 6, v{V_TMP}
    v_add_u32 v{W.V_WR}, v{W.V_WR}, v{V_TMP}
    v_bfe_u32 v{V_TMP}, v{V_LANE}, 4, 1
    v_lshlrev_b32 v{V_TMP}, 5, v{V_TMP}
    v_add_u32 v{W.V_WR}, v{W.V_WR}, v{V_TMP}
    v_and_b32 v{V_TMP}, 3, v{V_LANE}
    v_lshlrev_b32 v{V_TMP}, 3, v{V_TMP}
    v_add_u32 v{W.V_WR}, v{W.V_WR}, v{V_TMP}
    s_lshl_b32 s{T0}, s{W.WN}, 9
    v_add_u32 v{W.V_WR}, s{T0}, v{W.V_WR}
    v_add_u32 v{W.V_WRH}, 0x10000, v{W.V_WR}
    """)
    for r in list(range(VA, VA+4)) + [V_E+68, V_E+69]: A(f"v_mov_b32 v{r}, 0")
    LA1 = "L_cw_addr_v"; LA2 = "L_cw_addr_done"
    A(f"s_cmp_eq_u32 s{MODE}, 3"); A(f"s_cbranch_scc1 {LA2}")
    A(f"s_cmp_eq_u32 s{MODE}, 2"); A(f"s_cbranch_scc1 {LA1}")
    A(f"""
    s_mul_i32 s{T0}, s{MODE}, 640
    s_sub_u32 s{T0}, s{W.N0}, s{T0}
    s_lshl_b32 s{T1}, s{W.WN}, 6
    s_add_u32 s{T0}, s{T0}, s{T1}
    s_lshr_b32 s{T0}, s{T0}, 3
    v_add_u32 v{V_TMP}, s{T0}, v{V_H}
    v_lshlrev_b32 v{V_TMP+5}, 4, v{V_T}
    """)
    for i in range(2):
        for gp in range(2):
            r = VA + 2*i + gp
            A(f"""
            v_add_u32 v{V_TMP+1}, {4*i+2*gp}, v{V_TMP}
            v_mul_u32_u24 v{V_TMP+2}, 205, v{V_TMP+1}
            v_lshrrev_b32 v{V_TMP+2}, 10, v{V_TMP+2}
            v_mul_u32_u24 v{V_TMP+3}, 5, v{V_TMP+2}
            v_sub_u32 v{V_TMP+3}, v{V_TMP+1}, v{V_TMP+3}
            v_mul_u32_u24 v{r}, {64*PTS}, v{V_TMP+2}
            v_lshl_add_u32 v{r}, v{V_TMP+3}, 9, v{r}
            v_add_u32 v{r}, v{r}, v{V_TMP+5}
            """)
    A(f"s_branch {LA2}")
    A.label(LA1)
    A(f"""
    s_lshl_b32 s{T0}, s{W.WN}, 6
    v_add_u32 v{V_TMP}, s{T0}, v{V_T}
    s_sub_u32 s{T0}, s{W.N0}, 1280
    v_add_u32 v{V_TMP}, s{T0}, v{V_TMP}
    s_movk_i32 s{T1}, 3277
    """)
    for i in range(2):
        r = V_E + 68 + i
        A(f"""
        v_add_u32 v{V_TMP+1}, {32*i}, v{V_TMP}
        v_mul_u32_u24 v{V_TMP+2}, s{T1}, v{V_TMP+1}
        v_lshrrev_b32 v{V_TMP+2}, 16, v{V_TMP+2}
        v_mul_u32_u24 v{V_TMP+3}, 20, v{V_TMP+2}
        v_sub_u32 v{V_TMP+3}, v{V_TMP+1}, v{V_TMP+3}
        v_mul_u32_u24 v{r}, {64*VTS}, v{V_TMP+2}
        v_mul_u32_u24 v{V_TMP+4}, 22, v{V_H}
        v_add_u32 v{V_TMP+4}, v{V_TMP+4}, v{V_TMP+3}
        v_lshl_add_u32 v{r}, v{V_TMP+4}, 4, v{r}
        """)
    A.label(LA2)
    for r in range(64): A(f"v_mov_b32 v{V_ACC+r}, 0")
    A(f"""
    s_lshl_b32 s{T0}, s{W.TB}, 2
    s_lshl_b32 s{T1}, s{W.WT}, 1
    s_add_u32 s{T0}, s{T0}, s{T1}
    s_lshl_b32 s{T0}, s{T0}, 12
    s_add_u32 s{T1}, s{T0}, 4096
    v_lshlrev_b32 v{V_TMP}, 4, v{V_T}
    v_lshl_add_u32 v{V_TMP}, v{V_H}, 11, v{V_TMP}
    v_and_b32 v{V_TMP+2}, 127, v0
    v_add_u32 v{V_TMP+2}, s{W.N0}, v{V_TMP+2}
    v_lshlrev_b32 v{V_TMP+2}, 2, v{V_TMP+2}
    s_lshl_b32 s{T2}, s{W.CSROW}, 1
    s_add_u32 s{T3}, s{T2}, s{W.CSROW}
    """)
    stamp(A, 1)
    poll(A)
    A("s_barrier")
    stamp(A, 2)
    A(f"""
    s_cmp_eq_u32 s{MODE}, 0
    s_cselect_b32 s{W.QS}, {hex(f2u(QSCALE))}, 1.0
    s_cmp_eq_u32 s{MODE}, 3
    s_cselect_b64 s[{W.ISF}:{W.ISF+1}], -1, 0
    s_lshl_b32 s{T2}, s{W.WT}, 8
    s_add_u32 s{T2}, s{T2}, {W_SCR + 512}
    v_lshlrev_b32 v{V_TMP+6}, 2, v{V_T}
    v_add_u32 v{V_TMP+6}, s{T2}, v{V_TMP+6}
    """)
    FLD = None; F0 = None
    VS = V_E + 36
    FTOK = []
    for ip in range(2):
        FTOK += [f"ds_read_b32 v{VS+4*ip}, v{V_TMP+6} offset:{128*ip}", f"ds_read_b32 v{V_NB+2*ip}, v{V_TMP+6} offset:{1024+128*ip}",
                 f"ds_read_b32 v{VS+4*ip+1}, v{V_TMP+6} offset:{1536+128*ip}"]
    FPOST = []
    for ip in range(2):
        FPOST += [f"v_mov_b32 v{V_NB+2*ip+1}, v{V_NB+2*ip}",
                  f"v_mul_f32 v{V_A2+2*ip}, {hex(f2u(-1.4426950408889634))}, v{VS+4*ip}", f"v_mul_f32 v{V_AA+2*ip}, s{W.QS}, v{VS+4*ip}",
                  f"v_mov_b32 v{V_A2+2*ip+1}, v{V_A2+2*ip}",
                  f"v_cndmask_b32 v{V_AA+2*ip}, v{V_AA+2*ip}, v{VS+4*ip+1}, s[{W.ISF}:{W.ISF+1}]", f"v_mov_b32 v{V_AA+2*ip+1}, v{V_AA+2*ip}"]
    A("s_barrier")
    stamp(A, 3)
    for r in w_reads(0, 0, 0) + w_reads(1, 1, 0): A(r)
    LV = "L_cw_vmode"; LF = "L_cw_ffn"; FIN = "L_cw_fin"
    A(f"s_cmp_eq_u32 s{MODE}, 2"); A(f"s_cbranch_scc1 {LV}")
    FL = [f"s_lshl_b32 s{T0}, s{W.WN}, 8", f"s_add_u32 s{T0}, s{T0}, {W_SCR}", f"v_lshlrev_b32 v{V_TMP}, 4, v{V_H}", f"v_add_u32 v{V_TMP}, s{T0}, v{V_TMP}"]
    for i in range(2):
        for g in range(4):
            FL.append(f"ds_read_b128 {v(V_E+16*i+4*g,4)}, v{V_TMP} offset:{128*i + 32*g}")
    w_mainloop(A, True, "t", FLD, F0, FTOK + FL)
    stamp(A, 4)
    A("s_waitcnt lgkmcnt(0)")
    for x in FPOST: A(x)
    PK = V_FR
    A(f"s_cmp_eq_u32 s{MODE}, 3"); A(f"s_cbranch_scc1 {LF}")
    A(f"""
    s_lshl_b32 s{T0}, s{W.TB}, 2
    s_lshl_b32 s{T1}, s{W.WT}, 1
    s_add_u32 s{T0}, s{T0}, s{T1}
    s_mul_i32 s{T0}, s{T0}, {PTS}
    s_add_u32 s{T1}, s{T0}, {PTS}
    """)
    for i in range(2):
        for ip in range(2):
            c = w_acc(i, ip)
            for p in range(8): A(f"v_pk_fma_f32 {v(c+2*p,2)}, {v(V_E+16*i+2*p,2)}, {v(V_NB+2*ip,2)}, {v(c+2*p,2)}")
            for p in range(8): A(f"v_pk_mul_f32 {v(c+2*p,2)}, {v(c+2*p,2)}, {v(V_AA+2*ip,2)}")
            pk = PK + 8*(2*i+ip)
            for p in range(8): A(f"v_cvt_pk_bf16_f32 v{pk+p}, v{c+2*p}, v{c+2*p+1}")
            for gp in range(2):
                A(f"v_permlane32_swap_b32 v{pk+4*gp}, v{pk+4*gp+2}")
                A(f"v_permlane32_swap_b32 v{pk+4*gp+1}, v{pk+4*gp+3}")
            for gp in range(2):
                A(f"buffer_store_dwordx4 {v(pk+4*gp,4)}, v{VA+2*i+gp}, s[{W.OUT}:{W.OUT+3}], s{T0+ip} offen{SC}")
    A(f"s_branch {FIN}")
    A.label(LF)
    A(f"""
    s_lshl_b32 s{T0}, s{W.WN}, 6
    s_add_u32 s{T0}, s{T0}, s{W.N0}
    s_cmp_ge_u32 s{T0}, {F}
    s_cbranch_scc1 {FIN}
    s_lshr_b32 s{T0}, s{T0}, 4
    s_lshl_b32 s{T1}, s{W.TB}, 2
    s_lshl_b32 s{T2}, s{W.WT}, 1
    s_add_u32 s{T1}, s{T1}, s{T2}
    s_mul_i32 s{T1}, s{T1}, 108
    s_add_u32 s{T0}, s{T0}, s{T1}
    s_lshl_b32 s{T0}, s{T0}, 10
    s_add_u32 s{T1}, s{T0}, {108*1024}
    """)
    VZ = V_E + 36
    for ip in range(2):
        for i in range(2):
            c = w_acc(i, ip)
            for p in range(8): A(f"v_pk_fma_f32 {v(c+2*p,2)}, {v(V_E+16*i+2*p,2)}, {v(V_NB+2*ip,2)}, {v(c+2*p,2)}")
            for p in range(8): A(f"v_pk_mul_f32 {v(VZ+2*p,2)}, {v(c+2*p,2)}, {v(V_A2+2*ip,2)}")
            for r in range(16): A(f"v_exp_f32 v{VZ+r}, v{VZ+r}")
            for p in range(8): A(f"v_pk_fma_f32 {v(VZ+2*p,2)}, {v(VZ+2*p,2)}, {v(V_AA+2*ip,2)}, {v(V_AA+2*ip,2)}")
            for r in range(16): A(f"v_rcp_f32 v{VZ+r}, v{VZ+r}")
            for p in range(8): A(f"v_pk_mul_f32 {v(c+2*p,2)}, {v(c+2*p,2)}, {v(VZ+2*p,2)}")
            pk = PK + 8*(2*ip+i)
            for p in range(8): A(f"v_cvt_pk_bf16_f32 v{pk+p}, v{c+2*p}, v{c+2*p+1}")
            so = T0 if ip == 0 else T1
            A(f"buffer_store_dwordx4 {v(pk,4)}, v{W.V_XD}, s[{W.OUT}:{W.OUT+3}], s{so} offen{off(2048*i)}{SC}")
            A(f"buffer_store_dwordx4 {v(pk+4,4)}, v{W.V_XD}, s[{W.OUT}:{W.OUT+3}], s{so} offen{off(2048*i+1024)}{SC}")
    A(f"s_branch {FIN}")
    A.label(LV)
    FL = [f"s_lshl_b32 s{T0}, s{W.WN}, 6", f"v_add_u32 v{V_TMP}, s{T0}, v{V_T}", f"v_lshlrev_b32 v{V_TMP+1}, 2, v{V_TMP}",
          f"v_add_u32 v{V_TMP+1}, {W_SCR}, v{V_TMP+1}", f"ds_read_b32 v{V_E+64}, v{V_TMP+1}", f"ds_read_b32 v{V_E+66}, v{V_TMP+1} offset:128",
          f"s_lshl_b32 s{T1}, s{W.WT}, 8", f"s_add_u32 s{T1}, s{T1}, {W_SCR+512}", f"v_lshlrev_b32 v{V_TMP}, 4, v{V_H}", f"v_add_u32 v{V_TMP}, s{T1}, v{V_TMP}"]
    for ip in range(2):
        for g in range(4):
            FL.append(f"ds_read_b128 {v(V_E+32*ip+4*g,4)}, v{V_TMP} offset:{128*ip + 32*g}")
            FL.append(f"ds_read_b128 {v(V_E+32*ip+16+4*g,4)}, v{V_TMP} offset:{512 + 128*ip + 32*g}")
    w_mainloop(A, False, "v", FLD, F0, FL)
    stamp(A, 4)
    VAv = V_E + 68
    A(f"""
    s_lshl_b32 s{T0}, s{W.TB}, 2
    s_lshl_b32 s{T1}, s{W.WT}, 1
    s_add_u32 s{T0}, s{T0}, s{T1}
    s_mul_i32 s{T0}, s{T0}, {VTS}
    s_waitcnt lgkmcnt(0)
    v_sub_f32 v{V_E+64}, 0, v{V_E+64}
    v_sub_f32 v{V_E+66}, 0, v{V_E+66}
    v_mov_b32 v{V_E+65}, v{V_E+64}
    v_mov_b32 v{V_E+67}, v{V_E+66}
    """)
    for ip in range(2):
        for i in range(2):
            c = w_acc(i, ip)
            for p in range(8): A(f"v_pk_mul_f32 {v(c+2*p,2)}, {v(c+2*p,2)}, {v(V_E+32*ip+2*p,2)}")
            for p in range(8): A(f"v_pk_fma_f32 {v(c+2*p,2)}, {v(V_E+32*ip+16+2*p,2)}, {v(V_E+64+2*i,2)}, {v(c+2*p,2)}")
            pk = PK + 8*(2*ip+i)
            for p in range(8): A(f"v_cvt_pk_bf16_f32 v{pk+p}, v{c+2*p}, v{c+2*p+1}")
            A(f"buffer_store_dwordx4 {v(pk,4)}, v{VAv+i}, s[{W.OUT}:{W.OUT+3}], s{T0} offen{off(VTS*ip)}{SC}")
            A(f"buffer_store_dwordx4 {v(pk+4,4)}, v{VAv+i}, s[{W.OUT}:{W.OUT+3}], s{T0} offen{off(VTS*ip+704)}{SC}")
    A.label(FIN)
    stamp(A, 5)
    A("s_waitcnt vmcnt(0)")
    A("s_barrier")
    notify(A)
    stamp(A, 6)
    stamp_phase(A)
    A(f"s_cmp_eq_u32 s{MODE}, 3"); A(f"s_cbranch_scc1 {L_TO_FB}")
    A(f"s_branch {L_TO_ATT}")

def lw_setup_w(A, kaoff_reg_pair):
    V_TMP=W.V_TMP; T0=W.T0
    A(f"""
    v_lshlrev_b32 v{W.V_XD}, 4, v{V_LANE}
    v_lshrrev_b32 v{V_TMP}, 4, v{V_LANE}
    v_lshlrev_b32 v{W.V_WD}, 6, v{V_TMP}
    v_and_b32 v{V_TMP+1}, 3, v{V_LANE}
    v_lshlrev_b32 v{V_TMP+1}, 4, v{V_TMP+1}
    v_add_u32 v{W.V_WD}, v{W.V_WD}, v{V_TMP+1}
    v_bfe_u32 v{V_TMP+1}, v{V_LANE}, 2, 2
    v_mul_lo_u32 v{V_TMP+1}, v{V_TMP+1}, s{W.LDW}
    v_add_u32 v{W.V_WD}, v{W.V_WD}, v{V_TMP+1}
    s_cmp_eq_u32 s{W.MODE}, 3
    s_cselect_b32 s{T0}, s{W.CB}, 0
    s_cmp_eq_u32 s{T0}, 13
    s_cselect_b32 s{T0}, s{S_OOB}, 0
    v_cmp_le_u32 vcc, 2, v{V_TMP}
    v_mov_b32 v{V_TMP+1}, s{T0}
    s_lshl_b32 s{T0}, s{W.LDW}, 2
    s_sub_u32 s{T0}, s{T0}, 1024
    v_cndmask_b32 v{V_TMP+1}, 0, v{V_TMP+1}, vcc
    v_add_u32 v{W.V_WD}, v{W.V_WD}, v{V_TMP+1}
    v_add_u32 v{W.V_WD+1}, s{T0}, v{W.V_WD}
    v_add_u32 v{W.V_WD+2}, s{T0}, v{W.V_WD+1}
    v_add_u32 v{W.V_WD+3}, s{T0}, v{W.V_WD+2}
    s_lshl_b32 s{W.WADV}, s{W.LDW}, 6
    s_lshl_b32 s{T0}, s{W.LDW}, 4
    s_mul_i32 s{T0}, s{T0}, s{S_LW}
    s_lshl_b32 s{W.WOFF}, s{W.N0}, 1
    s_add_u32 s{W.WOFF}, s{W.WOFF}, s{T0}
    s_lshl_b32 s{W.M0}, s{S_LW}, 12
    s_mul_i32 s{W.WSZ}, s{W.LDW}, 640
    s_mov_b32 s{W.Wd}, s{kaoff_reg_pair}
    s_mov_b32 s{W.Wd+1}, s{kaoff_reg_pair+1}
    s_mov_b32 s{W.Wd+2}, s{W.WSZ}
    s_mov_b32 s{W.Wd+3}, 0x20000
    s_mov_b32 s{W.FREE}, 0
    s_mov_b32 s{W.FREEX}, 0
    """)
def lw_dma_x(k): return f"buffer_load_dwordx4 v{W.V_XD}, s[{W.X}:{W.X+3}], s{W.XOFF} offen{off(k*1024)} lds"
def lw_dma_w(k): return f"buffer_load_dwordx4 v{W.V_WD+k}, s[{W.Wd}:{W.Wd+3}], s{W.WOFF} offen{off(k*1024)} lds"
def slot_wrap(A, reg, slot, n):
    A(f"s_add_u32 s{reg}, s{reg}, {slot}"); A(f"s_cmp_eq_u32 s{reg}, {slot*n}"); A(f"s_cselect_b32 s{reg}, 0, s{reg}")
def lw_issue_w(A):
    A(f"s_add_u32 m0, s{W.FREE}, s{W.M0}")
    slot_wrap(A, W.FREE, W_SLOT, WW_N)
    for k in range(4): A(lw_dma_w(k))
    A(f"s_add_u32 s{W.WOFF}, s{W.WOFF}, s{W.WADV}")
def lw_issue_x(A):
    A(f"s_add_u32 s{W.T0}, s{W.FREEX}, s{W.M0}"); A(f"s_add_u32 m0, s{W.T0}, {WX_BASE}")
    slot_wrap(A, W.FREEX, W_SLOT, WX_N)
    for k in range(4): A(lw_dma_x(k))
    A(f"s_add_u32 s{W.XOFF}, s{W.XOFF}, 4096")
LS=24
def lw_stats_setup(A):
    T0=W.T0; T1=W.T1; T2=W.T2
    A(f"""
    s_cmp_eq_u32 s{W.MODE}, 3
    s_cselect_b32 s{T0}, 1, 0
    s_lshl_b32 s{T1}, s{S_L}, 1
    s_add_u32 s{T0}, s{T0}, s{T1}
    s_lshl_b32 s{T0}, s{T0}, 18
    s_add_u32 s{T0}, s{T0}, {hex(ST[0])}
    """)
    srd_reg(A, W.ST, T0, STSZ)
    A(f"""
    s_mov_b32 s{T0}, {hex(CSQ)}
    s_mov_b32 s{T1}, {CSQSZ}
    s_cmp_eq_u32 s{W.MODE}, 3
    s_cselect_b32 s{T0}, {hex(CS1)}, s{T0}
    s_cselect_b32 s{T1}, {CS1SZ}, s{T1}
    """)
    srd_reg(A, W.CS, T0, f"s{T1}")
    A(f"""
    s_lshl_b32 s52, s{W.TB}, 2
    s_add_u32 s52, s52, s{S_LW}
    s_lshl_b32 s52, s52, 12
    s_lshl_b32 s53, s{W.CSROW}, 1
    s_add_u32 s54, s53, s{W.CSROW}
    v_lshlrev_b32 v{LS+20}, 4, v{V_T}
    v_lshl_add_u32 v{LS+20}, v{V_H}, 11, v{LS+20}
    v_and_b32 v{LS+21}, 127, v0
    v_add_u32 v{LS+21}, s{W.N0}, v{LS+21}
    v_lshlrev_b32 v{LS+21}, 2, v{LS+21}
    """)
def lw_stats_load(A):
    for k in range(4): A(f"buffer_load_dwordx4 {v(LS+4*k,4)}, v{LS+20}, s[{W.ST}:{W.ST+3}], s52 offen{off(512*k)}")
    A(f"buffer_load_dword v{LS+16}, v{LS+21}, s[{W.CS}:{W.CS+3}], 0 offen")
    A(f"buffer_load_dword v{LS+17}, v{LS+21}, s[{W.CS}:{W.CS+3}], s{W.CSROW} offen")
    A(f"buffer_load_dword v{LS+18}, v{LS+21}, s[{W.CS}:{W.CS+3}], s53 offen")
    A(f"buffer_load_dword v{LS+19}, v{LS+21}, s[{W.CS}:{W.CS+3}], s54 offen")
def lw_stats_post(A):
    b = LS; t = LS + 22
    A(f"""
    v_pk_add_f32 {v(b,2)}, {v(b,2)}, {v(b+2,2)}
    v_pk_add_f32 {v(b+4,2)}, {v(b+4,2)}, {v(b+6,2)}
    v_pk_add_f32 {v(b+8,2)}, {v(b+8,2)}, {v(b+10,2)}
    v_pk_add_f32 {v(b+12,2)}, {v(b+12,2)}, {v(b+14,2)}
    v_pk_add_f32 {v(b,2)}, {v(b,2)}, {v(b+4,2)}
    v_pk_add_f32 {v(b+8,2)}, {v(b+8,2)}, {v(b+12,2)}
    v_add_f32 v{b+16}, v{b+16}, v{b+17}
    v_add_f32 v{b+18}, v{b+18}, v{b+19}
    v_pk_add_f32 {v(b,2)}, {v(b,2)}, {v(b+8,2)}
    v_add_f32 v{b+16}, v{b+16}, v{b+18}
    """)
    halfsum(A, b, t); halfsum(A, b+1, t+1)
    A(f"""
    v_mul_f32 v{b}, {hex(f2u(1.0/640))}, v{b}
    v_mul_f32 v{b+1}, {hex(f2u(1.0/640))}, v{b+1}
    v_fma_f32 v{b+1}, -v{b}, v{b}, v{b+1}
    v_max_f32 v{b+1}, 0, v{b+1}
    v_add_f32 v{b+3}, {hex(f2u(1e-5))}, v{b+1}
    v_rsq_f32 v{b+1}, v{b+3}
    v_sub_f32 v{b+4}, 0, v{b}
    s_lshl_b32 s{W.T0}, s{S_LW}, 7
    s_add_u32 s{W.T0}, s{W.T0}, {W_SCR + 512}
    v_lshlrev_b32 v{t}, 2, v{V_T}
    v_add_u32 v{t}, s{W.T0}, v{t}
    v_mul_f32 v{b+3}, v{b+3}, v{b+1}
    v_mul_f32 v{b+2}, v{b}, v{b+1}
    v_and_b32 v{t+1}, 127, v0
    v_lshlrev_b32 v{t+1}, 2, v{t+1}
    v_add_u32 v{t+1}, {W_SCR}, v{t+1}
    ds_write_b32 v{t}, v{b+1}
    ds_write_b32 v{t}, v{b+2} offset:512
    ds_write_b32 v{t}, v{b+4} offset:1024
    ds_write_b32 v{t}, v{b+3} offset:1536
    ds_write_b32 v{t+1}, v{b+16}
    s_waitcnt lgkmcnt(0)
    """)
def lw_prefetch_w(A, n=WW_N):
    for s_ in range(n): lw_issue_w(A)

class T:
    Q=8; K=12; V=16; O=20
    HEAD=24; QB=25; QG=27; KH=28; KO=29; VO=30; CNT=31; T0=32; T1=33; T2=34; FLAG=35; K0=36; V0=38; TT0=37; LO=42; CC=44
    V_AK0=4; V_AK1=5; V_AV=6; V_AO=7; V_TMP=10
    V_Q=16; V_O=48; V_S=112; V_P=144; V_K=152; V_V=168; V_M=184; V_X=188; V_J=200; V_AOP=228
def tQ0(q): return T.V_Q + 8*q
def tQ1(q): return T.V_Q + 8*q + 4
def tO(q): return T.V_O + 16*q
def tS(b): return T.V_S + 16*b
def tK0(p): return T.V_K + 8*p
def tK1(p): return T.V_K + 8*p + 4
def tV0(p): return T.V_V + 8*p
def tV1(p): return T.V_V + 8*p + 4
def mf(d, a_, b_, c):
    cs = v(c,16) if c is not None else "0"
    return f"v_mfma_f32_32x32x16_bf16 {v(d,16)}, {v(a_,4)}, {v(b_,4)}, {cs}"
def t_load_k(A, p, o):
    A(f"buffer_load_dwordx4 {v(tK0(p),4)}, v{T.V_AK0}, s[{T.K}:{T.K+3}], s{T.KO} offen{off(o)}")
    A(f"buffer_load_dwordx2 {v(tK1(p),2)}, v{T.V_AK1}, s[{T.K}:{T.K+3}], s{T.KO} offen{off(o)}")
def t_load_v(A, p, o):
    A(f"buffer_load_dwordx4 {v(tV0(p),4)}, v{T.V_AV}, s[{T.V}:{T.V+3}], s{T.VO} offen{off(o)}")
    A(f"buffer_load_dwordx4 {v(tV1(p),4)}, v{T.V_AV}, s[{T.V}:{T.V+3}], s{T.VO} offen{off(o+704)}")
def t_period(A, p, q):
    b = q & 1
    s_ = tS(b); sn = tS(b ^ 1)
    qn = (q + 1) & 3; kp = p if q < 3 else p ^ 1
    qp = (q - 1) & 3; vp = p if q > 0 else p ^ 1
    e = lambda r: A(f"v_exp_f32 v{s_+r}, v{s_+r}")
    c = lambda k: A(f"v_cvt_pk_bf16_f32 v{T.V_P+k}, v{s_+2*k}, v{s_+2*k+1}")
    if q == 3: A("s_waitcnt vmcnt(2)")
    A(mf(sn, tK0(kp), tQ0(qn), None))
    e(0); e(1); e(2); e(3); c(0)
    A(mf(sn, tK1(kp), tQ1(qn), sn))
    e(4); e(5); c(1)
    if q == 3 and not EXP.get('anoload'): t_load_k(A, p, p*PTS)
    if q == 1 and not EXP.get('anoload'): t_load_v(A, p ^ 1, p*VTS)
    e(6); e(7); c(2)
    A(mf(tO(qp), tV1(vp), T.V_P+4, tO(qp)))
    e(8); e(9); c(3); e(10); e(11); c(4)
    if q == 0: A("s_waitcnt vmcnt(2)")
    A(mf(tO(q), tV0(p), T.V_P, tO(q)))
    e(12); e(13); c(5); e(14); e(15); c(6); c(7)
def t_rowmax(A, dst, src, tmp):
    A(f"v_max3_f32 v{dst}, v{src}, v{src+1}, v{src+2}")
    for r in range(3, 15, 2): A(f"v_max3_f32 v{dst}, v{dst}, v{src+r}, v{src+r+1}")
    A(f"v_max_f32 v{dst}, v{dst}, v{src+15}")
    A(f"v_mov_b32 v{tmp}, v{dst}"); A(f"v_permlane32_swap_b32 v{dst}, v{tmp}"); A(f"v_max_f32 v{dst}, v{dst}, v{tmp}")
def t_set_shift(A):
    V_TMP = T.V_TMP
    A(f"s_mov_b64 exec, s[{T.LO}:{T.LO+1}]")
    for q in range(4):
        A(f"""
        v_xor_b32 v{V_TMP}, 0x80000000, v{T.V_M+q}
        v_and_b32 v{V_TMP+1}, 0xffff0000, v{V_TMP}
        v_sub_f32 v{V_TMP}, v{V_TMP}, v{V_TMP+1}
        v_and_b32 v{V_TMP+2}, 0xffff0000, v{V_TMP}
        v_sub_f32 v{V_TMP}, v{V_TMP}, v{V_TMP+2}
        v_lshrrev_b32 v{V_TMP+1}, 16, v{V_TMP+1}
        v_or_b32 v{tQ1(q)+2}, v{V_TMP+1}, v{V_TMP+2}
        v_lshrrev_b32 v{tQ1(q)+3}, 16, v{V_TMP}
        """)
    A("s_mov_b64 exec, -1")
def t_first_loads(A):
    A(f"s_mov_b32 s{T.KO}, s{T.K0}"); A(f"s_mov_b32 s{T.VO}, s{T.V0}")
    t_load_k(A, 0, 0); t_load_v(A, 0, 0); t_load_k(A, 1, PTS)
    A(f"s_add_u32 s{T.KO}, s{T.K0}, {2*PTS}"); A(f"s_add_u32 s{T.VO}, s{T.V0}, {VTS}")

def c_att(A, L_NEXT):
    V_TMP=T.V_TMP; T0=T.T0; T1=T.T1; T2=T.T2; V_X=T.V_X; V_M=T.V_M; V_P=T.V_P
    A(f"""
    s_and_b32 s{T.HEAD}, s{S_WG}, 31
    s_lshr_b32 s{T.QB}, s{S_WG}, 5
    """)
    sync_att(A)
    A(f"""
    s_and_b32 s{T.QG}, s{S_WAVE}, 1
    s_lshr_b32 s{T.KH}, s{S_WAVE}, 1
    s_and_b32 s{T2}, s{T.HEAD}, 1
    s_mul_i32 s{T0}, s{T2}, 1536
    v_lshlrev_b32 v{T.V_AK0}, 4, v{V_LANE}
    v_add_u32 v{T.V_AK0}, s{T0}, v{T.V_AK0}
    s_lshl_b32 s{T0}, s{T2}, 3
    s_add_u32 s{T0}, s{T0}, 1024
    v_lshlrev_b32 v{T.V_AK1}, 4, v{V_T}
    v_add_u32 v{T.V_AK1}, s{T0}, v{T.V_AK1}
    v_min_u32 v{V_TMP+1}, 20, v{V_T}
    v_cmp_lt_u32 vcc, 20, v{V_T}
    v_mul_u32_u24 v{T.V_AV}, 22, v{V_H}
    v_addc_co_u32 v{V_TMP+1}, vcc, 0, v{V_TMP+1}, vcc
    v_add_u32 v{T.V_AV}, v{T.V_AV}, v{V_TMP+1}
    v_lshlrev_b32 v{T.V_AV}, 4, v{T.V_AV}
    s_lshl_b32 s{T0}, s{T.KH}, 5
    s_mul_i32 s{T.K0}, s{T0}, {PTS}
    s_mul_i32 s{T.V0}, s{T0}, {VTS}
    s_lshl_b32 s{T.TT0}, s{T.QB}, 3
    s_lshl_b32 s{T2}, s{T.QG}, 2
    s_add_u32 s{T.TT0}, s{T.TT0}, s{T2}
    s_mov_b32 s{T.LO}, -1
    s_mov_b32 s{T.LO+1}, 0
    s_mov_b32 s{T.FLAG}, 0
    s_mul_i32 s{T2}, s{S_L}, {hex(LSTRIDE)}
    s_lshr_b32 s{T0}, s{T.HEAD}, 1
    s_mul_i32 s{T0}, s{T0}, {64*PTS}
    s_add_u32 s{T0}, s{T0}, s{T2}
    s_add_u32 s{T1}, s{T0}, {hex(KP)}
    """)
    srd_reg(A, T.K, T1, 64*PTS)
    A(f"s_add_u32 s{T1}, s{T0}, {hex(QP)}")
    srd_reg(A, T.Q, T1, 64*PTS)
    A(f"s_mul_i32 s{T0}, s{T.HEAD}, {64*VTS}"); A(f"s_add_u32 s{T0}, s{T0}, s{T2}"); A(f"s_add_u32 s{T1}, s{T0}, {hex(VF)}")
    srd_reg(A, T.V, T1, 64*VTS)
    A(f"s_add_u32 s{T1}, s{T2}, {hex(OF)}")
    srd_reg(A, T.O, T1, XSZ)
    for q in range(4):
        for r in range(4): A(f"v_mov_b32 v{tQ1(q)+r}, 0")
    for p in range(2):
        A(f"v_mov_b32 v{tK1(p)+2}, 0x3f803f80"); A(f"v_mov_b32 v{tK1(p)+3}, 0x00003f80")
    for r in range(8): A(f"v_mov_b32 v{V_P+r}, 0")
    for r in range(4): A(f"v_mov_b32 v{tV1(1)+r}, 0")
    for r in range(64): A(f"v_mov_b32 v{T.V_O+r}, 0")
    A(f"s_mul_i32 s{T0}, s{T.HEAD}, 5"); A(f"v_add_u32 v{V_TMP+5}, s{T0}, v{V_H}"); A(f"v_lshlrev_b32 v{V_TMP+2}, 4, v{V_T}")
    for a_ in range(3):
        A(f"""
        v_add_u32 v{V_TMP+3}, {2*a_}, v{V_TMP+5}
        v_lshrrev_b32 v{V_TMP+4}, 2, v{V_TMP+3}
        v_lshl_add_u32 v{T.V_AO+a_}, v{V_TMP+4}, 10, v{V_TMP+2}
        v_and_b32 v{V_TMP+4}, 1, v{V_TMP+3}
        v_lshl_add_u32 v{T.V_AO+a_}, v{V_TMP+4}, 9, v{T.V_AO+a_}
        v_bfe_u32 v{V_TMP+4}, v{V_TMP+3}, 1, 1
        v_lshl_add_u32 v{T.V_AO+a_}, v{V_TMP+4}, 3, v{T.V_AO+a_}
        """)
    A(f"s_mul_i32 s{T0}, s{T.TT0}, {PTS}")
    A(f"s_add_u32 s{T1}, s{T0}, {2*PTS}")
    A(f"s_mov_b32 s{T.KO}, s{T.K0}"); A(f"s_mov_b32 s{T.VO}, s{T.V0}")
    poll(A, two=True)
    A("s_barrier")
    stamp(A, 2)
    t_load_k(A, 0, 0)
    for q in range(4):
        so = T0 if q < 2 else T1
        A(f"buffer_load_dwordx4 {v(tQ0(q),4)}, v{T.V_AK0}, s[{T.Q}:{T.Q+3}], s{so} offen{off(PTS*(q&1))}")
    A(f"s_mov_b64 exec, s[{T.LO}:{T.LO+1}]")
    for q in range(4):
        so = T0 if q < 2 else T1
        A(f"buffer_load_dwordx2 {v(tQ1(q),2)}, v{T.V_AK1}, s[{T.Q}:{T.Q+3}], s{so} offen{off(PTS*(q&1))}")
    A("s_mov_b64 exec, -1")
    t_load_v(A, 0, 0); t_load_k(A, 1, PTS)
    A(f"s_add_u32 s{T.KO}, s{T.K0}, {2*PTS}"); A(f"s_add_u32 s{T.VO}, s{T.V0}, {VTS}")
    A("s_waitcnt vmcnt(4)")
    stamp(A, 3)
    FT = [tS(0), tS(1), T.V_J, T.V_J + 16]
    for q in range(4):
        A(mf(FT[q], tK0(0), tQ0(q), None)); A(mf(FT[q], tK1(0), tQ1(q), FT[q]))
    for q in range(4): t_rowmax(A, V_M+q, FT[q], V_X+q)
    t_set_shift(A)
    SETUP = "L_ca_setup"; LOOP = "L_ca_loop"; COMBINE = "L_ca_combine"
    A.label(SETUP)
    A(mf(tS(0), tK0(0), tQ0(0), None)); A(mf(tS(0), tK1(0), tQ1(0), tS(0)))
    A(f"s_mov_b32 s{T.CNT}, 16")
    stamp(A, 1)
    if EXP.get('prio'): A("s_setprio 3")
    A("s_nop 7")
    A(".p2align 6"); A.label(LOOP)
    for p in range(2):
        for q in range(4): t_period(A, p, q)
    A(f"s_add_u32 s{T.KO}, s{T.KO}, {2*PTS}"); A(f"s_add_u32 s{T.VO}, s{T.VO}, {2*VTS}")
    A(f"s_sub_u32 s{T.CNT}, s{T.CNT}, 1"); A(f"s_cmp_lg_u32 s{T.CNT}, 0"); A(f"s_cbranch_scc1 {LOOP}")
    stamp(A, 4)
    if EXP.get('prio'): A("s_setprio 0")
    A(mf(tO(3), tV1(1), V_P+4, tO(3)))
    A("s_waitcnt vmcnt(0)")
    for q in range(4):
        A(f"v_mov_b32 v{tO(q)+12}, v{tO(q)+8}"); A(f"v_mov_b32 v{tO(q)+13}, v{tO(q)+8}")
    for q in range(4): A(f"v_permlane32_swap_b32 v{tO(q)+13}, v{tO(q)+12}")
    A(f"s_cmp_lg_u32 s{T.FLAG}, 0"); A(f"s_cbranch_scc1 {COMBINE}")
    A(f"v_mov_b32 v{V_TMP}, 0")
    for q in range(4):
        for r in range(0, 12, 2): A(f"v_max3_f32 v{V_TMP}, v{V_TMP}, |v{tO(q)+r}|, |v{tO(q)+r+1}|")
    A(f"""
    v_add_f32 v{V_TMP+2}, v{tO(0)+12}, v{tO(1)+12}
    v_add_f32 v{V_TMP+3}, v{tO(2)+12}, v{tO(3)+12}
    v_add_f32 v{V_TMP+2}, v{V_TMP+2}, v{V_TMP+3}
    s_mov_b32 s{T0}, {hex(f2u(2.0**40))}
    s_mov_b32 s{T1}, {hex(f2u(2.0**120))}
    v_cmp_gt_f32 vcc, s{T0}, v{V_TMP+2}
    v_cmp_gt_f32 s[{T.CC}:{T.CC+1}], s{T1}, v{V_TMP}
    s_and_b64 vcc, vcc, s[{T.CC}:{T.CC+1}]
    s_cmp_eq_u64 vcc, exec
    s_cbranch_scc1 {COMBINE}
    """)
    A(f"s_mov_b32 s{T.FLAG}, 1")
    A(f"s_mov_b64 exec, s[{T.LO}:{T.LO+1}]")
    for q in range(4): A(f"v_mov_b32 v{tQ1(q)+2}, 0"); A(f"v_mov_b32 v{tQ1(q)+3}, 0")
    A("s_mov_b64 exec, -1")
    for q in range(4): A(f"v_mov_b32 v{V_X+4+q}, 0xff800000")
    A(f"s_mov_b32 s{T.KO}, s{T.K0}"); A(f"s_mov_b32 s{T.CNT}, 32")
    TL = "L_ca_tm_loop"
    A.label(TL)
    t_load_k(A, 0, 0)
    A(f"s_add_u32 s{T.KO}, s{T.KO}, {PTS}")
    A("s_waitcnt vmcnt(0)")
    for q in range(4):
        A(mf(tO(q), tK0(0), tQ0(q), None)); A(mf(tO(q), tK1(0), tQ1(q), tO(q)))
    for q in range(4):
        t_rowmax(A, V_M+q, tO(q), V_X+q); A(f"v_max_f32 v{V_X+4+q}, v{V_X+4+q}, v{V_M+q}")
    A(f"s_sub_u32 s{T.CNT}, s{T.CNT}, 1"); A(f"s_cmp_lg_u32 s{T.CNT}, 0"); A(f"s_cbranch_scc1 {TL}")
    for q in range(4): A(f"v_mov_b32 v{V_M+q}, v{V_X+4+q}")
    t_first_loads(A)
    t_set_shift(A)
    for r in range(64): A(f"v_mov_b32 v{T.V_O+r}, 0")
    for r in range(8): A(f"v_mov_b32 v{V_P+r}, 0")
    for r in range(4): A(f"v_mov_b32 v{tV1(1)+r}, 0")
    for r in range(64): A(f"v_mov_b32 v{T.V_O+r}, 0")
    A(f"s_mul_i32 s{T0}, s{T.HEAD}, 5"); A(f"v_add_u32 v{V_TMP+5}, s{T0}, v{V_H}"); A(f"v_lshlrev_b32 v{V_TMP+2}, 4, v{V_T}")
    for a_ in range(3):
        A(f"""
        v_add_u32 v{V_TMP+3}, {2*a_}, v{V_TMP+5}
        v_lshrrev_b32 v{V_TMP+4}, 2, v{V_TMP+3}
        v_lshl_add_u32 v{T.V_AO+a_}, v{V_TMP+4}, 10, v{V_TMP+2}
        v_and_b32 v{V_TMP+4}, 1, v{V_TMP+3}
        v_lshl_add_u32 v{T.V_AO+a_}, v{V_TMP+4}, 9, v{T.V_AO+a_}
        v_bfe_u32 v{V_TMP+4}, v{V_TMP+3}, 1, 1
        v_lshl_add_u32 v{T.V_AO+a_}, v{V_TMP+4}, 3, v{T.V_AO+a_}
        """)
    A("s_waitcnt vmcnt(4)")
    A(f"s_branch {SETUP}")
    A.label(COMBINE)
    for q in range(4): A(f"v_mov_b32 v{tO(q)+13}, v{V_M+q}")
    A(f"""
    s_lshl_b32 s{T0}, s{S_WAVE}, 13
    s_add_u32 s{T0}, s{T0}, {A_CMB}
    v_lshlrev_b32 v{V_TMP}, 4, v{V_LANE}
    v_add_u32 v{V_TMP+1}, s{T0}, v{V_TMP}
    s_xor_b32 s{T1}, s{S_WAVE}, 2
    s_lshl_b32 s{T1}, s{T1}, 13
    s_add_u32 s{T1}, s{T1}, {A_CMB}
    v_add_u32 v{V_TMP+2}, s{T1}, v{V_TMP}
    s_cmp_eq_u32 s{T.KH}, 0
    """)
    C1 = "L_ca_c1"; FIN = "L_ca_fin"
    A(f"s_cbranch_scc0 {C1}")
    for kh in range(2):
        if kh == 1: A.label(C1)
        send = (2, 3) if kh == 0 else (0, 1); keep = (0, 1) if kh == 0 else (2, 3)
        for j, q in enumerate(send):
            for g in range(4): A(f"ds_write_b128 v{V_TMP+1}, {v(tO(q)+4*g,4)} offset:{4096*j + 1024*g}")
        A("s_waitcnt lgkmcnt(0)"); A("s_barrier")
        for j in range(2):
            for g in range(4): A(f"ds_read_b128 {v(T.V_S+16*j+4*g,4)}, v{V_TMP+2} offset:{4096*j + 1024*g}")
        for j, q in enumerate(keep):
            o = tO(q); r_ = T.V_S + 16*j
            A(f"s_waitcnt lgkmcnt({4 if j == 0 else 0})")
            A(f"""
            v_max_f32 v{V_X}, v{o+13}, v{r_+13}
            v_sub_f32 v{V_X+1}, v{o+13}, v{V_X}
            v_sub_f32 v{V_X+2}, v{r_+13}, v{V_X}
            v_exp_f32 v{V_X+1}, v{V_X+1}
            v_exp_f32 v{V_X+2}, v{V_X+2}
            s_nop 0
            v_mul_f32 v{V_X+3}, v{V_X+1}, v{o+12}
            v_fmac_f32 v{V_X+3}, v{V_X+2}, v{r_+12}
            v_rcp_f32 v{V_X+3}, v{V_X+3}
            s_nop 0
            v_mul_f32 v{V_X+4}, v{V_X+1}, v{V_X+3}
            v_mul_f32 v{V_X+6}, v{V_X+2}, v{V_X+3}
            v_mov_b32 v{V_X+5}, v{V_X+4}
            v_mov_b32 v{V_X+7}, v{V_X+6}
            """)
            for pr in range(6): A(f"v_pk_mul_f32 {v(o+2*pr,2)}, {v(o+2*pr,2)}, {v(V_X+4,2)}")
            for pr in range(6): A(f"v_pk_fma_f32 {v(o+2*pr,2)}, {v(r_+2*pr,2)}, {v(V_X+6,2)}, {v(o+2*pr,2)}")
            pk = V_P if j == 0 else T.V_K
            for pr in range(6): A(f"v_cvt_pk_bf16_f32 v{pk+pr}, v{o+2*pr}, v{o+2*pr+1}")
            A(f"""
            s_add_u32 s{T1}, s{T.TT0}, {q}
            s_mul_i32 s{T1}, s{T1}, 40960
            buffer_store_dwordx2 {v(pk,2)}, v{T.V_AO}, s[{T.O}:{T.O+3}], s{T1} offen{SC}
            buffer_store_dwordx2 {v(pk+2,2)}, v{T.V_AO+1}, s[{T.O}:{T.O+3}], s{T1} offen{SC}
            s_mov_b64 exec, s[{T.LO}:{T.LO+1}]
            buffer_store_dwordx2 {v(pk+4,2)}, v{T.V_AO+2}, s[{T.O}:{T.O+3}], s{T1} offen{SC}
            s_mov_b64 exec, -1
            """)
        A(f"s_branch {FIN}")
    A.label(FIN)
    stamp(A, 5)
    A("s_waitcnt vmcnt(0)")
    A("s_barrier")
    notify(A)
    stamp(A, 6)
    stamp_phase(A)
    A(f"s_branch {L_NEXT}")

class N:
    X=8; Wd=12; R=16; OUT=20; ST=24
    TB=29; CB=30; FINAL=31; XOFF=32; WOFF=33; FREE=34; CUR=35; CNT=36; T0=37; T1=38; T2=39; WT=40; WK=41
    XM0=43; WM0=44; NK=45; CURW=48; NST=55; FREEX=56; T3=57
    V_XD=4; V_WR2=5; V_XR=8; V_WR=9; V_TMP=10; V_FR=40; V_ACC=104; V_E=152
def n_frW(par, j, b): return N.V_FR + 32*par + 16*j + 4*b
def n_frX(par, j): return N.V_FR + 32*par + 16*j + 12
def n_acc(b): return N.V_ACC + 16*b
def n_reads(par):
    L = []
    for j in range(2):
        L.append(f"ds_read_b128 {v(n_frX(par,j),4)}, v{N.V_XR} offset:{j*2048}")
        for b in range(3):
            for jj in range(2):
                if b < 2: L.append(f"ds_read_b64_tr_b16 {v(n_frW(par,j,b)+2*jj,2)}, v{N.V_WR} offset:{j*5120 + jj*1280 + b*256}")
                else:     L.append(f"ds_read_b64_tr_b16 {v(n_frW(par,j,b)+2*jj,2)}, v{N.V_WR2} offset:{j*5120 + jj*1280}")
    return L
def n_mfmas(par):
    return [f"v_mfma_f32_32x32x16_bf16 {v(n_acc(b),16)}, {v(n_frW(par,j,b),4)}, {v(n_frX(par,j),4)}, {v(n_acc(b),16)}" for j in range(2) for b in range(3)]
def n_stage(A, par, last=False):
    M = n_mfmas(par)
    A("s_waitcnt lgkmcnt(0)")
    if last:
        for m in M: A(m)
        return
    ring_adv(A, N.CUR, N.T1, NX_SLOT, NX_N, [N.V_XR]); ring_adv(A, N.CURW, N.T2, NW_SLOT, NW_N, [N.V_WR, N.V_WR2])
    A(M[0]); A("s_barrier")
    R = n_reads(par ^ 1); k = 0
    for m in M[1:]:
        for _ in range(3):
            if k < len(R): A(R[k]); k += 1
        A(m)
    while k < len(R): A(R[k]); k += 1

def n_params(A, ffb):
    narrow_coords(A, N.TB, N.CB, N.T0, N.T1, N.T2)
    A(f"s_mov_b32 s{N.NST}, {27 if ffb else 10}"); A(f"s_mov_b32 s{N.NK}, {108 if ffb else 40}")

def c_narrow(A, L_TO_FA, L_TO_QKV, L_END):
    V_TMP=N.V_TMP; V_E=N.V_E; T0=N.T0; T1=N.T1; T2=N.T2; T3=N.T3
    sync_narrow(A)
    A(f"""
    s_load_dwordx2 s[46:47], s[0:1], {KA_OUT}
    s_and_b32 s{N.WT}, s{S_WAVE}, 1
    s_lshr_b32 s{N.WK}, s{S_WAVE}, 1
    s_mov_b32 s{S_K8}, 8192
    s_mov_b32 s{S_K10}, 10240
    s_mov_b32 s{N.CUR}, 0
    s_mov_b32 s{N.CURW}, 0
    s_cmp_eq_u32 s{N.NST}, 27
    s_cselect_b32 s{T0}, 2, 1
    s_cselect_b32 s{T2}, s{S_L}, 0
    s_mov_b32 s{N.FINAL}, s{T2}
    s_lshl_b32 s{T1}, s{S_L}, 1
    s_add_u32 s{T0}, s{T0}, s{T1}
    s_lshl_b32 s{T3}, s{T0}, 18
    s_add_u32 s{T3}, s{T3}, {hex(ST[0])}
    s_mul_i32 s{T0}, s{T0}, {XSZ}
    """)
    srd_reg(A, N.ST, T3, STSZ)
    A(f"""
    s_waitcnt lgkmcnt(0)
    s_cmp_eq_u32 s{N.FINAL}, 1
    s_cselect_b32 s{N.OUT}, s46, s{S_WS}
    s_cselect_b32 s{N.OUT+1}, s47, s{S_WS+1}
    s_cselect_b32 s{T0}, 0, s{T0}
    s_add_u32 s{N.OUT}, s{N.OUT}, s{T0}
    s_addc_u32 s{N.OUT+1}, s{N.OUT+1}, 0
    s_mov_b32 s{N.OUT+2}, {XSZ}
    s_mov_b32 s{N.OUT+3}, 0x20000
    v_lshlrev_b32 v{N.V_XD}, 4, v{V_LANE}
    s_lshl_b32 s{T0}, s{N.WT}, 12
    s_lshl_b32 s{T1}, s{N.WK}, 10
    s_add_u32 s{T0}, s{T0}, s{T1}
    v_add_u32 v{N.V_XR}, s{T0}, v{N.V_XD}
    s_lshl_b32 s{T0}, s{N.WK}, 2
    v_add_u32 v{V_TMP}, s{T0}, v{V_H}
    v_mul_u32_u24 v{N.V_WR}, 640, v{V_TMP}
    v_add_u32 v{N.V_WR}, {NW_BASE}, v{N.V_WR}
    v_and_b32 v{V_TMP}, 3, v{V_LANE}
    v_lshlrev_b32 v{V_TMP}, 3, v{V_TMP}
    v_add_u32 v{N.V_WR}, v{N.V_WR}, v{V_TMP}
    v_bfe_u32 v{V_TMP}, v{V_LANE}, 2, 2
    v_lshlrev_b32 v{V_TMP+1}, 5, v{V_TMP}
    v_add_u32 v{N.V_WR2}, v{N.V_WR}, v{V_TMP+1}
    v_add_u32 v{N.V_WR2}, 512, v{N.V_WR2}
    v_lshlrev_b32 v{V_TMP}, 6, v{V_TMP}
    v_add_u32 v{N.V_WR}, v{N.V_WR}, v{V_TMP}
    v_bfe_u32 v{V_TMP}, v{V_LANE}, 4, 1
    v_lshlrev_b32 v{V_TMP}, 5, v{V_TMP}
    v_add_u32 v{N.V_WR}, v{N.V_WR}, v{V_TMP}
    """)
    for r in range(48): A(f"v_mov_b32 v{N.V_ACC+r}, 0")
    A(f"""
    s_lshl_b32 s{T0}, s{N.TB}, 1
    s_add_u32 s{T0}, s{T0}, s{N.WT}
    s_mul_i32 s{T0}, s{T0}, 40
    s_mul_i32 s{T1}, s{N.CB}, 5
    s_add_u32 s{T0}, s{T0}, s{T1}
    s_mul_i32 s{T1}, s{N.WK}, 3
    s_add_u32 s{T0}, s{T0}, s{T1}
    s_lshl_b32 s{T3}, s{T0}, 10
    s_sub_u32 s{N.CNT}, s{N.NST}, 1
    """)
    stamp(A, 1)
    poll(A)
    A("s_barrier")
    stamp(A, 2)
    NR = "L_cn_nores"
    A(f"s_cmp_eq_u32 s{N.NST}, 10"); A(f"s_cselect_b32 s{T0}, s{S_L}, 1"); A(f"s_cmp_lg_u32 s{T0}, 0"); A(f"s_cbranch_scc1 {NR}")
    srd_const(A, N.R, XF[0], XSZ)
    for k in range(3):
        A(f"buffer_load_dwordx4 {v(V_RESP+4*k,4)}, v{N.V_XD}, s[{N.R}:{N.R+3}], s{T3} offen{off(1024*k)}")
    A.label(NR)
    A("s_barrier")
    stamp(A, 3)
    for r in n_reads(0): A(r)
    L = "L_cn_loop"; LODD = "L_cn_odd"; LDONE = "L_cn_loopdone"
    A(f"s_lshr_b32 s{N.CNT}, s{N.CNT}, 1")
    A(".p2align 4"); A.label(L)
    n_stage(A, 0); n_stage(A, 1)
    A(f"s_sub_u32 s{N.CNT}, s{N.CNT}, 1"); A(f"s_cmp_lg_u32 s{N.CNT}, 0"); A(f"s_cbranch_scc1 {L}")
    A(f"s_cmp_eq_u32 s{N.NST}, 27"); A(f"s_cbranch_scc1 {LODD}")
    n_stage(A, 0); n_stage(A, 1, last=True)
    A(f"s_branch {LDONE}")
    A.label(LODD)
    n_stage(A, 0, last=True)
    A.label(LDONE)
    stamp(A, 4)
    A(f"""
    s_mul_i32 s{T0}, s{N.WT}, 4096
    s_mul_i32 s{T1}, s{N.WT}, 6144
    s_add_u32 s{T0}, s{T0}, {N_XCH}
    s_add_u32 s{T1}, s{T1}, {N_XCH + 8192}
    s_cmp_eq_u32 s{N.WK}, 0
    s_cselect_b32 s{T2}, s{T0}, s{T1}
    s_cselect_b32 s{T1}, s{T1}, s{T0}
    v_add_u32 v{V_TMP}, s{T2}, v{N.V_XD}
    v_add_u32 v{V_TMP+1}, s{T1}, v{N.V_XD}
    s_lshl_b32 s{T0}, s{N.TB}, 1
    s_add_u32 s{T0}, s{T0}, s{N.WT}
    """)
    def areg(k): return n_acc(k >> 1) + 8*(k & 1)
    W1 = "L_cn_wk1"; FIN = "L_cn_fin"
    A(f"s_cmp_eq_u32 s{N.WK}, 0"); A(f"s_cbranch_scc0 {W1}")
    for wk in range(2):
        if wk == 1: A.label(W1)
        keep = (0, 1, 2) if wk == 0 else (3, 4)
        send = (3, 4) if wk == 0 else (0, 1, 2)
        for j, k in enumerate(send):
            A(f"ds_write_b128 v{V_TMP}, {v(areg(k),4)} offset:{2048*j}")
            A(f"ds_write_b128 v{V_TMP}, {v(areg(k)+4,4)} offset:{2048*j+1024}")
        A("s_waitcnt lgkmcnt(0)"); A("s_barrier")
        for j, k in enumerate(keep):
            A(f"ds_read_b128 {v(V_E+8*j,4)}, v{V_TMP+1} offset:{2048*j}")
            A(f"ds_read_b128 {v(V_E+8*j+4,4)}, v{V_TMP+1} offset:{2048*j+1024}")
        A(f"v_mov_b32 v{V_TMP+2}, 0"); A(f"v_mov_b32 v{V_TMP+3}, 0")
        A("s_waitcnt vmcnt(0) lgkmcnt(0)")
        for j, k in enumerate(keep):
            a_ = areg(k); p_ = V_E + 8*j; r_ = V_RESP + 4*j
            for pr in range(4): A(f"v_pk_add_f32 {v(a_+2*pr,2)}, {v(a_+2*pr,2)}, {v(p_+2*pr,2)}")
            for pr in range(4):
                A(f"v_lshlrev_b32 v{p_+2*pr}, 16, v{r_+pr}"); A(f"v_and_b32 v{p_+2*pr+1}, 0xffff0000, v{r_+pr}")
            for pr in range(4): A(f"v_pk_add_f32 {v(a_+2*pr,2)}, {v(a_+2*pr,2)}, {v(p_+2*pr,2)}")
            for pr in range(4): A(f"v_cvt_pk_bf16_f32 v{r_+pr}, v{a_+2*pr}, v{a_+2*pr+1}")
        OUTF = f"L_cn_rowmajor_{wk}"
        A(f"s_cmp_eq_u32 s{N.FINAL}, 1"); A(f"s_cbranch_scc1 {OUTF}")
        for j, k in enumerate(keep):
            A(f"buffer_store_dwordx4 {v(V_RESP+4*j,4)}, v{N.V_XD}, s[{N.OUT}:{N.OUT+3}], s{T3} offen{off(1024*j)}{SC}")
        for j, k in enumerate(keep):
            a_ = areg(k)
            for x in range(8):
                A(f"v_add_f32 v{V_TMP+2}, v{V_TMP+2}, v{a_+x}"); A(f"v_fmac_f32 v{V_TMP+3}, v{a_+x}, v{a_+x}")
        halfsum(A, V_TMP+2, V_TMP+4); halfsum(A, V_TMP+3, V_TMP+5)
        A(f"""
        s_lshl_b32 s{T0}, s{T0}, 12
        s_lshl_b32 s{T2}, s{N.CB}, 9
        s_add_u32 s{T0}, s{T0}, s{T2}
        s_add_u32 s{T0}, s{T0}, {8*wk}
        v_lshlrev_b32 v{V_TMP+4}, 4, v{V_T}
        buffer_store_dwordx2 {v(V_TMP+2,2)}, v{V_TMP+4}, s[{N.ST}:{N.ST+3}], s{T0} offen{SC}
        s_branch {FIN}
        """)
        A.label(OUTF)
        A(f"""
        s_lshl_b32 s{T0}, s{T0}, 5
        v_add_u32 v{V_TMP+4}, s{T0}, v{V_T}
        v_mul_u32_u24 v{V_TMP+4}, 1280, v{V_TMP+4}
        v_lshlrev_b32 v{V_TMP+5}, 4, v{V_H}
        v_add_u32 v{V_TMP+4}, v{V_TMP+4}, v{V_TMP+5}
        s_mul_i32 s{T2}, s{N.CB}, 160
        """)
        for j, k in enumerate(keep):
            r_ = V_RESP + 4*j
            A(f"v_permlane32_swap_b32 v{r_}, v{r_+2}"); A(f"v_permlane32_swap_b32 v{r_+1}, v{r_+3}")
        for j, k in enumerate(keep):
            A(f"buffer_store_dwordx4 {v(V_RESP+4*j,4)}, v{V_TMP+4}, s[{N.OUT}:{N.OUT+3}], s{T2} offen{off(32*k)}")
        stamp(A, 5); stamp(A, 6); stamp_phase(A)
        A(f"s_branch {L_END}")
    A.label(FIN)
    stamp(A, 5)
    A("s_waitcnt vmcnt(0)")
    A("s_barrier")
    notify(A)
    stamp(A, 6)
    stamp_phase(A)
    A(f"s_cmp_eq_u32 s{N.NST}, 10"); A(f"s_cbranch_scc1 {L_TO_FA}")
    A(f"s_add_u32 s{S_L}, s{S_L}, 1")
    A(f"s_branch {L_TO_QKV}")

def ln_setup_w(A):
    T0=N.T0; T1=N.T1; T2=N.T2
    A(f"""
    v_lshlrev_b32 v{N.V_XD}, 4, v{V_LANE}
    s_mov_b32 s{T0}, {hex(WOP)}
    s_mov_b32 s{T1}, {WOPSZ}
    s_cmp_eq_u32 s{N.NST}, 27
    s_cselect_b32 s{T0}, {hex(W2P)}, s{T0}
    s_cselect_b32 s{T1}, {W2PSZ}, s{T1}
    """)
    srd_reg(A, N.Wd, T0, f"s{T1}")
    A(f"""
    s_mul_i32 s{T0}, s{S_LW}, 3072
    s_cmp_eq_u32 s{S_LW}, 3
    s_cselect_b32 s{T0}, 8192, s{T0}
    s_add_u32 s{N.WM0}, s{T0}, {NW_BASE}
    s_lshl_b32 s{T1}, s{N.NK}, 2
    s_mul_i32 s{T1}, s{T1}, 640
    s_mul_i32 s{T1}, s{T1}, s{N.CB}
    s_add_u32 s{N.WOFF}, s{T1}, s{T0}
    s_mov_b32 s{N.FREE}, 0
    s_mov_b32 s{N.FREEX}, 0
    s_and_b32 s{N.WT}, s{S_LW}, 1
    s_lshr_b32 s{N.WK}, s{S_LW}, 1
    s_lshl_b32 s{N.XM0}, s{N.WT}, 12
    s_lshl_b32 s{T1}, s{N.WK}, 11
    s_add_u32 s{N.XM0}, s{N.XM0}, s{T1}
    """)
def ln_setup_x(A):
    T0=N.T0; T1=N.T1; T2=N.T2
    A(f"""
    s_mov_b32 s{T0}, {hex(OF)}
    s_mov_b32 s{T1}, {XSZ}
    s_cmp_eq_u32 s{N.NST}, 27
    s_cselect_b32 s{T0}, {hex(HF)}, s{T0}
    s_cselect_b32 s{T1}, {HSZ}, s{T1}
    s_mul_i32 s{T2}, s{S_L}, {hex(LSTRIDE)}
    s_add_u32 s{T0}, s{T0}, s{T2}
    """)
    srd_reg(A, N.X, T0, f"s{T1}")
    A(f"""
    s_lshl_b32 s{T0}, s{N.TB}, 1
    s_add_u32 s{T0}, s{T0}, s{N.WT}
    s_mul_i32 s{T0}, s{T0}, s{N.NK}
    s_lshl_b32 s{T1}, s{N.WK}, 1
    s_add_u32 s{T0}, s{T0}, s{T1}
    s_lshl_b32 s{N.XOFF}, s{T0}, 10
    """)
def ln_issue_x(A):
    A(f"s_add_u32 m0, s{N.FREEX}, s{N.XM0}")
    slot_wrap(A, N.FREEX, NX_SLOT, NX_N)
    for k in range(2): A(f"buffer_load_dwordx4 v{N.V_XD}, s[{N.X}:{N.X+3}], s{N.XOFF} offen{off(1024*k)} lds")
    A(f"s_add_u32 s{N.XOFF}, s{N.XOFF}, 4096")
def ln_make_issue_w(nw):
    def f(A):
        A(f"s_add_u32 m0, s{N.FREE}, s{N.WM0}")
        slot_wrap(A, N.FREE, NW_SLOT, NW_N)
        for k in range(nw): A(f"buffer_load_dwordx4 v{N.V_XD}, s[{N.Wd}:{N.Wd+3}], s{N.WOFF} offen{off(1024*k)} lds")
        A(f"s_add_u32 s{N.WOFF}, s{N.WOFF}, 10240")
    return f
def ln_prefetch_w(A, tag, nstage):
    for nw, cond in ((3, 0), (2, 1)):
        L = f"L_lnpf_{tag}_{nw}"; SK = f"L_lnpfs_{tag}_{nw}"
        A(f"s_cmp_lt_u32 s{S_LW}, 2"); A(f"s_cbranch_scc{cond} {SK}")
        if nstage == 0:
            A.label(SK); continue
        A(f"s_mov_b32 s{N.CNT}, {nstage}")
        A.label(L)
        ln_make_issue_w(nw)(A)
        A(f"s_sub_u32 s{N.CNT}, s{N.CNT}, 1"); A(f"s_cmp_lg_u32 s{N.CNT}, 0"); A(f"s_cbranch_scc1 {L}")
        A.label(SK)

def stamp(A, i):
    if asmlib.STAMP: A(f"s_memtime s[{66+2*i}:{67+2*i}]")
def stamp_phase(A):
    if not asmlib.STAMP: return
    A("s_memrealtime s[80:81]")
    A("s_waitcnt lgkmcnt(0)")
    A(f"s_add_u32 s84, s{S_WS}, 0x4000000"); A(f"s_addc_u32 s85, s{S_WS+1}, 0"); A("s_mov_b32 s86, 0x400000"); A("s_mov_b32 s87, 0x20000")
    A(f"s_lshl_b32 s90, s91, 17"); A(f"v_mov_b32 v250, s{S_WG}"); A("v_lshlrev_b32 v250, 9, v250")
    A(f"v_mov_b32 v251, s{S_WAVE}"); A("v_lshlrev_b32 v251, 6, v251"); A("v_add_u32 v250, v250, v251")
    for i in range(7):
        A(f"v_mov_b32 v251, s{66+2*i}"); A(f"buffer_store_dword v251, v250, s[84:87], s90 offen offset:{4*i}")
    A("v_mov_b32 v251, s80"); A("buffer_store_dword v251, v250, s[84:87], s90 offen offset:28")
    A("v_mov_b32 v251, s88"); A("buffer_store_dword v251, v250, s[84:87], s90 offen offset:32")
    A("v_mov_b32 v251, s64"); A("buffer_store_dword v251, v250, s[84:87], s90 offen offset:36")
    A("s_add_u32 s91, s91, 1")

def gen_mega(name):
    A = Asm()
    END = "L_end"
    A(f".globl {name}"); A(".p2align 8"); A(f".type {name},@function"); A.label(name)
    A(f"""
    s_load_dwordx2 s[{S_WS}:{S_WS+1}], s[0:1], {KA_WS}
    {'s_memrealtime s[88:89]' if asmlib.STAMP else ''}
    s_cmp_ge_u32 s{S_WG}, 256
    s_cbranch_scc1 {END}
    v_lshrrev_b32 v4, 6, v0
    v_and_b32 v{V_LANE}, 63, v0
    v_readfirstlane_b32 s{S_WAVE}, v4
    v_lshrrev_b32 v{V_H}, 5, v{V_LANE}
    v_and_b32 v{V_T}, 31, v{V_LANE}
    s_mov_b32 s{S_L}, 0
    s_mov_b32 s{S_OOB}, {hex(OOB)}
    s_mov_b32 s91, 0
    s_and_b32 s{S_LW}, s{S_WAVE}, 3
    s_waitcnt lgkmcnt(0)
    """)
    srd_const(A, S_FL, FLAGS, FLAGSZ)
    for r in (VP_OFF, VP_EXP, VP_OFF2, VP_EXP2, VP_MB): A(f"v_mov_b32 v{r}, s{S_OOB}")
    A(f"s_mov_b32 s{S_POFF}, 0"); A(f"s_mov_b32 s{S_NONCE}, 0")
    A(f"s_cmp_ge_u32 s{S_WAVE}, 4"); A("s_cbranch_scc1 L_loader")
    c_prep(A)
    if asmlib.STAMP: A("s_memrealtime s[64:65]")
    A.label("C_QKV")
    stamp(A, 0)
    wide_coords(A, False, W.TB, W.CB, W.T0, W.T1, W.T2, "C_ATT")
    w_params(A, False)
    A("s_branch C_WIDE")
    A.label("C_FA")
    stamp(A, 0)
    wide_coords(A, True, W.TB, W.CB, W.T0, W.T1, W.T2, "C_FB")
    w_params(A, True)
    A.label("C_WIDE")
    c_wide(A, "C_FB", "C_ATT")
    A.label("C_ATT")
    stamp(A, 0)
    c_att(A, "C_O")
    A.label("C_O")
    stamp(A, 0)
    n_params(A, False)
    A("s_branch C_NARROW")
    A.label("C_FB")
    stamp(A, 0)
    n_params(A, True)
    A.label("C_NARROW")
    c_narrow(A, "C_FA", "C_QKV", END)
    A(".p2align 6")
    A.label("L_loader")
    A(f"s_load_dwordx2 s[50:51], s[0:1], {KA_WQKV}"); A(f"s_load_dwordx2 s[52:53], s[0:1], {KA_DBG}")
    A("s_waitcnt lgkmcnt(0)")
    srd_ptr(A, W.Wd, 50, 640*3840); srd_const(A, W.X, XF[0], XSZ)
    for r in range(4, 9): A(f"v_mov_b32 v{r}, 0")
    A(f"s_or_b32 s92, s{S_WG}, s{S_LW}"); A("s_cmp_lg_u32 s92, 0"); A("s_cbranch_scc1 L_nonce_made")
    srd_ptr(A, 56, 52, 256)
    A(f"""
    v_mov_b32 v16, {NONCE-FLAGS}
    buffer_load_dword v14, v16, s[{S_FL}:{S_FL+3}], 0 offen sc0 sc1
    v_lshlrev_b32 v17, 7, v{V_LANE}
    s_waitcnt vmcnt(0)
    v_add_u32 v14, 1, v14
    v_mov_b32 v15, 1
    s_mov_b64 exec, 3
    buffer_store_dwordx2 v[14:15], v17, s[56:59], 0 offen sc0 sc1
    s_mov_b64 exec, 1
    buffer_store_dword v14, v16, s[{S_FL}:{S_FL+3}], 0 offen sc0 sc1
    s_mov_b64 exec, -1
    """)
    A.label("L_nonce_made")
    if CODE_PF:
        LP = A.newlabel("cpf"); LS_ = A.newlabel("cpfs")
        A(f"s_cmp_eq_u32 s{S_LW}, 0"); A(f"s_cbranch_scc1 {LS_}")
        A("s_getpc_b64 s[60:61]")
        A.label(LP)
        A(f"s_sub_u32 s60, s60, {LP}-{name}"); A("s_subb_u32 s61, s61, 0")
        A(f"s_mov_b32 s62, L_code_end-{name}"); A("s_mov_b32 s63, 0x20000")
        A(f"s_lshr_b32 s92, s{S_WG}, 3"); A("s_mul_i32 s92, s92, 3"); A(f"s_add_u32 s92, s92, s{S_LW}"); A("s_sub_u32 s92, s92, 1"); A("s_lshl_b32 s92, s92, 10")
        A(f"v_lshlrev_b32 v24, 4, v{V_LANE}")
        A("buffer_load_dwordx4 v[100:103], v24, s[60:63], s92 offen")
        A.label(LS_)
    l_prep(A)
    for r in range(4, 9): A(f"v_mov_b32 v{r}, 0")
    A(f"s_mov_b32 s{W.MODE}, 4")
    wide_coords(A, False, W.TB, W.CB, W.T0, W.T1, W.T2, "L_ATT")
    w_params(A, False)
    lw_setup_w(A, 50)
    lw_prefetch_w(A, WW_N)
    A.label("L_WIDE")
    A(f"""
    s_cmp_eq_u32 s{W.MODE}, 3
    s_cselect_b32 s{W.T0}, 1, 0
    s_lshl_b32 s{W.T1}, s{S_L}, 1
    s_add_u32 s{W.T0}, s{W.T0}, s{W.T1}
    s_mul_i32 s{W.T0}, s{W.T0}, {XSZ}
    """)
    srd_reg(A, W.X, W.T0, XSZ)
    A(f"""
    s_lshl_b32 s{W.T0}, s{W.TB}, 2
    s_add_u32 s{W.T0}, s{W.T0}, s{S_LW}
    s_mul_i32 s{W.XOFF}, s{W.T0}, 40960
    """)
    lw_stats_setup(A)
    A("s_barrier")
    if asmlib.STAMP: A("s_memtime s[66:67]")
    emit_sched(A, sched2(W.NST, WX_N, WW_N, WW_N), 4, 4, lw_issue_x, lw_issue_w, W.CNT, "lw", loads={6: (lw_stats_load, 8)}, post={8: lw_stats_post})
    if not EXP['nobar']: A("s_barrier")
    if asmlib.STAMP:
        A("s_waitcnt lgkmcnt(0)")
        A(f"s_add_u32 s88, s{S_WS}, 0x4400000"); A(f"s_addc_u32 s89, s{S_WS+1}, 0"); A("s_mov_b32 s90, 0x400000"); A("s_mov_b32 s91, 0x20000")
        A(f"s_cmp_eq_u32 s{W.MODE}, 3"); A("s_cselect_b32 s92, 1, 0"); A(f"s_lshl_b32 s93, s{S_L}, 1"); A("s_add_u32 s92, s92, s93"); A("s_lshl_b32 s92, s92, 17")
        A(f"v_mov_b32 v30, s{S_WG}"); A("v_lshlrev_b32 v30, 9, v30"); A(f"v_mov_b32 v31, s{S_WAVE}"); A("v_lshlrev_b32 v31, 6, v31"); A("v_add_u32 v30, v30, v31")
        for i in range(9):
            A(f"v_mov_b32 v31, s{66+2*i}"); A(f"buffer_store_dword v31, v30, s[88:91], s92 offen offset:{4*i}")
    A(f"s_cmp_eq_u32 s{W.MODE}, 3"); A("s_cbranch_scc1 L_wide_fa_end")
    A("s_barrier")
    A("s_branch L_ATT")
    A.label("L_wide_fa_end")
    n_params(A, True); ln_setup_w(A); ln_prefetch_w(A, "fb", PFN)
    A("s_barrier")
    ln_prefetch_w(A, "fbb", NW_N - PFN)
    A("s_branch L_NARROW")
    A.label("L_ATT")
    A("s_barrier")
    n_params(A, False); ln_setup_w(A)
    A("s_barrier")
    ln_prefetch_w(A, "o", PFN)
    A("s_barrier")
    ln_prefetch_w(A, "ob", 10 - PFN)
    A.label("L_NARROW")
    ln_setup_x(A)
    A("s_barrier")
    for nw in (3, 2):
        for nst in (10, 27):
            nxt = f"L_ln_next_{nw}_{nst}"
            A(f"s_cmp_lt_u32 s{S_LW}, 2"); A(f"s_cbranch_scc{0 if nw == 3 else 1} {nxt}")
            A(f"s_cmp_eq_u32 s{N.NST}, {nst}"); A(f"s_cbranch_scc0 {nxt}")
            emit_sched(A, sched2(nst, NX_N, NW_N, min(nst, NW_N)), 2, nw, ln_issue_x, ln_make_issue_w(nw), N.CNT, f"ln{nw}_{nst}")
            A("s_branch L_ln_done")
            A.label(nxt)
    A.label("L_ln_done")
    A("s_barrier")
    A(f"s_cmp_eq_u32 s{N.NST}, 27"); A("s_cbranch_scc1 L_after_fb")
    wide_coords(A, True, W.TB, W.CB, W.T0, W.T1, W.T2, "L_o_fa_idle")
    w_params(A, True)
    A(f"s_load_dwordx2 s[50:51], s[0:1], {KA_W1}"); A("s_waitcnt lgkmcnt(0)")
    lw_setup_w(A, 50); lw_prefetch_w(A, PFW)
    A("s_barrier")
    lw_prefetch_w(A, WW_N - PFW)
    A("s_branch L_WIDE")
    A.label("L_o_fa_idle")
    A("s_barrier")
    n_params(A, True); ln_setup_w(A); ln_prefetch_w(A, "fb2", NW_N)
    A("s_branch L_NARROW")
    A.label("L_after_fb")
    A(f"s_cmp_eq_u32 s{S_L}, 1"); A(f"s_cbranch_scc1 {END}")
    A(f"s_mov_b32 s{S_L}, 1")
    wide_coords(A, False, W.TB, W.CB, W.T0, W.T1, W.T2, "L_fb_qkv_idle")
    w_params(A, False)
    A(f"s_load_dwordx2 s[50:51], s[0:1], {KA_WQKV}"); A("s_waitcnt lgkmcnt(0)")
    lw_setup_w(A, 50); lw_prefetch_w(A, PFW)
    A("s_barrier")
    lw_prefetch_w(A, WW_N - PFW)
    A("s_branch L_WIDE")
    A.label("L_fb_qkv_idle")
    A("s_barrier")
    A("s_branch L_ATT")
    A.label(END)
    A("s_endpgm")
    A.label("L_code_end")
    desc = f""".section .rodata,"a"
.p2align 6
.amdhsa_kernel {name}
  .amdhsa_next_free_vgpr 256
  .amdhsa_next_free_sgpr 102
  .amdhsa_accum_offset 256
  .amdhsa_group_segment_fixed_size 0
  .amdhsa_kernarg_size 72
  .amdhsa_user_sgpr_count 2
  .amdhsa_user_sgpr_kernarg_segment_ptr 1
  .amdhsa_system_sgpr_workgroup_id_x 1
  .amdhsa_float_denorm_mode_32 3
.end_amdhsa_kernel
.text
"""
    return A, desc

def build(path, name="interleave_layers__mha_block__dense_activation_silu__prompt_kernel"):
    hdr = open('interleave_layers__mha_block__dense_activation_silu__prompt.s.ref').read().split("; Override launch")[0]
    A, desc = gen_mega(name)
    lines, n = hazard_pass(A.lines)
    A.lines = lines
    out = hdr + f"; @launch grid=(256,1,1) block=(512,1,1) lds={LDS_BYTES}\n" + '.amdgcn_target "amdgcn-amd-amdhsa--gfx950"\n.text\n' + A.text() + desc
    open(path, 'w').write(out)
    print(path, 'nops', n, 'lines', len(out.splitlines()), 'bytes', len(out))
if __name__ == "__main__":
    build('mega.s')
    asmlib.STAMP = True
    build('mega_stamp.s')
```

```python
from asmlib import *
from mlayout import *
import asmlib, struct
def f2u(x): return struct.unpack("<I", struct.pack("<f", x))[0]
QSCALE = (DH ** -0.5) * 1.4426950408889634
SC = " sc0 sc1"
OOB = 0x7f000000
CODE_PF = True
PF0 = 0
PFN = 3
NFIRST = 4
PFW = 2
EXP = dict(nowait=False, nomfma=False, nodma=False, nobar=False, noread=False)

S_WG=2; S_WAVE=3; S_WS=4; S_NONCE=6; S_L=7
S_K16=63; S_K8=62; S_K10=61; S_FOFF=94; S_PCNT=95; S_FL=96; S_LW=100; S_OOB=101
V_LANE=1; V_H=2; V_T=3
V_RESP=232
WW_BASE=0; WW_N=6; WX_BASE=98304; WX_N=3; W_SLOT=16384; W_SCR=147456
NX_BASE=0; NX_N=6; NX_SLOT=8192; NW_BASE=49152; NW_N=10; NW_SLOT=10240; N_XCH=120832
A_CMB=0
P_SCR=126976
LDS_BYTES=163840

def srd_const(A, d, off, size):
    A(f"s_add_u32 s{d}, s{S_WS}, {hex(off)}"); A(f"s_addc_u32 s{d+1}, s{S_WS+1}, 0")
    A(f"s_mov_b32 s{d+2}, {size}"); A(f"s_mov_b32 s{d+3}, 0x20000")
def srd_reg(A, d, soff, size):
    A(f"s_add_u32 s{d}, s{S_WS}, s{soff}"); A(f"s_addc_u32 s{d+1}, s{S_WS+1}, 0")
    A(f"s_mov_b32 s{d+2}, {size}"); A(f"s_mov_b32 s{d+3}, 0x20000")
def srd_ptr(A, d, p, size):
    A(f"s_mov_b32 s{d}, s{p}"); A(f"s_mov_b32 s{d+1}, s{p+1}")
    A(f"s_mov_b32 s{d+2}, {size}"); A(f"s_mov_b32 s{d+3}, 0x20000")
def halfsum(A, x, tmp):
    A(f"v_mov_b32 v{tmp}, v{x}"); A(f"v_permlane32_swap_b32 v{x}, v{tmp}"); A(f"v_add_f32 v{x}, v{x}, v{tmp}")
def off(x): return f" offset:{x}" if x else ""

def sched2(nst, nxs, nws, prew, first=2):
    out = []; nx = 0; nw = prew
    for j in range(-1, nst-1):
        ops = []; n = 0
        while nx < nst and nx - nxs + 1 <= j and (n < (first if j == -1 else 2) or nx <= j + 1):
            ops.append(('X', nx)); nx += 1; n += 1
        n = 0
        while nw < nst and nw - nws + 1 <= j and (n < 1 or nw <= j + 1):
            ops.append(('W', nw)); nw += 1; n += 1
        assert nx > j + 1 and max(nw, prew) > j + 1
        out.append((ops, j + 1))
    return out
def emit_sched(A, sched, cx, cw, issue_x, issue_w, scnt, tag, loads=None, post=None):
    loads = loads or {}; post = post or {}
    q = []; items = []
    for n, (ops, tgt) in enumerate(sched):
        for kind, s_ in ops: q.append((kind, s_, cx if kind == 'X' else cw))
        if n in loads: q.append(('E', -1, loads[n][1]))
        idx = max(i for i, (k, st, c) in enumerate(q) if st == tgt)
        wait = sum(c for (k, st, c) in q[idx+1:])
        items.append((tuple(k for k, _ in ops), wait, n if (n in loads or n in post) else None))
    i = 0; k = 0; first = [True]; nb = [1]
    while i < len(items):
        j = i
        while j < len(items) and items[j] == items[i]: j += 1
        if EXP['nobar'] and i == 0: j = 1
        run = j - i; kinds, w, hook = items[i]
        assert w <= 63
        def body():
            if not EXP['nodma']:
                for kd in kinds: (issue_x if kd == 'X' else issue_w)(A)
            if hook in loads: loads[hook][0](A)
            if not EXP['nowait']: A(f"s_waitcnt vmcnt({w})")
            if hook in post: post[hook](A)
            if not (EXP['nobar'] and tag == "lw" and not first[0]): A("s_barrier")
            first[0] = False
            if asmlib.STAMP and tag == "lw" and nb[0] < 9:
                A(f"s_memtime s[{66+2*nb[0]}:{67+2*nb[0]}]"); nb[0] += 1
        if run >= 3 and not (asmlib.STAMP and tag == "lw"):
            L = f"L_{tag}_{k}"; k += 1
            A(f"s_mov_b32 s{scnt}, {run}"); A.label(L); body()
            A(f"s_sub_u32 s{scnt}, s{scnt}, 1"); A(f"s_cmp_lg_u32 s{scnt}, 0"); A(f"s_cbranch_scc1 {L}")
        else:
            for _ in range(run): body()
        i = j

VP_OFF=244; VP_EXP=245; VP_OFF2=246; VP_EXP2=247; VP_D=248; VP_D2=249; VP_T=12; VP_MB=252
S_POFF=94
def notify(A):
    L = A.newlabel("fl")
    A(f"s_cmp_lg_u32 s{S_WAVE}, 0"); A(f"s_cbranch_scc1 {L}")
    A(f"v_mov_b32 v{VP_D}, s{S_NONCE}")
    A(f"buffer_store_dword v{VP_D}, v{VP_MB}, s[{S_FL}:{S_FL+3}], 0 offen sc0 sc1")
    A.label(L)
def only_w0(A):
    L = A.newlabel("w0"); A(f"s_cmp_lg_u32 s{S_WAVE}, 0"); A(f"s_cbranch_scc1 {L}"); return L
def mb_finish(A, idx, slot, nvalid_cmp, region, shift=7):
    A(f"v_lshlrev_b32 v{idx}, {shift}, v{idx}")
    A(f"v_lshl_add_u32 v{VP_MB}, v{slot}, 2, v{idx}")
    A(f"v_add_u32 v{VP_MB}, s{region}, v{VP_MB}")
    A(f"v_mov_b32 v{idx}, s{S_OOB}")
    A(f"v_cndmask_b32 v{VP_MB}, v{idx}, v{VP_MB}, vcc")
def region(A, dst, base, layer_add=0):
    A(f"s_add_u32 s{dst}, s{S_L}, {layer_add}") if layer_add else A(f"s_mov_b32 s{dst}, s{S_L}")
    A(f"s_mul_i32 s{dst}, s{dst}, {hex(MB_LAYER)}"); A(f"s_add_u32 s{dst}, s{dst}, {hex(base)}")
def poll(A, two=False):
    L = A.newlabel("poll"); Dn = A.newlabel("polld")
    A(f"s_cmp_lg_u32 s{S_WAVE}, 0"); A(f"s_cbranch_scc1 {Dn}")
    A(f"s_mov_b32 s{S_PCNT}, 0x10000")
    A.label(L)
    A(f"buffer_load_dword v{VP_D}, v{VP_OFF}, s[{S_FL}:{S_FL+3}], s{S_POFF} offen sc0 sc1")
    if two: A(f"buffer_load_dword v{VP_D2}, v{VP_OFF2}, s[{S_FL}:{S_FL+3}], s{S_POFF} offen sc0 sc1")
    A("s_waitcnt vmcnt(0)")
    A(f"v_cmp_eq_u32 vcc, v{VP_D}, v{VP_EXP}")
    if two:
        A(f"v_cmp_eq_u32 s[92:93], v{VP_D2}, v{VP_EXP2}")
        A("s_and_b64 vcc, vcc, s[92:93]")
    A("s_cmp_eq_u64 vcc, exec")
    A(f"s_cbranch_scc1 {Dn}")
    A(f"s_sub_u32 s{S_PCNT}, s{S_PCNT}, 1"); A(f"s_cmp_lg_u32 s{S_PCNT}, 0"); A(f"s_cbranch_scc1 {L}")
    A.label(Dn)
def poll_slots(A, n_sreg_or_const):
    A(f"v_lshlrev_b32 v{VP_OFF}, 2, v{V_LANE}")
    A(f"v_cmp_gt_u32 vcc, {n_sreg_or_const}, v{V_LANE}")
    A(f"v_mov_b32 v{VP_T}, s{S_OOB}")
    A(f"v_mov_b32 v{VP_EXP}, s{S_NONCE}")
    A(f"v_cndmask_b32 v{VP_OFF}, v{VP_T}, v{VP_OFF}, vcc")
    A(f"v_cndmask_b32 v{VP_EXP}, 0, v{VP_EXP}, vcc")
def mb_from_prep(A, t):
    I=VP_T; S_=VP_T+1; X=VP_T+2
    A(f"""
    s_lshr_b32 s{t}, s{S_WG}, 4
    v_lshlrev_b32 v{I}, 4, v{V_LANE}
    v_add_u32 v{I}, s{t}, v{I}
    s_and_b32 s{t}, s{S_WG}, 15
    v_mov_b32 v{S_}, s{t}
    s_lshr_b32 s{t}, s{S_WG}, 3
    s_lshl_b32 s{t}, s{t}, 4
    s_sub_u32 s{t}, s{t}, 16
    v_add_u32 v{X}, s{t}, v{V_LANE}
    v_bfe_u32 v{X+1}, v{V_LANE}, 4, 2
    v_cmp_eq_u32 vcc, 1, v{X+1}
    s_and_b32 s{t}, s{S_WG}, 7
    s_add_u32 s{t}, s{t}, 16
    v_mov_b32 v{X+1}, s{t}
    v_cndmask_b32 v{I}, v{I}, v{X}, vcc
    v_cndmask_b32 v{S_}, v{S_}, v{X+1}, vcc
    s_cmp_lt_u32 s{S_WG}, 120
    s_cselect_b64 s[92:93], -1, 0
    s_and_b64 s[92:93], s[92:93], vcc
    v_cmp_gt_u32 vcc, 15, v{V_LANE}
    s_or_b64 vcc, vcc, s[92:93]
    s_mov_b32 s{t}, {MB_QKV}
    """)
    mb_finish(A, I, S_, None, t)
def mb_from_qkv(A, t0, t1, t2):
    I=VP_T; S_=VP_T+1; X=VP_T+2; Y=VP_T+3
    A(f"""
    s_mul_i32 s{t0}, s{W.CB}, 205
    s_lshr_b32 s{t0}, s{t0}, 10
    s_mul_i32 s{t1}, s{t0}, 5
    s_sub_u32 s{t1}, s{W.CB}, s{t1}
    s_lshl_b32 s{t2}, s{t1}, 7
    s_mul_i32 s{S_PCNT}, s{t2}, 3277
    s_lshr_b32 s{S_PCNT}, s{S_PCNT}, 16
    s_add_u32 s{t2}, s{t2}, 127
    s_mul_i32 s{t2}, s{t2}, 3277
    s_lshr_b32 s{t2}, s{t2}, 16
    """)
    LQ = A.newlabel("mbq"); LD = A.newlabel("mbd")
    A(f"s_cmp_eq_u32 s{t0}, 0"); A(f"s_cbranch_scc1 {LQ}")
    A(f"""
    v_lshrrev_b32 v{X}, 3, v{V_LANE}
    v_add_u32 v{X}, s{S_PCNT}, v{X}
    v_and_b32 v{I}, 7, v{V_LANE}
    v_lshl_add_u32 v{I}, v{I}, 5, v{X}
    v_mul_u32_u24 v{Y}, 20, v{X}
    v_lshrrev_b32 v{Y}, 7, v{Y}
    v_cmp_ne_u32 vcc, s{t1}, v{Y}
    s_sub_u32 s{t0}, s{t0}, 1
    s_lshl_b32 s{t0}, s{t0}, 5
    s_add_u32 s{t0}, s{t0}, s{W.TB}
    v_mov_b32 v{S_}, s{t0}
    v_add_u32 v{Y}, 16, v{S_}
    v_cndmask_b32 v{S_}, v{S_}, v{Y}, vcc
    v_cmp_ge_u32 vcc, s{t2}, v{X}
    s_branch {LD}
    """)
    A.label(LQ)
    A(f"""
    v_add_u32 v{X}, s{S_PCNT}, v{V_LANE}
    s_lshr_b32 s{t0}, s{W.TB}, 1
    s_lshl_b32 s{t0}, s{t0}, 5
    v_add_u32 v{I}, s{t0}, v{X}
    v_mul_u32_u24 v{Y}, 20, v{X}
    v_lshrrev_b32 v{Y}, 7, v{Y}
    v_cmp_ne_u32 vcc, s{t1}, v{Y}
    s_and_b32 s{t0}, s{W.TB}, 1
    s_add_u32 s{t0}, s{t0}, 64
    v_mov_b32 v{S_}, s{t0}
    v_add_u32 v{Y}, 2, v{S_}
    v_cndmask_b32 v{S_}, v{S_}, v{Y}, vcc
    v_cmp_ge_u32 vcc, s{t2}, v{X}
    v_cmp_gt_u32 s[92:93], 8, v{V_LANE}
    s_and_b64 vcc, vcc, s[92:93]
    """)
    A.label(LD)
    region(A, t0, MB_ATT)
    mb_finish(A, I, S_, None, t0, shift=9)
def mb_simple(A, t, idx_base_expr, lane_shift, slot_sreg, nvalid, base, layer_add=0):
    I=VP_T; S_=VP_T+1
    A(f"v_lshlrev_b32 v{I}, {lane_shift}, v{V_LANE}") if lane_shift else A(f"v_mov_b32 v{I}, v{V_LANE}")
    A(f"v_add_u32 v{I}, s{idx_base_expr}, v{I}")
    A(f"v_mov_b32 v{S_}, s{slot_sreg}")
    A(f"v_cmp_gt_u32 vcc, {nvalid}, v{V_LANE}")
    region(A, t, base, layer_add)
    mb_finish(A, I, S_, None, t)

def sync_wide(A):
    L = only_w0(A)
    LF = A.newlabel("swf"); LD = A.newlabel("swd")
    A(f"s_cmp_eq_u32 s{W.MODE}, 3"); A(f"s_cbranch_scc1 {LF}")
    mb_from_qkv(A, W.T0, W.T1, W.T2)
    A(f"s_branch {LD}")
    A.label(LF)
    A(f"s_lshl_b32 s{W.T0}, s{W.TB}, 4")
    mb_simple(A, W.T1, W.T0, 0, W.CB, 16, MB_FB)
    A.label(LD)
    A(f"""
    s_lshl_b32 s{W.T0}, s{W.CB}, 4
    s_add_u32 s{W.T0}, s{W.T0}, s{W.TB}
    s_lshl_b32 s{W.T1}, s{W.TB}, 4
    s_add_u32 s{W.T1}, s{W.T1}, s{W.CB}
    s_cmp_eq_u32 s{W.MODE}, 3
    s_cselect_b32 s{W.T0}, s{W.T1}, s{W.T0}
    s_cselect_b32 s{W.T2}, {hex(MB_FA)}, {MB_QKV}
    s_lshl_b32 s{W.T0}, s{W.T0}, 7
    s_add_u32 s{W.T0}, s{W.T0}, s{W.T2}
    s_mul_i32 s{S_POFF}, s{S_L}, {hex(MB_LAYER)}
    s_add_u32 s{S_POFF}, s{S_POFF}, s{W.T0}
    s_cmp_eq_u32 s{W.MODE}, 3
    s_cselect_b32 s{W.T1}, 1, s{S_L}
    s_cmp_eq_u32 s{W.T1}, 0
    s_cselect_b32 s{W.T1}, 24, 16
    """)
    poll_slots(A, f"s{W.T1}")
    A.label(L)
def sync_att(A):
    L = only_w0(A)
    CA=40; CB_=41; T0=46; T1=47
    A(f"s_lshl_b32 s{T0}, s{T.QB}, 5")
    mb_simple(A, T1, T0, 0, T.HEAD, 32, MB_O)
    A(f"""
    s_mul_i32 s{T0}, s{T.HEAD}, 20
    s_lshr_b32 s{CA}, s{T0}, 7
    s_add_u32 s{T0}, s{T0}, 19
    s_lshr_b32 s{CB_}, s{T0}, 7
    s_cmp_lg_u32 s{CA}, s{CB_}
    s_cselect_b64 s[92:93], -1, 0
    v_lshlrev_b32 v{VP_OFF}, 2, v{V_LANE}
    v_bfe_u32 v{VP_T}, v{V_LANE}, 4, 1
    v_cmp_eq_u32 vcc, 0, v{VP_T}
    s_or_b64 vcc, vcc, s[92:93]
    v_mov_b32 v{VP_T}, s{S_OOB}
    v_mov_b32 v{VP_EXP}, s{S_NONCE}
    v_cndmask_b32 v{VP_OFF}, v{VP_T}, v{VP_OFF}, vcc
    v_cndmask_b32 v{VP_EXP}, 0, v{VP_EXP}, vcc
    v_lshlrev_b32 v{VP_OFF2}, 2, v{V_LANE}
    v_add_u32 v{VP_OFF2}, 256, v{VP_OFF2}
    v_cmp_gt_u32 vcc, 2, v{V_LANE}
    v_cmp_gt_u32 s[48:49], 4, v{V_LANE}
    s_and_b64 s[48:49], s[48:49], s[92:93]
    s_or_b64 vcc, vcc, s[48:49]
    v_mov_b32 v{VP_EXP2}, s{S_NONCE}
    v_cndmask_b32 v{VP_OFF2}, v{VP_T}, v{VP_OFF2}, vcc
    v_cndmask_b32 v{VP_EXP2}, 0, v{VP_EXP2}, vcc
    """)
    region(A, S_POFF, MB_ATT)
    A(f"s_lshl_b32 s{T0}, s{S_WG}, 9"); A(f"s_add_u32 s{S_POFF}, s{S_POFF}, s{T0}")
    A.label(L)
def sync_narrow(A):
    L = only_w0(A)
    LFB = A.newlabel("snf"); LD = A.newlabel("snd")
    A(f"s_and_b32 s60, s{N.TB}, 1"); A(f"s_lshl_b32 s60, s60, 3"); A(f"s_add_u32 s60, s60, s{N.CB}"); A(f"s_lshr_b32 s59, s{N.TB}, 1")
    A(f"s_cmp_eq_u32 s{N.NST}, 27"); A(f"s_cbranch_scc1 {LFB}")
    A(f"s_lshl_b32 s59, s59, 4")
    mb_simple(A, 58, 59, 0, 60, 14, MB_FA)
    A(f"s_branch {LD}")
    A.label(LFB)
    mb_simple(A, 58, 59, 4, 60, 15, MB_QKV, layer_add=1)
    A.label(LD)
    A(f"""
    s_lshl_b32 s{N.T0}, s{N.TB}, 3
    s_add_u32 s{N.T0}, s{N.T0}, s{N.CB}
    s_lshl_b32 s{N.T0}, s{N.T0}, 7
    s_mov_b32 s{N.T1}, {hex(MB_O)}
    s_cmp_eq_u32 s{N.NST}, 27
    s_cselect_b32 s{N.T1}, {hex(MB_FB)}, s{N.T1}
    s_cselect_b32 s{N.T2}, 14, 32
    s_add_u32 s{N.T0}, s{N.T0}, s{N.T1}
    s_mul_i32 s{S_POFF}, s{S_L}, {hex(MB_LAYER)}
    s_add_u32 s{S_POFF}, s{S_POFF}, s{N.T0}
    """)
    poll_slots(A, f"s{N.T2}")
    A.label(L)

def wide_coords(A, ffn, tb, cb, t0, t1, t2, idle_label):
    A(f"""
    s_and_b32 s{t0}, s{S_WG}, 7
    s_lshr_b32 s{t1}, s{S_WG}, 3
    s_and_b32 s{tb}, s{t0}, 3
    s_lshl_b32 s{tb}, s{tb}, 2
    s_and_b32 s{t2}, s{t1}, 3
    s_add_u32 s{tb}, s{tb}, s{t2}
    s_lshr_b32 s{t0}, s{t0}, 2
    s_lshr_b32 s{t1}, s{t1}, 2
    """)
    if ffn:
        A(f"s_mul_i32 s{cb}, s{t0}, 7"); A(f"s_add_u32 s{cb}, s{cb}, s{t1}")
        A(f"s_cmp_ge_u32 s{t1}, 7"); A(f"s_cbranch_scc1 {idle_label}")
    else:
        A(f"s_lshl_b32 s{cb}, s{t0}, 3"); A(f"s_add_u32 s{cb}, s{cb}, s{t1}")
        A(f"s_cmp_ge_u32 s{cb}, 15"); A(f"s_cbranch_scc1 {idle_label}")
def narrow_coords(A, tb, cb, t0, t1, t2):
    A(f"""
    s_and_b32 s{t0}, s{S_WG}, 7
    s_lshr_b32 s{t1}, s{S_WG}, 3
    s_and_b32 s{tb}, s{t0}, 3
    s_lshl_b32 s{tb}, s{tb}, 3
    s_and_b32 s{t2}, s{t1}, 7
    s_add_u32 s{tb}, s{tb}, s{t2}
    s_lshr_b32 s{t0}, s{t0}, 2
    s_lshl_b32 s{t0}, s{t0}, 2
    s_lshr_b32 s{t1}, s{t1}, 3
    s_add_u32 s{cb}, s{t0}, s{t1}
    """)

def packaddr(A, dst, vsrc, add, kq640, stmp):
    A(f"""
    v_lshrrev_b32 v72, 4, v{vsrc}
    v_add_u32 v72, {add}, v72
    s_mov_b32 s{stmp}, 0xcccccccd
    v_mul_hi_u32 v73, v72, s{stmp}
    v_lshrrev_b32 v73, 6, v73
    v_mul_u32_u24 v74, 80, v73
    v_sub_u32 v74, v72, v74
    v_mul_u32_u24 v75, 6554, v74
    v_lshrrev_b32 v75, 16, v75
    v_mul_u32_u24 v76, 10, v75
    v_sub_u32 v76, v74, v76
    s_mov_b32 s{stmp}, {kq640}
    v_mul_lo_u32 v{dst}, v75, s{stmp}
    v_lshrrev_b32 v77, 2, v73
    v_mul_u32_u24 v77, 640, v77
    v_add_u32 v{dst}, v{dst}, v77
    v_and_b32 v73, 3, v73
    v_lshrrev_b32 v77, 2, v76
    v_lshlrev_b32 v77, 8, v77
    v_lshlrev_b32 v78, 6, v73
    v_add_u32 v77, v77, v78
    v_and_b32 v78, 3, v76
    v_lshlrev_b32 v78, 4, v78
    v_add_u32 v77, v77, v78
    v_lshlrev_b32 v78, 5, v73
    v_and_b32 v79, 1, v76
    v_lshlrev_b32 v79, 4, v79
    v_add_u32 v78, v78, v79
    v_add_u32 v78, 512, v78
    v_cmp_gt_u32 vcc, 8, v76
    v_cndmask_b32 v77, v78, v77, vcc
    v_add_u32 v{dst}, v{dst}, v77
    v_cmp_gt_u32 vcc, {kq640*8//16}, v72
    v_mov_b32 v78, s{S_OOB}
    v_cndmask_b32 v{dst}, v78, v{dst}, vcc
    """)

def pack_unit(A, sunit, WO, W2, WOPD, W2PD, t0, t1, t2, t3, lds_base_sreg, part="both", wait=0):
    if part == "finish":
        pack_finish(A, t2, wait); return
    L2 = A.newlabel("pk2"); LG = A.newlabel("pkg")
    A(f"s_cmp_ge_u32 s{sunit}, 320"); A(f"s_cbranch_scc1 {L2}")
    A(f"""
    s_mul_i32 s{t0}, s{sunit}, 1639
    s_lshr_b32 s{t0}, s{t0}, 16
    s_mul_i32 s{t1}, s{t0}, 40
    s_sub_u32 s{t1}, s{sunit}, s{t1}
    s_mul_i32 s{t2}, s{sunit}, 2560
    s_mov_b32 s56, s{WO}
    s_mov_b32 s57, s{WO+1}
    s_mov_b32 s58, s{WO+2}
    s_mov_b32 s60, s{WOPD}
    s_mov_b32 s61, s{WOPD+1}
    s_mov_b32 s62, s{WOPD+2}
    s_branch {LG}
    """)
    A.label(L2)
    A(f"""
    s_sub_u32 s{t3}, s{sunit}, 320
    s_mul_i32 s{t0}, s{t3}, 607
    s_lshr_b32 s{t0}, s{t0}, 16
    s_mul_i32 s{t1}, s{t0}, 108
    s_sub_u32 s{t1}, s{t3}, s{t1}
    s_mul_i32 s{t2}, s{t3}, 2560
    s_mov_b32 s56, s{W2}
    s_mov_b32 s57, s{W2+1}
    s_mov_b32 s58, s{W2+2}
    s_mov_b32 s60, s{W2PD}
    s_mov_b32 s61, s{W2PD+1}
    s_mov_b32 s62, s{W2PD+2}
    """)
    A.label(LG)
    A(f"""
    s_mov_b32 s59, 0x20000
    s_mov_b32 s63, 0x20000
    s_mul_i32 s{t1}, s{t1}, {16*1280}
    s_mul_i32 s{t0}, s{t0}, 160
    s_add_u32 s{t0}, s{t0}, s{t1}
    """)
    for i in range(3):
        A(f"""
        v_add_u32 v20, {64*i}, v{V_LANE}
        v_mul_u32_u24 v21, 6554, v20
        v_lshrrev_b32 v21, 16, v21
        v_mul_u32_u24 v22, 10, v21
        v_sub_u32 v22, v20, v22
        v_mul_u32_u24 v23, 1280, v21
        v_lshl_add_u32 v23, v22, 4, v23
        v_lshrrev_b32 v24, 2, v21
        v_mul_u32_u24 v24, 640, v24
        v_and_b32 v21, 3, v21
        v_lshrrev_b32 v25, 2, v22
        v_lshlrev_b32 v25, 8, v25
        v_lshl_add_u32 v25, v21, 6, v25
        v_and_b32 v26, 3, v22
        v_lshl_add_u32 v25, v26, 4, v25
        v_lshlrev_b32 v26, 5, v21
        v_and_b32 v27, 1, v22
        v_lshl_add_u32 v26, v27, 4, v26
        v_add_u32 v26, 512, v26
        v_cmp_gt_u32 vcc, 8, v22
        v_cndmask_b32 v25, v26, v25, vcc
        v_add_u32 v24, v24, v25
        v_add_u32 v{28+i}, s{lds_base_sreg}, v24
        """)
        if i == 2:
            A(f"v_cmp_gt_u32 vcc, 160, v20"); A(f"v_mov_b32 v21, s{S_OOB}"); A("v_cndmask_b32 v23, v21, v23, vcc")
        A(f"buffer_load_dwordx4 v[{32+4*i}:{35+4*i}], v23, s[56:59], s{t0} offen")
    A(f"""
    v_mul_u32_u24 v20, 640, v{V_H}
    v_add_u32 v20, s{lds_base_sreg}, v20
    v_and_b32 v21, 3, v{V_LANE}
    v_lshl_add_u32 v20, v21, 3, v20
    v_bfe_u32 v21, v{V_LANE}, 2, 2
    v_lshl_add_u32 v22, v21, 5, v20
    v_add_u32 v22, 512, v22
    v_lshl_add_u32 v20, v21, 6, v20
    v_bfe_u32 v21, v{V_LANE}, 4, 1
    v_lshl_add_u32 v20, v21, 5, v20
    v_lshlrev_b32 v24, 4, v{V_LANE}
    v_and_b32 v25, 15, v{V_LANE}
    v_lshlrev_b32 v25, 4, v25
    v_lshl_add_u32 v25, v{V_H}, 8, v25
    v_add_u32 v25, 2048, v25
    v_cmp_eq_u32 vcc, 0, v21
    v_mov_b32 v26, s{S_OOB}
    v_cndmask_b32 v25, v26, v25, vcc
    """)
    if part == "both": pack_finish(A, t2, 0)
def pack_finish(A, t2, wait):
    A(f"""
    s_waitcnt vmcnt({wait})
    ds_write_b128 v28, v[32:35]
    ds_write_b128 v29, v[36:39]
    """)
    A("s_mov_b32 exec_hi, 0")
    A("ds_write_b128 v30, v[40:43]")
    A("s_mov_b32 exec_hi, -1")
    A(f"""
    s_waitcnt lgkmcnt(0)
    ds_read_b64_tr_b16 v[32:33], v20
    ds_read_b64_tr_b16 v[34:35], v20 offset:1280
    ds_read_b64_tr_b16 v[36:37], v20 offset:256
    ds_read_b64_tr_b16 v[38:39], v20 offset:1536
    ds_read_b64_tr_b16 v[40:41], v22
    ds_read_b64_tr_b16 v[42:43], v22 offset:1280
    s_waitcnt lgkmcnt(0)
    buffer_store_dwordx4 v[32:35], v24, s[60:63], s{t2} offen{SC}
    buffer_store_dwordx4 v[36:39], v24, s[60:63], s{t2} offen offset:1024{SC}
    buffer_store_dwordx4 v[40:43], v25, s[60:63], s{t2} offen{SC}
    """)

def c_prep(A):
    X=20; XF0=24; ST0=28; WO=32; W2=36; WOPD=48; W2PD=52
    TT=64; Q=65; T0=66; T1=67; T2=68; T3=69; K3=82
    A(f"""
    s_load_dwordx2 s[8:9], s[0:1], {KA_X}
    s_load_dwordx2 s[12:13], s[0:1], {KA_WO}
    s_load_dwordx2 s[18:19], s[0:1], {KA_W2}
    s_load_dwordx2 s[10:11], s[0:1], {KA_DBG}
    s_lshr_b32 s{TT}, s{S_WG}, 2
    s_and_b32 s{Q}, s{S_WG}, 3
    s_lshl_b32 s{T0}, s{TT}, 5
    v_add_u32 v5, s{T0}, v{V_T}
    v_mul_u32_u24 v5, 1280, v5
    v_lshlrev_b32 v6, 4, v{V_H}
    v_add_u32 v5, v5, v6
    s_mul_i32 s{T0}, s{Q}, 320
    s_lshl_b32 s{T1}, s{S_WAVE}, 5
    s_add_u32 s{T0}, s{T0}, s{T1}
    v_add_u32 v5, s{T0}, v5
    s_cmp_lt_u32 s{S_WAVE}, 2
    s_cselect_b32 s{K3}, 256, s{S_OOB}
    s_lshl_b32 s{T0}, s{S_WG}, 12
    v_lshlrev_b32 v7, 4, v0
    v_add_u32 v7, s{T0}, v7
    s_waitcnt lgkmcnt(0)
    """)
    srd_ptr(A, X, 8, XSZ)
    A(f"""
    buffer_load_dwordx4 v[8:11], v5, s[{X}:{X+3}], 0 offen
    buffer_load_dwordx4 v[12:15], v5, s[{X}:{X+3}], 0 offen offset:128
    buffer_load_dwordx4 v[16:19], v5, s[{X}:{X+3}], s{K3} offen
    """)
    srd_ptr(A, WO, 12, 640*1280); srd_ptr(A, W2, 18, F*1280)
    srd_const(A, XF0, XF[0], XSZ); srd_const(A, ST0, ST[0], STSZ)
    srd_const(A, WOPD, WOP, WOPSZ); srd_const(A, W2PD, W2P, W2PSZ)
    A(f"""
    s_mul_i32 s70, s{S_WAVE}, 2560
    s_add_u32 s70, s70, {P_SCR + 8192}
    s_lshl_b32 s71, s{S_WG}, 2
    s_add_u32 s71, s71, s{S_WAVE}
    """)
    pack_unit(A, 71, WO, W2, WOPD, W2PD, 72, 73, 74, 75, 70, part="issue")
    A("s_waitcnt vmcnt(3)")
    A("v_mov_b32 v56, 0\nv_mov_b32 v57, 0")
    for r in range(8, 20):
        A(f"""
        v_lshlrev_b32 v58, 16, v{r}
        v_and_b32 v59, 0xffff0000, v{r}
        v_add_f32 v56, v56, v58
        v_fmac_f32 v57, v58, v58
        v_add_f32 v56, v56, v59
        v_fmac_f32 v57, v59, v59
        """)
    for b in (8, 12, 16):
        A(f"v_permlane32_swap_b32 v{b}, v{b+2}"); A(f"v_permlane32_swap_b32 v{b+1}, v{b+3}")
    A(f"""
    s_mul_i32 s{T0}, s{TT}, 40
    s_mul_i32 s{T1}, s{Q}, 10
    s_add_u32 s{T0}, s{T0}, s{T1}
    s_add_u32 s{T0}, s{T0}, s{S_WAVE}
    s_lshl_b32 s{T0}, s{T0}, 10
    v_lshlrev_b32 v60, 4, v{V_LANE}
    v_add_u32 v60, s{T0}, v60
    s_cmp_lt_u32 s{S_WAVE}, 2
    s_cselect_b32 s{K3}, 8192, s{S_OOB}
    s_mov_b32 s{T1}, 4096
    buffer_store_dwordx4 v[8:11], v60, s[{XF0}:{XF0+3}], 0 offen{SC}
    buffer_store_dwordx4 v[12:15], v60, s[{XF0}:{XF0+3}], s{T1} offen{SC}
    buffer_store_dwordx4 v[16:19], v60, s[{XF0}:{XF0+3}], s{K3} offen{SC}
    """)
    halfsum(A, 56, 58); halfsum(A, 57, 59)
    A(f"""
    s_lshl_b32 s{T0}, s{TT}, 12
    s_lshl_b32 s{T1}, s{Q}, 2
    s_add_u32 s{T1}, s{T1}, s{S_WAVE}
    s_lshr_b32 s{T2}, s{T1}, 1
    s_lshl_b32 s{T2}, s{T2}, 9
    s_add_u32 s{T0}, s{T0}, s{T2}
    s_and_b32 s{T1}, s{T1}, 1
    s_lshl_b32 s{T1}, s{T1}, 3
    s_add_u32 s{T0}, s{T0}, s{T1}
    v_lshlrev_b32 v60, 4, v{V_T}
    v_add_u32 v60, s{T0}, v60
    buffer_store_dwordx2 v[56:57], v60, s[{ST0}:{ST0+3}], 0 offen{SC}
    """)
    pack_unit(A, 71, WO, W2, WOPD, W2PD, 72, 73, 74, 75, 70, part="finish", wait=4)
    LNO = A.newlabel("pk_no2")
    A("s_add_u32 s71, s71, 1024"); A("s_cmp_ge_u32 s71, 1184"); A(f"s_cbranch_scc1 {LNO}")
    pack_unit(A, 71, WO, W2, WOPD, W2PD, 72, 73, 74, 75, 70)
    A.label(LNO)
    A("s_waitcnt vmcnt(0)")
    for _ in range(3): A("s_barrier")
    L0 = only_w0(A)
    mb_from_prep(A, T0)
    srd_ptr(A, 12, 10, 256)
    A(f"s_mov_b32 s{S_PCNT}, 0x10000")
    A(f"s_and_b32 s{T0}, s{S_WG}, 1"); A(f"s_lshl_b32 s{T0}, s{T0}, 7"); A(f"v_mov_b32 v{VP_OFF}, s{T0}")
    A.label("L_nonce_poll")
    A(f"""
    buffer_load_dwordx2 v[{VP_D}:{VP_D2}], v{VP_OFF}, s[12:15], 0 offen sc0 sc1
    s_waitcnt vmcnt(0)
    v_readfirstlane_b32 s{S_NONCE}, v{VP_D}
    v_readfirstlane_b32 s{T0}, v{VP_D2}
    s_cmp_eq_u32 s{T0}, 1
    s_cbranch_scc1 {L0}
    s_sub_u32 s{S_PCNT}, s{S_PCNT}, 1
    s_cmp_lg_u32 s{S_PCNT}, 0
    s_cbranch_scc1 L_nonce_poll
    """)
    A.label(L0)
    A("s_barrier")
    notify(A)

def l_prep(A):
    W2=36; CS_S=40; CS_D=44; W2PD=64; VF0=68; VF1=72
    T0=76; T1=77; T2=78; T3=79; LDW=80; CROW=81; TASK=82; STRIP=83; RQ=84; NOCS=85; ADV=86; CO=87
    TID=9
    A(f"""
    s_load_dwordx2 s[20:21], s[0:1], {KA_W1}
    s_load_dwordx2 s[22:23], s[0:1], {KA_W2}
    v_and_b32 v{TID}, 255, v0
    s_cmp_ge_u32 s{S_WG}, 228
    s_cselect_b32 s{NOCS}, 1, 0
    s_waitcnt lgkmcnt(0)
    """)
    CSW1 = "L_lp_csw1"; CSGO = "L_lp_csgo"
    A(f"s_cmp_ge_u32 s{S_WG}, 120"); A(f"s_cbranch_scc1 {CSW1}")
    srd_ptr(A, CS_S, 50, 640*3840); srd_const(A, CS_D, CSQ, CSQSZ)
    A(f"s_mov_b32 s{LDW}, 3840"); A(f"s_mov_b32 s{CROW}, 7680"); A(f"s_mov_b32 s{TASK}, s{S_WG}"); A(f"s_branch {CSGO}")
    A.label(CSW1)
    srd_ptr(A, CS_S, 20, 640*3456); srd_const(A, CS_D, CS1, CS1SZ)
    A(f"s_mov_b32 s{LDW}, 3456"); A(f"s_mov_b32 s{CROW}, 6912"); A(f"s_sub_u32 s{TASK}, s{S_WG}, 120")
    A.label(CSGO)
    A(f"""
    s_lshr_b32 s{STRIP}, s{TASK}, 2
    s_and_b32 s{RQ}, s{TASK}, 3
    v_lshrrev_b32 v6, 3, v{TID}
    s_mul_i32 s{T0}, s{RQ}, 160
    v_add_u32 v6, s{T0}, v6
    v_mul_lo_u32 v6, v6, s{LDW}
    v_and_b32 v7, 7, v{TID}
    v_lshlrev_b32 v7, 4, v7
    v_add_u32 v6, v6, v7
    s_lshl_b32 s{T0}, s{STRIP}, 7
    v_add_u32 v6, s{T0}, v6
    s_lshl_b32 s{ADV}, s{LDW}, 5
    s_cmp_eq_u32 s{NOCS}, 1
    s_cselect_b32 s{CO}, s{S_OOB}, 0
    """)
    for i in range(5):
        A(f"buffer_load_dwordx4 v[{20+4*i}:{23+4*i}], v6, s[{CS_S}:{CS_S+3}], s{CO} offen")
        if i < 4: A(f"s_add_u32 s{CO}, s{CO}, s{ADV}")
    srd_const(A, VF0, VF, VSZ); srd_const(A, VF1, VF + LSTRIDE, VSZ)
    A(f"""
    v_lshrrev_b32 v95, 1, v{V_LANE}
    s_lshl_b32 s{T0}, s{S_WG}, 5
    v_add_u32 v95, s{T0}, v95
    v_mul_u32_u24 v95, 352, v95
    v_and_b32 v94, 1, v{V_LANE}
    v_lshlrev_b32 v96, 4, v94
    v_add_u32 v95, v95, v96
    v_add_u32 v95, 320, v95
    v_mov_b32 v96, 0x3f803f80
    v_cmp_eq_u32 vcc, 0, v94
    v_cndmask_b32 v96, 0, v96, vcc
    v_mov_b32 v97, v96
    v_mov_b32 v98, v96
    v_mov_b32 v99, v96
    v_cmp_gt_u32 vcc, 64, v{TID}
    v_mov_b32 v94, s{S_OOB}
    v_cndmask_b32 v95, v94, v95, vcc
    buffer_store_dwordx4 v[96:99], v95, s[{VF0}:{VF0+3}], 0 offen{SC}
    buffer_store_dwordx4 v[96:99], v95, s[{VF1}:{VF1+3}], 0 offen{SC}
    """)
    A("s_waitcnt vmcnt(2)")
    for j in range(8): A(f"v_mov_b32 v{64+j}, 0")
    for i in range(5):
        for rr in range(4):
            r = 20 + 4*i + rr
            A(f"""
            v_lshlrev_b32 v58, 16, v{r}
            v_and_b32 v59, 0xffff0000, v{r}
            v_add_f32 v{64+2*rr}, v{64+2*rr}, v58
            v_add_f32 v{65+2*rr}, v{65+2*rr}, v59
            """)
    A(f"""
    v_lshlrev_b32 v58, 5, v{TID}
    v_add_u32 v58, {P_SCR}, v58
    ds_write_b128 v58, v[64:67]
    ds_write_b128 v58, v[68:71] offset:16
    s_waitcnt lgkmcnt(0)
    s_barrier
    v_lshlrev_b32 v58, 2, v{V_LANE}
    s_lshl_b32 s{T0}, s{S_LW}, 11
    s_add_u32 s{T0}, s{T0}, {P_SCR}
    v_add_u32 v58, s{T0}, v58
    """)
    for k in range(8): A(f"ds_read_b32 v{64+k}, v58 offset:{256*k}")
    A(f"""
    s_waitcnt lgkmcnt(0)
    v_add_f32 v64, v64, v65
    v_add_f32 v66, v66, v67
    v_add_f32 v68, v68, v69
    v_add_f32 v70, v70, v71
    v_add_f32 v64, v64, v66
    v_add_f32 v68, v68, v70
    v_add_f32 v64, v64, v68
    v_lshlrev_b32 v58, 2, v{TID}
    v_add_u32 v58, {P_SCR}, v58
    s_barrier
    ds_write_b32 v58, v64
    s_waitcnt lgkmcnt(0)
    s_barrier
    v_lshlrev_b32 v59, 2, v{V_LANE}
    v_add_u32 v58, {P_SCR}, v59
    ds_read_b32 v64, v58
    ds_read_b32 v65, v58 offset:256
    ds_read_b32 v66, v58 offset:512
    ds_read_b32 v67, v58 offset:768
    s_waitcnt lgkmcnt(0)
    v_add_f32 v64, v64, v65
    v_add_f32 v66, v66, v67
    v_add_f32 v64, v64, v66
    s_mul_i32 s{T0}, s{RQ}, s{CROW}
    s_lshl_b32 s{T1}, s{STRIP}, 8
    s_add_u32 s{T0}, s{T0}, s{T1}
    s_cmp_lg_u32 s{S_LW}, 0
    s_cselect_b32 s{T0}, s{S_OOB}, s{T0}
    s_cmp_eq_u32 s{NOCS}, 1
    s_cselect_b32 s{T0}, s{S_OOB}, s{T0}
    v_add_u32 v59, s{T0}, v59
    buffer_store_dword v64, v59, s[{CS_D}:{CS_D+3}], 0 offen{SC}
    s_waitcnt vmcnt(0)
    s_barrier
    """)

class W:
    X=8; Wd=12; ST=16; CS=20; OUT=24
    TB=29; CB=30; MODE=31; XOFF=32; WOFF=33; M0=34; WADV=35; FREE=36; CNT=37; LDW=38; N0=39; CSROW=40
    T0=41; T1=42; T2=43; WN=44; WT=45; XB=46; T3=47; FREEX=48; WSZ=49; CURX=54; CURW=55; QS=56; ISF=58; SO0=50
    V_XD=4; V_WD=5; V_WRH=5; V_XR=9; V_WR=10; V_TMP=11; V_AA=20; V_NB=24; V_A2=28; V_FR=32; V_ACC=96; V_E=160
    NST=10
def ring_adv(A, cur, tmp, slot, n, vregs):
    A(f"s_add_u32 s{cur}, s{cur}, 1"); A(f"s_cmp_eq_u32 s{cur}, {n}")
    A(f"s_cselect_b32 s{tmp}, {hex(-slot*(n-1) & 0xffffffff)}, s{S_K16 if slot == 16384 else (S_K8 if slot == 8192 else S_K10)}")
    A(f"s_cselect_b32 s{cur}, 0, s{cur}")
    for r in vregs: A(f"v_add_u32 v{r}, s{tmp}, v{r}")
def w_fr(setn, kind, i): return W.V_FR + 16*setn + (0 if kind == 'W' else 8) + 4*i
def w_acc(i, ip): return W.V_ACC + 16*(2*i + ip)
def w_reads(setn, step, stage):
    if EXP['noread']: return []
    xs = (stage % WX_N)*W_SLOT; ws = stage % WW_N
    wreg = W.V_WR if ws < 4 else W.V_WRH; wo = (ws % 4)*W_SLOT
    L = []
    for i in range(2):
        for jj in range(2):
            L.append(f"ds_read_b64_tr_b16 {v(w_fr(setn,'W',i)+2*jj,2)}, v{wreg} offset:{wo + step*4096 + jj*2048 + i*256}")
        L.append(f"ds_read_b128 {v(w_fr(setn,'X',i),4)}, v{W.V_XR} offset:{xs + i*4096 + step*1024}")
    return L
def w_mfmas(setn, trans):
    L = []
    for (i, ip) in ((0,0),(0,1),(1,0),(1,1)):
        w = v(w_fr(setn,'W',i),4); x = v(w_fr(setn,'X',ip),4); d = v(w_acc(i,ip),16)
        L.append(f"v_mfma_f32_32x32x16_bf16 {d}, {w}, {x}, {d}" if trans else f"v_mfma_f32_32x32x16_bf16 {d}, {x}, {w}, {d}")
    return L
def w_stage(A, trans, st, fill=None):
    fill = list(fill or [])
    per = -(-len(fill) // 14) if fill else 0
    def F():
        for _ in range(per):
            if fill: A(fill.pop(0))
    last = st == W.NST - 1
    for step in range(4):
        M = w_mfmas(step, trans)
        if EXP['nomfma']: M = ["s_nop 0"]*4
        if step == 0 or step == 1: A("s_waitcnt lgkmcnt(6)")
        if step == 2:
            A("s_waitcnt lgkmcnt(0)")
            A(M[0]); F(); A(M[1])
            if not EXP['nobar']: A("s_barrier")
            R = [] if last else w_reads(0, 0, st + 1)
            for r in R[:3]: A(r)
            F(); A(M[2])
            for r in R[3:]: A(r)
            F(); A(M[3]); F()
            continue
        if step < 2: R = w_reads(step + 2, step + 2, st)
        else: R = [] if last else w_reads(1, 1, st + 1)
        A(M[0])
        k = 0
        for m in M[1:]:
            for _ in range(2):
                if k < len(R): A(R[k]); k += 1
            F()
            A(m)
        F()
    while fill: A(fill.pop(0))
def w_mainloop(A, trans, tag, fill_ld, fill0, fill_last):
    for st in range(W.NST):
        w_stage(A, trans, st, fill={5: fill_ld, 7: fill0, W.NST-1: fill_last}.get(st))

def w_params(A, ffn):
    if ffn:
        A(f"s_mov_b32 s{W.MODE}, 3"); A(f"s_mov_b32 s{W.LDW}, 3456"); A(f"s_mov_b32 s{W.CSROW}, 6912")
    else:
        A(f"""
        s_cmp_ge_u32 s{W.CB}, 5
        s_cselect_b32 s{W.MODE}, 1, 0
        s_cmp_ge_u32 s{W.CB}, 10
        s_cselect_b32 s{W.MODE}, 2, s{W.MODE}
        s_mov_b32 s{W.LDW}, 3840
        s_mov_b32 s{W.CSROW}, 7680
        """)
    A(f"s_lshl_b32 s{W.N0}, s{W.CB}, 7")

def c_wide(A, L_TO_FB, L_TO_ATT):
    V_TMP=W.V_TMP; V_E=W.V_E; V_FR=W.V_FR; V_AA=W.V_AA; V_NB=W.V_NB; V_A2=W.V_A2; V_ACC=W.V_ACC
    T0=W.T0; T1=W.T1; T2=W.T2; T3=W.T3; MODE=W.MODE
    VA=V_E+32
    sync_wide(A)
    A(f"""
    s_and_b32 s{W.WN}, s{S_WAVE}, 1
    s_lshr_b32 s{W.WT}, s{S_WAVE}, 1
    s_cmp_eq_u32 s{MODE}, 3
    s_cselect_b32 s{T0}, 1, 0
    s_lshl_b32 s{T1}, s{S_L}, 1
    s_add_u32 s{T0}, s{T0}, s{T1}
    s_lshl_b32 s{T0}, s{T0}, 18
    s_add_u32 s{T0}, s{T0}, {hex(ST[0])}
    """)
    srd_reg(A, W.ST, T0, STSZ)
    A(f"""
    s_mov_b32 s{T0}, {hex(CSQ)}
    s_mov_b32 s{T1}, {CSQSZ}
    s_cmp_eq_u32 s{MODE}, 3
    s_cselect_b32 s{T0}, {hex(CS1)}, s{T0}
    s_cselect_b32 s{T1}, {CS1SZ}, s{T1}
    """)
    srd_reg(A, W.CS, T0, f"s{T1}")
    A(f"""
    s_mov_b32 s{T0}, {hex(QP)}
    s_mov_b32 s{T1}, {XSZ}
    s_cmp_eq_u32 s{MODE}, 1
    s_cselect_b32 s{T0}, {hex(KP)}, s{T0}
    s_cmp_eq_u32 s{MODE}, 2
    s_cselect_b32 s{T0}, {hex(VF)}, s{T0}
    s_cselect_b32 s{T1}, {VSZ}, s{T1}
    s_cmp_eq_u32 s{MODE}, 3
    s_cselect_b32 s{T0}, {hex(HF)}, s{T0}
    s_cselect_b32 s{T1}, {HSZ}, s{T1}
    s_mul_i32 s{T2}, s{S_L}, {hex(LSTRIDE)}
    s_add_u32 s{T0}, s{T0}, s{T2}
    """)
    srd_reg(A, W.OUT, T0, f"s{T1}")
    A(f"""
    v_lshlrev_b32 v{W.V_XD}, 4, v{V_LANE}
    s_lshl_b32 s{T0}, s{W.WT}, 13
    s_add_u32 s{T0}, s{T0}, {WX_BASE}
    v_add_u32 v{W.V_XR}, s{T0}, v{W.V_XD}
    s_mov_b32 s{W.CURX}, 0
    s_mov_b32 s{W.CURW}, 0
    s_mov_b32 s{S_K16}, 16384
    v_lshlrev_b32 v{W.V_WR}, 10, v{V_H}
    v_bfe_u32 v{V_TMP}, v{V_LANE}, 2, 2
    v_lshlrev_b32 v{V_TMP}, 6, v{V_TMP}
    v_add_u32 v{W.V_WR}, v{W.V_WR}, v{V_TMP}
    v_bfe_u32 v{V_TMP}, v{V_LANE}, 4, 1
    v_lshlrev_b32 v{V_TMP}, 5, v{V_TMP}
    v_add_u32 v{W.V_WR}, v{W.V_WR}, v{V_TMP}
    v_and_b32 v{V_TMP}, 3, v{V_LANE}
    v_lshlrev_b32 v{V_TMP}, 3, v{V_TMP}
    v_add_u32 v{W.V_WR}, v{W.V_WR}, v{V_TMP}
    s_lshl_b32 s{T0}, s{W.WN}, 9
    v_add_u32 v{W.V_WR}, s{T0}, v{W.V_WR}
    v_add_u32 v{W.V_WRH}, 0x10000, v{W.V_WR}
    """)
    for r in list(range(VA, VA+4)) + [V_E+68, V_E+69]: A(f"v_mov_b32 v{r}, 0")
    LA1 = "L_cw_addr_v"; LA2 = "L_cw_addr_done"
    A(f"s_cmp_eq_u32 s{MODE}, 3"); A(f"s_cbranch_scc1 {LA2}")
    A(f"s_cmp_eq_u32 s{MODE}, 2"); A(f"s_cbranch_scc1 {LA1}")
    A(f"""
    s_mul_i32 s{T0}, s{MODE}, 640
    s_sub_u32 s{T0}, s{W.N0}, s{T0}
    s_lshl_b32 s{T1}, s{W.WN}, 6
    s_add_u32 s{T0}, s{T0}, s{T1}
    s_lshr_b32 s{T0}, s{T0}, 3
    v_add_u32 v{V_TMP}, s{T0}, v{V_H}
    v_lshlrev_b32 v{V_TMP+5}, 4, v{V_T}
    """)
    for i in range(2):
        for gp in range(2):
            r = VA + 2*i + gp
            A(f"""
            v_add_u32 v{V_TMP+1}, {4*i+2*gp}, v{V_TMP}
            v_mul_u32_u24 v{V_TMP+2}, 205, v{V_TMP+1}
            v_lshrrev_b32 v{V_TMP+2}, 10, v{V_TMP+2}
            v_mul_u32_u24 v{V_TMP+3}, 5, v{V_TMP+2}
            v_sub_u32 v{V_TMP+3}, v{V_TMP+1}, v{V_TMP+3}
            v_mul_u32_u24 v{r}, {64*PTS}, v{V_TMP+2}
            v_lshl_add_u32 v{r}, v{V_TMP+3}, 9, v{r}
            v_add_u32 v{r}, v{r}, v{V_TMP+5}
            """)
    A(f"s_branch {LA2}")
    A.label(LA1)
    A(f"""
    s_lshl_b32 s{T0}, s{W.WN}, 6
    v_add_u32 v{V_TMP}, s{T0}, v{V_T}
    s_sub_u32 s{T0}, s{W.N0}, 1280
    v_add_u32 v{V_TMP}, s{T0}, v{V_TMP}
    s_movk_i32 s{T1}, 3277
    """)
    for i in range(2):
        r = V_E + 68 + i
        A(f"""
        v_add_u32 v{V_TMP+1}, {32*i}, v{V_TMP}
        v_mul_u32_u24 v{V_TMP+2}, s{T1}, v{V_TMP+1}
        v_lshrrev_b32 v{V_TMP+2}, 16, v{V_TMP+2}
        v_mul_u32_u24 v{V_TMP+3}, 20, v{V_TMP+2}
        v_sub_u32 v{V_TMP+3}, v{V_TMP+1}, v{V_TMP+3}
        v_mul_u32_u24 v{r}, {64*VTS}, v{V_TMP+2}
        v_mul_u32_u24 v{V_TMP+4}, 22, v{V_H}
        v_add_u32 v{V_TMP+4}, v{V_TMP+4}, v{V_TMP+3}
        v_lshl_add_u32 v{r}, v{V_TMP+4}, 4, v{r}
        """)
    A.label(LA2)
    for r in range(64): A(f"v_mov_b32 v{V_ACC+r}, 0")
    A(f"""
    s_lshl_b32 s{T0}, s{W.TB}, 2
    s_lshl_b32 s{T1}, s{W.WT}, 1
    s_add_u32 s{T0}, s{T0}, s{T1}
    s_lshl_b32 s{T0}, s{T0}, 12
    s_add_u32 s{T1}, s{T0}, 4096
    v_lshlrev_b32 v{V_TMP}, 4, v{V_T}
    v_lshl_add_u32 v{V_TMP}, v{V_H}, 11, v{V_TMP}
    v_and_b32 v{V_TMP+2}, 127, v0
    v_add_u32 v{V_TMP+2}, s{W.N0}, v{V_TMP+2}
    v_lshlrev_b32 v{V_TMP+2}, 2, v{V_TMP+2}
    s_lshl_b32 s{T2}, s{W.CSROW}, 1
    s_add_u32 s{T3}, s{T2}, s{W.CSROW}
    """)
    stamp(A, 1)
    poll(A)
    A("s_barrier")
    stamp(A, 2)
    A(f"""
    s_cmp_eq_u32 s{MODE}, 0
    s_cselect_b32 s{W.QS}, {hex(f2u(QSCALE))}, 1.0
    s_cmp_eq_u32 s{MODE}, 3
    s_cselect_b64 s[{W.ISF}:{W.ISF+1}], -1, 0
    s_lshl_b32 s{T2}, s{W.WT}, 8
    s_add_u32 s{T2}, s{T2}, {W_SCR + 512}
    v_lshlrev_b32 v{V_TMP+6}, 2, v{V_T}
    v_add_u32 v{V_TMP+6}, s{T2}, v{V_TMP+6}
    """)
    FLD = None; F0 = None
    VS = V_E + 36
    FTOK = []
    for ip in range(2):
        FTOK += [f"ds_read_b32 v{VS+4*ip}, v{V_TMP+6} offset:{128*ip}", f"ds_read_b32 v{V_NB+2*ip}, v{V_TMP+6} offset:{1024+128*ip}",
                 f"ds_read_b32 v{VS+4*ip+1}, v{V_TMP+6} offset:{1536+128*ip}"]
    FPOST = []
    for ip in range(2):
        FPOST += [f"v_mov_b32 v{V_NB+2*ip+1}, v{V_NB+2*ip}",
                  f"v_mul_f32 v{V_A2+2*ip}, {hex(f2u(-1.4426950408889634))}, v{VS+4*ip}", f"v_mul_f32 v{V_AA+2*ip}, s{W.QS}, v{VS+4*ip}",
                  f"v_mov_b32 v{V_A2+2*ip+1}, v{V_A2+2*ip}",
                  f"v_cndmask_b32 v{V_AA+2*ip}, v{V_AA+2*ip}, v{VS+4*ip+1}, s[{W.ISF}:{W.ISF+1}]", f"v_mov_b32 v{V_AA+2*ip+1}, v{V_AA+2*ip}"]
    A("s_barrier")
    stamp(A, 3)
    for r in w_reads(0, 0, 0) + w_reads(1, 1, 0): A(r)
    LV = "L_cw_vmode"; LF = "L_cw_ffn"; FIN = "L_cw_fin"
    A(f"s_cmp_eq_u32 s{MODE}, 2"); A(f"s_cbranch_scc1 {LV}")
    FL = [f"s_lshl_b32 s{T0}, s{W.WN}, 8", f"s_add_u32 s{T0}, s{T0}, {W_SCR}", f"v_lshlrev_b32 v{V_TMP}, 4, v{V_H}", f"v_add_u32 v{V_TMP}, s{T0}, v{V_TMP}"]
    for i in range(2):
        for g in range(4):
            FL.append(f"ds_read_b128 {v(V_E+16*i+4*g,4)}, v{V_TMP} offset:{128*i + 32*g}")
    w_mainloop(A, True, "t", FLD, F0, FTOK + FL)
    stamp(A, 4)
    A("s_waitcnt lgkmcnt(0)")
    for x in FPOST: A(x)
    PK = V_FR
    A(f"s_cmp_eq_u32 s{MODE}, 3"); A(f"s_cbranch_scc1 {LF}")
    A(f"""
    s_lshl_b32 s{T0}, s{W.TB}, 2
    s_lshl_b32 s{T1}, s{W.WT}, 1
    s_add_u32 s{T0}, s{T0}, s{T1}
    s_mul_i32 s{T0}, s{T0}, {PTS}
    s_add_u32 s{T1}, s{T0}, {PTS}
    """)
    for i in range(2):
        for ip in range(2):
            c = w_acc(i, ip)
            for p in range(8): A(f"v_pk_fma_f32 {v(c+2*p,2)}, {v(V_E+16*i+2*p,2)}, {v(V_NB+2*ip,2)}, {v(c+2*p,2)}")
            for p in range(8): A(f"v_pk_mul_f32 {v(c+2*p,2)}, {v(c+2*p,2)}, {v(V_AA+2*ip,2)}")
            pk = PK + 8*(2*i+ip)
            for p in range(8): A(f"v_cvt_pk_bf16_f32 v{pk+p}, v{c+2*p}, v{c+2*p+1}")
            for gp in range(2):
                A(f"v_permlane32_swap_b32 v{pk+4*gp}, v{pk+4*gp+2}")
                A(f"v_permlane32_swap_b32 v{pk+4*gp+1}, v{pk+4*gp+3}")
            for gp in range(2):
                A(f"buffer_store_dwordx4 {v(pk+4*gp,4)}, v{VA+2*i+gp}, s[{W.OUT}:{W.OUT+3}], s{T0+ip} offen{SC}")
    A(f"s_branch {FIN}")
    A.label(LF)
    A(f"""
    s_lshl_b32 s{T0}, s{W.WN}, 6
    s_add_u32 s{T0}, s{T0}, s{W.N0}
    s_cmp_ge_u32 s{T0}, {F}
    s_cbranch_scc1 {FIN}
    s_lshr_b32 s{T0}, s{T0}, 4
    s_lshl_b32 s{T1}, s{W.TB}, 2
    s_lshl_b32 s{T2}, s{W.WT}, 1
    s_add_u32 s{T1}, s{T1}, s{T2}
    s_mul_i32 s{T1}, s{T1}, 108
    s_add_u32 s{T0}, s{T0}, s{T1}
    s_lshl_b32 s{T0}, s{T0}, 10
    s_add_u32 s{T1}, s{T0}, {108*1024}
    """)
    VZ = V_E + 36
    for ip in range(2):
        for i in range(2):
            c = w_acc(i, ip)
            for p in range(8): A(f"v_pk_fma_f32 {v(c+2*p,2)}, {v(V_E+16*i+2*p,2)}, {v(V_NB+2*ip,2)}, {v(c+2*p,2)}")
            for p in range(8): A(f"v_pk_mul_f32 {v(VZ+2*p,2)}, {v(c+2*p,2)}, {v(V_A2+2*ip,2)}")
            for r in range(16): A(f"v_exp_f32 v{VZ+r}, v{VZ+r}")
            for p in range(8): A(f"v_pk_fma_f32 {v(VZ+2*p,2)}, {v(VZ+2*p,2)}, {v(V_AA+2*ip,2)}, {v(V_AA+2*ip,2)}")
            for r in range(16): A(f"v_rcp_f32 v{VZ+r}, v{VZ+r}")
            for p in range(8): A(f"v_pk_mul_f32 {v(c+2*p,2)}, {v(c+2*p,2)}, {v(VZ+2*p,2)}")
            pk = PK + 8*(2*ip+i)
            for p in range(8): A(f"v_cvt_pk_bf16_f32 v{pk+p}, v{c+2*p}, v{c+2*p+1}")
            so = T0 if ip == 0 else T1
            A(f"buffer_store_dwordx4 {v(pk,4)}, v{W.V_XD}, s[{W.OUT}:{W.OUT+3}], s{so} offen{off(2048*i)}{SC}")
            A(f"buffer_store_dwordx4 {v(pk+4,4)}, v{W.V_XD}, s[{W.OUT}:{W.OUT+3}], s{so} offen{off(2048*i+1024)}{SC}")
    A(f"s_branch {FIN}")
    A.label(LV)
    FL = [f"s_lshl_b32 s{T0}, s{W.WN}, 6", f"v_add_u32 v{V_TMP}, s{T0}, v{V_T}", f"v_lshlrev_b32 v{V_TMP+1}, 2, v{V_TMP}",
          f"v_add_u32 v{V_TMP+1}, {W_SCR}, v{V_TMP+1}", f"ds_read_b32 v{V_E+64}, v{V_TMP+1}", f"ds_read_b32 v{V_E+66}, v{V_TMP+1} offset:128",
          f"s_lshl_b32 s{T1}, s{W.WT}, 8", f"s_add_u32 s{T1}, s{T1}, {W_SCR+512}", f"v_lshlrev_b32 v{V_TMP}, 4, v{V_H}", f"v_add_u32 v{V_TMP}, s{T1}, v{V_TMP}"]
    for ip in range(2):
        for g in range(4):
            FL.append(f"ds_read_b128 {v(V_E+32*ip+4*g,4)}, v{V_TMP} offset:{128*ip + 32*g}")
            FL.append(f"ds_read_b128 {v(V_E+32*ip+16+4*g,4)}, v{V_TMP} offset:{512 + 128*ip + 32*g}")
    w_mainloop(A, False, "v", FLD, F0, FL)
    stamp(A, 4)
    VAv = V_E + 68
    A(f"""
    s_lshl_b32 s{T0}, s{W.TB}, 2
    s_lshl_b32 s{T1}, s{W.WT}, 1
    s_add_u32 s{T0}, s{T0}, s{T1}
    s_mul_i32 s{T0}, s{T0}, {VTS}
    s_waitcnt lgkmcnt(0)
    v_sub_f32 v{V_E+64}, 0, v{V_E+64}
    v_sub_f32 v{V_E+66}, 0, v{V_E+66}
    v_mov_b32 v{V_E+65}, v{V_E+64}
    v_mov_b32 v{V_E+67}, v{V_E+66}
    """)
    for ip in range(2):
        for i in range(2):
            c = w_acc(i, ip)
            for p in range(8): A(f"v_pk_mul_f32 {v(c+2*p,2)}, {v(c+2*p,2)}, {v(V_E+32*ip+2*p,2)}")
            for p in range(8): A(f"v_pk_fma_f32 {v(c+2*p,2)}, {v(V_E+32*ip+16+2*p,2)}, {v(V_E+64+2*i,2)}, {v(c+2*p,2)}")
            pk = PK + 8*(2*ip+i)
            for p in range(8): A(f"v_cvt_pk_bf16_f32 v{pk+p}, v{c+2*p}, v{c+2*p+1}")
            A(f"buffer_store_dwordx4 {v(pk,4)}, v{VAv+i}, s[{W.OUT}:{W.OUT+3}], s{T0} offen{off(VTS*ip)}{SC}")
            A(f"buffer_store_dwordx4 {v(pk+4,4)}, v{VAv+i}, s[{W.OUT}:{W.OUT+3}], s{T0} offen{off(VTS*ip+704)}{SC}")
    A.label(FIN)
    stamp(A, 5)
    A("s_waitcnt vmcnt(0)")
    A("s_barrier")
    notify(A)
    stamp(A, 6)
    stamp_phase(A)
    A(f"s_cmp_eq_u32 s{MODE}, 3"); A(f"s_cbranch_scc1 {L_TO_FB}")
    A(f"s_branch {L_TO_ATT}")

def lw_setup_w(A, kaoff_reg_pair):
    V_TMP=W.V_TMP; T0=W.T0
    A(f"""
    v_lshlrev_b32 v{W.V_XD}, 4, v{V_LANE}
    v_lshrrev_b32 v{V_TMP}, 4, v{V_LANE}
    v_lshlrev_b32 v{W.V_WD}, 6, v{V_TMP}
    v_and_b32 v{V_TMP+1}, 3, v{V_LANE}
    v_lshlrev_b32 v{V_TMP+1}, 4, v{V_TMP+1}
    v_add_u32 v{W.V_WD}, v{W.V_WD}, v{V_TMP+1}
    v_bfe_u32 v{V_TMP+1}, v{V_LANE}, 2, 2
    v_mul_lo_u32 v{V_TMP+1}, v{V_TMP+1}, s{W.LDW}
    v_add_u32 v{W.V_WD}, v{W.V_WD}, v{V_TMP+1}
    s_cmp_eq_u32 s{W.MODE}, 3
    s_cselect_b32 s{T0}, s{W.CB}, 0
    s_cmp_eq_u32 s{T0}, 13
    s_cselect_b32 s{T0}, s{S_OOB}, 0
    v_cmp_le_u32 vcc, 2, v{V_TMP}
    v_mov_b32 v{V_TMP+1}, s{T0}
    s_lshl_b32 s{T0}, s{W.LDW}, 2
    s_sub_u32 s{T0}, s{T0}, 1024
    v_cndmask_b32 v{V_TMP+1}, 0, v{V_TMP+1}, vcc
    v_add_u32 v{W.V_WD}, v{W.V_WD}, v{V_TMP+1}
    v_add_u32 v{W.V_WD+1}, s{T0}, v{W.V_WD}
    v_add_u32 v{W.V_WD+2}, s{T0}, v{W.V_WD+1}
    v_add_u32 v{W.V_WD+3}, s{T0}, v{W.V_WD+2}
    s_lshl_b32 s{W.WADV}, s{W.LDW}, 6
    s_lshl_b32 s{T0}, s{W.LDW}, 4
    s_mul_i32 s{T0}, s{T0}, s{S_LW}
    s_lshl_b32 s{W.WOFF}, s{W.N0}, 1
    s_add_u32 s{W.WOFF}, s{W.WOFF}, s{T0}
    s_lshl_b32 s{W.M0}, s{S_LW}, 12
    s_mul_i32 s{W.WSZ}, s{W.LDW}, 640
    s_mov_b32 s{W.Wd}, s{kaoff_reg_pair}
    s_mov_b32 s{W.Wd+1}, s{kaoff_reg_pair+1}
    s_mov_b32 s{W.Wd+2}, s{W.WSZ}
    s_mov_b32 s{W.Wd+3}, 0x20000
    s_mov_b32 s{W.FREE}, 0
    s_mov_b32 s{W.FREEX}, 0
    """)
def lw_dma_x(k): return f"buffer_load_dwordx4 v{W.V_XD}, s[{W.X}:{W.X+3}], s{W.XOFF} offen{off(k*1024)} lds"
def lw_dma_w(k): return f"buffer_load_dwordx4 v{W.V_WD+k}, s[{W.Wd}:{W.Wd+3}], s{W.WOFF} offen{off(k*1024)} lds"
def slot_wrap(A, reg, slot, n):
    A(f"s_add_u32 s{reg}, s{reg}, {slot}"); A(f"s_cmp_eq_u32 s{reg}, {slot*n}"); A(f"s_cselect_b32 s{reg}, 0, s{reg}")
def lw_issue_w(A):
    A(f"s_add_u32 m0, s{W.FREE}, s{W.M0}")
    slot_wrap(A, W.FREE, W_SLOT, WW_N)
    for k in range(4): A(lw_dma_w(k))
    A(f"s_add_u32 s{W.WOFF}, s{W.WOFF}, s{W.WADV}")
def lw_issue_x(A):
    A(f"s_add_u32 s{W.T0}, s{W.FREEX}, s{W.M0}"); A(f"s_add_u32 m0, s{W.T0}, {WX_BASE}")
    slot_wrap(A, W.FREEX, W_SLOT, WX_N)
    for k in range(4): A(lw_dma_x(k))
    A(f"s_add_u32 s{W.XOFF}, s{W.XOFF}, 4096")
LS=24
def lw_stats_setup(A):
    T0=W.T0; T1=W.T1; T2=W.T2
    A(f"""
    s_cmp_eq_u32 s{W.MODE}, 3
    s_cselect_b32 s{T0}, 1, 0
    s_lshl_b32 s{T1}, s{S_L}, 1
    s_add_u32 s{T0}, s{T0}, s{T1}
    s_lshl_b32 s{T0}, s{T0}, 18
    s_add_u32 s{T0}, s{T0}, {hex(ST[0])}
    """)
    srd_reg(A, W.ST, T0, STSZ)
    A(f"""
    s_mov_b32 s{T0}, {hex(CSQ)}
    s_mov_b32 s{T1}, {CSQSZ}
    s_cmp_eq_u32 s{W.MODE}, 3
    s_cselect_b32 s{T0}, {hex(CS1)}, s{T0}
    s_cselect_b32 s{T1}, {CS1SZ}, s{T1}
    """)
    srd_reg(A, W.CS, T0, f"s{T1}")
    A(f"""
    s_lshl_b32 s52, s{W.TB}, 2
    s_add_u32 s52, s52, s{S_LW}
    s_lshl_b32 s52, s52, 12
    s_lshl_b32 s53, s{W.CSROW}, 1
    s_add_u32 s54, s53, s{W.CSROW}
    v_lshlrev_b32 v{LS+20}, 4, v{V_T}
    v_lshl_add_u32 v{LS+20}, v{V_H}, 11, v{LS+20}
    v_and_b32 v{LS+21}, 127, v0
    v_add_u32 v{LS+21}, s{W.N0}, v{LS+21}
    v_lshlrev_b32 v{LS+21}, 2, v{LS+21}
    """)
def lw_stats_load(A):
    for k in range(4): A(f"buffer_load_dwordx4 {v(LS+4*k,4)}, v{LS+20}, s[{W.ST}:{W.ST+3}], s52 offen{off(512*k)}")
    A(f"buffer_load_dword v{LS+16}, v{LS+21}, s[{W.CS}:{W.CS+3}], 0 offen")
    A(f"buffer_load_dword v{LS+17}, v{LS+21}, s[{W.CS}:{W.CS+3}], s{W.CSROW} offen")
    A(f"buffer_load_dword v{LS+18}, v{LS+21}, s[{W.CS}:{W.CS+3}], s53 offen")
    A(f"buffer_load_dword v{LS+19}, v{LS+21}, s[{W.CS}:{W.CS+3}], s54 offen")
def lw_stats_post(A):
    b = LS; t = LS + 22
    A(f"""
    v_pk_add_f32 {v(b,2)}, {v(b,2)}, {v(b+2,2)}
    v_pk_add_f32 {v(b+4,2)}, {v(b+4,2)}, {v(b+6,2)}
    v_pk_add_f32 {v(b+8,2)}, {v(b+8,2)}, {v(b+10,2)}
    v_pk_add_f32 {v(b+12,2)}, {v(b+12,2)}, {v(b+14,2)}
    v_pk_add_f32 {v(b,2)}, {v(b,2)}, {v(b+4,2)}
    v_pk_add_f32 {v(b+8,2)}, {v(b+8,2)}, {v(b+12,2)}
    v_add_f32 v{b+16}, v{b+16}, v{b+17}
    v_add_f32 v{b+18}, v{b+18}, v{b+19}
    v_pk_add_f32 {v(b,2)}, {v(b,2)}, {v(b+8,2)}
    v_add_f32 v{b+16}, v{b+16}, v{b+18}
    """)
    halfsum(A, b, t); halfsum(A, b+1, t+1)
    A(f"""
    v_mul_f32 v{b}, {hex(f2u(1.0/640))}, v{b}
    v_mul_f32 v{b+1}, {hex(f2u(1.0/640))}, v{b+1}
    v_fma_f32 v{b+1}, -v{b}, v{b}, v{b+1}
    v_max_f32 v{b+1}, 0, v{b+1}
    v_add_f32 v{b+3}, {hex(f2u(1e-5))}, v{b+1}
    v_rsq_f32 v{b+1}, v{b+3}
    v_sub_f32 v{b+4}, 0, v{b}
    s_lshl_b32 s{W.T0}, s{S_LW}, 7
    s_add_u32 s{W.T0}, s{W.T0}, {W_SCR + 512}
    v_lshlrev_b32 v{t}, 2, v{V_T}
    v_add_u32 v{t}, s{W.T0}, v{t}
    v_mul_f32 v{b+3}, v{b+3}, v{b+1}
    v_mul_f32 v{b+2}, v{b}, v{b+1}
    v_and_b32 v{t+1}, 127, v0
    v_lshlrev_b32 v{t+1}, 2, v{t+1}
    v_add_u32 v{t+1}, {W_SCR}, v{t+1}
    ds_write_b32 v{t}, v{b+1}
    ds_write_b32 v{t}, v{b+2} offset:512
    ds_write_b32 v{t}, v{b+4} offset:1024
    ds_write_b32 v{t}, v{b+3} offset:1536
    ds_write_b32 v{t+1}, v{b+16}
    s_waitcnt lgkmcnt(0)
    """)
def lw_prefetch_w(A, n=WW_N):
    for s_ in range(n): lw_issue_w(A)

class T:
    Q=8; K=12; V=16; O=20
    HEAD=24; QB=25; QG=27; KH=28; KO=29; VO=30; CNT=31; T0=32; T1=33; T2=34; FLAG=35; K0=36; V0=38; TT0=37; LO=42; CC=44
    V_AK0=4; V_AK1=5; V_AV=6; V_AO=7; V_TMP=10
    V_Q=16; V_O=48; V_S=112; V_P=144; V_K=152; V_V=168; V_M=184; V_X=188; V_J=200; V_AOP=228
def tQ0(q): return T.V_Q + 8*q
def tQ1(q): return T.V_Q + 8*q + 4
def tO(q): return T.V_O + 16*q
def tS(b): return T.V_S + 16*b
def tK0(p): return T.V_K + 8*p
def tK1(p): return T.V_K + 8*p + 4
def tV0(p): return T.V_V + 8*p
def tV1(p): return T.V_V + 8*p + 4
def mf(d, a_, b_, c):
    cs = v(c,16) if c is not None else "0"
    return f"v_mfma_f32_32x32x16_bf16 {v(d,16)}, {v(a_,4)}, {v(b_,4)}, {cs}"
def t_load_k(A, p, o):
    A(f"buffer_load_dwordx4 {v(tK0(p),4)}, v{T.V_AK0}, s[{T.K}:{T.K+3}], s{T.KO} offen{off(o)}")
    A(f"buffer_load_dwordx2 {v(tK1(p),2)}, v{T.V_AK1}, s[{T.K}:{T.K+3}], s{T.KO} offen{off(o)}")
def t_load_v(A, p, o):
    A(f"buffer_load_dwordx4 {v(tV0(p),4)}, v{T.V_AV}, s[{T.V}:{T.V+3}], s{T.VO} offen{off(o)}")
    A(f"buffer_load_dwordx4 {v(tV1(p),4)}, v{T.V_AV}, s[{T.V}:{T.V+3}], s{T.VO} offen{off(o+704)}")
def t_period(A, p, q):
    b = q & 1
    s_ = tS(b); sn = tS(b ^ 1)
    qn = (q + 1) & 3; kp = p if q < 3 else p ^ 1
    qp = (q - 1) & 3; vp = p if q > 0 else p ^ 1
    e = lambda r: A(f"v_exp_f32 v{s_+r}, v{s_+r}")
    c = lambda k: A(f"v_cvt_pk_bf16_f32 v{T.V_P+k}, v{s_+2*k}, v{s_+2*k+1}")
    if q == 3: A("s_waitcnt vmcnt(2)")
    A(mf(sn, tK0(kp), tQ0(qn), None))
    e(0); e(1); e(2); e(3); c(0)
    A(mf(sn, tK1(kp), tQ1(qn), sn))
    e(4); e(5); c(1)
    if q == 3 and not EXP.get('anoload'): t_load_k(A, p, p*PTS)
    if q == 1 and not EXP.get('anoload'): t_load_v(A, p ^ 1, p*VTS)
    e(6); e(7); c(2)
    A(mf(tO(qp), tV1(vp), T.V_P+4, tO(qp)))
    e(8); e(9); c(3); e(10); e(11); c(4)
    if q == 0: A("s_waitcnt vmcnt(2)")
    A(mf(tO(q), tV0(p), T.V_P, tO(q)))
    e(12); e(13); c(5); e(14); e(15); c(6); c(7)
def t_rowmax(A, dst, src, tmp):
    A(f"v_max3_f32 v{dst}, v{src}, v{src+1}, v{src+2}")
    for r in range(3, 15, 2): A(f"v_max3_f32 v{dst}, v{dst}, v{src+r}, v{src+r+1}")
    A(f"v_max_f32 v{dst}, v{dst}, v{src+15}")
    A(f"v_mov_b32 v{tmp}, v{dst}"); A(f"v_permlane32_swap_b32 v{dst}, v{tmp}"); A(f"v_max_f32 v{dst}, v{dst}, v{tmp}")
def t_set_shift(A):
    V_TMP = T.V_TMP
    A(f"s_mov_b64 exec, s[{T.LO}:{T.LO+1}]")
    for q in range(4):
        A(f"""
        v_xor_b32 v{V_TMP}, 0x80000000, v{T.V_M+q}
        v_and_b32 v{V_TMP+1}, 0xffff0000, v{V_TMP}
        v_sub_f32 v{V_TMP}, v{V_TMP}, v{V_TMP+1}
        v_and_b32 v{V_TMP+2}, 0xffff0000, v{V_TMP}
        v_sub_f32 v{V_TMP}, v{V_TMP}, v{V_TMP+2}
        v_lshrrev_b32 v{V_TMP+1}, 16, v{V_TMP+1}
        v_or_b32 v{tQ1(q)+2}, v{V_TMP+1}, v{V_TMP+2}
        v_lshrrev_b32 v{tQ1(q)+3}, 16, v{V_TMP}
        """)
    A("s_mov_b64 exec, -1")
def t_first_loads(A):
    A(f"s_mov_b32 s{T.KO}, s{T.K0}"); A(f"s_mov_b32 s{T.VO}, s{T.V0}")
    t_load_k(A, 0, 0); t_load_v(A, 0, 0); t_load_k(A, 1, PTS)
    A(f"s_add_u32 s{T.KO}, s{T.K0}, {2*PTS}"); A(f"s_add_u32 s{T.VO}, s{T.V0}, {VTS}")

def c_att(A, L_NEXT):
    V_TMP=T.V_TMP; T0=T.T0; T1=T.T1; T2=T.T2; V_X=T.V_X; V_M=T.V_M; V_P=T.V_P
    A(f"""
    s_and_b32 s{T.HEAD}, s{S_WG}, 31
    s_lshr_b32 s{T.QB}, s{S_WG}, 5
    """)
    sync_att(A)
    A(f"""
    s_and_b32 s{T.QG}, s{S_WAVE}, 1
    s_lshr_b32 s{T.KH}, s{S_WAVE}, 1
    s_and_b32 s{T2}, s{T.HEAD}, 1
    s_mul_i32 s{T0}, s{T2}, 1536
    v_lshlrev_b32 v{T.V_AK0}, 4, v{V_LANE}
    v_add_u32 v{T.V_AK0}, s{T0}, v{T.V_AK0}
    s_lshl_b32 s{T0}, s{T2}, 3
    s_add_u32 s{T0}, s{T0}, 1024
    v_lshlrev_b32 v{T.V_AK1}, 4, v{V_T}
    v_add_u32 v{T.V_AK1}, s{T0}, v{T.V_AK1}
    v_min_u32 v{V_TMP+1}, 20, v{V_T}
    v_cmp_lt_u32 vcc, 20, v{V_T}
    v_mul_u32_u24 v{T.V_AV}, 22, v{V_H}
    v_addc_co_u32 v{V_TMP+1}, vcc, 0, v{V_TMP+1}, vcc
    v_add_u32 v{T.V_AV}, v{T.V_AV}, v{V_TMP+1}
    v_lshlrev_b32 v{T.V_AV}, 4, v{T.V_AV}
    s_lshl_b32 s{T0}, s{T.KH}, 5
    s_mul_i32 s{T.K0}, s{T0}, {PTS}
    s_mul_i32 s{T.V0}, s{T0}, {VTS}
    s_lshl_b32 s{T.TT0}, s{T.QB}, 3
    s_lshl_b32 s{T2}, s{T.QG}, 2
    s_add_u32 s{T.TT0}, s{T.TT0}, s{T2}
    s_mov_b32 s{T.LO}, -1
    s_mov_b32 s{T.LO+1}, 0
    s_mov_b32 s{T.FLAG}, 0
    s_mul_i32 s{T2}, s{S_L}, {hex(LSTRIDE)}
    s_lshr_b32 s{T0}, s{T.HEAD}, 1
    s_mul_i32 s{T0}, s{T0}, {64*PTS}
    s_add_u32 s{T0}, s{T0}, s{T2}
    s_add_u32 s{T1}, s{T0}, {hex(KP)}
    """)
    srd_reg(A, T.K, T1, 64*PTS)
    A(f"s_add_u32 s{T1}, s{T0}, {hex(QP)}")
    srd_reg(A, T.Q, T1, 64*PTS)
    A(f"s_mul_i32 s{T0}, s{T.HEAD}, {64*VTS}"); A(f"s_add_u32 s{T0}, s{T0}, s{T2}"); A(f"s_add_u32 s{T1}, s{T0}, {hex(VF)}")
    srd_reg(A, T.V, T1, 64*VTS)
    A(f"s_add_u32 s{T1}, s{T2}, {hex(OF)}")
    srd_reg(A, T.O, T1, XSZ)
    for q in range(4):
        for r in range(4): A(f"v_mov_b32 v{tQ1(q)+r}, 0")
    for p in range(2):
        A(f"v_mov_b32 v{tK1(p)+2}, 0x3f803f80"); A(f"v_mov_b32 v{tK1(p)+3}, 0x00003f80")
    for r in range(8): A(f"v_mov_b32 v{V_P+r}, 0")
    for r in range(4): A(f"v_mov_b32 v{tV1(1)+r}, 0")
    for r in range(64): A(f"v_mov_b32 v{T.V_O+r}, 0")
    A(f"s_mul_i32 s{T0}, s{T.HEAD}, 5"); A(f"v_add_u32 v{V_TMP+5}, s{T0}, v{V_H}"); A(f"v_lshlrev_b32 v{V_TMP+2}, 4, v{V_T}")
    for a_ in range(3):
        A(f"""
        v_add_u32 v{V_TMP+3}, {2*a_}, v{V_TMP+5}
        v_lshrrev_b32 v{V_TMP+4}, 2, v{V_TMP+3}
        v_lshl_add_u32 v{T.V_AO+a_}, v{V_TMP+4}, 10, v{V_TMP+2}
        v_and_b32 v{V_TMP+4}, 1, v{V_TMP+3}
        v_lshl_add_u32 v{T.V_AO+a_}, v{V_TMP+4}, 9, v{T.V_AO+a_}
        v_bfe_u32 v{V_TMP+4}, v{V_TMP+3}, 1, 1
        v_lshl_add_u32 v{T.V_AO+a_}, v{V_TMP+4}, 3, v{T.V_AO+a_}
        """)
    A(f"s_mul_i32 s{T0}, s{T.TT0}, {PTS}")
    A(f"s_add_u32 s{T1}, s{T0}, {2*PTS}")
    A(f"s_mov_b32 s{T.KO}, s{T.K0}"); A(f"s_mov_b32 s{T.VO}, s{T.V0}")
    poll(A, two=True)
    A("s_barrier")
    stamp(A, 2)
    t_load_k(A, 0, 0)
    for q in range(4):
        so = T0 if q < 2 else T1
        A(f"buffer_load_dwordx4 {v(tQ0(q),4)}, v{T.V_AK0}, s[{T.Q}:{T.Q+3}], s{so} offen{off(PTS*(q&1))}")
    A(f"s_mov_b64 exec, s[{T.LO}:{T.LO+1}]")
    for q in range(4):
        so = T0 if q < 2 else T1
        A(f"buffer_load_dwordx2 {v(tQ1(q),2)}, v{T.V_AK1}, s[{T.Q}:{T.Q+3}], s{so} offen{off(PTS*(q&1))}")
    A("s_mov_b64 exec, -1")
    t_load_v(A, 0, 0); t_load_k(A, 1, PTS)
    A(f"s_add_u32 s{T.KO}, s{T.K0}, {2*PTS}"); A(f"s_add_u32 s{T.VO}, s{T.V0}, {VTS}")
    A("s_waitcnt vmcnt(4)")
    stamp(A, 3)
    FT = [tS(0), tS(1), T.V_J, T.V_J + 16]
    for q in range(4):
        A(mf(FT[q], tK0(0), tQ0(q), None)); A(mf(FT[q], tK1(0), tQ1(q), FT[q]))
    for q in range(4): t_rowmax(A, V_M+q, FT[q], V_X+q)
    t_set_shift(A)
    SETUP = "L_ca_setup"; LOOP = "L_ca_loop"; COMBINE = "L_ca_combine"
    A.label(SETUP)
    A(mf(tS(0), tK0(0), tQ0(0), None)); A(mf(tS(0), tK1(0), tQ1(0), tS(0)))
    A(f"s_mov_b32 s{T.CNT}, 16")
    stamp(A, 1)
    if EXP.get('prio'): A("s_setprio 3")
    A("s_nop 7")
    A(".p2align 6"); A.label(LOOP)
    for p in range(2):
        for q in range(4): t_period(A, p, q)
    A(f"s_add_u32 s{T.KO}, s{T.KO}, {2*PTS}"); A(f"s_add_u32 s{T.VO}, s{T.VO}, {2*VTS}")
    A(f"s_sub_u32 s{T.CNT}, s{T.CNT}, 1"); A(f"s_cmp_lg_u32 s{T.CNT}, 0"); A(f"s_cbranch_scc1 {LOOP}")
    stamp(A, 4)
    if EXP.get('prio'): A("s_setprio 0")
    A(mf(tO(3), tV1(1), V_P+4, tO(3)))
    A("s_waitcnt vmcnt(0)")
    for q in range(4):
        A(f"v_mov_b32 v{tO(q)+12}, v{tO(q)+8}"); A(f"v_mov_b32 v{tO(q)+13}, v{tO(q)+8}")
    for q in range(4): A(f"v_permlane32_swap_b32 v{tO(q)+13}, v{tO(q)+12}")
    A(f"s_cmp_lg_u32 s{T.FLAG}, 0"); A(f"s_cbranch_scc1 {COMBINE}")
    A(f"v_mov_b32 v{V_TMP}, 0")
    for q in range(4):
        for r in range(0, 12, 2): A(f"v_max3_f32 v{V_TMP}, v{V_TMP}, |v{tO(q)+r}|, |v{tO(q)+r+1}|")
    A(f"""
    v_add_f32 v{V_TMP+2}, v{tO(0)+12}, v{tO(1)+12}
    v_add_f32 v{V_TMP+3}, v{tO(2)+12}, v{tO(3)+12}
    v_add_f32 v{V_TMP+2}, v{V_TMP+2}, v{V_TMP+3}
    s_mov_b32 s{T0}, {hex(f2u(2.0**40))}
    s_mov_b32 s{T1}, {hex(f2u(2.0**120))}
    v_cmp_gt_f32 vcc, s{T0}, v{V_TMP+2}
    v_cmp_gt_f32 s[{T.CC}:{T.CC+1}], s{T1}, v{V_TMP}
    s_and_b64 vcc, vcc, s[{T.CC}:{T.CC+1}]
    s_cmp_eq_u64 vcc, exec
    s_cbranch_scc1 {COMBINE}
    """)
    A(f"s_mov_b32 s{T.FLAG}, 1")
    A(f"s_mov_b64 exec, s[{T.LO}:{T.LO+1}]")
    for q in range(4): A(f"v_mov_b32 v{tQ1(q)+2}, 0"); A(f"v_mov_b32 v{tQ1(q)+3}, 0")
    A("s_mov_b64 exec, -1")
    for q in range(4): A(f"v_mov_b32 v{V_X+4+q}, 0xff800000")
    A(f"s_mov_b32 s{T.KO}, s{T.K0}"); A(f"s_mov_b32 s{T.CNT}, 32")
    TL = "L_ca_tm_loop"
    A.label(TL)
    t_load_k(A, 0, 0)
    A(f"s_add_u32 s{T.KO}, s{T.KO}, {PTS}")
    A("s_waitcnt vmcnt(0)")
    for q in range(4):
        A(mf(tO(q), tK0(0), tQ0(q), None)); A(mf(tO(q), tK1(0), tQ1(q), tO(q)))
    for q in range(4):
        t_rowmax(A, V_M+q, tO(q), V_X+q); A(f"v_max_f32 v{V_X+4+q}, v{V_X+4+q}, v{V_M+q}")
    A(f"s_sub_u32 s{T.CNT}, s{T.CNT}, 1"); A(f"s_cmp_lg_u32 s{T.CNT}, 0"); A(f"s_cbranch_scc1 {TL}")
    for q in range(4): A(f"v_mov_b32 v{V_M+q}, v{V_X+4+q}")
    t_first_loads(A)
    t_set_shift(A)
    for r in range(64): A(f"v_mov_b32 v{T.V_O+r}, 0")
    for r in range(8): A(f"v_mov_b32 v{V_P+r}, 0")
    for r in range(4): A(f"v_mov_b32 v{tV1(1)+r}, 0")
    for r in range(64): A(f"v_mov_b32 v{T.V_O+r}, 0")
    A(f"s_mul_i32 s{T0}, s{T.HEAD}, 5"); A(f"v_add_u32 v{V_TMP+5}, s{T0}, v{V_H}"); A(f"v_lshlrev_b32 v{V_TMP+2}, 4, v{V_T}")
    for a_ in range(3):
        A(f"""
        v_add_u32 v{V_TMP+3}, {2*a_}, v{V_TMP+5}
        v_lshrrev_b32 v{V_TMP+4}, 2, v{V_TMP+3}
        v_lshl_add_u32 v{T.V_AO+a_}, v{V_TMP+4}, 10, v{V_TMP+2}
        v_and_b32 v{V_TMP+4}, 1, v{V_TMP+3}
        v_lshl_add_u32 v{T.V_AO+a_}, v{V_TMP+4}, 9, v{T.V_AO+a_}
        v_bfe_u32 v{V_TMP+4}, v{V_TMP+3}, 1, 1
        v_lshl_add_u32 v{T.V_AO+a_}, v{V_TMP+4}, 3, v{T.V_AO+a_}
        """)
    A("s_waitcnt vmcnt(4)")
    A(f"s_branch {SETUP}")
    A.label(COMBINE)
    for q in range(4): A(f"v_mov_b32 v{tO(q)+13}, v{V_M+q}")
    A(f"""
    s_lshl_b32 s{T0}, s{S_WAVE}, 13
    s_add_u32 s{T0}, s{T0}, {A_CMB}
    v_lshlrev_b32 v{V_TMP}, 4, v{V_LANE}
    v_add_u32 v{V_TMP+1}, s{T0}, v{V_TMP}
    s_xor_b32 s{T1}, s{S_WAVE}, 2
    s_lshl_b32 s{T1}, s{T1}, 13
    s_add_u32 s{T1}, s{T1}, {A_CMB}
    v_add_u32 v{V_TMP+2}, s{T1}, v{V_TMP}
    s_cmp_eq_u32 s{T.KH}, 0
    """)
    C1 = "L_ca_c1"; FIN = "L_ca_fin"
    A(f"s_cbranch_scc0 {C1}")
    for kh in range(2):
        if kh == 1: A.label(C1)
        send = (2, 3) if kh == 0 else (0, 1); keep = (0, 1) if kh == 0 else (2, 3)
        for j, q in enumerate(send):
            for g in range(4): A(f"ds_write_b128 v{V_TMP+1}, {v(tO(q)+4*g,4)} offset:{4096*j + 1024*g}")
        A("s_waitcnt lgkmcnt(0)"); A("s_barrier")
        for j in range(2):
            for g in range(4): A(f"ds_read_b128 {v(T.V_S+16*j+4*g,4)}, v{V_TMP+2} offset:{4096*j + 1024*g}")
        for j, q in enumerate(keep):
            o = tO(q); r_ = T.V_S + 16*j
            A(f"s_waitcnt lgkmcnt({4 if j == 0 else 0})")
            A(f"""
            v_max_f32 v{V_X}, v{o+13}, v{r_+13}
            v_sub_f32 v{V_X+1}, v{o+13}, v{V_X}
            v_sub_f32 v{V_X+2}, v{r_+13}, v{V_X}
            v_exp_f32 v{V_X+1}, v{V_X+1}
            v_exp_f32 v{V_X+2}, v{V_X+2}
            s_nop 0
            v_mul_f32 v{V_X+3}, v{V_X+1}, v{o+12}
            v_fmac_f32 v{V_X+3}, v{V_X+2}, v{r_+12}
            v_rcp_f32 v{V_X+3}, v{V_X+3}
            s_nop 0
            v_mul_f32 v{V_X+4}, v{V_X+1}, v{V_X+3}
            v_mul_f32 v{V_X+6}, v{V_X+2}, v{V_X+3}
            v_mov_b32 v{V_X+5}, v{V_X+4}
            v_mov_b32 v{V_X+7}, v{V_X+6}
            """)
            for pr in range(6): A(f"v_pk_mul_f32 {v(o+2*pr,2)}, {v(o+2*pr,2)}, {v(V_X+4,2)}")
            for pr in range(6): A(f"v_pk_fma_f32 {v(o+2*pr,2)}, {v(r_+2*pr,2)}, {v(V_X+6,2)}, {v(o+2*pr,2)}")
            pk = V_P if j == 0 else T.V_K
            for pr in range(6): A(f"v_cvt_pk_bf16_f32 v{pk+pr}, v{o+2*pr}, v{o+2*pr+1}")
            A(f"""
            s_add_u32 s{T1}, s{T.TT0}, {q}
            s_mul_i32 s{T1}, s{T1}, 40960
            buffer_store_dwordx2 {v(pk,2)}, v{T.V_AO}, s[{T.O}:{T.O+3}], s{T1} offen{SC}
            buffer_store_dwordx2 {v(pk+2,2)}, v{T.V_AO+1}, s[{T.O}:{T.O+3}], s{T1} offen{SC}
            s_mov_b64 exec, s[{T.LO}:{T.LO+1}]
            buffer_store_dwordx2 {v(pk+4,2)}, v{T.V_AO+2}, s[{T.O}:{T.O+3}], s{T1} offen{SC}
            s_mov_b64 exec, -1
            """)
        A(f"s_branch {FIN}")
    A.label(FIN)
    stamp(A, 5)
    A("s_waitcnt vmcnt(0)")
    A("s_barrier")
    notify(A)
    stamp(A, 6)
    stamp_phase(A)
    A(f"s_branch {L_NEXT}")

class N:
    X=8; Wd=12; R=16; OUT=20; ST=24
    TB=29; CB=30; FINAL=31; XOFF=32; WOFF=33; FREE=34; CUR=35; CNT=36; T0=37; T1=38; T2=39; WT=40; WK=41
    XM0=43; WM0=44; NK=45; CURW=48; NST=55; FREEX=56; T3=57
    V_XD=4; V_WR2=5; V_XR=8; V_WR=9; V_TMP=10; V_FR=40; V_ACC=104; V_E=152
def n_frW(par, j, b): return N.V_FR + 32*par + 16*j + 4*b
def n_frX(par, j): return N.V_FR + 32*par + 16*j + 12
def n_acc(b): return N.V_ACC + 16*b
def n_reads(par):
    L = []
    for j in range(2):
        L.append(f"ds_read_b128 {v(n_frX(par,j),4)}, v{N.V_XR} offset:{j*2048}")
        for b in range(2): L.append(f"ds_read_b128 {v(n_frW(par,j,b),4)}, v{N.V_WR} offset:{j*5120 + b*1024}")
        L.append(f"ds_read_b128 {v(n_frW(par,j,2),4)}, v{N.V_WR2} offset:{j*5120}")
    return L
def n_mfmas(par):
    return [f"v_mfma_f32_32x32x16_bf16 {v(n_acc(b),16)}, {v(n_frW(par,j,b),4)}, {v(n_frX(par,j),4)}, {v(n_acc(b),16)}" for j in range(2) for b in range(3)]
def n_stage(A, par, last=False):
    M = n_mfmas(par)
    A("s_waitcnt lgkmcnt(0)")
    if last:
        for m in M: A(m)
        return
    ring_adv(A, N.CUR, N.T1, NX_SLOT, NX_N, [N.V_XR]); ring_adv(A, N.CURW, N.T2, NW_SLOT, NW_N, [N.V_WR, N.V_WR2])
    A(M[0]); A("s_barrier")
    R = n_reads(par ^ 1); k = 0
    for m in M[1:]:
        for _ in range(2):
            if k < len(R): A(R[k]); k += 1
        A(m)
    while k < len(R): A(R[k]); k += 1

def n_params(A, ffb):
    narrow_coords(A, N.TB, N.CB, N.T0, N.T1, N.T2)
    A(f"s_mov_b32 s{N.NST}, {27 if ffb else 10}"); A(f"s_mov_b32 s{N.NK}, {108 if ffb else 40}")

def c_narrow(A, L_TO_FA, L_TO_QKV, L_END):
    V_TMP=N.V_TMP; V_E=N.V_E; T0=N.T0; T1=N.T1; T2=N.T2; T3=N.T3
    sync_narrow(A)
    A(f"""
    s_load_dwordx2 s[46:47], s[0:1], {KA_OUT}
    s_and_b32 s{N.WT}, s{S_WAVE}, 1
    s_lshr_b32 s{N.WK}, s{S_WAVE}, 1
    s_mov_b32 s{S_K8}, 8192
    s_mov_b32 s{S_K10}, 10240
    s_mov_b32 s{N.CUR}, 0
    s_mov_b32 s{N.CURW}, 0
    s_cmp_eq_u32 s{N.NST}, 27
    s_cselect_b32 s{T0}, 2, 1
    s_cselect_b32 s{T2}, s{S_L}, 0
    s_mov_b32 s{N.FINAL}, s{T2}
    s_lshl_b32 s{T1}, s{S_L}, 1
    s_add_u32 s{T0}, s{T0}, s{T1}
    s_lshl_b32 s{T3}, s{T0}, 18
    s_add_u32 s{T3}, s{T3}, {hex(ST[0])}
    s_mul_i32 s{T0}, s{T0}, {XSZ}
    """)
    srd_reg(A, N.ST, T3, STSZ)
    A(f"""
    s_waitcnt lgkmcnt(0)
    s_cmp_eq_u32 s{N.FINAL}, 1
    s_cselect_b32 s{N.OUT}, s46, s{S_WS}
    s_cselect_b32 s{N.OUT+1}, s47, s{S_WS+1}
    s_cselect_b32 s{T0}, 0, s{T0}
    s_add_u32 s{N.OUT}, s{N.OUT}, s{T0}
    s_addc_u32 s{N.OUT+1}, s{N.OUT+1}, 0
    s_mov_b32 s{N.OUT+2}, {XSZ}
    s_mov_b32 s{N.OUT+3}, 0x20000
    v_lshlrev_b32 v{N.V_XD}, 4, v{V_LANE}
    s_lshl_b32 s{T0}, s{N.WT}, 12
    s_lshl_b32 s{T1}, s{N.WK}, 10
    s_add_u32 s{T0}, s{T0}, s{T1}
    v_add_u32 v{N.V_XR}, s{T0}, v{N.V_XD}
    s_mul_i32 s{T0}, s{N.WK}, 2560
    s_add_u32 s{T0}, s{T0}, {NW_BASE}
    v_add_u32 v{N.V_WR}, s{T0}, v{N.V_XD}
    v_and_b32 v{V_TMP}, 15, v{V_LANE}
    v_lshlrev_b32 v{V_TMP}, 4, v{V_TMP}
    v_lshl_add_u32 v{V_TMP}, v{V_H}, 8, v{V_TMP}
    v_add_u32 v{V_TMP}, 2048, v{V_TMP}
    v_add_u32 v{N.V_WR2}, s{T0}, v{V_TMP}
    """)
    for r in range(48): A(f"v_mov_b32 v{N.V_ACC+r}, 0")
    A(f"""
    s_lshl_b32 s{T0}, s{N.TB}, 1
    s_add_u32 s{T0}, s{T0}, s{N.WT}
    s_mul_i32 s{T0}, s{T0}, 40
    s_mul_i32 s{T1}, s{N.CB}, 5
    s_add_u32 s{T0}, s{T0}, s{T1}
    s_mul_i32 s{T1}, s{N.WK}, 3
    s_add_u32 s{T0}, s{T0}, s{T1}
    s_lshl_b32 s{T3}, s{T0}, 10
    s_sub_u32 s{N.CNT}, s{N.NST}, 1
    """)
    stamp(A, 1)
    poll(A)
    A("s_barrier")
    stamp(A, 2)
    NR = "L_cn_nores"
    A(f"s_cmp_eq_u32 s{N.NST}, 10"); A(f"s_cselect_b32 s{T0}, s{S_L}, 1"); A(f"s_cmp_lg_u32 s{T0}, 0"); A(f"s_cbranch_scc1 {NR}")
    srd_const(A, N.R, XF[0], XSZ)
    for k in range(3):
        A(f"buffer_load_dwordx4 {v(V_RESP+4*k,4)}, v{N.V_XD}, s[{N.R}:{N.R+3}], s{T3} offen{off(1024*k)}")
    A.label(NR)
    A("s_barrier")
    stamp(A, 3)
    for r in n_reads(0): A(r)
    L = "L_cn_loop"; LODD = "L_cn_odd"; LDONE = "L_cn_loopdone"
    A(f"s_lshr_b32 s{N.CNT}, s{N.CNT}, 1")
    A(".p2align 4"); A.label(L)
    n_stage(A, 0); n_stage(A, 1)
    A(f"s_sub_u32 s{N.CNT}, s{N.CNT}, 1"); A(f"s_cmp_lg_u32 s{N.CNT}, 0"); A(f"s_cbranch_scc1 {L}")
    A(f"s_cmp_eq_u32 s{N.NST}, 27"); A(f"s_cbranch_scc1 {LODD}")
    n_stage(A, 0); n_stage(A, 1, last=True)
    A(f"s_branch {LDONE}")
    A.label(LODD)
    n_stage(A, 0, last=True)
    A.label(LDONE)
    stamp(A, 4)
    A(f"""
    s_mul_i32 s{T0}, s{N.WT}, 4096
    s_mul_i32 s{T1}, s{N.WT}, 6144
    s_add_u32 s{T0}, s{T0}, {N_XCH}
    s_add_u32 s{T1}, s{T1}, {N_XCH + 8192}
    s_cmp_eq_u32 s{N.WK}, 0
    s_cselect_b32 s{T2}, s{T0}, s{T1}
    s_cselect_b32 s{T1}, s{T1}, s{T0}
    v_add_u32 v{V_TMP}, s{T2}, v{N.V_XD}
    v_add_u32 v{V_TMP+1}, s{T1}, v{N.V_XD}
    s_lshl_b32 s{T0}, s{N.TB}, 1
    s_add_u32 s{T0}, s{T0}, s{N.WT}
    """)
    def areg(k): return n_acc(k >> 1) + 8*(k & 1)
    W1 = "L_cn_wk1"; FIN = "L_cn_fin"
    A(f"s_cmp_eq_u32 s{N.WK}, 0"); A(f"s_cbranch_scc0 {W1}")
    for wk in range(2):
        if wk == 1: A.label(W1)
        keep = (0, 1, 2) if wk == 0 else (3, 4)
        send = (3, 4) if wk == 0 else (0, 1, 2)
        for j, k in enumerate(send):
            A(f"ds_write_b128 v{V_TMP}, {v(areg(k),4)} offset:{2048*j}")
            A(f"ds_write_b128 v{V_TMP}, {v(areg(k)+4,4)} offset:{2048*j+1024}")
        A("s_waitcnt lgkmcnt(0)"); A("s_barrier")
        for j, k in enumerate(keep):
            A(f"ds_read_b128 {v(V_E+8*j,4)}, v{V_TMP+1} offset:{2048*j}")
            A(f"ds_read_b128 {v(V_E+8*j+4,4)}, v{V_TMP+1} offset:{2048*j+1024}")
        A(f"v_mov_b32 v{V_TMP+2}, 0"); A(f"v_mov_b32 v{V_TMP+3}, 0")
        A("s_waitcnt vmcnt(0) lgkmcnt(0)")
        for j, k in enumerate(keep):
            a_ = areg(k); p_ = V_E + 8*j; r_ = V_RESP + 4*j
            for pr in range(4): A(f"v_pk_add_f32 {v(a_+2*pr,2)}, {v(a_+2*pr,2)}, {v(p_+2*pr,2)}")
            for pr in range(4):
                A(f"v_lshlrev_b32 v{p_+2*pr}, 16, v{r_+pr}"); A(f"v_and_b32 v{p_+2*pr+1}, 0xffff0000, v{r_+pr}")
            for pr in range(4): A(f"v_pk_add_f32 {v(a_+2*pr,2)}, {v(a_+2*pr,2)}, {v(p_+2*pr,2)}")
            for pr in range(4): A(f"v_cvt_pk_bf16_f32 v{r_+pr}, v{a_+2*pr}, v{a_+2*pr+1}")
        OUTF = f"L_cn_rowmajor_{wk}"
        A(f"s_cmp_eq_u32 s{N.FINAL}, 1"); A(f"s_cbranch_scc1 {OUTF}")
        for j, k in enumerate(keep):
            A(f"buffer_store_dwordx4 {v(V_RESP+4*j,4)}, v{N.V_XD}, s[{N.OUT}:{N.OUT+3}], s{T3} offen{off(1024*j)}{SC}")
        for j, k in enumerate(keep):
            a_ = areg(k)
            for x in range(8):
                A(f"v_add_f32 v{V_TMP+2}, v{V_TMP+2}, v{a_+x}"); A(f"v_fmac_f32 v{V_TMP+3}, v{a_+x}, v{a_+x}")
        halfsum(A, V_TMP+2, V_TMP+4); halfsum(A, V_TMP+3, V_TMP+5)
        A(f"""
        s_lshl_b32 s{T0}, s{T0}, 12
        s_lshl_b32 s{T2}, s{N.CB}, 9
        s_add_u32 s{T0}, s{T0}, s{T2}
        s_add_u32 s{T0}, s{T0}, {8*wk}
        v_lshlrev_b32 v{V_TMP+4}, 4, v{V_T}
        buffer_store_dwordx2 {v(V_TMP+2,2)}, v{V_TMP+4}, s[{N.ST}:{N.ST+3}], s{T0} offen{SC}
        s_branch {FIN}
        """)
        A.label(OUTF)
        A(f"""
        s_lshl_b32 s{T0}, s{T0}, 5
        v_add_u32 v{V_TMP+4}, s{T0}, v{V_T}
        v_mul_u32_u24 v{V_TMP+4}, 1280, v{V_TMP+4}
        v_lshlrev_b32 v{V_TMP+5}, 4, v{V_H}
        v_add_u32 v{V_TMP+4}, v{V_TMP+4}, v{V_TMP+5}
        s_mul_i32 s{T2}, s{N.CB}, 160
        """)
        for j, k in enumerate(keep):
            r_ = V_RESP + 4*j
            A(f"v_permlane32_swap_b32 v{r_}, v{r_+2}"); A(f"v_permlane32_swap_b32 v{r_+1}, v{r_+3}")
        for j, k in enumerate(keep):
            A(f"buffer_store_dwordx4 {v(V_RESP+4*j,4)}, v{V_TMP+4}, s[{N.OUT}:{N.OUT+3}], s{T2} offen{off(32*k)}{SC if EXP.get('outsc') else ''}")
        stamp(A, 5); stamp(A, 6); stamp_phase(A)
        A(f"s_branch {L_END}")
    A.label(FIN)
    stamp(A, 5)
    A("s_waitcnt vmcnt(0)")
    A("s_barrier")
    notify(A)
    stamp(A, 6)
    stamp_phase(A)
    A(f"s_cmp_eq_u32 s{N.NST}, 10"); A(f"s_cbranch_scc1 {L_TO_FA}")
    A(f"s_add_u32 s{S_L}, s{S_L}, 1")
    A(f"s_branch {L_TO_QKV}")

def ln_setup_w(A):
    T0=N.T0; T1=N.T1; T2=N.T2
    A(f"""
    v_lshlrev_b32 v{N.V_XD}, 4, v{V_LANE}
    s_mov_b32 s{T0}, {hex(WOP)}
    s_mov_b32 s{T1}, {WOPSZ}
    s_cmp_eq_u32 s{N.NST}, 27
    s_cselect_b32 s{T0}, {hex(W2P)}, s{T0}
    s_cselect_b32 s{T1}, {W2PSZ}, s{T1}
    """)
    srd_reg(A, N.Wd, T0, f"s{T1}")
    A(f"""
    s_mul_i32 s{T0}, s{S_LW}, 3072
    s_cmp_eq_u32 s{S_LW}, 3
    s_cselect_b32 s{T0}, 8192, s{T0}
    s_add_u32 s{N.WM0}, s{T0}, {NW_BASE}
    s_lshl_b32 s{T1}, s{N.NK}, 2
    s_mul_i32 s{T1}, s{T1}, 640
    s_mul_i32 s{T1}, s{T1}, s{N.CB}
    s_add_u32 s{N.WOFF}, s{T1}, s{T0}
    s_mov_b32 s{N.FREE}, 0
    s_mov_b32 s{N.FREEX}, 0
    s_and_b32 s{N.WT}, s{S_LW}, 1
    s_lshr_b32 s{N.WK}, s{S_LW}, 1
    s_lshl_b32 s{N.XM0}, s{N.WT}, 12
    s_lshl_b32 s{T1}, s{N.WK}, 11
    s_add_u32 s{N.XM0}, s{N.XM0}, s{T1}
    """)
def ln_setup_x(A):
    T0=N.T0; T1=N.T1; T2=N.T2
    A(f"""
    s_mov_b32 s{T0}, {hex(OF)}
    s_mov_b32 s{T1}, {XSZ}
    s_cmp_eq_u32 s{N.NST}, 27
    s_cselect_b32 s{T0}, {hex(HF)}, s{T0}
    s_cselect_b32 s{T1}, {HSZ}, s{T1}
    s_mul_i32 s{T2}, s{S_L}, {hex(LSTRIDE)}
    s_add_u32 s{T0}, s{T0}, s{T2}
    """)
    srd_reg(A, N.X, T0, f"s{T1}")
    A(f"""
    s_lshl_b32 s{T0}, s{N.TB}, 1
    s_add_u32 s{T0}, s{T0}, s{N.WT}
    s_mul_i32 s{T0}, s{T0}, s{N.NK}
    s_lshl_b32 s{T1}, s{N.WK}, 1
    s_add_u32 s{T0}, s{T0}, s{T1}
    s_lshl_b32 s{N.XOFF}, s{T0}, 10
    """)
def ln_issue_x(A):
    A(f"s_add_u32 m0, s{N.FREEX}, s{N.XM0}")
    slot_wrap(A, N.FREEX, NX_SLOT, NX_N)
    for k in range(2): A(f"buffer_load_dwordx4 v{N.V_XD}, s[{N.X}:{N.X+3}], s{N.XOFF} offen{off(1024*k)} lds")
    A(f"s_add_u32 s{N.XOFF}, s{N.XOFF}, 4096")
def ln_make_issue_w(nw):
    def f(A):
        A(f"s_add_u32 m0, s{N.FREE}, s{N.WM0}")
        slot_wrap(A, N.FREE, NW_SLOT, NW_N)
        for k in range(nw): A(f"buffer_load_dwordx4 v{N.V_XD}, s[{N.Wd}:{N.Wd+3}], s{N.WOFF} offen{off(1024*k)} lds")
        A(f"s_add_u32 s{N.WOFF}, s{N.WOFF}, 10240")
    return f
def ln_prefetch_w(A, tag, nstage):
    for nw, cond in ((3, 0), (2, 1)):
        L = f"L_lnpf_{tag}_{nw}"; SK = f"L_lnpfs_{tag}_{nw}"
        A(f"s_cmp_lt_u32 s{S_LW}, 2"); A(f"s_cbranch_scc{cond} {SK}")
        if nstage == 0:
            A.label(SK); continue
        A(f"s_mov_b32 s{N.CNT}, {nstage}")
        A.label(L)
        ln_make_issue_w(nw)(A)
        A(f"s_sub_u32 s{N.CNT}, s{N.CNT}, 1"); A(f"s_cmp_lg_u32 s{N.CNT}, 0"); A(f"s_cbranch_scc1 {L}")
        A.label(SK)

DBGT = False
def dbgt(A, slot_sreg=None):
    if not DBGT: return
    L = A.newlabel("dbgt")
    A(f"s_cmp_lg_u32 s{S_WG}, 9"); A(f"s_cbranch_scc1 {L}")
    A(f"s_cmp_lg_u32 s{S_WAVE}, 0"); A(f"s_cbranch_scc1 {L}")
    A("s_memrealtime s[80:81]"); A(f"s_load_dwordx2 s[82:83], s[0:1], {KA_DBG}"); A("s_waitcnt lgkmcnt(0)")
    A("s_mov_b32 s84, s82"); A("s_mov_b32 s85, s83"); A("s_mov_b32 s86, 256"); A("s_mov_b32 s87, 0x20000")
    A("s_sub_u32 s80, s80, s88"); A("v_mov_b32 v250, s80"); A("s_lshl_b32 s90, s91, 2"); A("s_add_u32 s90, s90, 8"); A("v_mov_b32 v251, s90")
    A("buffer_store_dword v250, v251, s[84:87], 0 offen sc0 sc1"); A("s_add_u32 s91, s91, 1")
    A.label(L)
def stamp(A, i):
    if asmlib.STAMP: A(f"s_memtime s[{66+2*i}:{67+2*i}]")
def stamp_phase(A):
    dbgt(A)
    if not asmlib.STAMP: return
    A("s_memrealtime s[80:81]")
    A("s_waitcnt lgkmcnt(0)")
    A(f"s_add_u32 s84, s{S_WS}, 0x4000000"); A(f"s_addc_u32 s85, s{S_WS+1}, 0"); A("s_mov_b32 s86, 0x400000"); A("s_mov_b32 s87, 0x20000")
    A(f"s_lshl_b32 s90, s91, 17"); A(f"v_mov_b32 v250, s{S_WG}"); A("v_lshlrev_b32 v250, 9, v250")
    A(f"v_mov_b32 v251, s{S_WAVE}"); A("v_lshlrev_b32 v251, 6, v251"); A("v_add_u32 v250, v250, v251")
    for i in range(7):
        A(f"v_mov_b32 v251, s{66+2*i}"); A(f"buffer_store_dword v251, v250, s[84:87], s90 offen offset:{4*i}")
    A("v_mov_b32 v251, s80"); A("buffer_store_dword v251, v250, s[84:87], s90 offen offset:28")
    A("v_mov_b32 v251, s88"); A("buffer_store_dword v251, v250, s[84:87], s90 offen offset:32")
    A("v_mov_b32 v251, s64"); A("buffer_store_dword v251, v250, s[84:87], s90 offen offset:36")
    A("s_add_u32 s91, s91, 1")

def gen_mega(name):
    A = Asm()
    END = "L_end"
    A(f".globl {name}"); A(".p2align 8"); A(f".type {name},@function"); A.label(name)
    A(f"""
    s_load_dwordx2 s[{S_WS}:{S_WS+1}], s[0:1], {KA_WS}
    {'s_memrealtime s[88:89]' if (asmlib.STAMP or DBGT) else ''}
    s_cmp_ge_u32 s{S_WG}, 256
    s_cbranch_scc1 {END}
    v_lshrrev_b32 v4, 6, v0
    v_and_b32 v{V_LANE}, 63, v0
    v_readfirstlane_b32 s{S_WAVE}, v4
    v_lshrrev_b32 v{V_H}, 5, v{V_LANE}
    v_and_b32 v{V_T}, 31, v{V_LANE}
    s_mov_b32 s{S_L}, 0
    s_mov_b32 s{S_OOB}, {hex(OOB)}
    s_mov_b32 s91, 0
    s_and_b32 s{S_LW}, s{S_WAVE}, 3
    s_waitcnt lgkmcnt(0)
    """)
    srd_const(A, S_FL, FLAGS, FLAGSZ)
    for r in (VP_OFF, VP_EXP, VP_OFF2, VP_EXP2, VP_MB): A(f"v_mov_b32 v{r}, s{S_OOB}")
    A(f"s_mov_b32 s{S_POFF}, 0"); A(f"s_mov_b32 s{S_NONCE}, 0")
    A(f"s_cmp_ge_u32 s{S_WAVE}, 4"); A("s_cbranch_scc1 L_loader")
    if EXP.get('cprio'): A("s_setprio 1")
    c_prep(A)
    if asmlib.STAMP: A("s_memrealtime s[64:65]")
    dbgt(A)
    A.label("C_QKV")
    stamp(A, 0)
    wide_coords(A, False, W.TB, W.CB, W.T0, W.T1, W.T2, "C_ATT")
    w_params(A, False)
    A("s_branch C_WIDE")
    A.label("C_FA")
    stamp(A, 0)
    wide_coords(A, True, W.TB, W.CB, W.T0, W.T1, W.T2, "C_FB")
    w_params(A, True)
    A.label("C_WIDE")
    c_wide(A, "C_FB", "C_ATT")
    A.label("C_ATT")
    stamp(A, 0)
    c_att(A, "C_O")
    A.label("C_O")
    stamp(A, 0)
    n_params(A, False)
    A("s_branch C_NARROW")
    A.label("C_FB")
    stamp(A, 0)
    n_params(A, True)
    A.label("C_NARROW")
    c_narrow(A, "C_FA", "C_QKV", END)
    A(".p2align 6")
    A.label("L_loader")
    if EXP.get('lprio'): A("s_setprio 1")
    A(f"s_load_dwordx2 s[50:51], s[0:1], {KA_WQKV}"); A(f"s_load_dwordx2 s[52:53], s[0:1], {KA_DBG}")
    A("s_waitcnt lgkmcnt(0)")
    srd_ptr(A, W.Wd, 50, 640*3840); srd_const(A, W.X, XF[0], XSZ)
    for r in range(4, 9): A(f"v_mov_b32 v{r}, 0")
    A(f"s_or_b32 s92, s{S_WG}, s{S_LW}"); A("s_cmp_lg_u32 s92, 0"); A("s_cbranch_scc1 L_nonce_made")
    srd_ptr(A, 56, 52, 256)
    A(f"""
    v_mov_b32 v16, {NONCE-FLAGS}
    buffer_load_dword v14, v16, s[{S_FL}:{S_FL+3}], 0 offen sc0 sc1
    v_lshlrev_b32 v17, 7, v{V_LANE}
    s_waitcnt vmcnt(0)
    v_add_u32 v14, 1, v14
    v_mov_b32 v15, 1
    s_mov_b64 exec, 3
    buffer_store_dwordx2 v[14:15], v17, s[56:59], 0 offen sc0 sc1
    s_mov_b64 exec, 1
    buffer_store_dword v14, v16, s[{S_FL}:{S_FL+3}], 0 offen sc0 sc1
    s_mov_b64 exec, -1
    """)
    A.label("L_nonce_made")
    if CODE_PF:
        LP = A.newlabel("cpf"); LS_ = A.newlabel("cpfs")
        A(f"s_cmp_eq_u32 s{S_LW}, 0"); A(f"s_cbranch_scc1 {LS_}")
        A("s_getpc_b64 s[60:61]")
        A.label(LP)
        A(f"s_sub_u32 s60, s60, {LP}-{name}"); A("s_subb_u32 s61, s61, 0")
        A(f"s_mov_b32 s62, L_code_end-{name}"); A("s_mov_b32 s63, 0x20000")
        A(f"s_lshr_b32 s92, s{S_WG}, 3"); A("s_mul_i32 s92, s92, 3"); A(f"s_add_u32 s92, s92, s{S_LW}"); A("s_sub_u32 s92, s92, 1"); A("s_lshl_b32 s92, s92, 10")
        A(f"v_lshlrev_b32 v24, 4, v{V_LANE}")
        A("buffer_load_dwordx4 v[100:103], v24, s[60:63], s92 offen")
        A.label(LS_)
    l_prep(A)
    for r in range(4, 9): A(f"v_mov_b32 v{r}, 0")
    A(f"s_mov_b32 s{W.MODE}, 4")
    wide_coords(A, False, W.TB, W.CB, W.T0, W.T1, W.T2, "L_ATT")
    w_params(A, False)
    lw_setup_w(A, 50)
    lw_prefetch_w(A, WW_N)
    A.label("L_WIDE")
    A(f"""
    s_cmp_eq_u32 s{W.MODE}, 3
    s_cselect_b32 s{W.T0}, 1, 0
    s_lshl_b32 s{W.T1}, s{S_L}, 1
    s_add_u32 s{W.T0}, s{W.T0}, s{W.T1}
    s_mul_i32 s{W.T0}, s{W.T0}, {XSZ}
    """)
    srd_reg(A, W.X, W.T0, XSZ)
    A(f"""
    s_lshl_b32 s{W.T0}, s{W.TB}, 2
    s_add_u32 s{W.T0}, s{W.T0}, s{S_LW}
    s_mul_i32 s{W.XOFF}, s{W.T0}, 40960
    """)
    lw_stats_setup(A)
    A("s_barrier")
    if asmlib.STAMP: A("s_memtime s[66:67]")
    emit_sched(A, sched2(W.NST, WX_N, WW_N, WW_N), 4, 4, lw_issue_x, lw_issue_w, W.CNT, "lw", loads={6: (lw_stats_load, 8)}, post={8: lw_stats_post})
    if not EXP['nobar']: A("s_barrier")
    if asmlib.STAMP:
        A("s_waitcnt lgkmcnt(0)")
        A(f"s_add_u32 s88, s{S_WS}, 0x4400000"); A(f"s_addc_u32 s89, s{S_WS+1}, 0"); A("s_mov_b32 s90, 0x400000"); A("s_mov_b32 s91, 0x20000")
        A(f"s_cmp_eq_u32 s{W.MODE}, 3"); A("s_cselect_b32 s92, 1, 0"); A(f"s_lshl_b32 s93, s{S_L}, 1"); A("s_add_u32 s92, s92, s93"); A("s_lshl_b32 s92, s92, 17")
        A(f"v_mov_b32 v30, s{S_WG}"); A("v_lshlrev_b32 v30, 9, v30"); A(f"v_mov_b32 v31, s{S_WAVE}"); A("v_lshlrev_b32 v31, 6, v31"); A("v_add_u32 v30, v30, v31")
        for i in range(9):
            A(f"v_mov_b32 v31, s{66+2*i}"); A(f"buffer_store_dword v31, v30, s[88:91], s92 offen offset:{4*i}")
    A(f"s_cmp_eq_u32 s{W.MODE}, 3"); A("s_cbranch_scc1 L_wide_fa_end")
    A("s_barrier")
    A("s_branch L_ATT")
    A.label("L_wide_fa_end")
    n_params(A, True); ln_setup_w(A); ln_prefetch_w(A, "fb", PFN)
    A("s_barrier")
    ln_prefetch_w(A, "fbb", NW_N - PFN)
    A("s_branch L_NARROW")
    A.label("L_ATT")
    A("s_barrier")
    n_params(A, False); ln_setup_w(A)
    A("s_barrier")
    ln_prefetch_w(A, "o", PFN)
    A("s_barrier")
    ln_prefetch_w(A, "ob", 10 - PFN)
    A.label("L_NARROW")
    ln_setup_x(A)
    A("s_barrier")
    for nw in (3, 2):
        for nst in (10, 27):
            nxt = f"L_ln_next_{nw}_{nst}"
            A(f"s_cmp_lt_u32 s{S_LW}, 2"); A(f"s_cbranch_scc{0 if nw == 3 else 1} {nxt}")
            A(f"s_cmp_eq_u32 s{N.NST}, {nst}"); A(f"s_cbranch_scc0 {nxt}")
            emit_sched(A, sched2(nst, NX_N, NW_N, min(nst, NW_N), first=NFIRST), 2, nw, ln_issue_x, ln_make_issue_w(nw), N.CNT, f"ln{nw}_{nst}")
            A("s_branch L_ln_done")
            A.label(nxt)
    A.label("L_ln_done")
    A("s_barrier")
    A(f"s_cmp_eq_u32 s{N.NST}, 27"); A("s_cbranch_scc1 L_after_fb")
    wide_coords(A, True, W.TB, W.CB, W.T0, W.T1, W.T2, "L_o_fa_idle")
    w_params(A, True)
    A(f"s_load_dwordx2 s[50:51], s[0:1], {KA_W1}"); A("s_waitcnt lgkmcnt(0)")
    lw_setup_w(A, 50); lw_prefetch_w(A, PFW)
    A("s_barrier")
    lw_prefetch_w(A, WW_N - PFW)
    A("s_branch L_WIDE")
    A.label("L_o_fa_idle")
    A("s_barrier")
    n_params(A, True); ln_setup_w(A); ln_prefetch_w(A, "fb2", NW_N)
    A("s_branch L_NARROW")
    A.label("L_after_fb")
    A(f"s_cmp_eq_u32 s{S_L}, 1"); A(f"s_cbranch_scc1 {END}")
    A(f"s_mov_b32 s{S_L}, 1")
    wide_coords(A, False, W.TB, W.CB, W.T0, W.T1, W.T2, "L_fb_qkv_idle")
    w_params(A, False)
    A(f"s_load_dwordx2 s[50:51], s[0:1], {KA_WQKV}"); A("s_waitcnt lgkmcnt(0)")
    lw_setup_w(A, 50); lw_prefetch_w(A, PFW)
    A("s_barrier")
    lw_prefetch_w(A, WW_N - PFW)
    A("s_branch L_WIDE")
    A.label("L_fb_qkv_idle")
    A("s_barrier")
    A("s_branch L_ATT")
    A.label(END)
    A("s_endpgm")
    A.label("L_code_end")
    desc = f""".section .rodata,"a"
.p2align 6
.amdhsa_kernel {name}
  .amdhsa_next_free_vgpr 256
  .amdhsa_next_free_sgpr 102
  .amdhsa_accum_offset 256
  .amdhsa_group_segment_fixed_size 0
  .amdhsa_kernarg_size 72
  .amdhsa_user_sgpr_count 2
  .amdhsa_user_sgpr_kernarg_segment_ptr 1
  .amdhsa_system_sgpr_workgroup_id_x 1
  .amdhsa_float_denorm_mode_32 3
.end_amdhsa_kernel
.text
"""
    return A, desc

def build(path, name="interleave_layers__mha_block__dense_activation_silu__prompt_kernel"):
    hdr = open('interleave_layers__mha_block__dense_activation_silu__prompt.s.ref').read().split("; Override launch")[0]
    A, desc = gen_mega(name)
    lines, n = hazard_pass(A.lines)
    A.lines = lines
    out = hdr + f"; @launch grid=(256,1,1) block=(512,1,1) lds={LDS_BYTES}\n" + '.amdgcn_target "amdgcn-amd-amdhsa--gfx950"\n.text\n' + A.text() + desc
    open(path, 'w').write(out)
    print(path, 'nops', n, 'lines', len(out.splitlines()), 'bytes', len(out))
if __name__ == "__main__":
    build('mega.s')
    asmlib.STAMP = True
    build('mega_stamp.s')
```

```python
T=2048; D=640; H=32; DH=20; F=1728
XSZ = T*D*2
XF = [0x0000000, 0x0280000, 0x0500000, 0x0780000]
STSZ = T*16*8
ST = [0x0A00000, 0x0A40000, 0x0A80000, 0x0AC0000]
LSTRIDE = 0x1400000
QP = 0x1000000
KP = 0x1280000
VF = 0x1500000
OF = 0x1800000
HF = 0x1A80000
PTS = 2560
VTS = 1408
VSZ = 32*64*VTS
HSZ = T*F*2
CSQ = 0x0B00000; CSQSZ = 4*1920*4
CS1 = 0x0B08000; CS1SZ = 4*1728*4
WOP = 0x0B40000; WOPSZ = 640*1280
W2P = 0x0C40000; W2PSZ = 1728*1280
SLOT_SH = 4
MB_SH = SLOT_SH + 5
MBA_SH = SLOT_SH + 7
FLAGS = 0x3800000
MB_QKV = 0; MB_O = 256 << MB_SH; MB_FA = 2*MB_O; MB_FB = 3*MB_O; MB_ATT = 4*MB_O; MB_LAYER = MB_ATT + (256 << MBA_SH)
NONCE = FLAGS + 2*MB_LAYER + 0x8000
FLAGSZ = 2*MB_LAYER + 0x10000
WS_USED = 0x1000000 + 2*LSTRIDE
assert HF + HSZ <= QP + LSTRIDE
KA_X=0; KA_WQKV=8; KA_WO=16; KA_W1=32; KA_W2=40; KA_OUT=48; KA_DBG=56; KA_WS=64
```

```python
from asmlib import *
from mlayout import *
import asmlib, struct
def f2u(x): return struct.unpack("<I", struct.pack("<f", x))[0]
QSCALE = (DH ** -0.5) * 1.4426950408889634
SC = " sc1"
OOB = 0x7f000000
CODE_PF = True
PF0 = 0
PFN = 3
STL = 6
STP = 8
ALIGN = 6
NROT = False
NFIRST = 4
PFW = 2
EXP = dict(nowait=False, nomfma=False, nodma=False, nobar=False, noread=False)

S_WG=2; S_WAVE=3; S_WS=4; S_NONCE=6; S_L=7
S_K16=63; S_K8=62; S_K10=61; S_FOFF=94; S_PCNT=95; S_FL=96; S_LW=100; S_OOB=101
V_LANE=1; V_H=2; V_T=3
V_RESP=232
WW_BASE=0; WW_N=6; WX_BASE=98304; WX_N=3; W_SLOT=16384; W_SCR=147456
NX_BASE=0; NX_N=6; NX_SLOT=8192; NW_BASE=49152; NW_N=10; NW_SLOT=10240; N_XCH=120832
A_CMB=0
P_SCR=126976
LDS_BYTES=163840

def srd_const(A, d, off, size):
    A(f"s_add_u32 s{d}, s{S_WS}, {hex(off)}"); A(f"s_addc_u32 s{d+1}, s{S_WS+1}, 0")
    A(f"s_mov_b32 s{d+2}, {size}"); A(f"s_mov_b32 s{d+3}, 0x20000")
def srd_reg(A, d, soff, size):
    A(f"s_add_u32 s{d}, s{S_WS}, s{soff}"); A(f"s_addc_u32 s{d+1}, s{S_WS+1}, 0")
    A(f"s_mov_b32 s{d+2}, {size}"); A(f"s_mov_b32 s{d+3}, 0x20000")
def srd_ptr(A, d, p, size):
    A(f"s_mov_b32 s{d}, s{p}"); A(f"s_mov_b32 s{d+1}, s{p+1}")
    A(f"s_mov_b32 s{d+2}, {size}"); A(f"s_mov_b32 s{d+3}, 0x20000")
def halfsum(A, x, tmp):
    A(f"v_mov_b32 v{tmp}, v{x}"); A(f"v_permlane32_swap_b32 v{x}, v{tmp}"); A(f"v_add_f32 v{x}, v{x}, v{tmp}")
def off(x): return f" offset:{x}" if x else ""

def sched2(nst, nxs, nws, prew, first=2):
    out = []; nx = 0; nw = prew
    for j in range(-1, nst-1):
        ops = []; n = 0
        while nx < nst and nx - nxs + 1 <= j and (n < (first if j == -1 else 2) or nx <= j + 1):
            ops.append(('X', nx)); nx += 1; n += 1
        n = 0
        while nw < nst and nw - nws + 1 <= j and (n < 1 or nw <= j + 1):
            ops.append(('W', nw)); nw += 1; n += 1
        assert nx > j + 1 and max(nw, prew) > j + 1
        out.append((ops, j + 1))
    return out
def emit_sched(A, sched, cx, cw, issue_x, issue_w, scnt, tag, loads=None, post=None):
    loads = loads or {}; post = post or {}
    q = []; items = []
    for n, (ops, tgt) in enumerate(sched):
        for kind, s_ in ops: q.append((kind, s_, cx if kind == 'X' else cw))
        if n in loads: q.append(('E', -1, loads[n][1]))
        idx = max(i for i, (k, st, c) in enumerate(q) if st == tgt)
        wait = sum(c for (k, st, c) in q[idx+1:])
        items.append((tuple(k for k, _ in ops), wait, n if (n in loads or n in post) else None))
    i = 0; k = 0; first = [True]; nb = [1]
    while i < len(items):
        j = i
        while j < len(items) and items[j] == items[i]: j += 1
        if EXP['nobar'] and i == 0: j = 1
        run = j - i; kinds, w, hook = items[i]
        assert w <= 63
        def body():
            if not EXP['nodma']:
                for kd in kinds: (issue_x if kd == 'X' else issue_w)(A)
            if hook in loads: loads[hook][0](A)
            if not EXP['nowait']: A(f"s_waitcnt vmcnt({w})")
            if hook in post: post[hook](A)
            if not (EXP['nobar'] and tag == "lw" and not first[0]): A("s_barrier")
            first[0] = False
            if asmlib.STAMP and tag == "lw" and nb[0] < 9:
                A(f"s_memtime s[{66+2*nb[0]}:{67+2*nb[0]}]"); nb[0] += 1
        if run >= 3 and not (asmlib.STAMP and tag == "lw"):
            L = f"L_{tag}_{k}"; k += 1
            A(f"s_mov_b32 s{scnt}, {run}"); A.label(L); body()
            A(f"s_sub_u32 s{scnt}, s{scnt}, 1"); A(f"s_cmp_lg_u32 s{scnt}, 0"); A(f"s_cbranch_scc1 {L}")
        else:
            for _ in range(run): body()
        i = j

VP_OFF=244; VP_EXP=245; VP_OFF2=246; VP_EXP2=247; VP_D=248; VP_D2=249; VP_T=12; VP_MB=252
S_POFF=94
def notify(A):
    L = A.newlabel("fl")
    A(f"s_cmp_lg_u32 s{S_WAVE}, 0"); A(f"s_cbranch_scc1 {L}")
    A(f"v_mov_b32 v{VP_D}, s{S_NONCE}")
    A(f"buffer_store_dword v{VP_D}, v{VP_MB}, s[{S_FL}:{S_FL+3}], 0 offen sc0 sc1")
    A.label(L)
def only_w0(A):
    L = A.newlabel("w0"); A(f"s_cmp_lg_u32 s{S_WAVE}, 0"); A(f"s_cbranch_scc1 {L}"); return L
def mb_finish(A, idx, slot, nvalid_cmp, region, shift=None):
    if shift is None: shift = MB_SH
    A(f"v_lshlrev_b32 v{idx}, {shift}, v{idx}")
    A(f"v_lshl_add_u32 v{VP_MB}, v{slot}, {SLOT_SH}, v{idx}")
    A(f"v_add_u32 v{VP_MB}, s{region}, v{VP_MB}")
    A(f"v_mov_b32 v{idx}, s{S_OOB}")
    A(f"v_cndmask_b32 v{VP_MB}, v{idx}, v{VP_MB}, vcc")
def region(A, dst, base, layer_add=0):
    A(f"s_add_u32 s{dst}, s{S_L}, {layer_add}") if layer_add else A(f"s_mov_b32 s{dst}, s{S_L}")
    A(f"s_mul_i32 s{dst}, s{dst}, {hex(MB_LAYER)}"); A(f"s_add_u32 s{dst}, s{dst}, {hex(base)}")
PIPE = 1
def poll(A, two=False):
    L = A.newlabel("poll"); Dn = A.newlabel("polld")
    A(f"s_cmp_lg_u32 s{S_WAVE}, 0"); A(f"s_cbranch_scc1 {Dn}")
    A(f"s_mov_b32 s{S_PCNT}, 0x10000")
    if two: sets = [(VP_D, VP_D2), (253, 254)][:max(1, PIPE // 2)]
    else: sets = [(VP_D,), (VP_D2,), (253,), (254,)][:PIPE]
    n = len(sets[0]); inflight = n*(len(sets) - 1)
    def issue(rs):
        A(f"buffer_load_dword v{rs[0]}, v{VP_OFF}, s[{S_FL}:{S_FL+3}], s{S_POFF} offen sc0 sc1")
        if two: A(f"buffer_load_dword v{rs[1]}, v{VP_OFF2}, s[{S_FL}:{S_FL+3}], s{S_POFF} offen sc0 sc1")
    for rs in sets: issue(rs)
    A.label(L)
    for rs in sets:
        A(f"s_waitcnt vmcnt({inflight})")
        A(f"v_cmp_eq_u32 vcc, v{rs[0]}, v{VP_EXP}")
        if two:
            A(f"v_cmp_eq_u32 s[92:93], v{rs[1]}, v{VP_EXP2}")
            A("s_and_b64 vcc, vcc, s[92:93]")
        A("s_cmp_eq_u64 vcc, exec")
        A(f"s_cbranch_scc1 {Dn}")
        issue(rs)
    A(f"s_sub_u32 s{S_PCNT}, s{S_PCNT}, 1"); A(f"s_cmp_lg_u32 s{S_PCNT}, 0"); A(f"s_cbranch_scc1 {L}")
    A.label(Dn)
def poll_slots(A, n_sreg_or_const):
    A(f"v_lshlrev_b32 v{VP_OFF}, {SLOT_SH}, v{V_LANE}")
    A(f"v_cmp_gt_u32 vcc, {n_sreg_or_const}, v{V_LANE}")
    A(f"v_mov_b32 v{VP_T}, s{S_OOB}")
    A(f"v_mov_b32 v{VP_EXP}, s{S_NONCE}")
    A(f"v_cndmask_b32 v{VP_OFF}, v{VP_T}, v{VP_OFF}, vcc")
    A(f"v_cndmask_b32 v{VP_EXP}, 0, v{VP_EXP}, vcc")
def mb_from_prep(A, t):
    I=VP_T; S_=VP_T+1; X=VP_T+2
    A(f"""
    s_lshr_b32 s{t}, s{S_WG}, 4
    v_lshlrev_b32 v{I}, 4, v{V_LANE}
    v_add_u32 v{I}, s{t}, v{I}
    s_and_b32 s{t}, s{S_WG}, 15
    v_mov_b32 v{S_}, s{t}
    s_lshr_b32 s{t}, s{S_WG}, 3
    s_lshl_b32 s{t}, s{t}, 4
    s_sub_u32 s{t}, s{t}, 16
    v_add_u32 v{X}, s{t}, v{V_LANE}
    v_bfe_u32 v{X+1}, v{V_LANE}, 4, 2
    v_cmp_eq_u32 vcc, 1, v{X+1}
    s_and_b32 s{t}, s{S_WG}, 7
    s_add_u32 s{t}, s{t}, 16
    v_mov_b32 v{X+1}, s{t}
    v_cndmask_b32 v{I}, v{I}, v{X}, vcc
    v_cndmask_b32 v{S_}, v{S_}, v{X+1}, vcc
    s_cmp_lt_u32 s{S_WG}, 120
    s_cselect_b64 s[92:93], -1, 0
    s_and_b64 s[92:93], s[92:93], vcc
    v_cmp_gt_u32 vcc, 15, v{V_LANE}
    s_or_b64 vcc, vcc, s[92:93]
    s_mov_b32 s{t}, {MB_QKV}
    """)
    mb_finish(A, I, S_, None, t)
def mb_from_qkv(A, t0, t1, t2):
    I=VP_T; S_=VP_T+1; X=VP_T+2; Y=VP_T+3
    A(f"""
    s_mul_i32 s{t0}, s{W.CB}, 205
    s_lshr_b32 s{t0}, s{t0}, 10
    s_mul_i32 s{t1}, s{t0}, 5
    s_sub_u32 s{t1}, s{W.CB}, s{t1}
    s_lshl_b32 s{t2}, s{t1}, 7
    s_mul_i32 s{S_PCNT}, s{t2}, 3277
    s_lshr_b32 s{S_PCNT}, s{S_PCNT}, 16
    s_add_u32 s{t2}, s{t2}, 127
    s_mul_i32 s{t2}, s{t2}, 3277
    s_lshr_b32 s{t2}, s{t2}, 16
    """)
    LQ = A.newlabel("mbq"); LD = A.newlabel("mbd")
    A(f"s_cmp_eq_u32 s{t0}, 0"); A(f"s_cbranch_scc1 {LQ}")
    A(f"""
    v_lshrrev_b32 v{X}, 3, v{V_LANE}
    v_add_u32 v{X}, s{S_PCNT}, v{X}
    v_and_b32 v{I}, 7, v{V_LANE}
    v_lshl_add_u32 v{I}, v{I}, 5, v{X}
    v_mul_u32_u24 v{Y}, 20, v{X}
    v_lshrrev_b32 v{Y}, 7, v{Y}
    v_cmp_ne_u32 vcc, s{t1}, v{Y}
    s_sub_u32 s{t0}, s{t0}, 1
    s_lshl_b32 s{t0}, s{t0}, 5
    s_add_u32 s{t0}, s{t0}, s{W.TB}
    v_mov_b32 v{S_}, s{t0}
    v_add_u32 v{Y}, 16, v{S_}
    v_cndmask_b32 v{S_}, v{S_}, v{Y}, vcc
    v_cmp_ge_u32 vcc, s{t2}, v{X}
    s_branch {LD}
    """)
    A.label(LQ)
    A(f"""
    v_add_u32 v{X}, s{S_PCNT}, v{V_LANE}
    s_lshr_b32 s{t0}, s{W.TB}, 1
    s_lshl_b32 s{t0}, s{t0}, 5
    v_add_u32 v{I}, s{t0}, v{X}
    v_mul_u32_u24 v{Y}, 20, v{X}
    v_lshrrev_b32 v{Y}, 7, v{Y}
    v_cmp_ne_u32 vcc, s{t1}, v{Y}
    s_and_b32 s{t0}, s{W.TB}, 1
    s_add_u32 s{t0}, s{t0}, 64
    v_mov_b32 v{S_}, s{t0}
    v_add_u32 v{Y}, 2, v{S_}
    v_cndmask_b32 v{S_}, v{S_}, v{Y}, vcc
    v_cmp_ge_u32 vcc, s{t2}, v{X}
    v_cmp_gt_u32 s[92:93], 8, v{V_LANE}
    s_and_b64 vcc, vcc, s[92:93]
    """)
    A.label(LD)
    region(A, t0, MB_ATT)
    mb_finish(A, I, S_, None, t0, shift=MBA_SH)
def mb_simple(A, t, idx_base_expr, lane_shift, slot_sreg, nvalid, base, layer_add=0):
    I=VP_T; S_=VP_T+1
    A(f"v_lshlrev_b32 v{I}, {lane_shift}, v{V_LANE}") if lane_shift else A(f"v_mov_b32 v{I}, v{V_LANE}")
    A(f"v_add_u32 v{I}, s{idx_base_expr}, v{I}")
    A(f"v_mov_b32 v{S_}, s{slot_sreg}")
    A(f"v_cmp_gt_u32 vcc, {nvalid}, v{V_LANE}")
    region(A, t, base, layer_add)
    mb_finish(A, I, S_, None, t)

def sync_wide(A):
    L = only_w0(A)
    LF = A.newlabel("swf"); LD = A.newlabel("swd")
    A(f"s_cmp_eq_u32 s{W.MODE}, 3"); A(f"s_cbranch_scc1 {LF}")
    mb_from_qkv(A, W.T0, W.T1, W.T2)
    A(f"s_branch {LD}")
    A.label(LF)
    A(f"s_lshl_b32 s{W.T0}, s{W.TB}, 4")
    mb_simple(A, W.T1, W.T0, 0, W.CB, 16, MB_FB)
    A.label(LD)
    A(f"""
    s_lshl_b32 s{W.T0}, s{W.CB}, 4
    s_add_u32 s{W.T0}, s{W.T0}, s{W.TB}
    s_lshl_b32 s{W.T1}, s{W.TB}, 4
    s_add_u32 s{W.T1}, s{W.T1}, s{W.CB}
    s_cmp_eq_u32 s{W.MODE}, 3
    s_cselect_b32 s{W.T0}, s{W.T1}, s{W.T0}
    s_cselect_b32 s{W.T2}, {hex(MB_FA)}, {MB_QKV}
    s_lshl_b32 s{W.T0}, s{W.T0}, {MB_SH}
    s_add_u32 s{W.T0}, s{W.T0}, s{W.T2}
    s_mul_i32 s{S_POFF}, s{S_L}, {hex(MB_LAYER)}
    s_add_u32 s{S_POFF}, s{S_POFF}, s{W.T0}
    s_cmp_eq_u32 s{W.MODE}, 3
    s_cselect_b32 s{W.T1}, 1, s{S_L}
    s_cmp_eq_u32 s{W.T1}, 0
    s_cselect_b32 s{W.T1}, 24, 16
    """)
    poll_slots(A, f"s{W.T1}")
    A.label(L)
def sync_att(A):
    L = only_w0(A)
    CA=40; CB_=41; T0=46; T1=47
    A(f"s_lshl_b32 s{T0}, s{T.QB}, 5")
    mb_simple(A, T1, T0, 0, T.HEAD, 32, MB_O)
    A(f"""
    s_mul_i32 s{T0}, s{T.HEAD}, 20
    s_lshr_b32 s{CA}, s{T0}, 7
    s_add_u32 s{T0}, s{T0}, 19
    s_lshr_b32 s{CB_}, s{T0}, 7
    s_cmp_lg_u32 s{CA}, s{CB_}
    s_cselect_b64 s[92:93], -1, 0
    v_lshlrev_b32 v{VP_OFF}, {SLOT_SH}, v{V_LANE}
    v_bfe_u32 v{VP_T}, v{V_LANE}, 4, 1
    v_cmp_eq_u32 vcc, 0, v{VP_T}
    s_or_b64 vcc, vcc, s[92:93]
    v_mov_b32 v{VP_T}, s{S_OOB}
    v_mov_b32 v{VP_EXP}, s{S_NONCE}
    v_cndmask_b32 v{VP_OFF}, v{VP_T}, v{VP_OFF}, vcc
    v_cndmask_b32 v{VP_EXP}, 0, v{VP_EXP}, vcc
    v_lshlrev_b32 v{VP_OFF2}, {SLOT_SH}, v{V_LANE}
    v_add_u32 v{VP_OFF2}, {64 << SLOT_SH}, v{VP_OFF2}
    v_cmp_gt_u32 vcc, 2, v{V_LANE}
    v_cmp_gt_u32 s[48:49], 4, v{V_LANE}
    s_and_b64 s[48:49], s[48:49], s[92:93]
    s_or_b64 vcc, vcc, s[48:49]
    v_mov_b32 v{VP_EXP2}, s{S_NONCE}
    v_cndmask_b32 v{VP_OFF2}, v{VP_T}, v{VP_OFF2}, vcc
    v_cndmask_b32 v{VP_EXP2}, 0, v{VP_EXP2}, vcc
    """)
    region(A, S_POFF, MB_ATT)
    A(f"s_lshl_b32 s{T0}, s{S_WG}, {MBA_SH}"); A(f"s_add_u32 s{S_POFF}, s{S_POFF}, s{T0}")
    A.label(L)
def sync_narrow(A):
    L = only_w0(A)
    LFB = A.newlabel("snf"); LD = A.newlabel("snd")
    A(f"s_and_b32 s60, s{N.TB}, 1"); A(f"s_lshl_b32 s60, s60, 3"); A(f"s_add_u32 s60, s60, s{N.CB}"); A(f"s_lshr_b32 s59, s{N.TB}, 1")
    A(f"s_cmp_eq_u32 s{N.NST}, 27"); A(f"s_cbranch_scc1 {LFB}")
    A(f"s_lshl_b32 s59, s59, 4")
    mb_simple(A, 58, 59, 0, 60, 14, MB_FA)
    A(f"s_branch {LD}")
    A.label(LFB)
    mb_simple(A, 58, 59, 4, 60, 15, MB_QKV, layer_add=1)
    A.label(LD)
    A(f"""
    s_lshl_b32 s{N.T0}, s{N.TB}, 3
    s_add_u32 s{N.T0}, s{N.T0}, s{N.CB}
    s_lshl_b32 s{N.T0}, s{N.T0}, {MB_SH}
    s_mov_b32 s{N.T1}, {hex(MB_O)}
    s_cmp_eq_u32 s{N.NST}, 27
    s_cselect_b32 s{N.T1}, {hex(MB_FB)}, s{N.T1}
    s_cselect_b32 s{N.T2}, 14, 32
    s_add_u32 s{N.T0}, s{N.T0}, s{N.T1}
    s_mul_i32 s{S_POFF}, s{S_L}, {hex(MB_LAYER)}
    s_add_u32 s{S_POFF}, s{S_POFF}, s{N.T0}
    """)
    poll_slots(A, f"s{N.T2}")
    A.label(L)

def wide_coords(A, ffn, tb, cb, t0, t1, t2, idle_label):
    A(f"""
    s_and_b32 s{t0}, s{S_WG}, 7
    s_lshr_b32 s{t1}, s{S_WG}, 3
    s_and_b32 s{tb}, s{t0}, 3
    s_lshl_b32 s{tb}, s{tb}, 2
    s_and_b32 s{t2}, s{t1}, 3
    s_add_u32 s{tb}, s{tb}, s{t2}
    s_lshr_b32 s{t0}, s{t0}, 2
    s_lshr_b32 s{t1}, s{t1}, 2
    """)
    if ffn:
        A(f"s_mul_i32 s{cb}, s{t0}, 7"); A(f"s_add_u32 s{cb}, s{cb}, s{t1}")
        A(f"s_cmp_ge_u32 s{t1}, 7"); A(f"s_cbranch_scc1 {idle_label}")
    else:
        A(f"s_lshl_b32 s{cb}, s{t0}, 3"); A(f"s_add_u32 s{cb}, s{cb}, s{t1}")
        A(f"s_cmp_ge_u32 s{cb}, 15"); A(f"s_cbranch_scc1 {idle_label}")
def narrow_coords(A, tb, cb, t0, t1, t2):
    A(f"""
    s_and_b32 s{t0}, s{S_WG}, 7
    s_lshr_b32 s{t1}, s{S_WG}, 3
    s_and_b32 s{tb}, s{t0}, 3
    s_lshl_b32 s{tb}, s{tb}, 3
    s_and_b32 s{t2}, s{t1}, 7
    s_add_u32 s{tb}, s{tb}, s{t2}
    s_lshr_b32 s{t0}, s{t0}, 2
    s_lshl_b32 s{t0}, s{t0}, 2
    s_lshr_b32 s{t1}, s{t1}, 3
    s_add_u32 s{cb}, s{t0}, s{t1}
    """)

def packaddr(A, dst, vsrc, add, kq640, stmp):
    A(f"""
    v_lshrrev_b32 v72, 4, v{vsrc}
    v_add_u32 v72, {add}, v72
    s_mov_b32 s{stmp}, 0xcccccccd
    v_mul_hi_u32 v73, v72, s{stmp}
    v_lshrrev_b32 v73, 6, v73
    v_mul_u32_u24 v74, 80, v73
    v_sub_u32 v74, v72, v74
    v_mul_u32_u24 v75, 6554, v74
    v_lshrrev_b32 v75, 16, v75
    v_mul_u32_u24 v76, 10, v75
    v_sub_u32 v76, v74, v76
    s_mov_b32 s{stmp}, {kq640}
    v_mul_lo_u32 v{dst}, v75, s{stmp}
    v_lshrrev_b32 v77, 2, v73
    v_mul_u32_u24 v77, 640, v77
    v_add_u32 v{dst}, v{dst}, v77
    v_and_b32 v73, 3, v73
    v_lshrrev_b32 v77, 2, v76
    v_lshlrev_b32 v77, 8, v77
    v_lshlrev_b32 v78, 6, v73
    v_add_u32 v77, v77, v78
    v_and_b32 v78, 3, v76
    v_lshlrev_b32 v78, 4, v78
    v_add_u32 v77, v77, v78
    v_lshlrev_b32 v78, 5, v73
    v_and_b32 v79, 1, v76
    v_lshlrev_b32 v79, 4, v79
    v_add_u32 v78, v78, v79
    v_add_u32 v78, 512, v78
    v_cmp_gt_u32 vcc, 8, v76
    v_cndmask_b32 v77, v78, v77, vcc
    v_add_u32 v{dst}, v{dst}, v77
    v_cmp_gt_u32 vcc, {kq640*8//16}, v72
    v_mov_b32 v78, s{S_OOB}
    v_cndmask_b32 v{dst}, v78, v{dst}, vcc
    """)

def pack_unit(A, sunit, WO, W2, WOPD, W2PD, t0, t1, t2, t3, lds_base_sreg, part="both", wait=0):
    if part == "finish":
        pack_finish(A, t2, wait); return
    L2 = A.newlabel("pk2"); LG = A.newlabel("pkg")
    A(f"s_cmp_ge_u32 s{sunit}, 320"); A(f"s_cbranch_scc1 {L2}")
    A(f"""
    s_mul_i32 s{t0}, s{sunit}, 1639
    s_lshr_b32 s{t0}, s{t0}, 16
    s_mul_i32 s{t1}, s{t0}, 40
    s_sub_u32 s{t1}, s{sunit}, s{t1}
    s_mul_i32 s{t2}, s{sunit}, 2560
    s_mov_b32 s56, s{WO}
    s_mov_b32 s57, s{WO+1}
    s_mov_b32 s58, s{WO+2}
    s_mov_b32 s60, s{WOPD}
    s_mov_b32 s61, s{WOPD+1}
    s_mov_b32 s62, s{WOPD+2}
    s_branch {LG}
    """)
    A.label(L2)
    A(f"""
    s_sub_u32 s{t3}, s{sunit}, 320
    s_mul_i32 s{t0}, s{t3}, 607
    s_lshr_b32 s{t0}, s{t0}, 16
    s_mul_i32 s{t1}, s{t0}, 108
    s_sub_u32 s{t1}, s{t3}, s{t1}
    s_mul_i32 s{t2}, s{t3}, 2560
    s_mov_b32 s56, s{W2}
    s_mov_b32 s57, s{W2+1}
    s_mov_b32 s58, s{W2+2}
    s_mov_b32 s60, s{W2PD}
    s_mov_b32 s61, s{W2PD+1}
    s_mov_b32 s62, s{W2PD+2}
    """)
    A.label(LG)
    A(f"""
    s_mov_b32 s59, 0x20000
    s_mov_b32 s63, 0x20000
    s_mul_i32 s{t1}, s{t1}, {16*1280}
    s_mul_i32 s{t0}, s{t0}, 160
    s_add_u32 s{t0}, s{t0}, s{t1}
    """)
    for i in range(3):
        A(f"""
        v_add_u32 v20, {64*i}, v{V_LANE}
        v_mul_u32_u24 v21, 6554, v20
        v_lshrrev_b32 v21, 16, v21
        v_mul_u32_u24 v22, 10, v21
        v_sub_u32 v22, v20, v22
        v_mul_u32_u24 v23, 1280, v21
        v_lshl_add_u32 v23, v22, 4, v23
        v_lshrrev_b32 v24, 2, v21
        v_mul_u32_u24 v24, 640, v24
        v_and_b32 v21, 3, v21
        v_lshrrev_b32 v25, 2, v22
        v_lshlrev_b32 v25, 8, v25
        v_lshl_add_u32 v25, v21, 6, v25
        v_and_b32 v26, 3, v22
        v_lshl_add_u32 v25, v26, 4, v25
        v_lshlrev_b32 v26, 5, v21
        v_and_b32 v27, 1, v22
        v_lshl_add_u32 v26, v27, 4, v26
        v_add_u32 v26, 512, v26
        v_cmp_gt_u32 vcc, 8, v22
        v_cndmask_b32 v25, v26, v25, vcc
        v_add_u32 v24, v24, v25
        v_add_u32 v{28+i}, s{lds_base_sreg}, v24
        """)
        if i == 2:
            A(f"v_cmp_gt_u32 vcc, 160, v20"); A(f"v_mov_b32 v21, s{S_OOB}"); A("v_cndmask_b32 v23, v21, v23, vcc")
        A(f"buffer_load_dwordx4 v[{32+4*i}:{35+4*i}], v23, s[56:59], s{t0} offen")
    A(f"""
    v_mul_u32_u24 v20, 640, v{V_H}
    v_add_u32 v20, s{lds_base_sreg}, v20
    v_and_b32 v21, 3, v{V_LANE}
    v_lshl_add_u32 v20, v21, 3, v20
    v_bfe_u32 v21, v{V_LANE}, 2, 2
    v_lshl_add_u32 v22, v21, 5, v20
    v_add_u32 v22, 512, v22
    v_lshl_add_u32 v20, v21, 6, v20
    v_bfe_u32 v21, v{V_LANE}, 4, 1
    v_lshl_add_u32 v20, v21, 5, v20
    v_lshlrev_b32 v24, 4, v{V_LANE}
    v_and_b32 v25, 15, v{V_LANE}
    v_lshlrev_b32 v25, 4, v25
    v_lshl_add_u32 v25, v{V_H}, 8, v25
    v_add_u32 v25, 2048, v25
    v_cmp_eq_u32 vcc, 0, v21
    v_mov_b32 v26, s{S_OOB}
    v_cndmask_b32 v25, v26, v25, vcc
    """)
    if part == "both": pack_finish(A, t2, 0)
def pack_finish(A, t2, wait):
    A(f"""
    s_waitcnt vmcnt({wait})
    ds_write_b128 v28, v[32:35]
    ds_write_b128 v29, v[36:39]
    """)
    A("s_mov_b32 exec_hi, 0")
    A("ds_write_b128 v30, v[40:43]")
    A("s_mov_b32 exec_hi, -1")
    A(f"""
    s_waitcnt lgkmcnt(0)
    ds_read_b64_tr_b16 v[32:33], v20
    ds_read_b64_tr_b16 v[34:35], v20 offset:1280
    ds_read_b64_tr_b16 v[36:37], v20 offset:256
    ds_read_b64_tr_b16 v[38:39], v20 offset:1536
    ds_read_b64_tr_b16 v[40:41], v22
    ds_read_b64_tr_b16 v[42:43], v22 offset:1280
    s_waitcnt lgkmcnt(0)
    buffer_store_dwordx4 v[32:35], v24, s[60:63], s{t2} offen{SC}
    buffer_store_dwordx4 v[36:39], v24, s[60:63], s{t2} offen offset:1024{SC}
    buffer_store_dwordx4 v[40:43], v25, s[60:63], s{t2} offen{SC}
    """)

def c_prep(A):
    X=20; XF0=24; ST0=28; WO=32; W2=36; WOPD=48; W2PD=52
    TT=64; Q=65; T0=66; T1=67; T2=68; T3=69; K3=82
    A(f"""
    s_load_dwordx2 s[8:9], s[0:1], {KA_X}
    s_load_dwordx2 s[12:13], s[0:1], {KA_WO}
    s_load_dwordx2 s[18:19], s[0:1], {KA_W2}
    s_load_dwordx2 s[10:11], s[0:1], {KA_DBG}
    s_lshr_b32 s{TT}, s{S_WG}, 2
    s_and_b32 s{Q}, s{S_WG}, 3
    s_lshl_b32 s{T0}, s{TT}, 5
    v_add_u32 v5, s{T0}, v{V_T}
    v_mul_u32_u24 v5, 1280, v5
    v_lshlrev_b32 v6, 4, v{V_H}
    v_add_u32 v5, v5, v6
    s_mul_i32 s{T0}, s{Q}, 320
    s_lshl_b32 s{T1}, s{S_WAVE}, 5
    s_add_u32 s{T0}, s{T0}, s{T1}
    v_add_u32 v5, s{T0}, v5
    s_cmp_lt_u32 s{S_WAVE}, 2
    s_cselect_b32 s{K3}, 256, s{S_OOB}
    s_lshl_b32 s{T0}, s{S_WG}, 12
    v_lshlrev_b32 v7, 4, v0
    v_add_u32 v7, s{T0}, v7
    s_waitcnt lgkmcnt(0)
    """)
    srd_ptr(A, X, 8, XSZ)
    A(f"""
    buffer_load_dwordx4 v[8:11], v5, s[{X}:{X+3}], 0 offen
    buffer_load_dwordx4 v[12:15], v5, s[{X}:{X+3}], 0 offen offset:128
    buffer_load_dwordx4 v[16:19], v5, s[{X}:{X+3}], s{K3} offen
    """)
    srd_ptr(A, WO, 12, 640*1280); srd_ptr(A, W2, 18, F*1280)
    srd_const(A, XF0, XF[0], XSZ); srd_const(A, ST0, ST[0], STSZ)
    srd_const(A, WOPD, WOP, WOPSZ); srd_const(A, W2PD, W2P, W2PSZ)
    A(f"""
    s_mul_i32 s70, s{S_WAVE}, 2560
    s_add_u32 s70, s70, {P_SCR + 8192}
    s_lshl_b32 s71, s{S_WG}, 2
    s_add_u32 s71, s71, s{S_WAVE}
    """)
    pack_unit(A, 71, WO, W2, WOPD, W2PD, 72, 73, 74, 75, 70, part="issue")
    A("s_waitcnt vmcnt(3)")
    A("v_mov_b32 v56, 0\nv_mov_b32 v57, 0")
    for r in range(8, 20):
        A(f"""
        v_lshlrev_b32 v58, 16, v{r}
        v_and_b32 v59, 0xffff0000, v{r}
        v_add_f32 v56, v56, v58
        v_fmac_f32 v57, v58, v58
        v_add_f32 v56, v56, v59
        v_fmac_f32 v57, v59, v59
        """)
    for b in (8, 12, 16):
        A(f"v_permlane32_swap_b32 v{b}, v{b+2}"); A(f"v_permlane32_swap_b32 v{b+1}, v{b+3}")
    A(f"""
    s_mul_i32 s{T0}, s{TT}, 40
    s_mul_i32 s{T1}, s{Q}, 10
    s_add_u32 s{T0}, s{T0}, s{T1}
    s_add_u32 s{T0}, s{T0}, s{S_WAVE}
    s_lshl_b32 s{T0}, s{T0}, 10
    v_lshlrev_b32 v60, 4, v{V_LANE}
    v_add_u32 v60, s{T0}, v60
    s_cmp_lt_u32 s{S_WAVE}, 2
    s_cselect_b32 s{K3}, 8192, s{S_OOB}
    s_mov_b32 s{T1}, 4096
    buffer_store_dwordx4 v[8:11], v60, s[{XF0}:{XF0+3}], 0 offen{SC}
    buffer_store_dwordx4 v[12:15], v60, s[{XF0}:{XF0+3}], s{T1} offen{SC}
    buffer_store_dwordx4 v[16:19], v60, s[{XF0}:{XF0+3}], s{K3} offen{SC}
    """)
    halfsum(A, 56, 58); halfsum(A, 57, 59)
    A(f"""
    s_lshl_b32 s{T0}, s{TT}, 12
    s_lshl_b32 s{T1}, s{Q}, 2
    s_add_u32 s{T1}, s{T1}, s{S_WAVE}
    s_lshr_b32 s{T2}, s{T1}, 1
    s_lshl_b32 s{T2}, s{T2}, 9
    s_add_u32 s{T0}, s{T0}, s{T2}
    s_and_b32 s{T1}, s{T1}, 1
    s_lshl_b32 s{T1}, s{T1}, 3
    s_add_u32 s{T0}, s{T0}, s{T1}
    v_lshlrev_b32 v60, 4, v{V_T}
    v_add_u32 v60, s{T0}, v60
    buffer_store_dwordx2 v[56:57], v60, s[{ST0}:{ST0+3}], 0 offen{SC}
    """)
    pack_unit(A, 71, WO, W2, WOPD, W2PD, 72, 73, 74, 75, 70, part="finish", wait=4)
    LNO = A.newlabel("pk_no2")
    A("s_add_u32 s71, s71, 1024"); A("s_cmp_ge_u32 s71, 1184"); A(f"s_cbranch_scc1 {LNO}")
    pack_unit(A, 71, WO, W2, WOPD, W2PD, 72, 73, 74, 75, 70)
    A.label(LNO)
    A("s_waitcnt vmcnt(0)")
    for _ in range(3): A("s_barrier")
    L0 = only_w0(A)
    mb_from_prep(A, T0)
    srd_ptr(A, 12, 10, 256)
    A(f"s_mov_b32 s{S_PCNT}, 0x10000")
    A(f"s_and_b32 s{T0}, s{S_WG}, 1"); A(f"s_lshl_b32 s{T0}, s{T0}, 7"); A(f"v_mov_b32 v{VP_OFF}, s{T0}")
    A.label("L_nonce_poll")
    A(f"""
    buffer_load_dwordx2 v[{VP_D}:{VP_D2}], v{VP_OFF}, s[12:15], 0 offen sc0 sc1
    s_waitcnt vmcnt(0)
    v_readfirstlane_b32 s{S_NONCE}, v{VP_D}
    v_readfirstlane_b32 s{T0}, v{VP_D2}
    s_cmp_eq_u32 s{T0}, 1
    s_cbranch_scc1 {L0}
    s_sub_u32 s{S_PCNT}, s{S_PCNT}, 1
    s_cmp_lg_u32 s{S_PCNT}, 0
    s_cbranch_scc1 L_nonce_poll
    """)
    A.label(L0)
    A("s_barrier")
    notify(A)

def l_prep(A):
    W2=36; CS_S=40; CS_D=44; W2PD=64; VF0=68; VF1=72
    T0=76; T1=77; T2=78; T3=79; LDW=80; CROW=81; TASK=82; STRIP=83; RQ=84; NOCS=85; ADV=86; CO=87
    TID=9
    A(f"""
    s_load_dwordx2 s[20:21], s[0:1], {KA_W1}
    s_load_dwordx2 s[22:23], s[0:1], {KA_W2}
    v_and_b32 v{TID}, 255, v0
    s_cmp_ge_u32 s{S_WG}, 228
    s_cselect_b32 s{NOCS}, 1, 0
    s_waitcnt lgkmcnt(0)
    """)
    CSW1 = "L_lp_csw1"; CSGO = "L_lp_csgo"
    A(f"s_cmp_ge_u32 s{S_WG}, 120"); A(f"s_cbranch_scc1 {CSW1}")
    srd_ptr(A, CS_S, 50, 640*3840); srd_const(A, CS_D, CSQ, CSQSZ)
    A(f"s_mov_b32 s{LDW}, 3840"); A(f"s_mov_b32 s{CROW}, 7680"); A(f"s_mov_b32 s{TASK}, s{S_WG}"); A(f"s_branch {CSGO}")
    A.label(CSW1)
    srd_ptr(A, CS_S, 20, 640*3456); srd_const(A, CS_D, CS1, CS1SZ)
    A(f"s_mov_b32 s{LDW}, 3456"); A(f"s_mov_b32 s{CROW}, 6912"); A(f"s_sub_u32 s{TASK}, s{S_WG}, 120")
    A.label(CSGO)
    A(f"""
    s_lshr_b32 s{STRIP}, s{TASK}, 2
    s_and_b32 s{RQ}, s{TASK}, 3
    v_lshrrev_b32 v6, 3, v{TID}
    s_mul_i32 s{T0}, s{RQ}, 160
    v_add_u32 v6, s{T0}, v6
    v_mul_lo_u32 v6, v6, s{LDW}
    v_and_b32 v7, 7, v{TID}
    v_lshlrev_b32 v7, 4, v7
    v_add_u32 v6, v6, v7
    s_lshl_b32 s{T0}, s{STRIP}, 7
    v_add_u32 v6, s{T0}, v6
    s_lshl_b32 s{ADV}, s{LDW}, 5
    s_cmp_eq_u32 s{NOCS}, 1
    s_cselect_b32 s{CO}, s{S_OOB}, 0
    """)
    for i in range(5):
        A(f"buffer_load_dwordx4 v[{20+4*i}:{23+4*i}], v6, s[{CS_S}:{CS_S+3}], s{CO} offen")
        if i < 4: A(f"s_add_u32 s{CO}, s{CO}, s{ADV}")
    srd_const(A, VF0, VF, VSZ); srd_const(A, VF1, VF + LSTRIDE, VSZ)
    A(f"""
    v_lshrrev_b32 v95, 1, v{V_LANE}
    s_lshl_b32 s{T0}, s{S_WG}, 5
    v_add_u32 v95, s{T0}, v95
    v_mul_u32_u24 v95, 352, v95
    v_and_b32 v94, 1, v{V_LANE}
    v_lshlrev_b32 v96, 4, v94
    v_add_u32 v95, v95, v96
    v_add_u32 v95, 320, v95
    v_mov_b32 v96, 0x3f803f80
    v_cmp_eq_u32 vcc, 0, v94
    v_cndmask_b32 v96, 0, v96, vcc
    v_mov_b32 v97, v96
    v_mov_b32 v98, v96
    v_mov_b32 v99, v96
    v_cmp_gt_u32 vcc, 64, v{TID}
    v_mov_b32 v94, s{S_OOB}
    v_cndmask_b32 v95, v94, v95, vcc
    buffer_store_dwordx4 v[96:99], v95, s[{VF0}:{VF0+3}], 0 offen{SC}
    buffer_store_dwordx4 v[96:99], v95, s[{VF1}:{VF1+3}], 0 offen{SC}
    """)
    A("s_waitcnt vmcnt(2)")
    for j in range(8): A(f"v_mov_b32 v{64+j}, 0")
    for i in range(5):
        for rr in range(4):
            r = 20 + 4*i + rr
            A(f"""
            v_lshlrev_b32 v58, 16, v{r}
            v_and_b32 v59, 0xffff0000, v{r}
            v_add_f32 v{64+2*rr}, v{64+2*rr}, v58
            v_add_f32 v{65+2*rr}, v{65+2*rr}, v59
            """)
    A(f"""
    v_lshlrev_b32 v58, 5, v{TID}
    v_add_u32 v58, {P_SCR}, v58
    ds_write_b128 v58, v[64:67]
    ds_write_b128 v58, v[68:71] offset:16
    s_waitcnt lgkmcnt(0)
    s_barrier
    v_lshlrev_b32 v58, 2, v{V_LANE}
    s_lshl_b32 s{T0}, s{S_LW}, 11
    s_add_u32 s{T0}, s{T0}, {P_SCR}
    v_add_u32 v58, s{T0}, v58
    """)
    for k in range(8): A(f"ds_read_b32 v{64+k}, v58 offset:{256*k}")
    A(f"""
    s_waitcnt lgkmcnt(0)
    v_add_f32 v64, v64, v65
    v_add_f32 v66, v66, v67
    v_add_f32 v68, v68, v69
    v_add_f32 v70, v70, v71
    v_add_f32 v64, v64, v66
    v_add_f32 v68, v68, v70
    v_add_f32 v64, v64, v68
    v_lshlrev_b32 v58, 2, v{TID}
    v_add_u32 v58, {P_SCR}, v58
    s_barrier
    ds_write_b32 v58, v64
    s_waitcnt lgkmcnt(0)
    s_barrier
    v_lshlrev_b32 v59, 2, v{V_LANE}
    v_add_u32 v58, {P_SCR}, v59
    ds_read_b32 v64, v58
    ds_read_b32 v65, v58 offset:256
    ds_read_b32 v66, v58 offset:512
    ds_read_b32 v67, v58 offset:768
    s_waitcnt lgkmcnt(0)
    v_add_f32 v64, v64, v65
    v_add_f32 v66, v66, v67
    v_add_f32 v64, v64, v66
    s_mul_i32 s{T0}, s{RQ}, s{CROW}
    s_lshl_b32 s{T1}, s{STRIP}, 8
    s_add_u32 s{T0}, s{T0}, s{T1}
    s_cmp_lg_u32 s{S_LW}, 0
    s_cselect_b32 s{T0}, s{S_OOB}, s{T0}
    s_cmp_eq_u32 s{NOCS}, 1
    s_cselect_b32 s{T0}, s{S_OOB}, s{T0}
    v_add_u32 v59, s{T0}, v59
    buffer_store_dword v64, v59, s[{CS_D}:{CS_D+3}], 0 offen{SC}
    s_waitcnt vmcnt(0)
    s_barrier
    """)

class W:
    X=8; Wd=12; ST=16; CS=20; OUT=24
    TB=29; CB=30; MODE=31; XOFF=32; WOFF=33; M0=34; WADV=35; FREE=36; CNT=37; LDW=38; N0=39; CSROW=40
    T0=41; T1=42; T2=43; WN=44; WT=45; XB=46; T3=47; FREEX=48; WSZ=49; CURX=54; CURW=55; QS=56; ISF=58; SO0=50
    V_XD=4; V_WD=5; V_WRH=5; V_XR=9; V_WR=10; V_TMP=11; V_AA=20; V_NB=24; V_A2=28; V_FR=32; V_ACC=96; V_E=160
    NST=10
def ring_adv(A, cur, tmp, slot, n, vregs):
    A(f"s_add_u32 s{cur}, s{cur}, 1"); A(f"s_cmp_eq_u32 s{cur}, {n}")
    A(f"s_cselect_b32 s{tmp}, {hex(-slot*(n-1) & 0xffffffff)}, s{S_K16 if slot == 16384 else (S_K8 if slot == 8192 else S_K10)}")
    A(f"s_cselect_b32 s{cur}, 0, s{cur}")
    for r in vregs: A(f"v_add_u32 v{r}, s{tmp}, v{r}")
def w_fr(setn, kind, i): return W.V_FR + 16*setn + (0 if kind == 'W' else 8) + 4*i
def w_acc(i, ip): return W.V_ACC + 16*(2*i + ip)
def w_reads(setn, step, stage):
    if EXP['noread']: return []
    xs = (stage % WX_N)*W_SLOT; ws = stage % WW_N
    wreg = W.V_WR if ws < 4 else W.V_WRH; wo = (ws % 4)*W_SLOT
    L = []
    for i in range(2):
        for jj in range(2):
            L.append(f"ds_read_b64_tr_b16 {v(w_fr(setn,'W',i)+2*jj,2)}, v{wreg} offset:{wo + step*4096 + jj*2048 + i*256}")
        L.append(f"ds_read_b128 {v(w_fr(setn,'X',i),4)}, v{W.V_XR} offset:{xs + i*4096 + step*1024}")
    return L
def w_mfmas(setn, trans):
    L = []
    for (i, ip) in ((0,0),(0,1),(1,0),(1,1)):
        w = v(w_fr(setn,'W',i),4); x = v(w_fr(setn,'X',ip),4); d = v(w_acc(i,ip),16)
        L.append(f"v_mfma_f32_32x32x16_bf16 {d}, {w}, {x}, {d}" if trans else f"v_mfma_f32_32x32x16_bf16 {d}, {x}, {w}, {d}")
    return L
def w_stage(A, trans, st, fill=None):
    fill = list(fill or [])
    per = -(-len(fill) // 14) if fill else 0
    def F():
        for _ in range(per):
            if fill: A(fill.pop(0))
    last = st == W.NST - 1
    for step in range(4):
        M = w_mfmas(step, trans)
        if EXP['nomfma']: M = ["s_nop 0"]*4
        if step == 0 or step == 1: A("s_waitcnt lgkmcnt(6)")
        if step == 2:
            A("s_waitcnt lgkmcnt(0)")
            A(M[0]); F(); A(M[1])
            if not EXP['nobar']: A("s_barrier")
            R = [] if last else w_reads(0, 0, st + 1)
            for r in R[:3]: A(r)
            F(); A(M[2])
            for r in R[3:]: A(r)
            F(); A(M[3]); F()
            continue
        if step < 2: R = w_reads(step + 2, step + 2, st)
        else: R = [] if last else w_reads(1, 1, st + 1)
        A(M[0])
        k = 0
        for m in M[1:]:
            for _ in range(2):
                if k < len(R): A(R[k]); k += 1
            F()
            A(m)
        F()
    while fill: A(fill.pop(0))
def w_mainloop(A, trans, tag, fill_ld, fill0, fill_last):
    if ALIGN: A(f".p2align {ALIGN}")
    for st in range(W.NST):
        w_stage(A, trans, st, fill={5: fill_ld, 7: fill0, W.NST-1: fill_last}.get(st))

def w_params(A, ffn):
    if ffn:
        A(f"s_mov_b32 s{W.MODE}, 3"); A(f"s_mov_b32 s{W.LDW}, 3456"); A(f"s_mov_b32 s{W.CSROW}, 6912")
    else:
        A(f"""
        s_cmp_ge_u32 s{W.CB}, 5
        s_cselect_b32 s{W.MODE}, 1, 0
        s_cmp_ge_u32 s{W.CB}, 10
        s_cselect_b32 s{W.MODE}, 2, s{W.MODE}
        s_mov_b32 s{W.LDW}, 3840
        s_mov_b32 s{W.CSROW}, 7680
        """)
    A(f"s_lshl_b32 s{W.N0}, s{W.CB}, 7")

def c_wide(A, L_TO_FB, L_TO_ATT):
    V_TMP=W.V_TMP; V_E=W.V_E; V_FR=W.V_FR; V_AA=W.V_AA; V_NB=W.V_NB; V_A2=W.V_A2; V_ACC=W.V_ACC
    T0=W.T0; T1=W.T1; T2=W.T2; T3=W.T3; MODE=W.MODE
    VA=V_E+32
    sync_wide(A)
    A(f"s_and_b32 s{W.WN}, s{S_WAVE}, 1"); A(f"s_lshr_b32 s{W.WT}, s{S_WAVE}, 1")
    A(f"""
    s_mov_b32 s{T0}, {hex(QP)}
    s_mov_b32 s{T1}, {XSZ}
    s_cmp_eq_u32 s{MODE}, 1
    s_cselect_b32 s{T0}, {hex(KP)}, s{T0}
    s_cmp_eq_u32 s{MODE}, 2
    s_cselect_b32 s{T0}, {hex(VF)}, s{T0}
    s_cselect_b32 s{T1}, {VSZ}, s{T1}
    s_cmp_eq_u32 s{MODE}, 3
    s_cselect_b32 s{T0}, {hex(HF)}, s{T0}
    s_cselect_b32 s{T1}, {HSZ}, s{T1}
    s_mul_i32 s{T2}, s{S_L}, {hex(LSTRIDE)}
    s_add_u32 s{T0}, s{T0}, s{T2}
    """)
    srd_reg(A, W.OUT, T0, f"s{T1}")
    A(f"""
    v_lshlrev_b32 v{W.V_XD}, 4, v{V_LANE}
    s_lshl_b32 s{T0}, s{W.WT}, 13
    s_add_u32 s{T0}, s{T0}, {WX_BASE}
    v_add_u32 v{W.V_XR}, s{T0}, v{W.V_XD}
    s_mov_b32 s{W.CURX}, 0
    s_mov_b32 s{W.CURW}, 0
    s_mov_b32 s{S_K16}, 16384
    v_lshlrev_b32 v{W.V_WR}, 10, v{V_H}
    v_bfe_u32 v{V_TMP}, v{V_LANE}, 2, 2
    v_lshlrev_b32 v{V_TMP}, 6, v{V_TMP}
    v_add_u32 v{W.V_WR}, v{W.V_WR}, v{V_TMP}
    v_bfe_u32 v{V_TMP}, v{V_LANE}, 4, 1
    v_lshlrev_b32 v{V_TMP}, 5, v{V_TMP}
    v_add_u32 v{W.V_WR}, v{W.V_WR}, v{V_TMP}
    v_and_b32 v{V_TMP}, 3, v{V_LANE}
    v_lshlrev_b32 v{V_TMP}, 3, v{V_TMP}
    v_add_u32 v{W.V_WR}, v{W.V_WR}, v{V_TMP}
    s_lshl_b32 s{T0}, s{W.WN}, 9
    v_add_u32 v{W.V_WR}, s{T0}, v{W.V_WR}
    v_add_u32 v{W.V_WRH}, 0x10000, v{W.V_WR}
    """)
    for r in list(range(VA, VA+4)) + [V_E+68, V_E+69]: A(f"v_mov_b32 v{r}, 0")
    LA1 = "L_cw_addr_v"; LA2 = "L_cw_addr_done"
    A(f"s_cmp_eq_u32 s{MODE}, 3"); A(f"s_cbranch_scc1 {LA2}")
    A(f"s_cmp_eq_u32 s{MODE}, 2"); A(f"s_cbranch_scc1 {LA1}")
    A(f"""
    s_mul_i32 s{T0}, s{MODE}, 640
    s_sub_u32 s{T0}, s{W.N0}, s{T0}
    s_lshl_b32 s{T1}, s{W.WN}, 6
    s_add_u32 s{T0}, s{T0}, s{T1}
    s_lshr_b32 s{T0}, s{T0}, 3
    v_add_u32 v{V_TMP}, s{T0}, v{V_H}
    v_lshlrev_b32 v{V_TMP+5}, 4, v{V_T}
    """)
    for i in range(2):
        for gp in range(2):
            r = VA + 2*i + gp
            A(f"""
            v_add_u32 v{V_TMP+1}, {4*i+2*gp}, v{V_TMP}
            v_mul_u32_u24 v{V_TMP+2}, 205, v{V_TMP+1}
            v_lshrrev_b32 v{V_TMP+2}, 10, v{V_TMP+2}
            v_mul_u32_u24 v{V_TMP+3}, 5, v{V_TMP+2}
            v_sub_u32 v{V_TMP+3}, v{V_TMP+1}, v{V_TMP+3}
            v_mul_u32_u24 v{r}, {64*PTS}, v{V_TMP+2}
            v_lshl_add_u32 v{r}, v{V_TMP+3}, 9, v{r}
            v_add_u32 v{r}, v{r}, v{V_TMP+5}
            """)
    A(f"s_branch {LA2}")
    A.label(LA1)
    A(f"""
    s_lshl_b32 s{T0}, s{W.WN}, 6
    v_add_u32 v{V_TMP}, s{T0}, v{V_T}
    s_sub_u32 s{T0}, s{W.N0}, 1280
    v_add_u32 v{V_TMP}, s{T0}, v{V_TMP}
    s_movk_i32 s{T1}, 3277
    """)
    for i in range(2):
        r = V_E + 68 + i
        A(f"""
        v_add_u32 v{V_TMP+1}, {32*i}, v{V_TMP}
        v_mul_u32_u24 v{V_TMP+2}, s{T1}, v{V_TMP+1}
        v_lshrrev_b32 v{V_TMP+2}, 16, v{V_TMP+2}
        v_mul_u32_u24 v{V_TMP+3}, 20, v{V_TMP+2}
        v_sub_u32 v{V_TMP+3}, v{V_TMP+1}, v{V_TMP+3}
        v_mul_u32_u24 v{r}, {64*VTS}, v{V_TMP+2}
        v_mul_u32_u24 v{V_TMP+4}, 22, v{V_H}
        v_add_u32 v{V_TMP+4}, v{V_TMP+4}, v{V_TMP+3}
        v_lshl_add_u32 v{r}, v{V_TMP+4}, 4, v{r}
        """)
    A.label(LA2)
    for r in range(64): A(f"v_mov_b32 v{V_ACC+r}, 0")
    stamp(A, 1)
    poll(A)
    A("s_barrier")
    stamp(A, 2)
    A(f"""
    s_cmp_eq_u32 s{MODE}, 0
    s_cselect_b32 s{W.QS}, {hex(f2u(QSCALE))}, 1.0
    s_cmp_eq_u32 s{MODE}, 3
    s_cselect_b64 s[{W.ISF}:{W.ISF+1}], -1, 0
    s_lshl_b32 s{T2}, s{W.WT}, 8
    s_add_u32 s{T2}, s{T2}, {W_SCR + 512}
    v_lshlrev_b32 v{V_TMP+6}, 2, v{V_T}
    v_add_u32 v{V_TMP+6}, s{T2}, v{V_TMP+6}
    """)
    FLD = None; F0 = None
    VS = V_E + 36
    FTOK = []
    for ip in range(2):
        FTOK += [f"ds_read_b32 v{VS+4*ip}, v{V_TMP+6} offset:{128*ip}", f"ds_read_b32 v{V_NB+2*ip}, v{V_TMP+6} offset:{1024+128*ip}",
                 f"ds_read_b32 v{VS+4*ip+1}, v{V_TMP+6} offset:{1536+128*ip}"]
    FPOST = []
    for ip in range(2):
        FPOST += [f"v_mov_b32 v{V_NB+2*ip+1}, v{V_NB+2*ip}",
                  f"v_mul_f32 v{V_A2+2*ip}, {hex(f2u(-1.4426950408889634))}, v{VS+4*ip}", f"v_mul_f32 v{V_AA+2*ip}, s{W.QS}, v{VS+4*ip}",
                  f"v_mov_b32 v{V_A2+2*ip+1}, v{V_A2+2*ip}",
                  f"v_cndmask_b32 v{V_AA+2*ip}, v{V_AA+2*ip}, v{VS+4*ip+1}, s[{W.ISF}:{W.ISF+1}]", f"v_mov_b32 v{V_AA+2*ip+1}, v{V_AA+2*ip}"]
    A("s_barrier")
    stamp(A, 3)
    for r in w_reads(0, 0, 0) + w_reads(1, 1, 0): A(r)
    LV = "L_cw_vmode"; LF = "L_cw_ffn"; FIN = "L_cw_fin"
    A(f"s_cmp_eq_u32 s{MODE}, 2"); A(f"s_cbranch_scc1 {LV}")
    FL = [f"s_lshl_b32 s{T0}, s{W.WN}, 8", f"s_add_u32 s{T0}, s{T0}, {W_SCR}", f"v_lshlrev_b32 v{V_TMP}, 4, v{V_H}", f"v_add_u32 v{V_TMP}, s{T0}, v{V_TMP}"]
    for i in range(2):
        for g in range(4):
            FL.append(f"ds_read_b128 {v(V_E+16*i+4*g,4)}, v{V_TMP} offset:{128*i + 32*g}")
    w_mainloop(A, True, "t", FLD, F0, FTOK + FL)
    stamp(A, 4)
    A("s_waitcnt lgkmcnt(0)")
    for x in FPOST: A(x)
    PK = V_FR
    A(f"s_cmp_eq_u32 s{MODE}, 3"); A(f"s_cbranch_scc1 {LF}")
    A(f"""
    s_lshl_b32 s{T0}, s{W.TB}, 2
    s_lshl_b32 s{T1}, s{W.WT}, 1
    s_add_u32 s{T0}, s{T0}, s{T1}
    s_mul_i32 s{T0}, s{T0}, {PTS}
    s_add_u32 s{T1}, s{T0}, {PTS}
    """)
    for i in range(2):
        for ip in range(2):
            c = w_acc(i, ip)
            for p in range(8): A(f"v_pk_fma_f32 {v(c+2*p,2)}, {v(V_E+16*i+2*p,2)}, {v(V_NB+2*ip,2)}, {v(c+2*p,2)}")
            for p in range(8): A(f"v_pk_mul_f32 {v(c+2*p,2)}, {v(c+2*p,2)}, {v(V_AA+2*ip,2)}")
            pk = PK + 8*(2*i+ip)
            for p in range(8): A(f"v_cvt_pk_bf16_f32 v{pk+p}, v{c+2*p}, v{c+2*p+1}")
            for gp in range(2):
                A(f"v_permlane32_swap_b32 v{pk+4*gp}, v{pk+4*gp+2}")
                A(f"v_permlane32_swap_b32 v{pk+4*gp+1}, v{pk+4*gp+3}")
            for gp in range(2):
                A(f"buffer_store_dwordx4 {v(pk+4*gp,4)}, v{VA+2*i+gp}, s[{W.OUT}:{W.OUT+3}], s{T0+ip} offen{SC}")
    A(f"s_branch {FIN}")
    A.label(LF)
    A(f"""
    s_lshl_b32 s{T0}, s{W.WN}, 6
    s_add_u32 s{T0}, s{T0}, s{W.N0}
    s_cmp_ge_u32 s{T0}, {F}
    s_cbranch_scc1 {FIN}
    s_lshr_b32 s{T0}, s{T0}, 4
    s_lshl_b32 s{T1}, s{W.TB}, 2
    s_lshl_b32 s{T2}, s{W.WT}, 1
    s_add_u32 s{T1}, s{T1}, s{T2}
    s_mul_i32 s{T1}, s{T1}, 108
    s_add_u32 s{T0}, s{T0}, s{T1}
    s_lshl_b32 s{T0}, s{T0}, 10
    s_add_u32 s{T1}, s{T0}, {108*1024}
    """)
    VZ = V_E + 36
    for ip in range(2):
        for i in range(2):
            c = w_acc(i, ip)
            for p in range(8): A(f"v_pk_fma_f32 {v(c+2*p,2)}, {v(V_E+16*i+2*p,2)}, {v(V_NB+2*ip,2)}, {v(c+2*p,2)}")
            for p in range(8): A(f"v_pk_mul_f32 {v(VZ+2*p,2)}, {v(c+2*p,2)}, {v(V_A2+2*ip,2)}")
            for r in range(16): A(f"v_exp_f32 v{VZ+r}, v{VZ+r}")
            for p in range(8): A(f"v_pk_fma_f32 {v(VZ+2*p,2)}, {v(VZ+2*p,2)}, {v(V_AA+2*ip,2)}, {v(V_AA+2*ip,2)}")
            for r in range(16): A(f"v_rcp_f32 v{VZ+r}, v{VZ+r}")
            for p in range(8): A(f"v_pk_mul_f32 {v(c+2*p,2)}, {v(c+2*p,2)}, {v(VZ+2*p,2)}")
            pk = PK + 8*(2*ip+i)
            for p in range(8): A(f"v_cvt_pk_bf16_f32 v{pk+p}, v{c+2*p}, v{c+2*p+1}")
            so = T0 if ip == 0 else T1
            A(f"buffer_store_dwordx4 {v(pk,4)}, v{W.V_XD}, s[{W.OUT}:{W.OUT+3}], s{so} offen{off(2048*i)}{SC}")
            A(f"buffer_store_dwordx4 {v(pk+4,4)}, v{W.V_XD}, s[{W.OUT}:{W.OUT+3}], s{so} offen{off(2048*i+1024)}{SC}")
    A(f"s_branch {FIN}")
    A.label(LV)
    FL = [f"s_lshl_b32 s{T0}, s{W.WN}, 6", f"v_add_u32 v{V_TMP}, s{T0}, v{V_T}", f"v_lshlrev_b32 v{V_TMP+1}, 2, v{V_TMP}",
          f"v_add_u32 v{V_TMP+1}, {W_SCR}, v{V_TMP+1}", f"ds_read_b32 v{V_E+64}, v{V_TMP+1}", f"ds_read_b32 v{V_E+66}, v{V_TMP+1} offset:128",
          f"s_lshl_b32 s{T1}, s{W.WT}, 8", f"s_add_u32 s{T1}, s{T1}, {W_SCR+512}", f"v_lshlrev_b32 v{V_TMP}, 4, v{V_H}", f"v_add_u32 v{V_TMP}, s{T1}, v{V_TMP}"]
    for ip in range(2):
        for g in range(4):
            FL.append(f"ds_read_b128 {v(V_E+32*ip+4*g,4)}, v{V_TMP} offset:{128*ip + 32*g}")
            FL.append(f"ds_read_b128 {v(V_E+32*ip+16+4*g,4)}, v{V_TMP} offset:{512 + 128*ip + 32*g}")
    w_mainloop(A, False, "v", FLD, F0, FL)
    stamp(A, 4)
    VAv = V_E + 68
    A(f"""
    s_lshl_b32 s{T0}, s{W.TB}, 2
    s_lshl_b32 s{T1}, s{W.WT}, 1
    s_add_u32 s{T0}, s{T0}, s{T1}
    s_mul_i32 s{T0}, s{T0}, {VTS}
    s_waitcnt lgkmcnt(0)
    v_sub_f32 v{V_E+64}, 0, v{V_E+64}
    v_sub_f32 v{V_E+66}, 0, v{V_E+66}
    v_mov_b32 v{V_E+65}, v{V_E+64}
    v_mov_b32 v{V_E+67}, v{V_E+66}
    """)
    for ip in range(2):
        for i in range(2):
            c = w_acc(i, ip)
            for p in range(8): A(f"v_pk_mul_f32 {v(c+2*p,2)}, {v(c+2*p,2)}, {v(V_E+32*ip+2*p,2)}")
            for p in range(8): A(f"v_pk_fma_f32 {v(c+2*p,2)}, {v(V_E+32*ip+16+2*p,2)}, {v(V_E+64+2*i,2)}, {v(c+2*p,2)}")
            pk = PK + 8*(2*ip+i)
            for p in range(8): A(f"v_cvt_pk_bf16_f32 v{pk+p}, v{c+2*p}, v{c+2*p+1}")
            A(f"buffer_store_dwordx4 {v(pk,4)}, v{VAv+i}, s[{W.OUT}:{W.OUT+3}], s{T0} offen{off(VTS*ip)}{SC}")
            A(f"buffer_store_dwordx4 {v(pk+4,4)}, v{VAv+i}, s[{W.OUT}:{W.OUT+3}], s{T0} offen{off(VTS*ip+704)}{SC}")
    A.label(FIN)
    stamp(A, 5)
    A("s_waitcnt vmcnt(0)")
    A("s_barrier")
    notify(A)
    stamp(A, 6)
    stamp_phase(A)
    A(f"s_cmp_eq_u32 s{MODE}, 3"); A(f"s_cbranch_scc1 {L_TO_FB}")
    A(f"s_branch {L_TO_ATT}")

def lw_setup_w(A, kaoff_reg_pair):
    V_TMP=W.V_TMP; T0=W.T0
    A(f"""
    v_lshlrev_b32 v{W.V_XD}, 4, v{V_LANE}
    v_lshrrev_b32 v{V_TMP}, 4, v{V_LANE}
    v_lshlrev_b32 v{W.V_WD}, 6, v{V_TMP}
    v_and_b32 v{V_TMP+1}, 3, v{V_LANE}
    v_lshlrev_b32 v{V_TMP+1}, 4, v{V_TMP+1}
    v_add_u32 v{W.V_WD}, v{W.V_WD}, v{V_TMP+1}
    v_bfe_u32 v{V_TMP+1}, v{V_LANE}, 2, 2
    v_mul_lo_u32 v{V_TMP+1}, v{V_TMP+1}, s{W.LDW}
    v_add_u32 v{W.V_WD}, v{W.V_WD}, v{V_TMP+1}
    s_cmp_eq_u32 s{W.MODE}, 3
    s_cselect_b32 s{T0}, s{W.CB}, 0
    s_cmp_eq_u32 s{T0}, 13
    s_cselect_b32 s{T0}, s{S_OOB}, 0
    v_cmp_le_u32 vcc, 2, v{V_TMP}
    v_mov_b32 v{V_TMP+1}, s{T0}
    s_lshl_b32 s{T0}, s{W.LDW}, 2
    s_sub_u32 s{T0}, s{T0}, 1024
    v_cndmask_b32 v{V_TMP+1}, 0, v{V_TMP+1}, vcc
    v_add_u32 v{W.V_WD}, v{W.V_WD}, v{V_TMP+1}
    v_add_u32 v{W.V_WD+1}, s{T0}, v{W.V_WD}
    v_add_u32 v{W.V_WD+2}, s{T0}, v{W.V_WD+1}
    v_add_u32 v{W.V_WD+3}, s{T0}, v{W.V_WD+2}
    s_lshl_b32 s{W.WADV}, s{W.LDW}, 6
    s_lshl_b32 s{T0}, s{W.LDW}, 4
    s_mul_i32 s{T0}, s{T0}, s{S_LW}
    s_lshl_b32 s{W.WOFF}, s{W.N0}, 1
    s_add_u32 s{W.WOFF}, s{W.WOFF}, s{T0}
    s_lshl_b32 s{W.M0}, s{S_LW}, 12
    s_mul_i32 s{W.WSZ}, s{W.LDW}, 640
    s_mov_b32 s{W.Wd}, s{kaoff_reg_pair}
    s_mov_b32 s{W.Wd+1}, s{kaoff_reg_pair+1}
    s_mov_b32 s{W.Wd+2}, s{W.WSZ}
    s_mov_b32 s{W.Wd+3}, 0x20000
    s_mov_b32 s{W.FREE}, 0
    s_mov_b32 s{W.FREEX}, 0
    """)
def lw_dma_x(k): return f"buffer_load_dwordx4 v{W.V_XD}, s[{W.X}:{W.X+3}], s{W.XOFF} offen{off(k*1024)} lds"
def lw_dma_w(k): return f"buffer_load_dwordx4 v{W.V_WD+k}, s[{W.Wd}:{W.Wd+3}], s{W.WOFF} offen{off(k*1024)} lds"
def slot_wrap(A, reg, slot, n):
    A(f"s_add_u32 s{reg}, s{reg}, {slot}"); A(f"s_cmp_eq_u32 s{reg}, {slot*n}"); A(f"s_cselect_b32 s{reg}, 0, s{reg}")
def lw_issue_w(A):
    A(f"s_add_u32 m0, s{W.FREE}, s{W.M0}")
    slot_wrap(A, W.FREE, W_SLOT, WW_N)
    for k in range(4): A(lw_dma_w(k))
    A(f"s_add_u32 s{W.WOFF}, s{W.WOFF}, s{W.WADV}")
def lw_issue_x(A):
    A(f"s_add_u32 s{W.T0}, s{W.FREEX}, s{W.M0}"); A(f"s_add_u32 m0, s{W.T0}, {WX_BASE}")
    slot_wrap(A, W.FREEX, W_SLOT, WX_N)
    for k in range(4): A(lw_dma_x(k))
    A(f"s_add_u32 s{W.XOFF}, s{W.XOFF}, 4096")
LS=24
def lw_stats_setup(A):
    T0=W.T0; T1=W.T1; T2=W.T2
    A(f"""
    s_cmp_eq_u32 s{W.MODE}, 3
    s_cselect_b32 s{T0}, 1, 0
    s_lshl_b32 s{T1}, s{S_L}, 1
    s_add_u32 s{T0}, s{T0}, s{T1}
    s_lshl_b32 s{T0}, s{T0}, 18
    s_add_u32 s{T0}, s{T0}, {hex(ST[0])}
    """)
    srd_reg(A, W.ST, T0, STSZ)
    A(f"""
    s_mov_b32 s{T0}, {hex(CSQ)}
    s_mov_b32 s{T1}, {CSQSZ}
    s_cmp_eq_u32 s{W.MODE}, 3
    s_cselect_b32 s{T0}, {hex(CS1)}, s{T0}
    s_cselect_b32 s{T1}, {CS1SZ}, s{T1}
    """)
    srd_reg(A, W.CS, T0, f"s{T1}")
    A(f"""
    s_lshl_b32 s52, s{W.TB}, 2
    s_add_u32 s52, s52, s{S_LW}
    s_lshl_b32 s52, s52, 12
    s_lshl_b32 s53, s{W.CSROW}, 1
    s_add_u32 s54, s53, s{W.CSROW}
    v_lshlrev_b32 v{LS+20}, 4, v{V_T}
    v_lshl_add_u32 v{LS+20}, v{V_H}, 11, v{LS+20}
    v_and_b32 v{LS+21}, 127, v0
    v_add_u32 v{LS+21}, s{W.N0}, v{LS+21}
    v_lshlrev_b32 v{LS+21}, 2, v{LS+21}
    """)
def lw_stats_load(A):
    for k in range(4): A(f"buffer_load_dwordx4 {v(LS+4*k,4)}, v{LS+20}, s[{W.ST}:{W.ST+3}], s52 offen{off(512*k)}")
    A(f"buffer_load_dword v{LS+16}, v{LS+21}, s[{W.CS}:{W.CS+3}], 0 offen")
    A(f"buffer_load_dword v{LS+17}, v{LS+21}, s[{W.CS}:{W.CS+3}], s{W.CSROW} offen")
    A(f"buffer_load_dword v{LS+18}, v{LS+21}, s[{W.CS}:{W.CS+3}], s53 offen")
    A(f"buffer_load_dword v{LS+19}, v{LS+21}, s[{W.CS}:{W.CS+3}], s54 offen")
def lw_stats_post(A):
    b = LS; t = LS + 22
    A(f"""
    v_pk_add_f32 {v(b,2)}, {v(b,2)}, {v(b+2,2)}
    v_pk_add_f32 {v(b+4,2)}, {v(b+4,2)}, {v(b+6,2)}
    v_pk_add_f32 {v(b+8,2)}, {v(b+8,2)}, {v(b+10,2)}
    v_pk_add_f32 {v(b+12,2)}, {v(b+12,2)}, {v(b+14,2)}
    v_pk_add_f32 {v(b,2)}, {v(b,2)}, {v(b+4,2)}
    v_pk_add_f32 {v(b+8,2)}, {v(b+8,2)}, {v(b+12,2)}
    v_add_f32 v{b+16}, v{b+16}, v{b+17}
    v_add_f32 v{b+18}, v{b+18}, v{b+19}
    v_pk_add_f32 {v(b,2)}, {v(b,2)}, {v(b+8,2)}
    v_add_f32 v{b+16}, v{b+16}, v{b+18}
    """)
    halfsum(A, b, t); halfsum(A, b+1, t+1)
    A(f"""
    v_mul_f32 v{b}, {hex(f2u(1.0/640))}, v{b}
    v_mul_f32 v{b+1}, {hex(f2u(1.0/640))}, v{b+1}
    v_fma_f32 v{b+1}, -v{b}, v{b}, v{b+1}
    v_max_f32 v{b+1}, 0, v{b+1}
    v_add_f32 v{b+3}, {hex(f2u(1e-5))}, v{b+1}
    v_rsq_f32 v{b+1}, v{b+3}
    v_sub_f32 v{b+4}, 0, v{b}
    s_lshl_b32 s{W.T0}, s{S_LW}, 7
    s_add_u32 s{W.T0}, s{W.T0}, {W_SCR + 512}
    v_lshlrev_b32 v{t}, 2, v{V_T}
    v_add_u32 v{t}, s{W.T0}, v{t}
    v_mul_f32 v{b+3}, v{b+3}, v{b+1}
    v_mul_f32 v{b+2}, v{b}, v{b+1}
    v_and_b32 v{t+1}, 127, v0
    v_lshlrev_b32 v{t+1}, 2, v{t+1}
    v_add_u32 v{t+1}, {W_SCR}, v{t+1}
    ds_write_b32 v{t}, v{b+1}
    ds_write_b32 v{t}, v{b+2} offset:512
    ds_write_b32 v{t}, v{b+4} offset:1024
    ds_write_b32 v{t}, v{b+3} offset:1536
    ds_write_b32 v{t+1}, v{b+16}
    s_waitcnt lgkmcnt(0)
    """)
def lw_prefetch_w(A, n=WW_N):
    for s_ in range(n): lw_issue_w(A)

class T:
    Q=8; K=12; V=16; O=20
    HEAD=24; QB=25; QG=27; KH=28; KO=29; VO=30; CNT=31; T0=32; T1=33; T2=34; FLAG=35; K0=36; V0=38; TT0=37; LO=42; CC=44
    V_AK0=4; V_AK1=5; V_AV=6; V_AO=7; V_TMP=10
    V_Q=16; V_O=48; V_S=112; V_P=144; V_K=152; V_V=168; V_M=184; V_X=188; V_J=200; V_AOP=228
def tQ0(q): return T.V_Q + 8*q
def tQ1(q): return T.V_Q + 8*q + 4
def tO(q): return T.V_O + 16*q
def tS(b): return T.V_S + 16*b
def tK0(p): return T.V_K + 8*p
def tK1(p): return T.V_K + 8*p + 4
def tV0(p): return T.V_V + 8*p
def tV1(p): return T.V_V + 8*p + 4
def mf(d, a_, b_, c):
    cs = v(c,16) if c is not None else "0"
    return f"v_mfma_f32_32x32x16_bf16 {v(d,16)}, {v(a_,4)}, {v(b_,4)}, {cs}"
def t_load_k(A, p, o):
    A(f"buffer_load_dwordx4 {v(tK0(p),4)}, v{T.V_AK0}, s[{T.K}:{T.K+3}], s{T.KO} offen{off(o)}")
    A(f"buffer_load_dwordx2 {v(tK1(p),2)}, v{T.V_AK1}, s[{T.K}:{T.K+3}], s{T.KO} offen{off(o)}")
def t_load_v(A, p, o):
    A(f"buffer_load_dwordx4 {v(tV0(p),4)}, v{T.V_AV}, s[{T.V}:{T.V+3}], s{T.VO} offen{off(o)}")
    A(f"buffer_load_dwordx4 {v(tV1(p),4)}, v{T.V_AV}, s[{T.V}:{T.V+3}], s{T.VO} offen{off(o+704)}")
def t_period(A, p, q):
    b = q & 1
    s_ = tS(b); sn = tS(b ^ 1)
    qn = (q + 1) & 3; kp = p if q < 3 else p ^ 1
    qp = (q - 1) & 3; vp = p if q > 0 else p ^ 1
    e = lambda r: A(f"v_exp_f32 v{s_+r}, v{s_+r}")
    c = lambda k: A(f"v_cvt_pk_bf16_f32 v{T.V_P+k}, v{s_+2*k}, v{s_+2*k+1}")
    if q == 3: A("s_waitcnt vmcnt(2)")
    A(mf(sn, tK0(kp), tQ0(qn), None))
    e(0); e(1); e(2); e(3); c(0)
    A(mf(sn, tK1(kp), tQ1(qn), sn))
    e(4); e(5); c(1)
    if q == 3 and not EXP.get('anoload'): t_load_k(A, p, p*PTS)
    if q == 1 and not EXP.get('anoload'): t_load_v(A, p ^ 1, p*VTS)
    e(6); e(7); c(2)
    A(mf(tO(qp), tV1(vp), T.V_P+4, tO(qp)))
    e(8); e(9); c(3); e(10); e(11); c(4)
    if q == 0: A("s_waitcnt vmcnt(2)")
    A(mf(tO(q), tV0(p), T.V_P, tO(q)))
    e(12); e(13); c(5); e(14); e(15); c(6); c(7)
def t_rowmax(A, dst, src, tmp):
    A(f"v_max3_f32 v{dst}, v{src}, v{src+1}, v{src+2}")
    for r in range(3, 15, 2): A(f"v_max3_f32 v{dst}, v{dst}, v{src+r}, v{src+r+1}")
    A(f"v_max_f32 v{dst}, v{dst}, v{src+15}")
    A(f"v_mov_b32 v{tmp}, v{dst}"); A(f"v_permlane32_swap_b32 v{dst}, v{tmp}"); A(f"v_max_f32 v{dst}, v{dst}, v{tmp}")
def t_set_shift(A):
    V_TMP = T.V_TMP
    A(f"s_mov_b64 exec, s[{T.LO}:{T.LO+1}]")
    for q in range(4):
        A(f"""
        v_xor_b32 v{V_TMP}, 0x80000000, v{T.V_M+q}
        v_and_b32 v{V_TMP+1}, 0xffff0000, v{V_TMP}
        v_sub_f32 v{V_TMP}, v{V_TMP}, v{V_TMP+1}
        v_and_b32 v{V_TMP+2}, 0xffff0000, v{V_TMP}
        v_sub_f32 v{V_TMP}, v{V_TMP}, v{V_TMP+2}
        v_lshrrev_b32 v{V_TMP+1}, 16, v{V_TMP+1}
        v_or_b32 v{tQ1(q)+2}, v{V_TMP+1}, v{V_TMP+2}
        v_lshrrev_b32 v{tQ1(q)+3}, 16, v{V_TMP}
        """)
    A("s_mov_b64 exec, -1")
def t_first_loads(A):
    A(f"s_mov_b32 s{T.KO}, s{T.K0}"); A(f"s_mov_b32 s{T.VO}, s{T.V0}")
    t_load_k(A, 0, 0); t_load_v(A, 0, 0); t_load_k(A, 1, PTS)
    A(f"s_add_u32 s{T.KO}, s{T.K0}, {2*PTS}"); A(f"s_add_u32 s{T.VO}, s{T.V0}, {VTS}")

def c_att(A, L_NEXT):
    V_TMP=T.V_TMP; T0=T.T0; T1=T.T1; T2=T.T2; V_X=T.V_X; V_M=T.V_M; V_P=T.V_P
    A(f"""
    s_and_b32 s{T.HEAD}, s{S_WG}, 31
    s_lshr_b32 s{T.QB}, s{S_WG}, 5
    """)
    sync_att(A)
    A(f"""
    s_and_b32 s{T.QG}, s{S_WAVE}, 1
    s_lshr_b32 s{T.KH}, s{S_WAVE}, 1
    s_and_b32 s{T2}, s{T.HEAD}, 1
    s_mul_i32 s{T0}, s{T2}, 1536
    v_lshlrev_b32 v{T.V_AK0}, 4, v{V_LANE}
    v_add_u32 v{T.V_AK0}, s{T0}, v{T.V_AK0}
    s_lshl_b32 s{T0}, s{T2}, 3
    s_add_u32 s{T0}, s{T0}, 1024
    v_lshlrev_b32 v{T.V_AK1}, 4, v{V_T}
    v_add_u32 v{T.V_AK1}, s{T0}, v{T.V_AK1}
    {'v_mov_b32 v%d, s%d' % (V_TMP+2, S_OOB) if EXP.get('kz') else ''}
    {'v_cmp_eq_u32 vcc, 0, v%d' % V_H if EXP.get('kz') else ''}
    {'v_cndmask_b32 v%d, v%d, v%d, vcc' % (T.V_AK1, V_TMP+2, T.V_AK1) if EXP.get('kz') else ''}
    v_min_u32 v{V_TMP+1}, 20, v{V_T}
    v_cmp_lt_u32 vcc, 20, v{V_T}
    v_mul_u32_u24 v{T.V_AV}, 22, v{V_H}
    v_addc_co_u32 v{V_TMP+1}, vcc, 0, v{V_TMP+1}, vcc
    v_add_u32 v{T.V_AV}, v{T.V_AV}, v{V_TMP+1}
    v_lshlrev_b32 v{T.V_AV}, 4, v{T.V_AV}
    s_lshl_b32 s{T0}, s{T.KH}, 5
    s_mul_i32 s{T.K0}, s{T0}, {PTS}
    s_mul_i32 s{T.V0}, s{T0}, {VTS}
    s_lshl_b32 s{T.TT0}, s{T.QB}, 3
    s_lshl_b32 s{T2}, s{T.QG}, 2
    s_add_u32 s{T.TT0}, s{T.TT0}, s{T2}
    s_mov_b32 s{T.LO}, -1
    s_mov_b32 s{T.LO+1}, 0
    s_mov_b32 s{T.FLAG}, 0
    s_mul_i32 s{T2}, s{S_L}, {hex(LSTRIDE)}
    s_lshr_b32 s{T0}, s{T.HEAD}, 1
    s_mul_i32 s{T0}, s{T0}, {64*PTS}
    s_add_u32 s{T0}, s{T0}, s{T2}
    s_add_u32 s{T1}, s{T0}, {hex(KP)}
    """)
    srd_reg(A, T.K, T1, 64*PTS)
    A(f"s_add_u32 s{T1}, s{T0}, {hex(QP)}")
    srd_reg(A, T.Q, T1, 64*PTS)
    A(f"s_mul_i32 s{T0}, s{T.HEAD}, {64*VTS}"); A(f"s_add_u32 s{T0}, s{T0}, s{T2}"); A(f"s_add_u32 s{T1}, s{T0}, {hex(VF)}")
    srd_reg(A, T.V, T1, 64*VTS)
    A(f"s_add_u32 s{T1}, s{T2}, {hex(OF)}")
    srd_reg(A, T.O, T1, XSZ)
    for q in range(4):
        for r in range(4): A(f"v_mov_b32 v{tQ1(q)+r}, 0")
    for p in range(2):
        if EXP.get('kz'):
            A(f"v_mov_b32 v{tK1(p)+2}, 0"); A(f"v_mov_b32 v{tK1(p)+3}, 0")
            A(f"s_mov_b64 exec, s[{T.LO}:{T.LO+1}]")
        A(f"v_mov_b32 v{tK1(p)+2}, 0x3f803f80"); A(f"v_mov_b32 v{tK1(p)+3}, 0x00003f80")
        if EXP.get('kz'): A("s_mov_b64 exec, -1")
    for r in range(8): A(f"v_mov_b32 v{V_P+r}, 0")
    for r in range(4): A(f"v_mov_b32 v{tV1(1)+r}, 0")
    for r in range(64): A(f"v_mov_b32 v{T.V_O+r}, 0")
    A(f"s_mul_i32 s{T0}, s{T.HEAD}, 5"); A(f"v_add_u32 v{V_TMP+5}, s{T0}, v{V_H}"); A(f"v_lshlrev_b32 v{V_TMP+2}, 4, v{V_T}")
    for a_ in range(3):
        A(f"""
        v_add_u32 v{V_TMP+3}, {2*a_}, v{V_TMP+5}
        v_lshrrev_b32 v{V_TMP+4}, 2, v{V_TMP+3}
        v_lshl_add_u32 v{T.V_AO+a_}, v{V_TMP+4}, 10, v{V_TMP+2}
        v_and_b32 v{V_TMP+4}, 1, v{V_TMP+3}
        v_lshl_add_u32 v{T.V_AO+a_}, v{V_TMP+4}, 9, v{T.V_AO+a_}
        v_bfe_u32 v{V_TMP+4}, v{V_TMP+3}, 1, 1
        v_lshl_add_u32 v{T.V_AO+a_}, v{V_TMP+4}, 3, v{T.V_AO+a_}
        """)
    A(f"s_mul_i32 s{T0}, s{T.TT0}, {PTS}")
    A(f"s_add_u32 s{T1}, s{T0}, {2*PTS}")
    A(f"s_mov_b32 s{T.KO}, s{T.K0}"); A(f"s_mov_b32 s{T.VO}, s{T.V0}")
    poll(A, two=True)
    A("s_barrier")
    stamp(A, 2)
    t_load_k(A, 0, 0)
    for q in range(4):
        so = T0 if q < 2 else T1
        A(f"buffer_load_dwordx4 {v(tQ0(q),4)}, v{T.V_AK0}, s[{T.Q}:{T.Q+3}], s{so} offen{off(PTS*(q&1))}")
    A(f"s_mov_b64 exec, s[{T.LO}:{T.LO+1}]")
    for q in range(4):
        so = T0 if q < 2 else T1
        A(f"buffer_load_dwordx2 {v(tQ1(q),2)}, v{T.V_AK1}, s[{T.Q}:{T.Q+3}], s{so} offen{off(PTS*(q&1))}")
    A("s_mov_b64 exec, -1")
    t_load_v(A, 0, 0); t_load_k(A, 1, PTS)
    A(f"s_add_u32 s{T.KO}, s{T.K0}, {2*PTS}"); A(f"s_add_u32 s{T.VO}, s{T.V0}, {VTS}")
    A("s_waitcnt vmcnt(4)")
    stamp(A, 3)
    FT = [tS(0), tS(1), T.V_J, T.V_J + 16]
    for q in range(4):
        A(mf(FT[q], tK0(0), tQ0(q), None)); A(mf(FT[q], tK1(0), tQ1(q), FT[q]))
    for q in range(4): t_rowmax(A, V_M+q, FT[q], V_X+q)
    t_set_shift(A)
    SETUP = "L_ca_setup"; LOOP = "L_ca_loop"; COMBINE = "L_ca_combine"
    A.label(SETUP)
    A(mf(tS(0), tK0(0), tQ0(0), None)); A(mf(tS(0), tK1(0), tQ1(0), tS(0)))
    A(f"s_mov_b32 s{T.CNT}, 16")
    stamp(A, 1)
    if EXP.get('prio'): A("s_setprio 3")
    A("s_nop 7")
    A(".p2align 6"); A.label(LOOP)
    for p in range(2):
        for q in range(4): t_period(A, p, q)
    A(f"s_add_u32 s{T.KO}, s{T.KO}, {2*PTS}"); A(f"s_add_u32 s{T.VO}, s{T.VO}, {2*VTS}")
    A(f"s_sub_u32 s{T.CNT}, s{T.CNT}, 1"); A(f"s_cmp_lg_u32 s{T.CNT}, 0"); A(f"s_cbranch_scc1 {LOOP}")
    stamp(A, 4)
    if EXP.get('prio'): A("s_setprio 0")
    A(mf(tO(3), tV1(1), V_P+4, tO(3)))
    A("s_waitcnt vmcnt(0)")
    for q in range(4):
        A(f"v_mov_b32 v{tO(q)+12}, v{tO(q)+8}"); A(f"v_mov_b32 v{tO(q)+13}, v{tO(q)+8}")
    for q in range(4): A(f"v_permlane32_swap_b32 v{tO(q)+13}, v{tO(q)+12}")
    A(f"s_cmp_lg_u32 s{T.FLAG}, 0"); A(f"s_cbranch_scc1 {COMBINE}")
    A(f"v_mov_b32 v{V_TMP}, 0")
    for q in range(4):
        for r in range(0, 12, 2): A(f"v_max3_f32 v{V_TMP}, v{V_TMP}, |v{tO(q)+r}|, |v{tO(q)+r+1}|")
    A(f"""
    v_add_f32 v{V_TMP+2}, v{tO(0)+12}, v{tO(1)+12}
    v_add_f32 v{V_TMP+3}, v{tO(2)+12}, v{tO(3)+12}
    v_add_f32 v{V_TMP+2}, v{V_TMP+2}, v{V_TMP+3}
    s_mov_b32 s{T0}, {hex(f2u(2.0**40))}
    s_mov_b32 s{T1}, {hex(f2u(2.0**120))}
    v_cmp_gt_f32 vcc, s{T0}, v{V_TMP+2}
    v_cmp_gt_f32 s[{T.CC}:{T.CC+1}], s{T1}, v{V_TMP}
    s_and_b64 vcc, vcc, s[{T.CC}:{T.CC+1}]
    s_cmp_eq_u64 vcc, exec
    s_cbranch_scc1 {COMBINE}
    """)
    A(f"s_mov_b32 s{T.FLAG}, 1")
    A(f"s_mov_b64 exec, s[{T.LO}:{T.LO+1}]")
    for q in range(4): A(f"v_mov_b32 v{tQ1(q)+2}, 0"); A(f"v_mov_b32 v{tQ1(q)+3}, 0")
    A("s_mov_b64 exec, -1")
    for q in range(4): A(f"v_mov_b32 v{V_X+4+q}, 0xff800000")
    A(f"s_mov_b32 s{T.KO}, s{T.K0}"); A(f"s_mov_b32 s{T.CNT}, 32")
    TL = "L_ca_tm_loop"
    A.label(TL)
    t_load_k(A, 0, 0)
    A(f"s_add_u32 s{T.KO}, s{T.KO}, {PTS}")
    A("s_waitcnt vmcnt(0)")
    for q in range(4):
        A(mf(tO(q), tK0(0), tQ0(q), None)); A(mf(tO(q), tK1(0), tQ1(q), tO(q)))
    for q in range(4):
        t_rowmax(A, V_M+q, tO(q), V_X+q); A(f"v_max_f32 v{V_X+4+q}, v{V_X+4+q}, v{V_M+q}")
    A(f"s_sub_u32 s{T.CNT}, s{T.CNT}, 1"); A(f"s_cmp_lg_u32 s{T.CNT}, 0"); A(f"s_cbranch_scc1 {TL}")
    for q in range(4): A(f"v_mov_b32 v{V_M+q}, v{V_X+4+q}")
    t_first_loads(A)
    t_set_shift(A)
    for r in range(64): A(f"v_mov_b32 v{T.V_O+r}, 0")
    for r in range(8): A(f"v_mov_b32 v{V_P+r}, 0")
    for r in range(4): A(f"v_mov_b32 v{tV1(1)+r}, 0")
    for r in range(64): A(f"v_mov_b32 v{T.V_O+r}, 0")
    A(f"s_mul_i32 s{T0}, s{T.HEAD}, 5"); A(f"v_add_u32 v{V_TMP+5}, s{T0}, v{V_H}"); A(f"v_lshlrev_b32 v{V_TMP+2}, 4, v{V_T}")
    for a_ in range(3):
        A(f"""
        v_add_u32 v{V_TMP+3}, {2*a_}, v{V_TMP+5}
        v_lshrrev_b32 v{V_TMP+4}, 2, v{V_TMP+3}
        v_lshl_add_u32 v{T.V_AO+a_}, v{V_TMP+4}, 10, v{V_TMP+2}
        v_and_b32 v{V_TMP+4}, 1, v{V_TMP+3}
        v_lshl_add_u32 v{T.V_AO+a_}, v{V_TMP+4}, 9, v{T.V_AO+a_}
        v_bfe_u32 v{V_TMP+4}, v{V_TMP+3}, 1, 1
        v_lshl_add_u32 v{T.V_AO+a_}, v{V_TMP+4}, 3, v{T.V_AO+a_}
        """)
    A("s_waitcnt vmcnt(4)")
    A(f"s_branch {SETUP}")
    A.label(COMBINE)
    for q in range(4): A(f"v_mov_b32 v{tO(q)+13}, v{V_M+q}")
    A(f"""
    s_lshl_b32 s{T0}, s{S_WAVE}, 13
    s_add_u32 s{T0}, s{T0}, {A_CMB}
    v_lshlrev_b32 v{V_TMP}, 4, v{V_LANE}
    v_add_u32 v{V_TMP+1}, s{T0}, v{V_TMP}
    s_xor_b32 s{T1}, s{S_WAVE}, 2
    s_lshl_b32 s{T1}, s{T1}, 13
    s_add_u32 s{T1}, s{T1}, {A_CMB}
    v_add_u32 v{V_TMP+2}, s{T1}, v{V_TMP}
    s_cmp_eq_u32 s{T.KH}, 0
    """)
    C1 = "L_ca_c1"; FIN = "L_ca_fin"
    A(f"s_cbranch_scc0 {C1}")
    for kh in range(2):
        if kh == 1: A.label(C1)
        send = (2, 3) if kh == 0 else (0, 1); keep = (0, 1) if kh == 0 else (2, 3)
        for j, q in enumerate(send):
            for g in range(4): A(f"ds_write_b128 v{V_TMP+1}, {v(tO(q)+4*g,4)} offset:{4096*j + 1024*g}")
        A("s_waitcnt lgkmcnt(0)"); A("s_barrier")
        for j in range(2):
            for g in range(4): A(f"ds_read_b128 {v(T.V_S+16*j+4*g,4)}, v{V_TMP+2} offset:{4096*j + 1024*g}")
        for j, q in enumerate(keep):
            o = tO(q); r_ = T.V_S + 16*j
            A(f"s_waitcnt lgkmcnt({4 if j == 0 else 0})")
            A(f"""
            v_max_f32 v{V_X}, v{o+13}, v{r_+13}
            v_sub_f32 v{V_X+1}, v{o+13}, v{V_X}
            v_sub_f32 v{V_X+2}, v{r_+13}, v{V_X}
            v_exp_f32 v{V_X+1}, v{V_X+1}
            v_exp_f32 v{V_X+2}, v{V_X+2}
            s_nop 0
            v_mul_f32 v{V_X+3}, v{V_X+1}, v{o+12}
            v_fmac_f32 v{V_X+3}, v{V_X+2}, v{r_+12}
            v_rcp_f32 v{V_X+3}, v{V_X+3}
            s_nop 0
            v_mul_f32 v{V_X+4}, v{V_X+1}, v{V_X+3}
            v_mul_f32 v{V_X+6}, v{V_X+2}, v{V_X+3}
            v_mov_b32 v{V_X+5}, v{V_X+4}
            v_mov_b32 v{V_X+7}, v{V_X+6}
            """)
            for pr in range(6): A(f"v_pk_mul_f32 {v(o+2*pr,2)}, {v(o+2*pr,2)}, {v(V_X+4,2)}")
            for pr in range(6): A(f"v_pk_fma_f32 {v(o+2*pr,2)}, {v(r_+2*pr,2)}, {v(V_X+6,2)}, {v(o+2*pr,2)}")
            pk = V_P if j == 0 else T.V_K
            for pr in range(6): A(f"v_cvt_pk_bf16_f32 v{pk+pr}, v{o+2*pr}, v{o+2*pr+1}")
            A(f"""
            s_add_u32 s{T1}, s{T.TT0}, {q}
            s_mul_i32 s{T1}, s{T1}, 40960
            buffer_store_dwordx2 {v(pk,2)}, v{T.V_AO}, s[{T.O}:{T.O+3}], s{T1} offen{SC}
            buffer_store_dwordx2 {v(pk+2,2)}, v{T.V_AO+1}, s[{T.O}:{T.O+3}], s{T1} offen{SC}
            s_mov_b64 exec, s[{T.LO}:{T.LO+1}]
            buffer_store_dwordx2 {v(pk+4,2)}, v{T.V_AO+2}, s[{T.O}:{T.O+3}], s{T1} offen{SC}
            s_mov_b64 exec, -1
            """)
        A(f"s_branch {FIN}")
    A.label(FIN)
    stamp(A, 5)
    A("s_waitcnt vmcnt(0)")
    A("s_barrier")
    notify(A)
    stamp(A, 6)
    stamp_phase(A)
    A(f"s_branch {L_NEXT}")

class N:
    X=8; Wd=12; R=16; OUT=20; ST=24
    TB=29; CB=30; FINAL=31; XOFF=32; WOFF=33; FREE=34; CUR=35; CNT=36; T0=37; T1=38; T2=39; WT=40; WK=41
    XM0=43; WM0=44; NK=45; CURW=48; NST=55; FREEX=56; T3=57; SIGX=58; SIGW=59; XWR=60; WWR=61; SIG0=62
    V_XD=4; V_WR2=5; V_XR=8; V_WR=9; V_TMP=10; V_FR=40; V_ACC=104; V_E=152
def n_frW(par, j, b): return N.V_FR + 32*par + 16*j + 4*b
def n_frX(par, j): return N.V_FR + 32*par + 16*j + 12
def n_acc(b): return N.V_ACC + 16*b
def n_reads(par):
    L = []
    for j in range(2):
        L.append(f"ds_read_b128 {v(n_frX(par,j),4)}, v{N.V_XR} offset:{j*2048}")
        for b in range(2): L.append(f"ds_read_b128 {v(n_frW(par,j,b),4)}, v{N.V_WR} offset:{j*5120 + b*1024}")
        L.append(f"ds_read_b128 {v(n_frW(par,j,2),4)}, v{N.V_WR2} offset:{j*5120}")
    return L
def n_mfmas(par):
    return [f"v_mfma_f32_32x32x16_bf16 {v(n_acc(b),16)}, {v(n_frW(par,j,b),4)}, {v(n_frX(par,j),4)}, {v(n_acc(b),16)}" for j in range(2) for b in range(3)]
def n_stage(A, par, last=False):
    M = n_mfmas(par)
    A("s_waitcnt lgkmcnt(0)")
    if last:
        for m in M: A(m)
        return
    ring_adv(A, N.CUR, N.T1, NX_SLOT, NX_N, [N.V_XR]); ring_adv(A, N.CURW, N.T2, NW_SLOT, NW_N, [N.V_WR, N.V_WR2])
    A(M[0]); A("s_barrier")
    R = n_reads(par ^ 1); k = 0
    for m in M[1:]:
        for _ in range(2):
            if k < len(R): A(R[k]); k += 1
        A(m)
    while k < len(R): A(R[k]); k += 1

def n_params(A, ffb):
    narrow_coords(A, N.TB, N.CB, N.T0, N.T1, N.T2)
    A(f"s_mov_b32 s{N.NST}, {27 if ffb else 10}"); A(f"s_mov_b32 s{N.NK}, {108 if ffb else 40}")

def c_narrow(A, L_TO_FA, L_TO_QKV, L_END):
    V_TMP=N.V_TMP; V_E=N.V_E; T0=N.T0; T1=N.T1; T2=N.T2; T3=N.T3
    sync_narrow(A)
    A(f"""
    s_load_dwordx2 s[46:47], s[0:1], {KA_OUT}
    s_and_b32 s{N.WT}, s{S_WAVE}, 1
    s_lshr_b32 s{N.WK}, s{S_WAVE}, 1
    s_mov_b32 s{S_K8}, 8192
    s_mov_b32 s{S_K10}, 10240
    s_mov_b32 s{N.CUR}, 0
    s_mov_b32 s{N.CURW}, 0
    s_cmp_eq_u32 s{N.NST}, 27
    s_cselect_b32 s{T0}, 2, 1
    s_cselect_b32 s{T2}, s{S_L}, 0
    s_mov_b32 s{N.FINAL}, s{T2}
    s_lshl_b32 s{T1}, s{S_L}, 1
    s_add_u32 s{T0}, s{T0}, s{T1}
    s_lshl_b32 s{T3}, s{T0}, 18
    s_add_u32 s{T3}, s{T3}, {hex(ST[0])}
    s_mul_i32 s{T0}, s{T0}, {XSZ}
    """)
    srd_reg(A, N.ST, T3, STSZ)
    A(f"""
    s_waitcnt lgkmcnt(0)
    s_cmp_eq_u32 s{N.FINAL}, 1
    s_cselect_b32 s{N.OUT}, s46, s{S_WS}
    s_cselect_b32 s{N.OUT+1}, s47, s{S_WS+1}
    s_cselect_b32 s{T0}, 0, s{T0}
    s_add_u32 s{N.OUT}, s{N.OUT}, s{T0}
    s_addc_u32 s{N.OUT+1}, s{N.OUT+1}, 0
    s_mov_b32 s{N.OUT+2}, {XSZ}
    s_mov_b32 s{N.OUT+3}, 0x20000
    v_lshlrev_b32 v{N.V_XD}, 4, v{V_LANE}
    s_lshl_b32 s{T0}, s{N.WT}, 12
    s_lshl_b32 s{T1}, s{N.WK}, 10
    s_add_u32 s{T0}, s{T0}, s{T1}
    v_add_u32 v{N.V_XR}, s{T0}, v{N.V_XD}
    s_mul_i32 s{T0}, s{N.WK}, 2560
    s_add_u32 s{T0}, s{T0}, {NW_BASE}
    v_add_u32 v{N.V_WR}, s{T0}, v{N.V_XD}
    v_and_b32 v{V_TMP}, 15, v{V_LANE}
    v_lshlrev_b32 v{V_TMP}, 4, v{V_TMP}
    v_lshl_add_u32 v{V_TMP}, v{V_H}, 8, v{V_TMP}
    v_add_u32 v{V_TMP}, 2048, v{V_TMP}
    v_add_u32 v{N.V_WR2}, s{T0}, v{V_TMP}
    """)
    for r in range(48): A(f"v_mov_b32 v{N.V_ACC+r}, 0")
    A(f"""
    s_lshl_b32 s{T0}, s{N.TB}, 1
    s_add_u32 s{T0}, s{T0}, s{N.WT}
    s_mul_i32 s{T0}, s{T0}, 40
    s_mul_i32 s{T1}, s{N.CB}, 5
    s_add_u32 s{T0}, s{T0}, s{T1}
    s_mul_i32 s{T1}, s{N.WK}, 3
    s_add_u32 s{T0}, s{T0}, s{T1}
    s_lshl_b32 s{T3}, s{T0}, 10
    s_sub_u32 s{N.CNT}, s{N.NST}, 1
    """)
    stamp(A, 1)
    poll(A)
    A("s_barrier")
    stamp(A, 2)
    NR = "L_cn_nores"
    A(f"s_cmp_eq_u32 s{N.NST}, 10"); A(f"s_cselect_b32 s{T0}, s{S_L}, 1"); A(f"s_cmp_lg_u32 s{T0}, 0"); A(f"s_cbranch_scc1 {NR}")
    srd_const(A, N.R, XF[0], XSZ)
    for k in range(3):
        A(f"buffer_load_dwordx4 {v(V_RESP+4*k,4)}, v{N.V_XD}, s[{N.R}:{N.R+3}], s{T3} offen{off(1024*k)}")
    A.label(NR)
    A("s_barrier")
    stamp(A, 3)
    for r in n_reads(0): A(r)
    L = "L_cn_loop"; LODD = "L_cn_odd"; LDONE = "L_cn_loopdone"
    A(f"s_lshr_b32 s{N.CNT}, s{N.CNT}, 1")
    A(f".p2align {ALIGN or 4}"); A.label(L)
    n_stage(A, 0); n_stage(A, 1)
    A(f"s_sub_u32 s{N.CNT}, s{N.CNT}, 1"); A(f"s_cmp_lg_u32 s{N.CNT}, 0"); A(f"s_cbranch_scc1 {L}")
    A(f"s_cmp_eq_u32 s{N.NST}, 27"); A(f"s_cbranch_scc1 {LODD}")
    n_stage(A, 0); n_stage(A, 1, last=True)
    A(f"s_branch {LDONE}")
    A.label(LODD)
    n_stage(A, 0, last=True)
    A.label(LDONE)
    stamp(A, 4)
    A(f"""
    s_mul_i32 s{T0}, s{N.WT}, 4096
    s_mul_i32 s{T1}, s{N.WT}, 6144
    s_add_u32 s{T0}, s{T0}, {N_XCH}
    s_add_u32 s{T1}, s{T1}, {N_XCH + 8192}
    s_cmp_eq_u32 s{N.WK}, 0
    s_cselect_b32 s{T2}, s{T0}, s{T1}
    s_cselect_b32 s{T1}, s{T1}, s{T0}
    v_add_u32 v{V_TMP}, s{T2}, v{N.V_XD}
    v_add_u32 v{V_TMP+1}, s{T1}, v{N.V_XD}
    s_lshl_b32 s{T0}, s{N.TB}, 1
    s_add_u32 s{T0}, s{T0}, s{N.WT}
    """)
    def areg(k): return n_acc(k >> 1) + 8*(k & 1)
    W1 = "L_cn_wk1"; FIN = "L_cn_fin"
    A(f"s_cmp_eq_u32 s{N.WK}, 0"); A(f"s_cbranch_scc0 {W1}")
    for wk in range(2):
        if wk == 1: A.label(W1)
        keep = (0, 1, 2) if wk == 0 else (3, 4)
        send = (3, 4) if wk == 0 else (0, 1, 2)
        for j, k in enumerate(send):
            A(f"ds_write_b128 v{V_TMP}, {v(areg(k),4)} offset:{2048*j}")
            A(f"ds_write_b128 v{V_TMP}, {v(areg(k)+4,4)} offset:{2048*j+1024}")
        A("s_waitcnt lgkmcnt(0)"); A("s_barrier")
        for j, k in enumerate(keep):
            A(f"ds_read_b128 {v(V_E+8*j,4)}, v{V_TMP+1} offset:{2048*j}")
            A(f"ds_read_b128 {v(V_E+8*j+4,4)}, v{V_TMP+1} offset:{2048*j+1024}")
        A("s_waitcnt vmcnt(0) lgkmcnt(0)")
        for j, k in enumerate(keep):
            a_ = areg(k); p_ = V_E + 8*j; r_ = V_RESP + 4*j
            for pr in range(4): A(f"v_pk_add_f32 {v(a_+2*pr,2)}, {v(a_+2*pr,2)}, {v(p_+2*pr,2)}")
            for pr in range(4):
                A(f"v_lshlrev_b32 v{p_+2*pr}, 16, v{r_+pr}"); A(f"v_and_b32 v{p_+2*pr+1}, 0xffff0000, v{r_+pr}")
            for pr in range(4): A(f"v_pk_add_f32 {v(a_+2*pr,2)}, {v(a_+2*pr,2)}, {v(p_+2*pr,2)}")
            for pr in range(4): A(f"v_cvt_pk_bf16_f32 v{r_+pr}, v{a_+2*pr}, v{a_+2*pr+1}")
        OUTF = f"L_cn_rowmajor_{wk}"
        A(f"s_cmp_eq_u32 s{N.FINAL}, 1"); A(f"s_cbranch_scc1 {OUTF}")
        for j, k in enumerate(keep):
            A(f"buffer_store_dwordx4 {v(V_RESP+4*j,4)}, v{N.V_XD}, s[{N.OUT}:{N.OUT+3}], s{T3} offen{off(1024*j)}{SC}")
        SP = V_E + 24; SQ = V_E + 26
        first = True
        for j, k in enumerate(keep):
            a_ = areg(k)
            for pr in range(4):
                if first:
                    A(f"v_pk_mul_f32 {v(SQ,2)}, {v(a_,2)}, {v(a_,2)}"); A(f"v_pk_add_f32 {v(SP,2)}, {v(a_,2)}, {v(a_+2,2)}")
                    first = False; skip_add = True
                    continue
                A(f"v_pk_fma_f32 {v(SQ,2)}, {v(a_+2*pr,2)}, {v(a_+2*pr,2)}, {v(SQ,2)}")
                if not (j == 0 and pr == 1): A(f"v_pk_add_f32 {v(SP,2)}, {v(SP,2)}, {v(a_+2*pr,2)}")
        A(f"v_add_f32 v{V_TMP+2}, v{SP}, v{SP+1}"); A(f"v_add_f32 v{V_TMP+3}, v{SQ}, v{SQ+1}")
        halfsum(A, V_TMP+2, V_TMP+4); halfsum(A, V_TMP+3, V_TMP+5)
        A(f"""
        s_lshl_b32 s{T0}, s{T0}, 12
        s_lshl_b32 s{T2}, s{N.CB}, 9
        s_add_u32 s{T0}, s{T0}, s{T2}
        s_add_u32 s{T0}, s{T0}, {8*wk}
        v_lshlrev_b32 v{V_TMP+4}, 4, v{V_T}
        buffer_store_dwordx2 {v(V_TMP+2,2)}, v{V_TMP+4}, s[{N.ST}:{N.ST+3}], s{T0} offen{SC}
        s_branch {FIN}
        """)
        A.label(OUTF)
        A(f"""
        s_lshl_b32 s{T0}, s{T0}, 5
        v_add_u32 v{V_TMP+4}, s{T0}, v{V_T}
        v_mul_u32_u24 v{V_TMP+4}, 1280, v{V_TMP+4}
        v_lshlrev_b32 v{V_TMP+5}, 4, v{V_H}
        v_add_u32 v{V_TMP+4}, v{V_TMP+4}, v{V_TMP+5}
        s_mul_i32 s{T2}, s{N.CB}, 160
        """)
        for j, k in enumerate(keep):
            r_ = V_RESP + 4*j
            A(f"v_permlane32_swap_b32 v{r_}, v{r_+2}"); A(f"v_permlane32_swap_b32 v{r_+1}, v{r_+3}")
        for j, k in enumerate(keep):
            A(f"buffer_store_dwordx4 {v(V_RESP+4*j,4)}, v{V_TMP+4}, s[{N.OUT}:{N.OUT+3}], s{T2} offen{off(32*k)}{SC if EXP.get('outsc') else ''}")
        stamp(A, 5); stamp(A, 6); stamp_phase(A)
        A(f"s_branch {L_END}")
    A.label(FIN)
    stamp(A, 5)
    A("s_waitcnt vmcnt(0)")
    A("s_barrier")
    notify(A)
    stamp(A, 6)
    stamp_phase(A)
    A(f"s_cmp_eq_u32 s{N.NST}, 10"); A(f"s_cbranch_scc1 {L_TO_FA}")
    A(f"s_add_u32 s{S_L}, s{S_L}, 1")
    A(f"s_branch {L_TO_QKV}")

def ln_setup_w(A):
    T0=N.T0; T1=N.T1; T2=N.T2
    A(f"""
    v_lshlrev_b32 v{N.V_XD}, 4, v{V_LANE}
    s_mov_b32 s{T0}, {hex(WOP)}
    s_mov_b32 s{T1}, {WOPSZ}
    s_cmp_eq_u32 s{N.NST}, 27
    s_cselect_b32 s{T0}, {hex(W2P)}, s{T0}
    s_cselect_b32 s{T1}, {W2PSZ}, s{T1}
    """)
    srd_reg(A, N.Wd, T0, f"s{T1}")
    A(f"""
    s_mul_i32 s{T0}, s{S_LW}, 3072
    s_cmp_eq_u32 s{S_LW}, 3
    s_cselect_b32 s{T0}, 8192, s{T0}
    s_add_u32 s{N.WM0}, s{T0}, {NW_BASE}
    s_lshl_b32 s{T1}, s{N.NK}, 2
    s_mul_i32 s{T1}, s{T1}, 640
    s_mul_i32 s{T1}, s{T1}, s{N.CB}
    s_add_u32 s{N.WOFF}, s{T1}, s{T0}
    s_mov_b32 s{N.FREE}, 0
    s_mov_b32 s{N.FREEX}, 0
    """)
    if NROT:
        A(f"""
        s_lshr_b32 s{N.SIG0}, s{S_WG}, 6
        s_mul_i32 s{N.SIG0}, s{N.SIG0}, s{N.NST}
        s_lshr_b32 s{N.SIG0}, s{N.SIG0}, 2
        s_mov_b32 s{N.SIGW}, s{N.SIG0}
        s_mov_b32 s{N.SIGX}, s{N.SIG0}
        s_mul_i32 s{T1}, s{N.SIG0}, 10240
        s_add_u32 s{N.WOFF}, s{N.WOFF}, s{T1}
        s_mul_i32 s{N.WWR}, s{N.NST}, 10240
        s_lshl_b32 s{N.XWR}, s{N.NST}, 12
        """)
    A(f"""
    s_and_b32 s{N.WT}, s{S_LW}, 1
    s_lshr_b32 s{N.WK}, s{S_LW}, 1
    s_lshl_b32 s{N.XM0}, s{N.WT}, 12
    s_lshl_b32 s{T1}, s{N.WK}, 11
    s_add_u32 s{N.XM0}, s{N.XM0}, s{T1}
    """)
def ln_setup_x(A):
    T0=N.T0; T1=N.T1; T2=N.T2
    A(f"""
    s_mov_b32 s{T0}, {hex(OF)}
    s_mov_b32 s{T1}, {XSZ}
    s_cmp_eq_u32 s{N.NST}, 27
    s_cselect_b32 s{T0}, {hex(HF)}, s{T0}
    s_cselect_b32 s{T1}, {HSZ}, s{T1}
    s_mul_i32 s{T2}, s{S_L}, {hex(LSTRIDE)}
    s_add_u32 s{T0}, s{T0}, s{T2}
    """)
    srd_reg(A, N.X, T0, f"s{T1}")
    A(f"""
    s_lshl_b32 s{T0}, s{N.TB}, 1
    s_add_u32 s{T0}, s{T0}, s{N.WT}
    s_mul_i32 s{T0}, s{T0}, s{N.NK}
    s_lshl_b32 s{T1}, s{N.WK}, 1
    s_add_u32 s{T0}, s{T0}, s{T1}
    s_lshl_b32 s{N.XOFF}, s{T0}, 10
    """)
    if NROT:
        A(f"s_lshl_b32 s{T1}, s{N.SIG0}, 12"); A(f"s_add_u32 s{N.XOFF}, s{N.XOFF}, s{T1}")
def ln_issue_x(A):
    A(f"s_add_u32 m0, s{N.FREEX}, s{N.XM0}")
    slot_wrap(A, N.FREEX, NX_SLOT, NX_N)
    for k in range(2): A(f"buffer_load_dwordx4 v{N.V_XD}, s[{N.X}:{N.X+3}], s{N.XOFF} offen{off(1024*k)} lds")
    A(f"s_add_u32 s{N.XOFF}, s{N.XOFF}, 4096")
    if NROT: rot_step(A, N.SIGX, N.XOFF, N.XWR)
def rot_step(A, sig, offreg, wrap):
    A(f"s_add_u32 s{sig}, s{sig}, 1"); A(f"s_cmp_eq_u32 s{sig}, s{N.NST}")
    A(f"s_cselect_b32 s{N.T2}, s{wrap}, 0"); A(f"s_cselect_b32 s{sig}, 0, s{sig}"); A(f"s_sub_u32 s{offreg}, s{offreg}, s{N.T2}")
def ln_make_issue_w(nw):
    def f(A):
        A(f"s_add_u32 m0, s{N.FREE}, s{N.WM0}")
        slot_wrap(A, N.FREE, NW_SLOT, NW_N)
        for k in range(nw): A(f"buffer_load_dwordx4 v{N.V_XD}, s[{N.Wd}:{N.Wd+3}], s{N.WOFF} offen{off(1024*k)} lds")
        A(f"s_add_u32 s{N.WOFF}, s{N.WOFF}, 10240")
        if NROT: rot_step(A, N.SIGW, N.WOFF, N.WWR)
    return f
def ln_prefetch_w(A, tag, nstage):
    for nw, cond in ((3, 0), (2, 1)):
        L = f"L_lnpf_{tag}_{nw}"; SK = f"L_lnpfs_{tag}_{nw}"
        A(f"s_cmp_lt_u32 s{S_LW}, 2"); A(f"s_cbranch_scc{cond} {SK}")
        if nstage == 0:
            A.label(SK); continue
        A(f"s_mov_b32 s{N.CNT}, {nstage}")
        A.label(L)
        ln_make_issue_w(nw)(A)
        A(f"s_sub_u32 s{N.CNT}, s{N.CNT}, 1"); A(f"s_cmp_lg_u32 s{N.CNT}, 0"); A(f"s_cbranch_scc1 {L}")
        A.label(SK)

DBGT = False
def dbgt(A, slot_sreg=None):
    if not DBGT: return
    L = A.newlabel("dbgt")
    A(f"s_cmp_lg_u32 s{S_WG}, 9"); A(f"s_cbranch_scc1 {L}")
    A(f"s_cmp_lg_u32 s{S_WAVE}, 0"); A(f"s_cbranch_scc1 {L}")
    A("s_memrealtime s[80:81]"); A(f"s_load_dwordx2 s[82:83], s[0:1], {KA_DBG}"); A("s_waitcnt lgkmcnt(0)")
    A("s_mov_b32 s84, s82"); A("s_mov_b32 s85, s83"); A("s_mov_b32 s86, 256"); A("s_mov_b32 s87, 0x20000")
    A("s_sub_u32 s80, s80, s88"); A("v_mov_b32 v250, s80"); A("s_lshl_b32 s90, s91, 2"); A("s_add_u32 s90, s90, 8"); A("v_mov_b32 v251, s90")
    A("buffer_store_dword v250, v251, s[84:87], 0 offen sc0 sc1"); A("s_add_u32 s91, s91, 1")
    A.label(L)
def stamp(A, i):
    if asmlib.STAMP: A(f"s_memtime s[{66+2*i}:{67+2*i}]")
def stamp_phase(A):
    dbgt(A)
    if not asmlib.STAMP: return
    A("s_memrealtime s[80:81]")
    A("s_waitcnt lgkmcnt(0)")
    A(f"s_add_u32 s84, s{S_WS}, 0x4000000"); A(f"s_addc_u32 s85, s{S_WS+1}, 0"); A("s_mov_b32 s86, 0x400000"); A("s_mov_b32 s87, 0x20000")
    A(f"s_lshl_b32 s90, s91, 17"); A(f"v_mov_b32 v250, s{S_WG}"); A("v_lshlrev_b32 v250, 9, v250")
    A(f"v_mov_b32 v251, s{S_WAVE}"); A("v_lshlrev_b32 v251, 6, v251"); A("v_add_u32 v250, v250, v251")
    for i in range(7):
        A(f"v_mov_b32 v251, s{66+2*i}"); A(f"buffer_store_dword v251, v250, s[84:87], s90 offen offset:{4*i}")
    A("v_mov_b32 v251, s80"); A("buffer_store_dword v251, v250, s[84:87], s90 offen offset:28")
    A("v_mov_b32 v251, s88"); A("buffer_store_dword v251, v250, s[84:87], s90 offen offset:32")
    A("v_mov_b32 v251, s64"); A("buffer_store_dword v251, v250, s[84:87], s90 offen offset:36")
    A("s_add_u32 s91, s91, 1")

def gen_mega(name):
    A = Asm()
    END = "L_end"
    A(f".globl {name}"); A(".p2align 8"); A(f".type {name},@function"); A.label(name)
    A(f"""
    s_load_dwordx2 s[{S_WS}:{S_WS+1}], s[0:1], {KA_WS}
    {'s_memrealtime s[88:89]' if (asmlib.STAMP or DBGT) else ''}
    s_cmp_ge_u32 s{S_WG}, 256
    s_cbranch_scc1 {END}
    v_lshrrev_b32 v4, 6, v0
    v_and_b32 v{V_LANE}, 63, v0
    v_readfirstlane_b32 s{S_WAVE}, v4
    v_lshrrev_b32 v{V_H}, 5, v{V_LANE}
    v_and_b32 v{V_T}, 31, v{V_LANE}
    s_mov_b32 s{S_L}, 0
    s_mov_b32 s{S_OOB}, {hex(OOB)}
    s_mov_b32 s91, 0
    s_and_b32 s{S_LW}, s{S_WAVE}, 3
    s_waitcnt lgkmcnt(0)
    """)
    srd_const(A, S_FL, FLAGS, FLAGSZ)
    for r in (VP_OFF, VP_EXP, VP_OFF2, VP_EXP2, VP_MB): A(f"v_mov_b32 v{r}, s{S_OOB}")
    A(f"s_mov_b32 s{S_POFF}, 0"); A(f"s_mov_b32 s{S_NONCE}, 0")
    A(f"s_cmp_ge_u32 s{S_WAVE}, 4"); A("s_cbranch_scc1 L_loader")
    if EXP.get('cprio'): A("s_setprio 1")
    c_prep(A)
    if asmlib.STAMP: A("s_memrealtime s[64:65]")
    dbgt(A)
    A.label("C_QKV")
    stamp(A, 0)
    wide_coords(A, False, W.TB, W.CB, W.T0, W.T1, W.T2, "C_ATT")
    w_params(A, False)
    A("s_branch C_WIDE")
    A.label("C_FA")
    stamp(A, 0)
    wide_coords(A, True, W.TB, W.CB, W.T0, W.T1, W.T2, "C_FB")
    w_params(A, True)
    A.label("C_WIDE")
    c_wide(A, "C_FB", "C_ATT")
    A.label("C_ATT")
    stamp(A, 0)
    c_att(A, "C_O")
    A.label("C_O")
    stamp(A, 0)
    n_params(A, False)
    A("s_branch C_NARROW")
    A.label("C_FB")
    stamp(A, 0)
    n_params(A, True)
    A.label("C_NARROW")
    c_narrow(A, "C_FA", "C_QKV", END)
    A(".p2align 6")
    A.label("L_loader")
    if EXP.get('lprio'): A("s_setprio 1")
    A(f"s_load_dwordx2 s[50:51], s[0:1], {KA_WQKV}"); A(f"s_load_dwordx2 s[52:53], s[0:1], {KA_DBG}")
    A("s_waitcnt lgkmcnt(0)")
    srd_ptr(A, W.Wd, 50, 640*3840); srd_const(A, W.X, XF[0], XSZ)
    for r in range(4, 9): A(f"v_mov_b32 v{r}, 0")
    A(f"s_or_b32 s92, s{S_WG}, s{S_LW}"); A("s_cmp_lg_u32 s92, 0"); A("s_cbranch_scc1 L_nonce_made")
    srd_ptr(A, 56, 52, 256)
    A(f"""
    v_mov_b32 v16, {NONCE-FLAGS}
    buffer_load_dword v14, v16, s[{S_FL}:{S_FL+3}], 0 offen sc0 sc1
    v_lshlrev_b32 v17, 7, v{V_LANE}
    s_waitcnt vmcnt(0)
    v_add_u32 v14, 1, v14
    v_mov_b32 v15, 1
    s_mov_b64 exec, 3
    buffer_store_dwordx2 v[14:15], v17, s[56:59], 0 offen sc0 sc1
    s_mov_b64 exec, 1
    buffer_store_dword v14, v16, s[{S_FL}:{S_FL+3}], 0 offen sc0 sc1
    s_mov_b64 exec, -1
    """)
    A.label("L_nonce_made")
    if CODE_PF:
        LP = A.newlabel("cpf"); LS_ = A.newlabel("cpfs")
        A(f"s_cmp_eq_u32 s{S_LW}, 0"); A(f"s_cbranch_scc1 {LS_}")
        A("s_getpc_b64 s[60:61]")
        A.label(LP)
        A(f"s_sub_u32 s60, s60, {LP}-{name}"); A("s_subb_u32 s61, s61, 0")
        A(f"s_mov_b32 s62, L_code_end-{name}"); A("s_mov_b32 s63, 0x20000")
        A(f"s_lshr_b32 s92, s{S_WG}, 3"); A("s_mul_i32 s92, s92, 3"); A(f"s_add_u32 s92, s92, s{S_LW}"); A("s_sub_u32 s92, s92, 1"); A("s_lshl_b32 s92, s92, 10")
        A(f"v_lshlrev_b32 v24, 4, v{V_LANE}")
        A("buffer_load_dwordx4 v[100:103], v24, s[60:63], s92 offen")
        A.label(LS_)
    l_prep(A)
    for r in range(4, 9): A(f"v_mov_b32 v{r}, 0")
    A(f"s_mov_b32 s{W.MODE}, 4")
    wide_coords(A, False, W.TB, W.CB, W.T0, W.T1, W.T2, "L_ATT")
    w_params(A, False)
    lw_setup_w(A, 50)
    lw_prefetch_w(A, WW_N)
    A.label("L_WIDE")
    A(f"""
    s_cmp_eq_u32 s{W.MODE}, 3
    s_cselect_b32 s{W.T0}, 1, 0
    s_lshl_b32 s{W.T1}, s{S_L}, 1
    s_add_u32 s{W.T0}, s{W.T0}, s{W.T1}
    s_mul_i32 s{W.T0}, s{W.T0}, {XSZ}
    """)
    srd_reg(A, W.X, W.T0, XSZ)
    A(f"""
    s_lshl_b32 s{W.T0}, s{W.TB}, 2
    s_add_u32 s{W.T0}, s{W.T0}, s{S_LW}
    s_mul_i32 s{W.XOFF}, s{W.T0}, 40960
    """)
    lw_stats_setup(A)
    A("s_barrier")
    if asmlib.STAMP: A("s_memtime s[66:67]")
    emit_sched(A, sched2(W.NST, WX_N, WW_N, WW_N), 4, 4, lw_issue_x, lw_issue_w, W.CNT, "lw", loads={STL: (lw_stats_load, 8)}, post={STP: lw_stats_post})
    if not EXP['nobar']: A("s_barrier")
    if asmlib.STAMP:
        A("s_waitcnt lgkmcnt(0)")
        A(f"s_add_u32 s88, s{S_WS}, 0x4400000"); A(f"s_addc_u32 s89, s{S_WS+1}, 0"); A("s_mov_b32 s90, 0x400000"); A("s_mov_b32 s91, 0x20000")
        A(f"s_cmp_eq_u32 s{W.MODE}, 3"); A("s_cselect_b32 s92, 1, 0"); A(f"s_lshl_b32 s93, s{S_L}, 1"); A("s_add_u32 s92, s92, s93"); A("s_lshl_b32 s92, s92, 17")
        A(f"v_mov_b32 v30, s{S_WG}"); A("v_lshlrev_b32 v30, 9, v30"); A(f"v_mov_b32 v31, s{S_WAVE}"); A("v_lshlrev_b32 v31, 6, v31"); A("v_add_u32 v30, v30, v31")
        for i in range(9):
            A(f"v_mov_b32 v31, s{66+2*i}"); A(f"buffer_store_dword v31, v30, s[88:91], s92 offen offset:{4*i}")
    A(f"s_cmp_eq_u32 s{W.MODE}, 3"); A("s_cbranch_scc1 L_wide_fa_end")
    A("s_barrier")
    A("s_branch L_ATT")
    A.label("L_wide_fa_end")
    n_params(A, True); ln_setup_w(A); ln_prefetch_w(A, "fb", PFN)
    A("s_barrier")
    ln_prefetch_w(A, "fbb", NW_N - PFN)
    A("s_branch L_NARROW")
    A.label("L_ATT")
    A("s_barrier")
    n_params(A, False); ln_setup_w(A)
    A("s_barrier")
    ln_prefetch_w(A, "o", PFN)
    A("s_barrier")
    ln_prefetch_w(A, "ob", 10 - PFN)
    A.label("L_NARROW")
    ln_setup_x(A)
    A("s_barrier")
    for nw in (3, 2):
        for nst in (10, 27):
            nxt = f"L_ln_next_{nw}_{nst}"
            A(f"s_cmp_lt_u32 s{S_LW}, 2"); A(f"s_cbranch_scc{0 if nw == 3 else 1} {nxt}")
            A(f"s_cmp_eq_u32 s{N.NST}, {nst}"); A(f"s_cbranch_scc0 {nxt}")
            emit_sched(A, sched2(nst, NX_N, NW_N, min(nst, NW_N), first=NFIRST), 2, nw, ln_issue_x, ln_make_issue_w(nw), N.CNT, f"ln{nw}_{nst}")
            A("s_branch L_ln_done")
            A.label(nxt)
    A.label("L_ln_done")
    A("s_barrier")
    A(f"s_cmp_eq_u32 s{N.NST}, 27"); A("s_cbranch_scc1 L_after_fb")
    wide_coords(A, True, W.TB, W.CB, W.T0, W.T1, W.T2, "L_o_fa_idle")
    w_params(A, True)
    A(f"s_load_dwordx2 s[50:51], s[0:1], {KA_W1}"); A("s_waitcnt lgkmcnt(0)")
    lw_setup_w(A, 50); lw_prefetch_w(A, PFW)
    A("s_barrier")
    lw_prefetch_w(A, WW_N - PFW)
    A("s_branch L_WIDE")
    A.label("L_o_fa_idle")
    A("s_barrier")
    n_params(A, True); ln_setup_w(A); ln_prefetch_w(A, "fb2", NW_N)
    A("s_branch L_NARROW")
    A.label("L_after_fb")
    A(f"s_cmp_eq_u32 s{S_L}, 1"); A(f"s_cbranch_scc1 {END}")
    A(f"s_mov_b32 s{S_L}, 1")
    wide_coords(A, False, W.TB, W.CB, W.T0, W.T1, W.T2, "L_fb_qkv_idle")
    w_params(A, False)
    A(f"s_load_dwordx2 s[50:51], s[0:1], {KA_WQKV}"); A("s_waitcnt lgkmcnt(0)")
    lw_setup_w(A, 50); lw_prefetch_w(A, PFW)
    A("s_barrier")
    lw_prefetch_w(A, WW_N - PFW)
    A("s_branch L_WIDE")
    A.label("L_fb_qkv_idle")
    A("s_barrier")
    A("s_branch L_ATT")
    A.label(END)
    A("s_endpgm")
    A.label("L_code_end")
    desc = f""".section .rodata,"a"
.p2align 6
.amdhsa_kernel {name}
  .amdhsa_next_free_vgpr 256
  .amdhsa_next_free_sgpr 102
  .amdhsa_accum_offset 256
  .amdhsa_group_segment_fixed_size 0
  .amdhsa_kernarg_size 72
  .amdhsa_user_sgpr_count 2
  .amdhsa_user_sgpr_kernarg_segment_ptr 1
  .amdhsa_system_sgpr_workgroup_id_x 1
  .amdhsa_float_denorm_mode_32 3
.end_amdhsa_kernel
.text
"""
    return A, desc

def build(path, name="interleave_layers__mha_block__dense_activation_silu__prompt_kernel"):
    hdr = open('interleave_layers__mha_block__dense_activation_silu__prompt.s.ref').read().split("; Override launch")[0]
    A, desc = gen_mega(name)
    lines, n = hazard_pass(A.lines)
    A.lines = lines
    doc = '''; ---------------------------------------------------------------------------------------------------------------
; Phases, in order: prep, then twice { QKV GEMM, attention, O-proj GEMM, FFN1 GEMM + SiLU, FFN2 GEMM }.
;    maximum.
; ---------------------------------------------------------------------------------------------------------------
'''
    out = hdr + f"; @launch grid=(256,1,1) block=(512,1,1) lds={LDS_BYTES}\n" + doc + '.amdgcn_target "amdgcn-amd-amdhsa--gfx950"\n.text\n' + A.text() + desc
    open(path, 'w').write(out)
    print(path, 'nops', n, 'lines', len(out.splitlines()), 'bytes', len(out))
if __name__ == "__main__":
    build('mega.s')
    asmlib.STAMP = True
    build('mega_stamp.s')
```
